```python
import torch

def _softmax(x, axis=-1):
    return torch.softmax(x, dim=axis)
def _gelu(x):
    return torch.nn.functional.gelu(x, approximate="tanh")
def _silu(x):
    return torch.nn.functional.silu(x)
def _sigmoid(x):
    return torch.sigmoid(x)
def _layernorm(x, axis=-1, eps=1e-5):
    m = x.mean(dim=axis, keepdim=True)
    v = x.var(dim=axis, keepdim=True, unbiased=False)
    return (x - m) / torch.sqrt(v + eps)
def _scatter_add(tgt, idx, src, axis=0):
    return tgt.clone().index_add_(axis, idx, src)
def _segment_sum(src, seg, n):
    out = torch.zeros((n,) + src.shape[1:], dtype=src.dtype)
    return out.index_add_(0, seg, src)
def _pad(x, pw):
    flat = tuple(v for pair in reversed(pw) for v in pair)
    return torch.nn.functional.pad(x, flat)

kernel_name = 'parallel_sum__linear_attn_block__dense_activation_mish__prompt'

def setup_inputs():

    _w = (lambda a: (lambda t: t.to(torch.bfloat16) if t.is_floating_point() else t)(torch.as_tensor(a)))
    def _A_setup():
        B, S, D = 1, 2048, 512
        return {
            "x": _w((lambda *s: torch.randn(*s, dtype=torch.bfloat16) * 0.05)(B, S, D)),
            "wqkv": _w((lambda *s: torch.randn(*s, dtype=torch.bfloat16) * 0.1)(D, 3 * D)),
            "wo": _w((lambda *s: torch.randn(*s, dtype=torch.bfloat16) * 0.05)(D, D)),
        }
    _A_in = _A_setup()

    def _B_setup():
        B, S, D, F = 1, 2048, 512, 1792
        return {
            "x": _w((lambda *s: torch.randn(*s, dtype=torch.bfloat16) * 0.05)(B, S, D)),
            "w1": _w((lambda *s: torch.randn(*s, dtype=torch.bfloat16) * 0.8)(D, F) * (D ** -0.5)),
            "b1": _w((lambda *s: torch.randn(*s, dtype=torch.bfloat16) * 0.4)(F)),
            "w2": _w((lambda *s: torch.randn(*s, dtype=torch.bfloat16) * 0.1)(F, D) * (F ** -0.5)),
        }
    _B_in = _B_setup()

    return {
        "A_x": _A_in["x"],
        "A_wqkv": _A_in["wqkv"],
        "A_wo": _A_in["wo"],
        "B_x": _B_in["x"],
        "B_w1": _B_in["w1"],
        "B_b1": _B_in["b1"],
        "B_w2": _B_in["w2"],
    }

def reference(A_x, A_wqkv, A_wo, B_x, B_w1, B_b1, B_w2):
    def _A_ref(x, wqkv, wo):
        B, S, D = x.shape
        H = 32; Dh = D // H
        qkv = (lambda x, *d: x.permute(*d))((x @ wqkv).reshape(B, S, 3, H, Dh), 2, 0, 3, 1, 4)
        q, k, v = qkv[0], qkv[1], qkv[2]
        phi = lambda t: torch.where(t > 0, t + 1, torch.exp(t)) + 1e-6
        pq, pk = phi(q), phi(k)
        kv = torch.einsum("bhsd,bhse->bhde", pk, v)
        z = torch.einsum("bhsd->bhd", pk)
        num = torch.einsum("bhqd,bhde->bhqe", pq, kv)
        den = torch.einsum("bhqd,bhd->bhq", pq, z)[..., None] + 1e-6
        o = num / den
        return (lambda x, *d: x.permute(*d))(o, 0, 2, 1, 3).reshape(B, S, D) @ wo

    def _B_ref(x, w1, b1, w2):
        h = torch.einsum("bsd,df->bsf", x, w1) + b1
        sp = torch.log1p(torch.exp(-torch.abs(h))) + torch.where(h > 0, h, torch.zeros_like(h))
        act = h * torch.tanh(sp)
        return torch.einsum("bsf,fd->bsd", act, w2)

    x = A_x
    xn = _layernorm(x, axis=-1)
    return x + _A_ref(xn, A_wqkv, A_wo) + _B_ref(xn, B_w1, B_b1, B_w2)
```

```python
import re

TRANS = ('v_exp_f32', 'v_log_f32', 'v_rcp_f32', 'v_rsq_f32', 'v_sqrt_f32', 'v_sin_f32', 'v_cos_f32', 'v_rcp_iflag_f32')

def regs_of(tok):
    tok = tok.strip()
    tok = tok.lstrip('-')
    m = re.fullmatch(r'abs\((.*)\)', tok) or re.fullmatch(r'\|(.*)\|', tok)
    if m: tok = m.group(1)
    m = re.fullmatch(r'([vsa])(\d+)', tok)
    if m: return [(m.group(1), int(m.group(2)))]
    m = re.fullmatch(r'([vsa])\[(\d+):(\d+)\]', tok)
    if m: return [(m.group(1), i) for i in range(int(m.group(2)), int(m.group(3)) + 1)]
    if tok == 'vcc': return [('s', 106), ('s', 107)]
    if tok == 'exec': return [('s', 126), ('s', 127)]
    if tok == 'm0': return [('s', 124)]
    return []

class Ins:
    def __init__(self, text):
        self.text = text
        t = text.split(';')[0].strip()
        self.label = None
        self.op = None
        self.w = set(); self.r = set()
        self.srcc = set(); self.srcab = set(); self.data = set()
        if t.endswith(':'):
            self.label = t[:-1]; return
        if not t or t.startswith('.'):
            return
        parts = t.split(None, 1)
        self.op = op = parts[0]
        rest = parts[1] if len(parts) > 1 else ''
        ops = []; cur = ''; d = 0
        for ch in rest:
            if ch == '[': d += 1
            if ch == ']': d -= 1
            if ch == ',' and d == 0: ops.append(cur); cur = ''
            else: cur += ch
        if cur.strip(): ops.append(cur)
        mods = ''
        if ops:
            last = ops[-1].strip().split(None, 1)
            ops[-1] = last[0]
            mods = last[1] if len(last) > 1 else ''
        self.ops = ops; self.mods = mods
        R = [regs_of(o) for o in ops]
        base = re.sub(r'_(e32|e64|dpp|sdwa)$', '', op)
        self.base = base
        self.is_mfma = op.startswith('v_mfma')
        self.is_valu = op.startswith('v_') and not self.is_mfma
        self.is_trans = base in TRANS
        self.is_dpp = op.endswith('_dpp') or 'row_' in mods or 'quad_perm' in mods
        self.is_vmem = op.startswith(('buffer_', 'global_'))
        self.is_ds = op.startswith('ds_')
        self.is_salu = op.startswith('s_')
        self.is_ldsdma = self.is_vmem and (' lds' in ' ' + mods or '_lds_' in op)
        self.is_perm = 'permlane' in op
        self.is_branch = op.startswith(('s_branch', 's_cbranch'))
        self.target = ops[0].strip() if self.is_branch else None
        if self.is_mfma:
            self.w |= set(R[0]); self.srcab = set(R[1]) | set(R[2]); self.srcc = set(R[3]); self.r = self.srcab | self.srcc
            self.passes = 8 if '32x32x16' in op else 4 if '16x16x32' in op else None
            assert self.passes
        elif self.is_valu:
            if self.is_perm:
                self.w |= set(R[0]) | set(R[1]); self.r |= set(R[0]) | set(R[1])
            elif base in ('v_add_co_u32', 'v_sub_co_u32', 'v_addc_co_u32'):
                self.w |= set(R[0]) | set(R[1])
                for x in R[2:]: self.r |= set(x)
            else:
                self.w |= set(R[0])
                for x in R[1:]: self.r |= set(x)
                if base in ('v_fmac_f32', 'v_dot2c_f32_bf16', 'v_writelane_b32') or self.is_dpp: self.r |= set(R[0])
                if base.startswith('v_cmpx'): self.w |= {('s', 126), ('s', 127)}
        elif self.is_ds:
            if op.startswith(('ds_read', 'ds_bpermute', 'ds_swizzle', 'ds_permute')):
                self.w |= set(R[0])
                for x in R[1:]: self.r |= set(x)
            else:
                for x in R: self.r |= set(x)
        elif self.is_vmem:
            if op in ('buffer_wbl2', 'buffer_inv'):
                pass
            elif self.is_ldsdma:
                for x in R: self.r |= set(x)
                self.r.add(('s', 124))
            elif '_load_' in op:
                self.w |= set(R[0])
                for x in R[1:]: self.r |= set(x)
                if 'd16' in op: self.r |= set(R[0])
            else:
                for x in R: self.r |= set(x)
                self.data = set(R[0]) if op.startswith('buffer_') else set(R[1])
                if not op.endswith(('x3', 'x4')): self.data = set()
        elif self.is_salu:
            if op.startswith(('s_cmp', 's_waitcnt', 's_nop', 's_barrier', 's_branch', 's_cbranch', 's_endpgm', 's_setprio', 's_sleep', 's_bitcmp')):
                for x in R: self.r |= set(x)
            else:
                if R: self.w |= set(R[0])
                for x in R[1:]: self.r |= set(x)
                if 'saveexec' in op: self.w |= {('s', 126), ('s', 127)}
        else:
            raise ValueError('unknown instruction: ' + text)

    def states(self):
        if self.op is None: return 0
        if self.op == 's_nop': return int(self.ops[0], 0) + 1
        return 1

def need(p, c):
    n = 0
    vw = {x for x in p.w if x[0] != 's'}
    sw = {x for x in p.w if x[0] == 's'}
    if p.is_valu:
        if c.is_mfma and vw & c.r: n = max(n, 2)
        if c.is_valu and c.is_dpp and vw & c.r: n = max(n, 2)
        if c.is_valu and c.is_perm and vw & c.r: n = max(n, 2)
        if c.is_valu and c.base in ('v_readfirstlane_b32', 'v_readlane_b32') and vw & c.r: n = max(n, 1)
        if p.is_trans and (c.is_valu or c.is_mfma or c.is_vmem or c.is_ds) and vw & c.r: n = max(n, 1)
        if sw:
            if c.is_vmem and sw & c.r: n = max(n, 5)
            if (c.is_valu) and sw & c.r: n = max(n, 4 if c.base in ('v_readlane_b32', 'v_writelane_b32') else 2)
            if c.is_valu and c.base == 'v_cndmask_b32' and len(c.ops) == 4 and sw & set(regs_of(c.ops[3])): n = max(n, 2)
            if c.is_salu and sw & c.r: n = max(n, 1)
            if ('s', 126) in sw and (c.is_mfma or c.is_valu): n = max(n, 5)
    if p.is_mfma:
        big = {4: 8, 8: 12}[p.passes]
        if c.is_mfma:
            if p.w & c.srcab: n = max(n, big)
            if p.w & c.srcc and not (p.w == c.srcc and p.passes == c.passes): n = max(n, {4: 6, 8: 10}[p.passes])
            if p.w & c.w and not (p.w == c.srcc and p.passes == c.passes): n = max(n, big)
        elif c.is_valu or c.is_vmem or c.is_ds:
            if p.w & (c.r | c.w): n = max(n, big)
            if p.srcc & c.w: n = max(n, {4: 3, 8: 7}[p.passes])
    if p.is_vmem and p.data and (c.is_valu or c.is_mfma) and p.data & c.w: n = max(n, 2)
    if p.is_vmem and p.data and (c.is_vmem or c.is_ds) and p.data & c.w: n = max(n, 1)
    if p.is_salu and ('s', 124) in p.w and c.is_vmem and c.is_ldsdma: n = max(n, 1)
    return n

MAXD = 12
def hazard_pass(lines):
    total = 0
    while True:
        ins = [Ins(l) for l in lines]
        labels = {i.label: k for k, i in enumerate(ins) if i.label}
        preds = {}
        for k, i in enumerate(ins):
            if i.op and i.is_branch: preds.setdefault(labels[i.target], []).append(k)
        def required(k):
            c = ins[k]; worst = 0
            stack = [(k - 1, 0)]; seen = set()
            while stack:
                j, d = stack.pop()
                while j >= 0 and d < MAXD:
                    if (j, d) in seen: break
                    seen.add((j, d))
                    p = ins[j]
                    if p.label:
                        for b in preds.get(j, []): stack.append((b, d))
                        q = j - 1
                        while q >= 0 and ins[q].op is None and not ins[q].label: q -= 1
                        if q >= 0 and ins[q].op in ('s_branch', 's_endpgm'): break
                        j -= 1; continue
                    if p.op is None: j -= 1; continue
                    worst = max(worst, need(p, c) - d)
                    d += p.states(); j -= 1
            return worst
        fix = None
        out = []
        changed = False
        for k, i in enumerate(ins):
            if i.op and not changed:
                r = required(k)
                if r > 0:
                    out.append('    s_nop %d    ; hazard pad' % (r - 1)); total += 1
                    changed = True; first = k
            out.append(lines[k])
        lines = out
        if not changed: return lines, total

def hazard_pass_fast(lines):
    ins = []
    out = []
    n = 0
    for l in lines:
        c = Ins(l)
        if c.op:
            d = 0; worst = 0
            for p in reversed(ins):
                if d >= MAXD: break
                if p.op is None: continue
                if p.op in ('s_branch', 's_endpgm'): break
                worst = max(worst, need(p, c) - d)
                d += p.states()
            if worst > 0:
                t = '    s_nop %d    ; hazard pad' % (worst - 1)
                out.append(t); ins.append(Ins(t)); n += 1
        out.append(l); ins.append(c)
    out, m = hazard_pass(out)
    return out, n + m

class Emit:
    def __init__(self):
        self.lines = []
        self.vm = 0
        self.lg = 0
    def __call__(self, s):
        for l in s.split('\n'):
            l = l.strip()
            if not l: continue
            if l.endswith(':'): self.lines.append(l); continue
            self.lines.append('    ' + l)
            op = l.split()[0]
            if op.startswith(('buffer_', 'global_')): self.vm += 1
            if op.startswith('ds_'): self.lg += 1
        return self
    def c(self, s): self.lines.append('    ; ' + s)
    def vtok(self): return self.vm
    def ltok(self): return self.lg
    def wait_vm(self, tok):
        n = self.vm - tok
        assert 0 <= n <= 63, n
        self('s_waitcnt vmcnt(%d)' % n)
    def wait_lg(self, tok):
        n = self.lg - tok
        assert 0 <= n, n
        self('s_waitcnt lgkmcnt(%d)' % min(n, 15))

def vr(a, n=1):
    return 'v%d' % a if n == 1 else 'v[%d:%d]' % (a, a + n - 1)
def sr(a, n=1):
    return 's%d' % a if n == 1 else 's[%d:%d]' % (a, a + n - 1)
```

```python
import sys
from asmlib import *

NAME = 'parallel_sum__linear_attn_block__dense_activation_mish__prompt'
OPT = dict(diag=0, rot=1, DA=24, barpos=3, pf=1)
for a in sys.argv[2:]:
    k, v = a.split('='); OPT[k] = int(v)
DIAG = OPT['diag']

WS_YF = 0x1000
WS_KVF = 0x30000
WS_KV = 0x40000
WS_TS = 0xE0000
WS_Y = 0x100000
WS_SIZE = WS_Y + 64 * 144 * 1024
SLOT = 45056
L_W = 16384; L_S = 40960
SCR = 147456
L_AUG = SCR
L_R = SCR + 2048
L_CS = SCR + 2560
L_KX = SCR + 4608
L_KF = SCR + 4608
L_KF = SCR + 12288 + 0
L_KX = SCR + 4096
L_CS = SCR + 2560
L_CSS = SCR + 12288
LDS_BYTES = 163840

sW, sRB, sG, sF, sROT, sRB2, sCB, sLI = 3, 4, 5, 6, 7, 8, 9, 10
pX, pWQKV, pWO, pW1, pB1, pW2, pOUT, pDBG, pWS = 16, 18, 20, 24, 26, 28, 30, 32, 34
SX, SWs, SW2, SWO, SWS, SOUT, SB1, SDBG = 36, 40, 44, 48, 52, 56, 60, 64
sNON = 68
sT = 70
sTS = 80

LOG2E = 0x3fb8aa3b
EPS6 = 0x358637bd
EPS5 = 0x3727c5ac

def srd(e, d, p, n):
    e(f's_mov_b32 s{d}, s{p}\ns_mov_b32 s{d+1}, s{p+1}\ns_mov_b32 s{d+2}, {n}\ns_mov_b32 s{d+3}, 0x20000')

def ts(e, k):
    if DIAG:
        e(f's_memrealtime s[{sTS+2*k}:{sTS+2*k+1}]\ns_waitcnt lgkmcnt(0)')

def ts_dump(e, nst, wave_off):
    if not DIAG: return
    e('v_mov_b32 v1, 0')
    for k in range(nst): e(f'v_writelane_b32 v1, s{sTS+2*k}, {k}')
    e(f's_lshl_b32 s{sT}, s2, 3\ns_add_u32 s{sT}, s{sT}, s{sW}\ns_add_u32 s{sT}, s{sT}, {wave_off}\ns_lshl_b32 s{sT}, s{sT}, 6\ns_add_u32 s{sT}, s{sT}, {WS_TS}')
    e('v_lshlrev_b32 v2, 2, v0\nv_cmp_gt_u32 vcc, 16, v0\ns_and_saveexec_b64 s[72:73], vcc')
    e(f'buffer_store_dword v1, v2, s[{SWS}:{SWS+3}], s{sT} offen\ns_mov_b64 exec, s[72:73]')

_lab = [0]
def lab(p):
    _lab[0] += 1
    return f'L_{p}_{_lab[0]}'

def poll(e, voff, tmp, soff='0'):
    L, D = lab('poll'), lab('pdone')
    e(f's_mov_b32 s{sT+9}, 200000')
    e(f'{L}:')
    e(f'buffer_load_dwordx2 v[{tmp}:{tmp+1}], v{voff}, s[{SWS}:{SWS+3}], {soff} offen sc1')
    e('s_waitcnt vmcnt(0)')
    e(f'v_cmp_eq_u64 vcc, s[{sNON}:{sNON+1}], v[{tmp}:{tmp+1}]')
    e('s_cmp_eq_u64 vcc, -1')
    e(f's_cbranch_scc1 {D}')
    e(f's_sub_u32 s{sT+9}, s{sT+9}, 1\ns_cmp_eq_u32 s{sT+9}, 0\ns_cbranch_scc1 {D}\ns_sleep 1\ns_branch {L}')
    e(f'{D}:')

def interleave(e, groups, fill):
    n = len(groups)
    if n == 0:
        for l in fill: e(l)
        return
    per = len(fill) / n
    done = 0
    for i, g in enumerate(groups):
        for l in g: e(l)
        upto = int(round(per * (i + 1)))
        for l in fill[done:upto]: e(l)
        done = upto

POS2U = list(range(24)) + [24, 25, 28, 26, 27, 29] + list(range(30, 36))

def helper(e, F):
    RS = 3584 if F else 3072
    vX, vWo, vS, vB, vA, vD, vAcc, vL16, vBuf = 2, 6, 8, 9, 12, 20, 36, 11, 112
    sXB, sWB, sHX, sHW, sHS, sSD, sB2 = 11, 12, 13, 14, 15, 78, 77
    e('v_lshrrev_b32 v40, 3, v0\nv_and_b32 v41, 7, v0\nv_lshrrev_b32 v42, 4, v0')
    e('v_xor_b32 v43, v41, v42\nv_lshlrev_b32 v43, 4, v43\nv_lshl_add_u32 v%d, v40, 10, v43' % vX)
    e(f'v_xor_b32 v{vX+1}, 64, v{vX}\nv_add_u32 v{vX+1}, {8192-1024}, v{vX+1}')
    e(f'v_add_u32 v{vX+2}, {2*(8192-1024)}, v{vX}\nv_add_u32 v{vX+3}, {2*(8192-1024)}, v{vX+1}')
    e('v_and_b32 v43, 1, v42\nv_lshlrev_b32 v43, 2, v43\nv_xor_b32 v43, v41, v43\nv_lshlrev_b32 v43, 4, v43')
    e(f'v_mul_u32_u24 v44, {RS}, v40\nv_add_u32 v{vWo}, v44, v43\nv_add_u32 v{vWo+1}, {8*RS-1024}, v{vWo}')
    if F:
        e(f'v_lshrrev_b32 v44, 2, v0\nv_mul_u32_u24 v44, {RS}, v44\nv_and_b32 v45, 3, v0\nv_lshl_add_u32 v{vS}, v45, 4, v44')
    e(f's_lshl_b32 s{sHX}, s{sW}, 12\ns_lshl_b32 s{sHW}, s{sW}, 11\ns_lshl_b32 s{sHS}, s{sW}, 10')
    e(f's_lshl_b32 s{sXB}, s{sRB}, 17\ns_lshl_b32 s{sT}, s{sW}, 15\ns_add_u32 s{sXB}, s{sXB}, s{sT}')
    e(f's_mul_i32 s{sWB}, s{sW}, {16*RS}')
    if F:
        e(f's_lshr_b32 s{sT}, s{sG}, 1\ns_mul_i32 s{sT}, s{sT}, 896\ns_add_u32 s{sWB}, s{sWB}, s{sT}')
        e(f's_and_b32 s{sT}, s{sG}, 1\ns_lshl_b32 s{sT+1}, s{sT}, 9\ns_add_u32 s{sWB}, s{sWB}, s{sT+1}')
        e(f's_mul_i32 s{sSD}, s{sT}, -448\ns_add_u32 s{sSD}, s{sSD}, 384')
    else:
        e(f's_lshl_b32 s{sT}, s{sG}, 7\ns_add_u32 s{sWB}, s{sWB}, s{sT}')
    e('s_waitcnt lgkmcnt(0)')
    srd(e, SX, pX, 2048 * 1024)
    srd(e, SWs, pW1 if F else pWQKV, 512 * RS)
    ust = 128 if F else 1024

    def chunk_groups(c):
        L = (c % 3) * SLOT
        g = []
        pre = [f's_add_u32 s{sT}, s{sROT}, {c}', f's_and_b32 s{sT}, s{sT}, 7', f's_lshl_b32 s{sT+1}, s{sT}, 7',
               f's_add_u32 s{sT+1}, s{sT+1}, s{sXB}', f's_add_u32 m0, s{sHX}, {L}', f's_mul_i32 s{sT+2}, s{sT}, {64*RS}']
        for i in range(4):
            g.append((pre if i == 0 else []) + [f'buffer_load_dwordx4 v{vX+i}, s[{SX}:{SX+3}], s{sT+1} offen offset:{i*1024} lds'])
        for u in range(3):
            pre = [f's_add_u32 m0, s{sHW}, {L+L_W+u*8192}',
                   f's_add_u32 s{sT+2}, s{sT+2}, s{sWB}' if u == 0 else f's_add_u32 s{sT+3}, s{sT+2}, {u*ust}']
            so = sT + 2 if u == 0 else sT + 3
            for i in range(2):
                g.append((pre if i == 0 else []) + [f'buffer_load_dwordx4 v{vWo+i}, s[{SWs}:{SWs+3}], s{so} offen offset:{i*1024} lds'])
        if F:
            g.append([f's_add_u32 m0, s{sHS}, {L+L_S}', f's_add_u32 s{sT+3}, s{sT+2}, s{sSD}',
                      f'buffer_load_dwordx4 v{vS}, s[{SWs}:{SWs+3}], s{sT+3} offen lds'])
        return g

    def b2_groups(pos):
        U = POS2U[pos]
        S = SW2 if U < 28 else SWO
        off = (U if U < 28 else U - 28) * 65536
        g = []
        for i in range(2):
            pre = [f's_add_u32 s{sT+4}, s{sB2}, {off}'] if i == 0 else []
            if pos < 18:
                if i == 0: pre = [f's_add_u32 m0, s{sHW}, {pos*8192}'] + pre
                g.append(pre + [f'buffer_load_dwordx4 v{vB+i}, s[{S}:{S+3}], s{sT+4} offen offset:{i*1024} lds'])
            else:
                r = vBuf + ((pos - 18) * 2 + i) * 4
                g.append(pre + [f'buffer_load_dwordx4 v[{r}:{r+3}], v{vB+i}, s[{S}:{S+3}], s{sT+4} offen offset:{i*1024}'])
        return g

    tok = {}
    for c in (0, 1):
        for g in chunk_groups(c):
            for l in g: e(l)
        tok[c] = e.vtok()
    ts(e, 1)
    srd(e, SW2, pW2, 1792 * 1024); srd(e, SWO, pWO, 512 * 1024); srd(e, SWS, pWS, WS_SIZE)
    e(f'v_lshl_add_u32 v{vB}, v40, 10, v43\nv_add_u32 v{vB+1}, {8192-1024}, v{vB}')
    e(f's_lshl_b32 s{sB2}, s{sW}, 14\ns_lshl_b32 s{sT}, s{sCB}, 7\ns_add_u32 s{sB2}, s{sB2}, s{sT}')
    e(f'v_lshlrev_b32 v{vL16}, 4, v0\nv_add_u32 v{vL16}, s{sHW}, v{vL16}')
    e('v_and_b32 v44, 31, v0\nv_lshrrev_b32 v45, 5, v0\nv_bfe_u32 v46, v0, 1, 3\nv_xor_b32 v46, v45, v46')
    e(f'v_lshlrev_b32 v47, 7, v44\nv_add_u32 v47, s{sHX}, v47')
    for s in range(4):
        e(f'v_xor_b32 v48, {2*s}, v46\nv_lshl_add_u32 v{vA+s}, v48, 4, v47\nv_add_u32 v{vA+4+s}, {2*SLOT}, v{vA+s}')
    for i in range(4): e(f'v_mov_b32 v{vAcc+i}, 0')
    e('s_mov_b32 s79, 0xffff0000')

    def stats(c):
        sl = c % 3
        rd = [f'ds_read_b128 v[{vD+4*s}:{vD+4*s+3}], v{vA+s+(4 if sl == 2 else 0)} offset:{SLOT if sl == 1 else 0}' for s in range(4)]
        va = []
        for d in range(16):
            if d % 4 == 0: va.append(f's_waitcnt lgkmcnt({3-d//4})')
            t = 50 + 2 * (d & 1)
            va += [f'v_lshlrev_b32 v{t}, 16, v{vD+d}', f'v_and_b32 v{t+1}, s79, v{vD+d}',
                   f'v_add_f32 v{vAcc}, v{vAcc}, v{t}', f'v_add_f32 v{vAcc+1}, v{vAcc+1}, v{t+1}',
                   f'v_fmac_f32 v{vAcc+2}, v{t}, v{t}', f'v_fmac_f32 v{vAcc+3}, v{t+1}, v{t+1}']
        return rd, va

    b2q = list(range(18, 36)) + list(range(11, 18)) + list(range(0, 5)) + list(range(5, 11))
    def take_b2(n):
        g = []
        for _ in range(n): g += b2_groups(b2q.pop(0))
        return g
    for c in range(8):
        e.wait_vm(tok[c])
        e('s_barrier')
        if c == 0: ts(e, 2)
        rd, va = stats(c)
        for l in rd: e(l)
        if c + 2 <= 7:
            interleave(e, chunk_groups(c + 2), va); tok[c + 2] = e.vtok()
        elif c == 6:
            interleave(e, take_b2(6), va)
        else:
            interleave(e, take_b2(2), va[:40])
            for l in va[40:]: e(l)
    S, Q = vAcc, vAcc + 2
    e(f'v_add_f32 v{S}, v{S}, v{S+1}\nv_add_f32 v{Q}, v{Q}, v{Q+1}\nv_mov_b32 v{S+1}, v{S}\nv_mov_b32 v{Q+1}, v{Q}')
    e(f'v_permlane32_swap_b32 v{S+1}, v{S}\nv_permlane32_swap_b32 v{Q+1}, v{Q}')
    e(f'v_add_f32 v{S}, v{S}, v{S+1}\nv_add_f32 v{Q}, v{Q}, v{Q+1}')
    e(f'v_mul_f32 v50, 0xbb000000, v{S}')
    e(f'v_mul_f32 v51, 0x3b000000, v{Q}\nv_fma_f32 v51, -v50, v50, v51\nv_max_f32 v51, 0, v51\nv_add_f32 v51, {EPS5}, v51')
    e('v_rsq_f32 v52, v51\nv_mul_f32 v53, v51, v52')
    e('v_cvt_pk_bf16_f32 v57, v50, v53\nv_lshlrev_b32 v54, 16, v57\nv_and_b32 v55, s79, v57')
    e('v_sub_f32 v54, v50, v54\nv_sub_f32 v55, v53, v55\nv_mov_b32 v59, 0')
    e('v_cvt_pk_bf16_f32 v56, v50, v54\nv_cvt_pk_bf16_f32 v58, v55, v59')
    e(f's_lshl_b32 s{sT}, s{sW}, 5\nv_add_u32 v44, s{sT}, v44\nv_lshlrev_b32 v45, 4, v44\nv_lshlrev_b32 v46, 2, v44')
    e(f'v_add_u32 v45, {L_AUG}, v45\nv_add_u32 v46, {L_R}, v46')
    e('ds_write_b128 v45, v[56:59]\nds_write_b32 v46, v52\ns_waitcnt lgkmcnt(0)')
    e('s_barrier')
    e('s_barrier')
    ts(e, 3)
    if not F:
        for g in take_b2(6):
            for l in g: e(l)
        e('s_barrier')
    n = 0
    while b2q:
        for g in take_b2(1):
            for l in g: e(l)
        n += 1
        if n % 8 == 0: e('s_waitcnt vmcnt(40)')
    ts(e, 4)
    if not F:
        e('s_barrier')
    e('s_waitcnt vmcnt(0)')
    ts(e, 5)
    e('s_barrier')
    for r in range(3):
        e('s_barrier')
        if r: e(f'v_add_u32 v{vL16}, 49152, v{vL16}')
        for k in range(12):
            b = vBuf + (r * 12 + k) * 4
            e(f'ds_write_b128 v{vL16}, v[{b}:{b+3}] offset:{(k//2)*8192+(k&1)*1024}')
        e('s_waitcnt lgkmcnt(0)')
    e('s_barrier')
    ts(e, 6)
    ts_dump(e, 7, 0)
    e('s_endpgm')

ACC = 16
FS = (128, 152)
CS = 176; SEL = 192; AX = 196; AW = 204; AS = 208; BI = 212; NV = 216; L16 = 218; HF = 219; RHO = 220; CSA = 221

def get_nonce(e):
    L, D = lab('non'), lab('nond')
    e(f's_mov_b32 s{sT+9}, 200000')
    e(f'{L}:')
    e(f'v_readfirstlane_b32 s{sNON}, v{NV}\nv_readfirstlane_b32 s{sNON+1}, v{NV+1}')
    e(f's_cmp_lg_u32 s{sNON+1}, 0\ns_cbranch_scc1 {D}')
    e(f's_sub_u32 s{sT+9}, s{sT+9}, 1\ns_cmp_eq_u32 s{sT+9}, 0\ns_cbranch_scc1 {D}')
    e(f'buffer_load_dwordx2 v[{NV}:{NV+1}], off, s[{SDBG}:{SDBG+3}], 0 sc1\ns_waitcnt vmcnt(0)\ns_branch {L}')
    e(f'{D}:')

def put_flag(e, soff):
    e(f'v_mov_b32 v2, s{sNON}\nv_mov_b32 v3, s{sNON+1}\ns_mov_b64 exec, 1')
    e(f'buffer_store_dwordx2 v[2:3], off, s[{SWS}:{SWS+3}], s{soff} sc1')
    e('s_mov_b64 exec, -1')

def compute_p1(e, F):
    NT = 7 if F else 6
    sRH, sCH, sDL, sCNT, sSL, sY0, sY1 = 11, 12, 13, 14, 15, 76, 77
    e(f's_and_b32 s{sRH}, s{sW}, 1\ns_lshr_b32 s{sCH}, s{sW}, 1')
    e(f'v_lshlrev_b32 v{L16}, 4, v0\nv_lshrrev_b32 v{HF}, 5, v0\nv_and_b32 v{RHO}, 31, v0')
    e(f'v_bfe_u32 v2, v0, 1, 3\nv_xor_b32 v2, v{HF}, v2')
    e(f's_lshl_b32 s{sT}, s{sRH}, 13\ns_lshl_b32 s{sT+1}, s{sCH}, 12\ns_add_u32 s{sT}, s{sT}, s{sT+1}')
    e(f'v_lshlrev_b32 v3, 7, v{RHO}\nv_add_u32 v3, s{sT}, v3')
    for s in range(4):
        e(f's_xor_b32 s{sT+2}, s{sW}, {s}\ns_lshl_b32 s{sT+2}, s{sT+2}, 1\nv_xor_b32 v4, s{sT+2}, v2')
        e(f'v_lshl_add_u32 v{AX+2*s}, v4, 4, v3\nv_xor_b32 v{AX+2*s+1}, 0x1000, v{AX+2*s}')
    e('v_bfe_u32 v2, v0, 2, 2\nv_bfe_u32 v3, v0, 4, 1\nv_and_b32 v4, 3, v0\nv_bfe_u32 v5, v0, 3, 1')
    if not F: e(f'v_xor_b32 v3, s{sRH}, v3')
    e(f'v_lshl_add_u32 v2, v{HF}, 3, v2')
    e('v_lshlrev_b32 v4, 3, v4\nv_lshl_add_u32 v4, v3, 5, v4')
    e(f'v_xor_b32 v5, s{sCH}, v5\nv_lshl_add_u32 v5, v5, 6, v4\nv_lshl_add_u32 v5, v2, 7, v5\nv_add_u32 v5, {L_W}, v5')
    e(f'v_lshl_add_u32 v6, v2, 6, v4\nv_add_u32 v6, {L_S}, v6')
    for s in range(4):
        e(f's_xor_b32 s{sT+2}, s{sW}, {s}\ns_lshl_b32 s{sT+3}, s{sT+2}, 11\nv_add_u32 v{AW+s}, s{sT+3}, v5')
        if F: e(f's_lshl_b32 s{sT+3}, s{sT+2}, 10\nv_add_u32 v{AS+s}, s{sT+3}, v6')
    e('v_lshrrev_b32 v2, 2, v0\nv_xor_b32 v2, v2, v0\nv_and_b32 v2, 4, v2\nv_cmp_eq_u32 vcc, 0, v2\nv_mov_b32 v3, 0x3f803f80')
    e(f'v_cndmask_b32 v{SEL}, 0, v3, vcc')
    for i in range(1, 4): e(f'v_mov_b32 v{SEL+i}, v{SEL}')
    e('s_waitcnt lgkmcnt(0)')
    srd(e, SWS, pWS, WS_SIZE); srd(e, SDBG, pDBG, 256); srd(e, SX, pX, 2048 * 1024); srd(e, SOUT, pOUT, 2048 * 1024)
    Ln = lab('nonce_skip')
    e(f's_or_b32 s{sT}, s2, s{sW}\ns_cmp_lg_u32 s{sT}, 0\ns_cbranch_scc1 {Ln}')
    e(f's_load_dwordx2 s[{sT+2}:{sT+3}], s[{pWS}:{pWS+1}], 0\ns_waitcnt lgkmcnt(0)')
    e(f's_mul_i32 s{sT+4}, s{sT+2}, 0x4c957f2d\ns_mul_hi_u32 s{sT+5}, s{sT+2}, 0x4c957f2d')
    e(f's_mul_i32 s{sT+6}, s{sT+3}, 0x4c957f2d\ns_add_u32 s{sT+5}, s{sT+5}, s{sT+6}')
    e(f's_mul_i32 s{sT+6}, s{sT+2}, 0x5851f42d\ns_add_u32 s{sT+5}, s{sT+5}, s{sT+6}')
    e(f's_add_u32 s{sT+4}, s{sT+4}, 0xf767814f\ns_addc_u32 s{sT+5}, s{sT+5}, 0x14057b7e\ns_or_b32 s{sT+5}, s{sT+5}, 0x80000000')
    e(f'v_mov_b32 v2, s{sT+4}\nv_mov_b32 v3, s{sT+5}\ns_mov_b64 exec, 1')
    e(f'buffer_store_dwordx2 v[2:3], off, s[{SDBG}:{SDBG+3}], 0 sc1')
    e(f'buffer_store_dwordx2 v[2:3], off, s[{SWS}:{SWS+3}], 0 sc1')
    e('s_mov_b64 exec, -1')
    e(f'{Ln}:')
    if OPT['pf']:
        Lp = lab('pf_skip'); Lq = lab('pc')
        e(f's_cmp_lg_u32 s{sW}, 1\ns_cbranch_scc1 {Lp}')
        e(f's_getpc_b64 s[{sT+2}:{sT+3}]')
        e(f'{Lq}:')
        e(f's_sub_u32 s{sT+2}, s{sT+2}, {Lq}-{NAME}_kernel\ns_subb_u32 s{sT+3}, s{sT+3}, 0')
        e(f's_lshl_b32 s{sT+4}, s{sLI}, 10\nv_add_u32 v2, s{sT+4}, v{L16}\nv_min_u32 v2, L_code_end-{NAME}_kernel-16, v2')
        e(f'global_load_dwordx4 v[252:255], v2, s[{sT+2}:{sT+3}]')
        e(f'{Lp}:')
    e(f's_lshl_b32 s{sT}, s{sRB}, 2\ns_lshl_b32 s{sT+1}, s{sRH}, 1\ns_add_u32 s{sT}, s{sT}, s{sT+1}\ns_add_u32 s{sT}, s{sT}, s{sCH}')
    e(f's_xor_b32 s{sT+1}, s{sT}, 1\ns_mul_i32 s{sY0}, s{sT}, {144*1024}\ns_mul_i32 s{sY1}, s{sT+1}, {144*1024}')
    if F:
        srd(e, SB1, pB1, 1792 * 2)
        e(f's_lshr_b32 s{sT}, s{sG}, 1\ns_mul_i32 s{sT}, s{sT}, 448\ns_and_b32 s{sT+1}, s{sG}, 1')
        e(f's_lshl_b32 s{sT+2}, s{sT+1}, 8\ns_add_u32 s{sT+2}, s{sT+2}, s{sT}\ns_lshl_b32 s{sT+3}, s{sCH}, 5\ns_add_u32 s{sT+2}, s{sT+2}, s{sT+3}')
        e(f's_lshl_b32 s{sT+3}, s{sT+1}, 5\ns_add_u32 s{sT+3}, s{sT+3}, s{sT}\ns_add_u32 s{sT+3}, s{sT+3}, 192')
        e(f'v_lshlrev_b32 v2, 1, v{RHO}\ns_lshl_b32 s{sT+4}, s{sT+2}, 1\ns_lshl_b32 s{sT+5}, s{sT+3}, 1')
        for u in range(3): e(f'buffer_load_ushort v{BI+u}, v2, s[{SB1}:{SB1+3}], s{sT+4} offen offset:{u*128}')
        e(f'buffer_load_ushort v{BI+3}, v2, s[{SB1}:{SB1+3}], s{sT+5} offen')
        e(f's_lshl_b32 s{sT+3}, s{sT+3}, 6\ns_add_u32 s78, s{sY0}, s{sT+3}\ns_add_u32 s78, s78, {WS_Y}')
        e(f's_lshl_b32 s{sT+2}, s{sT+2}, 6\ns_add_u32 s{sT+2}, s{sT+2}, {WS_Y}')
    else:
        e(f's_lshl_b32 s{sT+2}, s{sG}, 12\ns_lshl_b32 s{sT+3}, s{sCH}, 11\ns_add_u32 s{sT+2}, s{sT+2}, s{sT+3}\ns_add_u32 s{sT+2}, s{sT+2}, {WS_Y+112*1024}')
    e(f's_add_u32 s{sY0}, s{sY0}, s{sT+2}\ns_add_u32 s{sY1}, s{sY1}, s{sT+2}')
    for i in range(NT * 16): e(f'v_mov_b32 v{ACC+i}, 0')
    for i in range(16): e(f'v_mov_b32 v{CS+i}, 0')
    e(f's_mov_b32 s{sCNT}, 0\ns_mov_b32 s{sSL}, 0\ns_mov_b32 s75, {-2*SLOT}')
    e('s_setprio 1')

    def reads(s, st):
        b = FS[st]
        r = [f'ds_read_b128 v[{b}:{b+3}], v{AX+2*s}']
        for j in range(2): r.append(f'ds_read_b64_tr_b16 v[{b+8+2*j}:{b+9+2*j}], v{AW+s} offset:{j*512}')
        r.append(f'ds_read_b128 v[{b+4}:{b+7}], v{AX+2*s+1}')
        for u in (1, 2):
            for j in range(2): r.append(f'ds_read_b64_tr_b16 v[{b+8+4*u+2*j}:{b+9+4*u+2*j}], v{AW+s} offset:{u*8192+j*512}')
        if F:
            for j in range(2): r.append(f'ds_read_b64_tr_b16 v[{b+20+2*j}:{b+21+2*j}], v{AS+s} offset:{j*256}')
        return r
    def mf(t, xr, wr):
        a = ACC + 16 * t
        tr = F or t < 2
        A, B = (wr, xr) if tr else (xr, wr)
        return f'v_mfma_f32_32x32x16_bf16 v[{a}:{a+15}], v[{A}:{A+3}], v[{B}:{B+3}], v[{a}:{a+15}]'
    def mfmas(s, st):
        b = FS[st]
        m = []
        for u in range(3):
            for crt in range(2): m.append(mf(2 * u + crt, b + 4 * crt, b + 8 + 4 * u))
            if s % 2 == 0: m.append(f'v_mfma_f32_16x16x32_bf16 v[{CS+4*u}:{CS+4*u+3}], v[{SEL}:{SEL+3}], v[{b+8+4*u}:{b+11+4*u}], v[{CS+4*u}:{CS+4*u+3}]')
        if F:
            m.append(mf(6, b, b + 20))
            if s == 0: m.append(f'v_mfma_f32_16x16x32_bf16 v[{CS+12}:{CS+15}], v[{SEL}:{SEL+3}], v[{b+20}:{b+23}], v[{CS+12}:{CS+15}]')
        return m
    ts(e, 1)
    e('s_barrier')
    ts(e, 2)
    for l in reads(0, 0): e(l)
    LK = lab('kloop')
    e(f'{LK}:')
    for s in range(4):
        st = s & 1
        m = mfmas(s, st)
        e('s_waitcnt lgkmcnt(0)')
        if s < 3:
            r = reads(s + 1, st ^ 1)
            upd = []
            if s == 0:
                upd = [f's_add_u32 s{sSL}, s{sSL}, 1', f's_cmp_eq_u32 s{sSL}, 3', f's_cselect_b32 s{sDL}, s75, {SLOT}',
                       f's_cselect_b32 s{sSL}, 0, s{sSL}']
            ad = [AX + 2 * s, AX + 2 * s + 1, AW + s] + ([AS + s] if F else [])
            upd += [f'v_add_u32 v{a}, s{sDL}, v{a}' for a in ad]
            for i, x in enumerate(m):
                e(x)
                for l in r[2 * i:2 * i + 2]: e(l)
                if i == len(m) - 2:
                    for l in upd: e(l)
        else:
            bp = OPT['barpos']
            r = reads(0, st ^ 1)
            ad = [AX + 6, AX + 7, AW + 3] + ([AS + 3] if F else [])
            k = 0
            for i, x in enumerate(m):
                if i == bp: e('s_barrier')
                if i >= bp:
                    n = -(-(len(r) - k) // max(1, len(m) - i - 1)) if i < len(m) - 1 else len(r) - k
                    for l in r[k:k + n]: e(l)
                    k += n
                e(x)
                if i == 0:
                    for a in ad: e(f'v_add_u32 v{a}, s{sDL}, v{a}')
                    e(f's_add_u32 s{sCNT}, s{sCNT}, 1\ns_cmp_lt_u32 s{sCNT}, 8')
    e(f's_cbranch_scc1 {LK}')
    ts(e, 3)
    e(f'buffer_load_dwordx2 v[{NV}:{NV+1}], off, s[{SDBG}:{SDBG+3}], 0 sc1')
    e(f'v_lshlrev_b32 v2, 2, v{RHO}')
    if not F: e(f's_lshl_b32 s{sT}, s{sRH}, 6\nv_xor_b32 v2, s{sT}, v2')
    e(f's_mul_i32 s{sT}, s{sW}, 384\ns_add_u32 s{sT}, s{sT}, {L_CS}\nv_add_u32 v3, s{sT}, v2')
    e(f's_xor_b32 s{sT}, s{sW}, 1\ns_mul_i32 s{sT}, s{sT}, 384\ns_add_u32 s{sT}, s{sT}, {L_CS}\nv_add_u32 v4, s{sT}, v2')
    for u in range(3): e(f'ds_write_b32 v3, v{CS+4*u} offset:{u*128}')
    if F:
        e(f's_lshl_b32 s{sT}, s{sW}, 7\nv_add_u32 v5, {L_CSS}, v2\nv_add_u32 v6, s{sT}, v5\nds_write_b32 v6, v{CS+12}')
    e(f's_lshl_b32 s{sT}, s{sRH}, 6\ns_lshl_b32 s{sT+1}, s{sCH}, 5\ns_add_u32 s{sT}, s{sT}, s{sT+1}')
    e(f'v_add_u32 v7, s{sT}, v{RHO}\nv_lshlrev_b32 v8, 4, v7\nv_xor_b32 v9, 512, v8\nv_add_u32 v8, {L_AUG}, v8\nv_add_u32 v9, {L_AUG}, v9')
    e(f'v_lshlrev_b32 v10, 2, v7\nv_xor_b32 v11, 128, v10\nv_add_u32 v10, {L_R}, v10\nv_add_u32 v11, {L_R}, v11')
    e(f'v_cmp_eq_u32 vcc, 0, v{HF}')
    e('s_waitcnt lgkmcnt(0)')
    e('s_barrier')
    XA = 128; WA = 136; PC = 152; RR = 160; RL = 162; M2 = 164
    for u in range(3): e(f'ds_read_b32 v{PC+u}, v4 offset:{u*128}')
    if F:
        for w in range(4): e(f'ds_read_b32 v{PC+3+w}, v5 offset:{w*128}')
    e(f'ds_read_b128 v[{XA}:{XA+3}], v8\nds_read_b128 v[{XA+4}:{XA+7}], v9\nds_read_b32 v{RR}, v10\nds_read_b32 v{RR+1}, v11')
    RV = 224
    if not F:
        e(f's_lshl_b32 s{sT}, s{sT}, 2\nv_lshlrev_b32 v12, 4, v{HF}\nv_add_u32 v12, s{sT}, v12\nv_xor_b32 v13, 128, v12')
        e(f'v_add_u32 v12, {L_R}, v12\nv_add_u32 v13, {L_R}, v13')
    e('s_waitcnt vmcnt(1) lgkmcnt(0)')
    if not F:
        for crt in range(2):
            for q in range(4): e(f'ds_read_b128 v[{RV+16*crt+4*q}:{RV+16*crt+4*q+3}], v{12+crt} offset:{q*32}')
    e('s_mov_b32 s79, 0xffff0000')
    for u in range(4 if F else 3):
        w = WA + 4 * u
        if u < 3: e(f'v_add_f32 v2, v{CS+4*u}, v{PC+u}')
        else: e(f'v_add_f32 v2, v{PC+3}, v{PC+4}\nv_add_f32 v3, v{PC+5}, v{PC+6}\nv_add_f32 v2, v2, v3')
        e('v_cndmask_b32 v2, 0, v2, vcc')
        e(f'v_cvt_pk_bf16_f32 v{w}, v2, v2\nv_and_b32 v3, s79, v{w}\nv_sub_f32 v3, v2, v3\nv_mov_b32 v{w+3}, 0')
        if F:
            e(f'v_cndmask_b32 v{w+2}, 0, v{BI+u}, vcc\nv_lshlrev_b32 v14, 16, v{w+2}\nv_cvt_pk_bf16_f32 v{w+1}, v3, v14')
        else:
            e(f'v_mov_b32 v{w+2}, 0\nv_cvt_pk_bf16_f32 v{w+1}, v3, v{w+3}')
    order = [0, 1, 2, 3, 4, 5, 6] if F else [2, 3, 4, 5, 0, 1]
    for t in order:
        e(mf(t, XA + 4 * (t & 1) if t < 6 else XA, WA + 4 * (t >> 1)))
    e(f's_mov_b32 s{sT+5}, {LOG2E}')
    for crt in range(2):
        e(f'v_mul_f32 v{RL+crt}, s{sT+5}, v{RR+crt}\nv_mul_f32 v{M2+crt}, -2.0, v{RR+crt}')
    U = 176; P = 192
    def sel2(crt): return f'op_sel:[0,{crt}] op_sel_hi:[1,{crt}]'
    if F:
        for t in range(7):
            a = ACC + 16 * t; crt = t & 1 if t < 6 else 0; p = P + 8 * (t & 1)
            for i in range(0, 16, 2): e(f'v_pk_mul_f32 v[{U+i}:{U+i+1}], v[{a+i}:{a+i+1}], v[{RL}:{RL+1}] {sel2(crt)}')
            for i in range(16): e(f'v_exp_f32 v{U+i}, v{U+i}')
            for i in range(0, 16, 2): e(f'v_pk_add_f32 v[{U+i}:{U+i+1}], v[{U+i}:{U+i+1}], 1.0 op_sel_hi:[1,0]')
            for i in range(0, 16, 2): e(f'v_pk_fma_f32 v[{U+i}:{U+i+1}], v[{U+i}:{U+i+1}], v[{U+i}:{U+i+1}], 1.0 op_sel_hi:[1,1,0]')
            for i in range(16): e(f'v_rcp_f32 v{U+i}, v{U+i}')
            for i in range(0, 16, 2): e(f'v_pk_fma_f32 v[{U+i}:{U+i+1}], v[{U+i}:{U+i+1}], v[{M2}:{M2+1}], v[{RR}:{RR+1}] op_sel:[0,{crt},{crt}] op_sel_hi:[1,{crt},{crt}]')
            for i in range(0, 16, 2): e(f'v_pk_mul_f32 v[{U+i}:{U+i+1}], v[{U+i}:{U+i+1}], v[{a+i}:{a+i+1}]')
            for i in range(8): e(f'v_cvt_pk_bf16_f32 v{p+i}, v{U+2*i}, v{U+2*i+1}')
            if t < 6: e(f's_add_u32 s{sT}, s{sY1 if crt else sY0}, {(t>>1)*4096}'); so = sT
            else: so = 78
            for k in range(2): e(f'buffer_store_dwordx4 v[{p+4*k}:{p+4*k+3}], v{L16}, s[{SWS}:{SWS+3}], s{so} offen offset:{k*1024} sc1')
        ts(e, 4)
        e(f's_lshl_b32 s{sT}, s{sRB}, 1\ns_add_u32 s{sT}, s{sT}, s{sRH}\ns_lshl_b32 s{sT}, s{sT}, 5\ns_lshl_b32 s{sT+1}, s{sG}, 1')
        e(f's_add_u32 s{sT}, s{sT}, s{sT+1}\ns_add_u32 s{sT}, s{sT}, s{sCH}\ns_lshl_b32 s{sT}, s{sT}, 7\ns_add_u32 s{sT}, s{sT}, {WS_YF}')
        e('s_waitcnt vmcnt(0)')
        get_nonce(e)
        put_flag(e, sT)
        ts(e, 5)
    else:
        EP = 166; LG = 168
        e(f'v_mov_b32 v{EP}, {EPS6}\nv_mov_b32 v{LG}, {LOG2E}\nv_mov_b32 v170, 0x3f803f80')
        e(f'v_cmp_gt_u32 vcc, 16, v{RHO}')
        PK = 128; PV = 144; T = 192
        e('s_waitcnt lgkmcnt(0)')
        def phi(a, rsrc, p):
            for i in range(0, 16, 2): e(f'v_pk_fma_f32 v[{T+i}:{T+i+1}], v[{a+i}:{a+i+1}], {rsrc(i)}')
            for i in range(0, 16, 2): e(f'v_pk_mul_f32 v[{U+i}:{U+i+1}], v[{T+i}:{T+i+1}], v[{LG}:{LG+1}] op_sel_hi:[1,0]')
            for i in range(16): e(f'v_exp_f32_e64 v{U+i}, v{U+i} clamp')
            for i in range(16): e(f'v_max_f32 v{T+i}, v{EP}, v{T+i}')
            for i in range(0, 16, 2): e(f'v_pk_add_f32 v[{T+i}:{T+i+1}], v[{T+i}:{T+i+1}], v[{U+i}:{U+i+1}]')
            for i in range(8): e(f'v_cvt_pk_bf16_f32 v{p+i}, v{T+2*i}, v{T+2*i+1}')
        for crt in range(2):
            phi(ACC + 16 * (2 + crt), lambda i: f'v[{RV+16*crt+i}:{RV+16*crt+i+1}], v[{EP}:{EP+1}] op_sel_hi:[1,1,0]', PK + 8 * crt)
        for crt in range(2):
            a = ACC + 16 * (4 + crt)
            for i in range(0, 16, 2): e(f'v_pk_mul_f32 v[{U+i}:{U+i+1}], v[{a+i}:{a+i+1}], v[{RV+16*crt+i}:{RV+16*crt+i+1}]')
            for i in range(8): e(f'v_cvt_pk_bf16_f32 v{PV+8*crt+i}, v{U+2*i}, v{U+2*i+1}')
        B0 = 176; B1 = 192; D0 = ACC + 32; D1 = ACC + 48
        for i in range(16): e(f'v_cndmask_b32 v{B0+i}, v170, v{PV+i}, vcc\nv_cndmask_b32 v{B1+i}, v{PV+i}, v170, vcc')
        for k in range(4):
            for D, B in ((D1, B1), (D0, B0)):
                e(f'v_mfma_f32_32x32x16_bf16 v[{D}:{D+15}], v[{PK+4*k}:{PK+4*k+3}], v[{B+4*k}:{B+4*k+3}], ' + ('0' if k == 0 else f'v[{D}:{D+15}]'))
        e(f's_lshl_b32 s{sT}, s{sW}, 11\ns_add_u32 s{sT}, s{sT}, {L_KX}\nv_xor_b32 v2, 256, v{L16}\nv_add_u32 v2, s{sT}, v2')
        e(f's_xor_b32 s{sT}, s{sW}, 1\ns_lshl_b32 s{sT}, s{sT}, 11\ns_add_u32 s{sT}, s{sT}, {L_KX}\nv_add_u32 v3, s{sT}, v{L16}')
        e(f'v_lshlrev_b32 v4, 8, v{HF}\nv_lshl_add_u32 v4, v{RHO}, 4, v4\nv_add_u32 v5, 512, v4')
        e(f'v_lshlrev_b32 v6, 4, v{HF}\nv_add_u32 v6, 1024, v6\nv_add_u32 v7, 32, v6')
        e('v_cndmask_b32 v4, v6, v4, vcc\nv_cndmask_b32 v5, v7, v5, vcc')
        e(f'v_cmp_ge_u32 vcc, 16, v{RHO}\nv_mov_b32 v6, 0x7ff00000\nv_cndmask_b32 v4, v6, v4, vcc\nv_cndmask_b32 v5, v6, v5, vcc')
        e(f'ds_write_b128 v2, v[{D1+8}:{D1+11}]\nds_write_b128 v2, v[{D1+12}:{D1+15}] offset:1024')
        e('s_waitcnt lgkmcnt(0)')
        e('s_barrier')
        e(f'ds_read_b128 v[{U}:{U+3}], v3\nds_read_b128 v[{U+4}:{U+7}], v3 offset:1024')
        e(f's_lshl_b32 s{sT}, s{sG}, 2\ns_add_u32 s{sT}, s{sT}, s{sW}\ns_lshl_b32 s{sT}, s{sT}, 4')
        e(f's_mul_i32 s{sT+1}, s{sT}, 1152\ns_add_u32 s{sT+1}, s{sT+1}, {WS_KV}')
        e(f's_mul_i32 s{sT+2}, s{sRB}, 1152\ns_add_u32 s{sT+2}, s{sT+2}, s{sT+1}')
        e(f's_lshl_b32 s{sT+3}, s{sT}, 7\ns_add_u32 s{sT+3}, s{sT+3}, {WS_KVF}')
        e(f's_lshl_b32 s{sT+4}, s{sRB}, 7\ns_add_u32 s{sT+4}, s{sT+4}, s{sT+3}')
        e('s_waitcnt lgkmcnt(0)')
        for i in range(8): e(f'v_add_f32 v{U+i}, v{U+i}, v{D0+i}')
        e(f'buffer_store_dwordx4 v[{U}:{U+3}], v4, s[{SWS}:{SWS+3}], s{sT+2} offen sc1')
        e(f'buffer_store_dwordx4 v[{U+4}:{U+7}], v5, s[{SWS}:{SWS+3}], s{sT+2} offen sc1')
        ts(e, 4)
        PQ = 128
        for crt in range(2):
            phi(ACC + 16 * crt, lambda i: f'v[{RR}:{RR+1}], v[{EP}:{EP+1}] op_sel:[0,{crt},0] op_sel_hi:[1,{crt},0]', PQ + 8 * crt)
        e('s_waitcnt vmcnt(0)')
        get_nonce(e)
        put_flag(e, sT + 4)
        e('v_and_b32 v4, 15, v0\nv_lshlrev_b32 v4, 7, v4')
        poll(e, 4, 6, f's{sT+3}')
        ts(e, 5)
        G = 48
        e(f'v_lshrrev_b32 v4, 2, v0\nv_mul_u32_u24 v4, 1152, v4\nv_and_b32 v5, 3, v0\nv_lshl_add_u32 v4, v5, 4, v4')
        e(f'buffer_load_dwordx4 v[112:115], v4, s[{SWS}:{SWS+3}], s{sT+1} offen offset:1024 sc1')
        for r in range(16):
            if r % 3 == 0 and r: e(f's_add_u32 s{sT+1}, s{sT+1}, {3*1152}')
            e(f'buffer_load_dwordx4 v[{G+4*r}:{G+4*r+3}], v{L16}, s[{SWS}:{SWS+3}], s{sT+1} offen offset:{(r%3)*1152} sc1')
        e(f's_lshl_b32 s{sT}, s{sW}, 10\ns_add_u32 s{sT}, s{sT}, {L_KF}')
        e(f'v_bfe_u32 v6, v0, 4, 1\nv_and_b32 v7, 15, v0\nv_lshl_add_u32 v6, v6, 5, v7\nv_lshlrev_b32 v6, 4, v6\nv_lshl_add_u32 v6, v{HF}, 3, v6\nv_add_u32 v6, s{sT}, v6')
        e(f'v_and_b32 v7, 1, v0\nv_lshrrev_b32 v8, 2, v0\nv_lshl_add_u32 v7, v7, 5, v8\nv_lshlrev_b32 v7, 4, v7\nv_bfe_u32 v8, v0, 1, 1\nv_lshl_add_u32 v7, v8, 3, v7\nv_add_u32 v7, s{sT}, v7')
        e(f'v_add_u32 v8, s{sT}, v{L16}\nv_xor_b32 v9, 1024, v8')
        e('s_waitcnt vmcnt(16)')
        for ror in (4, 8):
            for i in range(4): e(f'v_add_f32_dpp v{112+i}, v{112+i}, v{112+i} row_ror:{ror} row_mask:0xf bank_mask:0xf')
        for sw in (16, 32):
            for i in range(4): e(f'v_mov_b32 v{116+i}, v{112+i}')
            for i in range(4): e(f'v_permlane{sw}_swap_b32 v{116+i}, v{112+i}')
            for i in range(4): e(f'v_add_f32 v{112+i}, v{112+i}, v{116+i}')
        e('v_cvt_pk_bf16_f32 v116, v112, v113\nv_cvt_pk_bf16_f32 v117, v114, v115')
        e('ds_write_b64 v7, v[116:117] offset:256')
        for r in range(1, 16):
            e(f's_waitcnt vmcnt({15-r})')
            for i in (0, 2): e(f'v_pk_add_f32 v[{G+i}:{G+i+1}], v[{G+i}:{G+i+1}], v[{G+4*r+i}:{G+4*r+i+1}]')
        e(f'v_cvt_pk_bf16_f32 v118, v{G}, v{G+1}\nv_cvt_pk_bf16_f32 v119, v{G+2}, v{G+3}')
        e('ds_write_b64 v6, v[118:119]\ns_waitcnt lgkmcnt(0)')
        e('s_barrier')
        e('ds_read_b128 v[144:147], v8\nds_read_b128 v[148:151], v9\ns_waitcnt lgkmcnt(0)')
        for crt in range(2):
            for h in range(2):
                d = ACC + 16 * (2 * crt + h)
                e(f'v_mfma_f32_32x32x16_bf16 v[{d}:{d+15}], v[{144+4*h}:{147+4*h}], v[{PQ+8*crt+4*h}:{PQ+8*crt+4*h+3}], 0')
        e(f's_lshl_b32 s{sT}, s{sRH}, 10\ns_xor_b32 s{sT+1}, s{sT}, 1024')
        for crt in range(2):
            for h in range(2):
                d = ACC + 16 * (2 * crt + h); p = P + 4 * (2 * crt + h)
                e(f'v_add_f32 v{d+8}, v{EP}, v{d+8}\nv_rcp_f32 v{d+8}, v{d+8}')
                e(f's_add_u32 s{sT+2}, s{sY1 if crt else sY0}, s{sT+h}')
                for i in range(0, 8, 2): e(f'v_pk_mul_f32 v[{d+i}:{d+i+1}], v[{d+i}:{d+i+1}], v[{d+8}:{d+9}] op_sel_hi:[1,0]')
                for i in range(4): e(f'v_cvt_pk_bf16_f32 v{p+i}, v{d+2*i}, v{d+2*i+1}')
                e(f'buffer_store_dwordx4 v[{p}:{p+3}], v{L16}, s[{SWS}:{SWS+3}], s{sT+2} offen sc1')
        e(f's_lshl_b32 s{sT}, s{sRB}, 1\ns_add_u32 s{sT}, s{sT}, s{sRH}\ns_lshl_b32 s{sT}, s{sT}, 5\ns_lshl_b32 s{sT+1}, s{sG}, 1')
        e(f's_add_u32 s{sT}, s{sT}, s{sT+1}\ns_add_u32 s{sT}, s{sT}, s{sCH}\ns_lshl_b32 s{sT}, s{sT}, 7\ns_add_u32 s{sT}, s{sT}, {WS_YF+16*128}')
        e('s_waitcnt vmcnt(0)')
        put_flag(e, sT)

def compute_p2(e):
    sRH, sKH = 11, 12
    DA = OPT['DA']
    A0 = 48; BF = A0 + 4 * DA; AB = BF + 24; XR = AB + 6 + (AB & 1); VO = XR + 8
    assert VO < 216
    sA3, sA2, sA1 = 13, 14, 15
    ts(e, 6)
    e(f's_lshl_b32 s{sT}, s{sRB2}, 6\ns_lshl_b32 s{sT+1}, s{sRH}, 5\ns_add_u32 s{sT}, s{sT}, s{sT+1}\ns_lshl_b32 s{sT}, s{sT}, 10')
    e(f's_lshl_b32 s{sT+1}, s{sCB}, 7\ns_add_u32 s{sT}, s{sT}, s{sT+1}\ns_lshl_b32 s{sT+1}, s{sKH}, 6\ns_add_u32 s76, s{sT}, s{sT+1}')
    e(f'v_lshlrev_b32 v{VO}, 10, v{RHO}\nv_lshl_add_u32 v{VO}, v{HF}, 5, v{VO}')
    for k in range(2): e(f'buffer_load_dwordx4 v[{XR+4*k}:{XR+4*k+3}], v{VO}, s[{SX}:{SX+3}], s76 offen offset:{k*16}')
    e(f's_lshl_b32 s{sT}, s{sRB2}, 1\ns_add_u32 s{sT}, s{sT}, s{sRH}\ns_mul_i32 s{sT}, s{sT}, {144*1024}\ns_add_u32 s{sT}, s{sT}, {WS_Y}')
    e(f's_lshl_b32 s{sT+1}, s{sKH}, 12\ns_add_u32 s{sA1}, s{sT}, s{sT+1}\ns_add_u32 s{sA2}, s{sA1}, s{sT+1}\ns_add_u32 s{sA3}, s{sA2}, s{sT+1}')
    e('v_bfe_u32 v2, v0, 2, 2\nv_bfe_u32 v3, v0, 4, 1\nv_bfe_u32 v4, v0, 1, 1\nv_and_b32 v5, 1, v0\nv_bfe_u32 v6, v0, 3, 1')
    e(f'v_lshl_add_u32 v2, v{HF}, 2, v2')
    e('v_lshl_add_u32 v3, v3, 1, v4\nv_lshl_add_u32 v3, v5, 2, v3')
    e(f'v_xor_b32 v6, s{sKH}, v6\nv_lshlrev_b32 v3, 3, v3\nv_lshl_add_u32 v3, v6, 6, v3\nv_lshl_add_u32 v3, v2, 7, v3')
    e(f's_mul_i32 s{sT}, s{sKH}, 24576\nv_add_u32 v{AB}, s{sT}, v3\nv_xor_b32 v{AB+1}, 64, v{AB}')
    for k in (1, 2):
        for t in range(2): e(f'v_add_u32 v{AB+2*k+t}, {49152*k}, v{AB+t}')
    e(f'v_lshlrev_b32 v4, 7, v{RHO}\ns_lshl_b32 s{sT+3}, s{sRB2}, 12\ns_add_u32 s{sT+3}, s{sT+3}, {WS_YF}')
    poll(e, 4, 6, f's{sT+3}')
    ts(e, 7)
    tokA = {}
    def loadA(n):
        r, idx, s = n // 12, (n % 12) // 4, n % 4
        U0 = POS2U[6 * r + idx]; dU = POS2U[6 * r + 3 + idx] - U0
        if s == 0: e(f's_add_u32 s{sT}, s{ {3: sA3, 2: sA2, 1: sA1}[dU] }, {U0*4096}')
        a = A0 + 4 * (n % DA)
        e(f'buffer_load_dwordx4 v[{a}:{a+3}], v{L16}, s[{SWS}:{SWS+3}], s{sT} offen offset:{s*1024} sc1')
        tokA[n] = e.vtok()
    def readB(n, t):
        r, idx, s = n // 12, (n % 12) // 4, n % 4
        b = BF + 8 * (n % 3) + 4 * t
        for j in range(2): e(f'ds_read_b64_tr_b16 v[{b+2*j}:{b+2*j+1}], v{AB+2*(r%3)+t} offset:{idx*8192+s*2048+j*1024}')
    for n in range(DA): loadA(n)
    e('s_barrier')
    ts(e, 8)
    for n in (0, 1):
        for t in range(2): readB(n, t)
    for n in range(72):
        bar = (n % 12 == 10) and (n // 12 in (0, 1, 2, 4))
        nv = e.vm - tokA[n]
        lg = 0 if (bar or n == 71) else 4
        e(f's_waitcnt vmcnt({nv}) lgkmcnt({lg})')
        if bar: e('s_barrier')
        a = A0 + 4 * (n % DA)
        for t in range(2):
            if n + 2 < 72: readB(n + 2, t)
            b = BF + 8 * (n % 3) + 4 * t; d = ACC + 16 * t
            e(f'v_mfma_f32_32x32x16_bf16 v[{d}:{d+15}], v[{b}:{b+3}], v[{a}:{a+3}], ' + ('0' if n == 0 else f'v[{d}:{d+15}]'))
        if n + DA < 72: loadA(n + DA)
    ts(e, 9)
    e(f's_lshl_b32 s{sT}, s{sW}, 12\ns_add_u32 s{sT}, s{sT}, {SCR}\nv_add_u32 v2, s{sT}, v{L16}\nv_xor_b32 v3, 0x2000, v2')
    for q in range(4): e(f'ds_write_b128 v2, v[{ACC+16+4*q}:{ACC+19+4*q}] offset:{q*1024}')
    e('s_mov_b32 s79, 0xffff0000')
    for i in range(8): e(f'v_lshlrev_b32 v{64+2*i}, 16, v{XR+i}\nv_and_b32 v{65+2*i}, s79, v{XR+i}')
    for i in range(0, 16, 2): e(f'v_pk_add_f32 v[{ACC+i}:{ACC+i+1}], v[{ACC+i}:{ACC+i+1}], v[{64+i}:{65+i}]')
    e('s_waitcnt lgkmcnt(0)\ns_barrier')
    for q in range(4): e(f'ds_read_b128 v[{48+4*q}:{51+4*q}], v3 offset:{q*1024}')
    for q in range(4):
        e(f's_waitcnt lgkmcnt({3-q})')
        for i in (4 * q, 4 * q + 2):
            e(f'v_pk_add_f32 v[{ACC+i}:{ACC+i+1}], v[{ACC+i}:{ACC+i+1}], v[{48+i}:{49+i}]')
            e(f'v_cvt_pk_bf16_f32 v{64+i//2}, v{ACC+i}, v{ACC+i+1}')
        if q & 1: e(f'buffer_store_dwordx4 v[{64+4*(q>>1)}:{67+4*(q>>1)}], v{VO}, s[{SOUT}:{SOUT+3}], s76 offen offset:{(q>>1)*16}')
    if DIAG: e('s_waitcnt vmcnt(0)')
    ts(e, 10)
    ts_dump(e, 11, 4)
    e('s_endpgm')

def main():
    e = Emit()
    e('s_cmp_ge_u32 s2, 256\ns_cbranch_scc1 L_end')
    e('s_load_dwordx16 s[16:31], s[0:1], 0\ns_load_dwordx4 s[32:35], s[0:1], 64')
    if DIAG: e(f's_memrealtime s[{sTS}:{sTS+1}]')
    e(f'v_readfirstlane_b32 s{sW}, v0\nv_and_b32 v0, 63, v0')
    e(f's_lshr_b32 s{sLI}, s2, 3\ns_bfe_u32 s{sRB}, s2, 0x10002\ns_lshl_b32 s{sRB}, s{sRB}, 3\ns_lshr_b32 s{sT}, s2, 5\ns_add_u32 s{sRB}, s{sRB}, s{sT}')
    e(f's_and_b32 s{sG}, s2, 3\ns_lshl_b32 s{sG}, s{sG}, 1\ns_and_b32 s{sT}, s{sLI}, 1\ns_add_u32 s{sG}, s{sG}, s{sT}')
    if OPT['rot']:
        e(f's_and_b32 s{sT}, s{sLI}, 3\ns_lshl_b32 s{sT}, s{sT}, 1\ns_add_u32 s{sROT}, s{sRB}, s{sT}')
    else:
        e(f's_mov_b32 s{sROT}, 0')
    e(f's_and_b32 s{sRB2}, s2, 7\ns_lshl_b32 s{sRB2}, s{sRB2}, 2\ns_lshr_b32 s{sT}, s2, 6\ns_add_u32 s{sRB2}, s{sRB2}, s{sT}\ns_and_b32 s{sCB}, s{sLI}, 7')
    e(f's_lshr_b32 s{sW}, s{sW}, 6\ns_bfe_u32 s{sF}, s2, 0x10004')
    e(f's_cmp_ge_u32 s{sW}, 4\ns_cbranch_scc1 L_compute')
    e(f's_cmp_eq_u32 s{sF}, 0\ns_cbranch_scc1 L_helper_A')
    helper(e, 1)
    e('L_helper_A:'); e.vm = 0
    helper(e, 0)
    e('L_compute:'); e.vm = 0
    e(f's_sub_u32 s{sW}, s{sW}, 4\ns_cmp_eq_u32 s{sF}, 0\ns_cbranch_scc1 L_compute_A')
    compute_p1(e, 1)
    e('s_branch L_p2')
    e('L_compute_A:')
    compute_p1(e, 0)
    e('L_p2:')
    compute_p2(e)
    e('L_end:\ns_endpgm\nL_code_end:')
    lines, n = hazard_pass_fast(e.lines)
    hdr = open('cdna_kernels/%s.s.ref' % NAME).read().split('; Override launch')[0]
    out = hdr + f'; @launch grid=(256,1,1) block=(512,1,1) lds={LDS_BYTES}\n'
    out += f'.amdgcn_target "amdgcn-amd-amdhsa--gfx950"\n.text\n.globl {NAME}_kernel\n.p2align 8\n.type {NAME}_kernel,@function\n{NAME}_kernel:\n'
    out += '\n'.join(lines) + '\n'
    out += f'''.section .rodata,"a"
.p2align 6
.amdhsa_kernel {NAME}_kernel
  .amdhsa_next_free_vgpr 256
  .amdhsa_next_free_sgpr 102
  .amdhsa_accum_offset 256
  .amdhsa_group_segment_fixed_size 0
  .amdhsa_kernarg_size 80
  .amdhsa_user_sgpr_count 2
  .amdhsa_user_sgpr_kernarg_segment_ptr 1
  .amdhsa_system_sgpr_workgroup_id_x 1
  .amdhsa_float_denorm_mode_32 3
.end_amdhsa_kernel
'''
    open(sys.argv[1], 'w').write(out)
    print('wrote', sys.argv[1], len(lines), 'lines,', n, 'hazard pads')

main()
```

```python
import sys
from asmlib import *

NAME = 'parallel_sum__linear_attn_block__dense_activation_mish__prompt'
OPT = dict(diag=0, rot=1, DA=24, barpos=3, pf=1)
for a in sys.argv[2:]:
    k, v = a.split('='); OPT[k] = int(v)
DIAG = OPT['diag']

WS_YF = 0x1000
WS_KVF = 0x30000
WS_KV = 0x40000
WS_TS = 0xE0000
WS_Y = 0x100000
WS_SIZE = WS_Y + 64 * 144 * 1024
SLOT = 45056
L_W = 16384; L_S = 40960
SCR = 147456
L_AUG = SCR
L_R = SCR + 2048
L_CS = SCR + 2560
L_KX = SCR + 4608
L_KF = SCR + 4608
L_KF = SCR + 12288 + 0
L_KX = SCR + 4096
L_CS = SCR + 2560
L_CSS = SCR + 12288
LDS_BYTES = 163840

sW, sRB, sG, sF, sROT, sRB2, sCB, sLI = 3, 4, 5, 6, 7, 8, 9, 10
pX, pWQKV, pWO, pW1, pB1, pW2, pOUT, pDBG, pWS = 16, 18, 20, 24, 26, 28, 30, 32, 34
SX, SWs, SW2, SWO, SWS, SOUT, SB1, SDBG = 36, 40, 44, 48, 52, 56, 60, 64
sNON = 68
sT = 70
sTS = 80

LOG2E = 0x3fb8aa3b
EPS6 = 0x358637bd
EPS5 = 0x3727c5ac

def srd(e, d, p, n):
    e(f's_mov_b32 s{d}, s{p}\ns_mov_b32 s{d+1}, s{p+1}\ns_mov_b32 s{d+2}, {n}\ns_mov_b32 s{d+3}, 0x20000')

def ts(e, k):
    if DIAG:
        e(f's_memrealtime s[{sTS+2*k}:{sTS+2*k+1}]\ns_waitcnt lgkmcnt(0)')

def ts_dump(e, nst, wave_off):
    if not DIAG: return
    if DIAG == 2:
        if wave_off == 0: return
        Ls = lab('dd')
        e(f's_cmp_lg_u32 s{sW}, 0\ns_cbranch_scc1 {Ls}')
        e('s_memtime s[72:73]\ns_waitcnt lgkmcnt(0)\nv_mov_b32 v1, 0')
        for k in range(nst): e(f'v_writelane_b32 v1, s{sTS+2*k}, {2+k}')
        e(f's_not_b32 s{sT}, s{sTS}\nv_writelane_b32 v1, s{sT}, 13')
        e(f's_sub_u32 s72, s72, s22\ns_sub_u32 s73, s{sTS+2*(nst-1)}, s{sTS+2}\ns_cmp_eq_u32 s2, 0\ns_cselect_b32 s72, s72, 0\ns_cselect_b32 s73, s73, 0')
        e('v_writelane_b32 v1, s72, 14\nv_writelane_b32 v1, s73, 15')
        e('v_lshlrev_b32 v2, 2, v0\ns_mov_b64 exec, 0xfffc')
        e(f'buffer_atomic_umax v1, v2, s[{SDBG}:{SDBG+3}], 0 offen\ns_mov_b64 exec, -1')
        e(f'{Ls}:')
        return
    e('v_mov_b32 v1, 0')
    for k in range(nst): e(f'v_writelane_b32 v1, s{sTS+2*k}, {k}')
    e(f's_lshl_b32 s{sT}, s2, 3\ns_add_u32 s{sT}, s{sT}, s{sW}\ns_add_u32 s{sT}, s{sT}, {wave_off}\ns_lshl_b32 s{sT}, s{sT}, 6\ns_add_u32 s{sT}, s{sT}, {WS_TS}')
    e('v_lshlrev_b32 v2, 2, v0\nv_cmp_gt_u32 vcc, 16, v0\ns_and_saveexec_b64 s[72:73], vcc')
    e(f'buffer_store_dword v1, v2, s[{SWS}:{SWS+3}], s{sT} offen\ns_mov_b64 exec, s[72:73]')

_lab = [0]
def lab(p):
    _lab[0] += 1
    return f'L_{p}_{_lab[0]}'

def poll(e, voff, tmp, soff='0'):
    L, D = lab('poll'), lab('pdone')
    e(f's_mov_b32 s{sT+9}, 200000')
    e(f'{L}:')
    e(f'buffer_load_dwordx2 v[{tmp}:{tmp+1}], v{voff}, s[{SWS}:{SWS+3}], {soff} offen sc1')
    e('s_waitcnt vmcnt(0)')
    e(f'v_cmp_eq_u64 vcc, s[{sNON}:{sNON+1}], v[{tmp}:{tmp+1}]')
    e('s_cmp_eq_u64 vcc, -1')
    e(f's_cbranch_scc1 {D}')
    e(f's_sub_u32 s{sT+9}, s{sT+9}, 1\ns_cmp_eq_u32 s{sT+9}, 0\ns_cbranch_scc1 {D}\ns_sleep 1\ns_branch {L}')
    e(f'{D}:')

def interleave(e, groups, fill):
    n = len(groups)
    if n == 0:
        for l in fill: e(l)
        return
    per = len(fill) / n
    done = 0
    for i, g in enumerate(groups):
        for l in g: e(l)
        upto = int(round(per * (i + 1)))
        for l in fill[done:upto]: e(l)
        done = upto

POS2U = list(range(24)) + [24, 25, 28, 26, 27, 29] + list(range(30, 36))

def helper(e, F):
    RS = 3584 if F else 3072
    vX, vWo, vS, vB, vA, vD, vAcc, vL16, vBuf = 2, 6, 8, 9, 12, 20, 36, 11, 112
    sXB, sWB, sHX, sHW, sHS, sSD, sB2 = 11, 12, 13, 14, 15, 78, 77
    e('v_lshrrev_b32 v40, 3, v0\nv_and_b32 v41, 7, v0\nv_lshrrev_b32 v42, 4, v0')
    e('v_xor_b32 v43, v41, v42\nv_lshlrev_b32 v43, 4, v43\nv_lshl_add_u32 v%d, v40, 10, v43' % vX)
    e(f'v_xor_b32 v{vX+1}, 64, v{vX}\nv_add_u32 v{vX+1}, {8192-1024}, v{vX+1}')
    e(f'v_add_u32 v{vX+2}, {2*(8192-1024)}, v{vX}\nv_add_u32 v{vX+3}, {2*(8192-1024)}, v{vX+1}')
    e('v_and_b32 v43, 1, v42\nv_lshlrev_b32 v43, 2, v43\nv_xor_b32 v43, v41, v43\nv_lshlrev_b32 v43, 4, v43')
    e(f'v_mul_u32_u24 v44, {RS}, v40\nv_add_u32 v{vWo}, v44, v43\nv_add_u32 v{vWo+1}, {8*RS-1024}, v{vWo}')
    if F:
        e(f'v_lshrrev_b32 v44, 2, v0\nv_mul_u32_u24 v44, {RS}, v44\nv_and_b32 v45, 3, v0\nv_lshl_add_u32 v{vS}, v45, 4, v44')
    e(f's_lshl_b32 s{sHX}, s{sW}, 12\ns_lshl_b32 s{sHW}, s{sW}, 11\ns_lshl_b32 s{sHS}, s{sW}, 10')
    e(f's_lshl_b32 s{sXB}, s{sRB}, 17\ns_lshl_b32 s{sT}, s{sW}, 15\ns_add_u32 s{sXB}, s{sXB}, s{sT}')
    e(f's_mul_i32 s{sWB}, s{sW}, {16*RS}')
    if F:
        e(f's_lshr_b32 s{sT}, s{sG}, 1\ns_mul_i32 s{sT}, s{sT}, 896\ns_add_u32 s{sWB}, s{sWB}, s{sT}')
        e(f's_and_b32 s{sT}, s{sG}, 1\ns_lshl_b32 s{sT+1}, s{sT}, 9\ns_add_u32 s{sWB}, s{sWB}, s{sT+1}')
        e(f's_mul_i32 s{sSD}, s{sT}, -448\ns_add_u32 s{sSD}, s{sSD}, 384')
    else:
        e(f's_lshl_b32 s{sT}, s{sG}, 7\ns_add_u32 s{sWB}, s{sWB}, s{sT}')
    e('s_waitcnt lgkmcnt(0)')
    srd(e, SX, pX, 2048 * 1024)
    srd(e, SWs, pW1 if F else pWQKV, 512 * RS)
    ust = 128 if F else 1024

    def chunk_groups(c):
        L = (c % 3) * SLOT
        g = []
        pre = [f's_add_u32 s{sT}, s{sROT}, {c}', f's_and_b32 s{sT}, s{sT}, 7', f's_lshl_b32 s{sT+1}, s{sT}, 7',
               f's_add_u32 s{sT+1}, s{sT+1}, s{sXB}', f's_add_u32 m0, s{sHX}, {L}', f's_mul_i32 s{sT+2}, s{sT}, {64*RS}']
        for i in range(4):
            g.append((pre if i == 0 else []) + [f'buffer_load_dwordx4 v{vX+i}, s[{SX}:{SX+3}], s{sT+1} offen offset:{i*1024} lds'])
        for u in range(3):
            pre = [f's_add_u32 m0, s{sHW}, {L+L_W+u*8192}',
                   f's_add_u32 s{sT+2}, s{sT+2}, s{sWB}' if u == 0 else f's_add_u32 s{sT+3}, s{sT+2}, {u*ust}']
            so = sT + 2 if u == 0 else sT + 3
            for i in range(2):
                g.append((pre if i == 0 else []) + [f'buffer_load_dwordx4 v{vWo+i}, s[{SWs}:{SWs+3}], s{so} offen offset:{i*1024} lds'])
        if F:
            g.append([f's_add_u32 m0, s{sHS}, {L+L_S}', f's_add_u32 s{sT+3}, s{sT+2}, s{sSD}',
                      f'buffer_load_dwordx4 v{vS}, s[{SWs}:{SWs+3}], s{sT+3} offen lds'])
        return g

    def b2_groups(pos):
        U = POS2U[pos]
        S = SW2 if U < 28 else SWO
        off = (U if U < 28 else U - 28) * 65536
        g = []
        for i in range(2):
            pre = [f's_add_u32 s{sT+4}, s{sB2}, {off}'] if i == 0 else []
            if pos < 18:
                if i == 0: pre = [f's_add_u32 m0, s{sHW}, {pos*8192}'] + pre
                g.append(pre + [f'buffer_load_dwordx4 v{vB+i}, s[{S}:{S+3}], s{sT+4} offen offset:{i*1024} lds'])
            else:
                r = vBuf + ((pos - 18) * 2 + i) * 4
                g.append(pre + [f'buffer_load_dwordx4 v[{r}:{r+3}], v{vB+i}, s[{S}:{S+3}], s{sT+4} offen offset:{i*1024}'])
        return g

    tok = {}
    for c in (0, 1):
        for g in chunk_groups(c):
            for l in g: e(l)
        tok[c] = e.vtok()
    ts(e, 1)
    srd(e, SW2, pW2, 1792 * 1024); srd(e, SWO, pWO, 512 * 1024); srd(e, SWS, pWS, WS_SIZE)
    e(f'v_lshl_add_u32 v{vB}, v40, 10, v43\nv_add_u32 v{vB+1}, {8192-1024}, v{vB}')
    e(f's_lshl_b32 s{sB2}, s{sW}, 14\ns_lshl_b32 s{sT}, s{sCB}, 7\ns_add_u32 s{sB2}, s{sB2}, s{sT}')
    e(f'v_lshlrev_b32 v{vL16}, 4, v0\nv_add_u32 v{vL16}, s{sHW}, v{vL16}')
    e('v_and_b32 v44, 31, v0\nv_lshrrev_b32 v45, 5, v0\nv_bfe_u32 v46, v0, 1, 3\nv_xor_b32 v46, v45, v46')
    e(f'v_lshlrev_b32 v47, 7, v44\nv_add_u32 v47, s{sHX}, v47')
    for s in range(4):
        e(f'v_xor_b32 v48, {2*s}, v46\nv_lshl_add_u32 v{vA+s}, v48, 4, v47\nv_add_u32 v{vA+4+s}, {2*SLOT}, v{vA+s}')
    for i in range(4): e(f'v_mov_b32 v{vAcc+i}, 0')
    e('s_mov_b32 s79, 0xffff0000')

    def stats(c):
        sl = c % 3
        rd = [f'ds_read_b128 v[{vD+4*s}:{vD+4*s+3}], v{vA+s+(4 if sl == 2 else 0)} offset:{SLOT if sl == 1 else 0}' for s in range(4)]
        va = []
        for d in range(16):
            if d % 4 == 0: va.append(f's_waitcnt lgkmcnt({3-d//4})')
            t = 50 + 2 * (d & 1)
            va += [f'v_lshlrev_b32 v{t}, 16, v{vD+d}', f'v_and_b32 v{t+1}, s79, v{vD+d}',
                   f'v_add_f32 v{vAcc}, v{vAcc}, v{t}', f'v_add_f32 v{vAcc+1}, v{vAcc+1}, v{t+1}',
                   f'v_fmac_f32 v{vAcc+2}, v{t}, v{t}', f'v_fmac_f32 v{vAcc+3}, v{t+1}, v{t+1}']
        return rd, va

    b2q = list(range(18, 36)) + list(range(11, 18)) + list(range(0, 5)) + list(range(5, 11))
    def take_b2(n):
        g = []
        for _ in range(n): g += b2_groups(b2q.pop(0))
        return g
    for c in range(8):
        e.wait_vm(tok[c])
        e('s_barrier')
        if c == 0: ts(e, 2)
        rd, va = stats(c)
        for l in rd: e(l)
        if c + 2 <= 7:
            interleave(e, chunk_groups(c + 2), va); tok[c + 2] = e.vtok()
        elif c == 6:
            interleave(e, take_b2(6), va)
        else:
            interleave(e, take_b2(2), va[:40])
            for l in va[40:]: e(l)
    S, Q = vAcc, vAcc + 2
    e(f'v_add_f32 v{S}, v{S}, v{S+1}\nv_add_f32 v{Q}, v{Q}, v{Q+1}\nv_mov_b32 v{S+1}, v{S}\nv_mov_b32 v{Q+1}, v{Q}')
    e(f'v_permlane32_swap_b32 v{S+1}, v{S}\nv_permlane32_swap_b32 v{Q+1}, v{Q}')
    e(f'v_add_f32 v{S}, v{S}, v{S+1}\nv_add_f32 v{Q}, v{Q}, v{Q+1}')
    e(f'v_mul_f32 v50, 0xbb000000, v{S}')
    e(f'v_mul_f32 v51, 0x3b000000, v{Q}\nv_fma_f32 v51, -v50, v50, v51\nv_max_f32 v51, 0, v51\nv_add_f32 v51, {EPS5}, v51')
    e('v_rsq_f32 v52, v51\nv_mul_f32 v53, v51, v52')
    e('v_cvt_pk_bf16_f32 v57, v50, v53\nv_lshlrev_b32 v54, 16, v57\nv_and_b32 v55, s79, v57')
    e('v_sub_f32 v54, v50, v54\nv_sub_f32 v55, v53, v55\nv_mov_b32 v59, 0')
    e('v_cvt_pk_bf16_f32 v56, v50, v54\nv_cvt_pk_bf16_f32 v58, v55, v59')
    e(f's_lshl_b32 s{sT}, s{sW}, 5\nv_add_u32 v44, s{sT}, v44\nv_lshlrev_b32 v45, 4, v44\nv_lshlrev_b32 v46, 2, v44')
    e(f'v_add_u32 v45, {L_AUG}, v45\nv_add_u32 v46, {L_R}, v46')
    e('ds_write_b128 v45, v[56:59]\nds_write_b32 v46, v52\ns_waitcnt lgkmcnt(0)')
    e('s_barrier')
    e('s_barrier')
    ts(e, 3)
    if not F:
        for g in take_b2(6):
            for l in g: e(l)
        e('s_barrier')
    n = 0
    while b2q:
        for g in take_b2(1):
            for l in g: e(l)
        n += 1
        if n % 8 == 0: e('s_waitcnt vmcnt(40)')
    ts(e, 4)
    if not F:
        e('s_barrier')
    e('s_waitcnt vmcnt(0)')
    ts(e, 5)
    e('s_barrier')
    for r in range(3):
        e('s_barrier')
        if r: e(f'v_add_u32 v{vL16}, 49152, v{vL16}')
        for k in range(12):
            b = vBuf + (r * 12 + k) * 4
            e(f'ds_write_b128 v{vL16}, v[{b}:{b+3}] offset:{(k//2)*8192+(k&1)*1024}')
        e('s_waitcnt lgkmcnt(0)')
    e('s_barrier')
    ts(e, 6)
    ts_dump(e, 7, 0)
    e('s_endpgm')

ACC = 16
FS = (128, 152)
CS = 176; SEL = 192; AX = 196; AW = 204; AS = 208; BI = 212; NV = 216; L16 = 218; HF = 219; RHO = 220; CSA = 221

def get_nonce(e):
    L, D = lab('non'), lab('nond')
    e(f's_mov_b32 s{sT+9}, 200000')
    e(f'{L}:')
    e(f'v_readfirstlane_b32 s{sNON}, v{NV}\nv_readfirstlane_b32 s{sNON+1}, v{NV+1}')
    e(f's_cmp_lg_u32 s{sNON+1}, 0\ns_cbranch_scc1 {D}')
    e(f's_sub_u32 s{sT+9}, s{sT+9}, 1\ns_cmp_eq_u32 s{sT+9}, 0\ns_cbranch_scc1 {D}')
    e(f'buffer_load_dwordx2 v[{NV}:{NV+1}], off, s[{SDBG}:{SDBG+3}], 0 sc1\ns_waitcnt vmcnt(0)\ns_branch {L}')
    e(f'{D}:')

def put_flag(e, soff):
    e(f'v_mov_b32 v2, s{sNON}\nv_mov_b32 v3, s{sNON+1}\ns_mov_b64 exec, 1')
    e(f'buffer_store_dwordx2 v[2:3], off, s[{SWS}:{SWS+3}], s{soff} sc1')
    e('s_mov_b64 exec, -1')

def compute_p1(e, F):
    NT = 7 if F else 6
    sRH, sCH, sDL, sCNT, sSL, sY0, sY1 = 11, 12, 13, 14, 15, 76, 77
    e(f's_and_b32 s{sRH}, s{sW}, 1\ns_lshr_b32 s{sCH}, s{sW}, 1')
    e(f'v_lshlrev_b32 v{L16}, 4, v0\nv_lshrrev_b32 v{HF}, 5, v0\nv_and_b32 v{RHO}, 31, v0')
    e(f'v_bfe_u32 v2, v0, 1, 3\nv_xor_b32 v2, v{HF}, v2')
    e(f's_lshl_b32 s{sT}, s{sRH}, 13\ns_lshl_b32 s{sT+1}, s{sCH}, 12\ns_add_u32 s{sT}, s{sT}, s{sT+1}')
    e(f'v_lshlrev_b32 v3, 7, v{RHO}\nv_add_u32 v3, s{sT}, v3')
    for s in range(4):
        e(f's_xor_b32 s{sT+2}, s{sW}, {s}\ns_lshl_b32 s{sT+2}, s{sT+2}, 1\nv_xor_b32 v4, s{sT+2}, v2')
        e(f'v_lshl_add_u32 v{AX+2*s}, v4, 4, v3\nv_xor_b32 v{AX+2*s+1}, 0x1000, v{AX+2*s}')
    e('v_bfe_u32 v2, v0, 2, 2\nv_bfe_u32 v3, v0, 4, 1\nv_and_b32 v4, 3, v0\nv_bfe_u32 v5, v0, 3, 1')
    if not F: e(f'v_xor_b32 v3, s{sRH}, v3')
    e(f'v_lshl_add_u32 v2, v{HF}, 3, v2')
    e('v_lshlrev_b32 v4, 3, v4\nv_lshl_add_u32 v4, v3, 5, v4')
    e(f'v_xor_b32 v5, s{sCH}, v5\nv_lshl_add_u32 v5, v5, 6, v4\nv_lshl_add_u32 v5, v2, 7, v5\nv_add_u32 v5, {L_W}, v5')
    e(f'v_lshl_add_u32 v6, v2, 6, v4\nv_add_u32 v6, {L_S}, v6')
    for s in range(4):
        e(f's_xor_b32 s{sT+2}, s{sW}, {s}\ns_lshl_b32 s{sT+3}, s{sT+2}, 11\nv_add_u32 v{AW+s}, s{sT+3}, v5')
        if F: e(f's_lshl_b32 s{sT+3}, s{sT+2}, 10\nv_add_u32 v{AS+s}, s{sT+3}, v6')
    e('v_lshrrev_b32 v2, 2, v0\nv_xor_b32 v2, v2, v0\nv_and_b32 v2, 4, v2\nv_cmp_eq_u32 vcc, 0, v2\nv_mov_b32 v3, 0x3f803f80')
    e(f'v_cndmask_b32 v{SEL}, 0, v3, vcc')
    for i in range(1, 4): e(f'v_mov_b32 v{SEL+i}, v{SEL}')
    e('s_waitcnt lgkmcnt(0)')
    srd(e, SWS, pWS, WS_SIZE); srd(e, SDBG, pDBG, 256); srd(e, SX, pX, 2048 * 1024); srd(e, SOUT, pOUT, 2048 * 1024)
    Ln = lab('nonce_skip')
    e(f's_or_b32 s{sT}, s2, s{sW}\ns_cmp_lg_u32 s{sT}, 0\ns_cbranch_scc1 {Ln}')
    e(f's_load_dwordx2 s[{sT+2}:{sT+3}], s[{pWS}:{pWS+1}], 0\ns_waitcnt lgkmcnt(0)')
    e(f's_mul_i32 s{sT+4}, s{sT+2}, 0x4c957f2d\ns_mul_hi_u32 s{sT+5}, s{sT+2}, 0x4c957f2d')
    e(f's_mul_i32 s{sT+6}, s{sT+3}, 0x4c957f2d\ns_add_u32 s{sT+5}, s{sT+5}, s{sT+6}')
    e(f's_mul_i32 s{sT+6}, s{sT+2}, 0x5851f42d\ns_add_u32 s{sT+5}, s{sT+5}, s{sT+6}')
    e(f's_add_u32 s{sT+4}, s{sT+4}, 0xf767814f\ns_addc_u32 s{sT+5}, s{sT+5}, 0x14057b7e\ns_or_b32 s{sT+5}, s{sT+5}, 0x80000000')
    e(f'v_mov_b32 v2, s{sT+4}\nv_mov_b32 v3, s{sT+5}\ns_mov_b64 exec, 1')
    e(f'buffer_store_dwordx2 v[2:3], off, s[{SDBG}:{SDBG+3}], 0 sc1')
    e(f'buffer_store_dwordx2 v[2:3], off, s[{SWS}:{SWS+3}], 0 sc1')
    e('s_mov_b64 exec, -1')
    e(f'{Ln}:')
    if OPT['pf']:
        Lp = lab('pf_skip'); Lq = lab('pc')
        e(f's_cmp_lg_u32 s{sW}, 1\ns_cbranch_scc1 {Lp}')
        e(f's_getpc_b64 s[{sT+2}:{sT+3}]')
        e(f'{Lq}:')
        e(f's_sub_u32 s{sT+2}, s{sT+2}, {Lq}-{NAME}_kernel\ns_subb_u32 s{sT+3}, s{sT+3}, 0')
        e(f's_lshl_b32 s{sT+4}, s{sLI}, 10\nv_add_u32 v2, s{sT+4}, v{L16}\nv_min_u32 v2, L_code_end-{NAME}_kernel-16, v2')
        e(f'global_load_dwordx4 v[252:255], v2, s[{sT+2}:{sT+3}]')
        e(f'{Lp}:')
    e(f's_lshl_b32 s{sT}, s{sRB}, 2\ns_lshl_b32 s{sT+1}, s{sRH}, 1\ns_add_u32 s{sT}, s{sT}, s{sT+1}\ns_add_u32 s{sT}, s{sT}, s{sCH}')
    e(f's_xor_b32 s{sT+1}, s{sT}, 1\ns_mul_i32 s{sY0}, s{sT}, {144*1024}\ns_mul_i32 s{sY1}, s{sT+1}, {144*1024}')
    if F:
        srd(e, SB1, pB1, 1792 * 2)
        e(f's_lshr_b32 s{sT}, s{sG}, 1\ns_mul_i32 s{sT}, s{sT}, 448\ns_and_b32 s{sT+1}, s{sG}, 1')
        e(f's_lshl_b32 s{sT+2}, s{sT+1}, 8\ns_add_u32 s{sT+2}, s{sT+2}, s{sT}\ns_lshl_b32 s{sT+3}, s{sCH}, 5\ns_add_u32 s{sT+2}, s{sT+2}, s{sT+3}')
        e(f's_lshl_b32 s{sT+3}, s{sT+1}, 5\ns_add_u32 s{sT+3}, s{sT+3}, s{sT}\ns_add_u32 s{sT+3}, s{sT+3}, 192')
        e(f'v_lshlrev_b32 v2, 1, v{RHO}\ns_lshl_b32 s{sT+4}, s{sT+2}, 1\ns_lshl_b32 s{sT+5}, s{sT+3}, 1')
        for u in range(3): e(f'buffer_load_ushort v{BI+u}, v2, s[{SB1}:{SB1+3}], s{sT+4} offen offset:{u*128}')
        e(f'buffer_load_ushort v{BI+3}, v2, s[{SB1}:{SB1+3}], s{sT+5} offen')
        e(f's_lshl_b32 s{sT+3}, s{sT+3}, 6\ns_add_u32 s78, s{sY0}, s{sT+3}\ns_add_u32 s78, s78, {WS_Y}')
        e(f's_lshl_b32 s{sT+2}, s{sT+2}, 6\ns_add_u32 s{sT+2}, s{sT+2}, {WS_Y}')
    else:
        e(f's_lshl_b32 s{sT+2}, s{sG}, 12\ns_lshl_b32 s{sT+3}, s{sCH}, 11\ns_add_u32 s{sT+2}, s{sT+2}, s{sT+3}\ns_add_u32 s{sT+2}, s{sT+2}, {WS_Y+112*1024}')
    e(f's_add_u32 s{sY0}, s{sY0}, s{sT+2}\ns_add_u32 s{sY1}, s{sY1}, s{sT+2}')
    for i in range(NT * 16): e(f'v_mov_b32 v{ACC+i}, 0')
    for i in range(16): e(f'v_mov_b32 v{CS+i}, 0')
    e(f's_mov_b32 s{sCNT}, 0\ns_mov_b32 s{sSL}, 0\ns_mov_b32 s75, {-2*SLOT}')
    e('s_setprio 1')

    def reads(s, st):
        b = FS[st]
        r = [f'ds_read_b128 v[{b}:{b+3}], v{AX+2*s}']
        for j in range(2): r.append(f'ds_read_b64_tr_b16 v[{b+8+2*j}:{b+9+2*j}], v{AW+s} offset:{j*512}')
        r.append(f'ds_read_b128 v[{b+4}:{b+7}], v{AX+2*s+1}')
        for u in (1, 2):
            for j in range(2): r.append(f'ds_read_b64_tr_b16 v[{b+8+4*u+2*j}:{b+9+4*u+2*j}], v{AW+s} offset:{u*8192+j*512}')
        if F:
            for j in range(2): r.append(f'ds_read_b64_tr_b16 v[{b+20+2*j}:{b+21+2*j}], v{AS+s} offset:{j*256}')
        return r
    def mf(t, xr, wr):
        a = ACC + 16 * t
        tr = F or t < 2
        A, B = (wr, xr) if tr else (xr, wr)
        return f'v_mfma_f32_32x32x16_bf16 v[{a}:{a+15}], v[{A}:{A+3}], v[{B}:{B+3}], v[{a}:{a+15}]'
    def mfmas(s, st):
        b = FS[st]
        m = []
        for u in range(3):
            for crt in range(2): m.append(mf(2 * u + crt, b + 4 * crt, b + 8 + 4 * u))
            if s % 2 == 0: m.append(f'v_mfma_f32_16x16x32_bf16 v[{CS+4*u}:{CS+4*u+3}], v[{SEL}:{SEL+3}], v[{b+8+4*u}:{b+11+4*u}], v[{CS+4*u}:{CS+4*u+3}]')
        if F:
            m.append(mf(6, b, b + 20))
            if s == 0: m.append(f'v_mfma_f32_16x16x32_bf16 v[{CS+12}:{CS+15}], v[{SEL}:{SEL+3}], v[{b+20}:{b+23}], v[{CS+12}:{CS+15}]')
        return m
    ts(e, 1)
    if DIAG == 2: e('s_memtime s[22:23]\ns_waitcnt lgkmcnt(0)')
    e('s_barrier')
    ts(e, 2)
    for l in reads(0, 0): e(l)
    LK = lab('kloop')
    e(f'{LK}:')
    for s in range(4):
        st = s & 1
        m = mfmas(s, st)
        e('s_waitcnt lgkmcnt(0)')
        if s < 3:
            r = reads(s + 1, st ^ 1)
            upd = []
            if s == 0:
                upd = [f's_add_u32 s{sSL}, s{sSL}, 1', f's_cmp_eq_u32 s{sSL}, 3', f's_cselect_b32 s{sDL}, s75, {SLOT}',
                       f's_cselect_b32 s{sSL}, 0, s{sSL}']
            ad = [AX + 2 * s, AX + 2 * s + 1, AW + s] + ([AS + s] if F else [])
            upd += [f'v_add_u32 v{a}, s{sDL}, v{a}' for a in ad]
            for i, x in enumerate(m):
                e(x)
                for l in r[2 * i:2 * i + 2]: e(l)
                if i == len(m) - 2:
                    for l in upd: e(l)
        else:
            bp = OPT['barpos']
            r = reads(0, st ^ 1)
            ad = [AX + 6, AX + 7, AW + 3] + ([AS + 3] if F else [])
            k = 0
            for i, x in enumerate(m):
                if i == bp: e('s_barrier')
                if i >= bp:
                    n = -(-(len(r) - k) // max(1, len(m) - i - 1)) if i < len(m) - 1 else len(r) - k
                    for l in r[k:k + n]: e(l)
                    k += n
                e(x)
                if i == 0:
                    for a in ad: e(f'v_add_u32 v{a}, s{sDL}, v{a}')
                    e(f's_add_u32 s{sCNT}, s{sCNT}, 1\ns_cmp_lt_u32 s{sCNT}, 8')
    e(f's_cbranch_scc1 {LK}')
    ts(e, 3)
    e(f'buffer_load_dwordx2 v[{NV}:{NV+1}], off, s[{SDBG}:{SDBG+3}], 0 sc1')
    e(f'v_lshlrev_b32 v2, 2, v{RHO}')
    if not F: e(f's_lshl_b32 s{sT}, s{sRH}, 6\nv_xor_b32 v2, s{sT}, v2')
    e(f's_mul_i32 s{sT}, s{sW}, 384\ns_add_u32 s{sT}, s{sT}, {L_CS}\nv_add_u32 v3, s{sT}, v2')
    e(f's_xor_b32 s{sT}, s{sW}, 1\ns_mul_i32 s{sT}, s{sT}, 384\ns_add_u32 s{sT}, s{sT}, {L_CS}\nv_add_u32 v4, s{sT}, v2')
    for u in range(3): e(f'ds_write_b32 v3, v{CS+4*u} offset:{u*128}')
    if F:
        e(f's_lshl_b32 s{sT}, s{sW}, 7\nv_add_u32 v5, {L_CSS}, v2\nv_add_u32 v6, s{sT}, v5\nds_write_b32 v6, v{CS+12}')
    e(f's_lshl_b32 s{sT}, s{sRH}, 6\ns_lshl_b32 s{sT+1}, s{sCH}, 5\ns_add_u32 s{sT}, s{sT}, s{sT+1}')
    e(f'v_add_u32 v7, s{sT}, v{RHO}\nv_lshlrev_b32 v8, 4, v7\nv_xor_b32 v9, 512, v8\nv_add_u32 v8, {L_AUG}, v8\nv_add_u32 v9, {L_AUG}, v9')
    e(f'v_lshlrev_b32 v10, 2, v7\nv_xor_b32 v11, 128, v10\nv_add_u32 v10, {L_R}, v10\nv_add_u32 v11, {L_R}, v11')
    e(f'v_cmp_eq_u32 vcc, 0, v{HF}')
    e('s_waitcnt lgkmcnt(0)')
    e('s_barrier')
    XA = 128; WA = 136; PC = 152; RR = 160; RL = 162; M2 = 164
    for u in range(3): e(f'ds_read_b32 v{PC+u}, v4 offset:{u*128}')
    if F:
        for w in range(4): e(f'ds_read_b32 v{PC+3+w}, v5 offset:{w*128}')
    e(f'ds_read_b128 v[{XA}:{XA+3}], v8\nds_read_b128 v[{XA+4}:{XA+7}], v9\nds_read_b32 v{RR}, v10\nds_read_b32 v{RR+1}, v11')
    RV = 224
    if not F:
        e(f's_lshl_b32 s{sT}, s{sT}, 2\nv_lshlrev_b32 v12, 4, v{HF}\nv_add_u32 v12, s{sT}, v12\nv_xor_b32 v13, 128, v12')
        e(f'v_add_u32 v12, {L_R}, v12\nv_add_u32 v13, {L_R}, v13')
    e('s_waitcnt vmcnt(1) lgkmcnt(0)')
    if not F:
        for crt in range(2):
            for q in range(4): e(f'ds_read_b128 v[{RV+16*crt+4*q}:{RV+16*crt+4*q+3}], v{12+crt} offset:{q*32}')
    e('s_mov_b32 s79, 0xffff0000')
    for u in range(4 if F else 3):
        w = WA + 4 * u
        if u < 3: e(f'v_add_f32 v2, v{CS+4*u}, v{PC+u}')
        else: e(f'v_add_f32 v2, v{PC+3}, v{PC+4}\nv_add_f32 v3, v{PC+5}, v{PC+6}\nv_add_f32 v2, v2, v3')
        e('v_cndmask_b32 v2, 0, v2, vcc')
        e(f'v_cvt_pk_bf16_f32 v{w}, v2, v2\nv_and_b32 v3, s79, v{w}\nv_sub_f32 v3, v2, v3\nv_mov_b32 v{w+3}, 0')
        if F:
            e(f'v_cndmask_b32 v{w+2}, 0, v{BI+u}, vcc\nv_lshlrev_b32 v14, 16, v{w+2}\nv_cvt_pk_bf16_f32 v{w+1}, v3, v14')
        else:
            e(f'v_mov_b32 v{w+2}, 0\nv_cvt_pk_bf16_f32 v{w+1}, v3, v{w+3}')
    order = [0, 1, 2, 3, 4, 5, 6] if F else [2, 3, 4, 5, 0, 1]
    for t in order:
        e(mf(t, XA + 4 * (t & 1) if t < 6 else XA, WA + 4 * (t >> 1)))
    e(f's_mov_b32 s{sT+5}, {LOG2E}')
    for crt in range(2):
        e(f'v_mul_f32 v{RL+crt}, s{sT+5}, v{RR+crt}\nv_mul_f32 v{M2+crt}, -2.0, v{RR+crt}')
    U = 176; P = 192
    def sel2(crt): return f'op_sel:[0,{crt}] op_sel_hi:[1,{crt}]'
    if F:
        for t in range(7):
            a = ACC + 16 * t; crt = t & 1 if t < 6 else 0; p = P + 8 * (t & 1)
            for i in range(0, 16, 2): e(f'v_pk_mul_f32 v[{U+i}:{U+i+1}], v[{a+i}:{a+i+1}], v[{RL}:{RL+1}] {sel2(crt)}')
            for i in range(16): e(f'v_exp_f32 v{U+i}, v{U+i}')
            for i in range(0, 16, 2): e(f'v_pk_add_f32 v[{U+i}:{U+i+1}], v[{U+i}:{U+i+1}], 1.0 op_sel_hi:[1,0]')
            for i in range(0, 16, 2): e(f'v_pk_fma_f32 v[{U+i}:{U+i+1}], v[{U+i}:{U+i+1}], v[{U+i}:{U+i+1}], 1.0 op_sel_hi:[1,1,0]')
            for i in range(16): e(f'v_rcp_f32 v{U+i}, v{U+i}')
            for i in range(0, 16, 2): e(f'v_pk_fma_f32 v[{U+i}:{U+i+1}], v[{U+i}:{U+i+1}], v[{M2}:{M2+1}], v[{RR}:{RR+1}] op_sel:[0,{crt},{crt}] op_sel_hi:[1,{crt},{crt}]')
            for i in range(0, 16, 2): e(f'v_pk_mul_f32 v[{U+i}:{U+i+1}], v[{U+i}:{U+i+1}], v[{a+i}:{a+i+1}]')
            for i in range(8): e(f'v_cvt_pk_bf16_f32 v{p+i}, v{U+2*i}, v{U+2*i+1}')
            if t < 6: e(f's_add_u32 s{sT}, s{sY1 if crt else sY0}, {(t>>1)*4096}'); so = sT
            else: so = 78
            for k in range(2): e(f'buffer_store_dwordx4 v[{p+4*k}:{p+4*k+3}], v{L16}, s[{SWS}:{SWS+3}], s{so} offen offset:{k*1024} sc1')
        ts(e, 4)
        e(f's_lshl_b32 s{sT}, s{sRB}, 1\ns_add_u32 s{sT}, s{sT}, s{sRH}\ns_lshl_b32 s{sT}, s{sT}, 5\ns_lshl_b32 s{sT+1}, s{sG}, 1')
        e(f's_add_u32 s{sT}, s{sT}, s{sT+1}\ns_add_u32 s{sT}, s{sT}, s{sCH}\ns_lshl_b32 s{sT}, s{sT}, 7\ns_add_u32 s{sT}, s{sT}, {WS_YF}')
        e('s_waitcnt vmcnt(0)')
        get_nonce(e)
        put_flag(e, sT)
        ts(e, 5)
    else:
        EP = 166; LG = 168
        e(f'v_mov_b32 v{EP}, {EPS6}\nv_mov_b32 v{LG}, {LOG2E}\nv_mov_b32 v170, 0x3f803f80')
        e(f'v_cmp_gt_u32 vcc, 16, v{RHO}')
        PK = 128; PV = 144; T = 192
        e('s_waitcnt lgkmcnt(0)')
        def phi(a, rsrc, p):
            for i in range(0, 16, 2): e(f'v_pk_fma_f32 v[{T+i}:{T+i+1}], v[{a+i}:{a+i+1}], {rsrc(i)}')
            for i in range(0, 16, 2): e(f'v_pk_mul_f32 v[{U+i}:{U+i+1}], v[{T+i}:{T+i+1}], v[{LG}:{LG+1}] op_sel_hi:[1,0]')
            for i in range(16): e(f'v_exp_f32_e64 v{U+i}, v{U+i} clamp')
            for i in range(16): e(f'v_max_f32 v{T+i}, v{EP}, v{T+i}')
            for i in range(0, 16, 2): e(f'v_pk_add_f32 v[{T+i}:{T+i+1}], v[{T+i}:{T+i+1}], v[{U+i}:{U+i+1}]')
            for i in range(8): e(f'v_cvt_pk_bf16_f32 v{p+i}, v{T+2*i}, v{T+2*i+1}')
        for crt in range(2):
            phi(ACC + 16 * (2 + crt), lambda i: f'v[{RV+16*crt+i}:{RV+16*crt+i+1}], v[{EP}:{EP+1}] op_sel_hi:[1,1,0]', PK + 8 * crt)
        for crt in range(2):
            a = ACC + 16 * (4 + crt)
            for i in range(0, 16, 2): e(f'v_pk_mul_f32 v[{U+i}:{U+i+1}], v[{a+i}:{a+i+1}], v[{RV+16*crt+i}:{RV+16*crt+i+1}]')
            for i in range(8): e(f'v_cvt_pk_bf16_f32 v{PV+8*crt+i}, v{U+2*i}, v{U+2*i+1}')
        B0 = 176; B1 = 192; D0 = ACC + 32; D1 = ACC + 48
        for i in range(16): e(f'v_cndmask_b32 v{B0+i}, v170, v{PV+i}, vcc\nv_cndmask_b32 v{B1+i}, v{PV+i}, v170, vcc')
        for k in range(4):
            for D, B in ((D1, B1), (D0, B0)):
                e(f'v_mfma_f32_32x32x16_bf16 v[{D}:{D+15}], v[{PK+4*k}:{PK+4*k+3}], v[{B+4*k}:{B+4*k+3}], ' + ('0' if k == 0 else f'v[{D}:{D+15}]'))
        e(f's_lshl_b32 s{sT}, s{sW}, 11\ns_add_u32 s{sT}, s{sT}, {L_KX}\nv_xor_b32 v2, 256, v{L16}\nv_add_u32 v2, s{sT}, v2')
        e(f's_xor_b32 s{sT}, s{sW}, 1\ns_lshl_b32 s{sT}, s{sT}, 11\ns_add_u32 s{sT}, s{sT}, {L_KX}\nv_add_u32 v3, s{sT}, v{L16}')
        e(f'v_lshlrev_b32 v4, 8, v{HF}\nv_lshl_add_u32 v4, v{RHO}, 4, v4\nv_add_u32 v5, 512, v4')
        e(f'v_lshlrev_b32 v6, 4, v{HF}\nv_add_u32 v6, 1024, v6\nv_add_u32 v7, 32, v6')
        e('v_cndmask_b32 v4, v6, v4, vcc\nv_cndmask_b32 v5, v7, v5, vcc')
        e(f'v_cmp_ge_u32 vcc, 16, v{RHO}\nv_mov_b32 v6, 0x7ff00000\nv_cndmask_b32 v4, v6, v4, vcc\nv_cndmask_b32 v5, v6, v5, vcc')
        e(f'ds_write_b128 v2, v[{D1+8}:{D1+11}]\nds_write_b128 v2, v[{D1+12}:{D1+15}] offset:1024')
        e('s_waitcnt lgkmcnt(0)')
        e('s_barrier')
        e(f'ds_read_b128 v[{U}:{U+3}], v3\nds_read_b128 v[{U+4}:{U+7}], v3 offset:1024')
        e(f's_lshl_b32 s{sT}, s{sG}, 2\ns_add_u32 s{sT}, s{sT}, s{sW}\ns_lshl_b32 s{sT}, s{sT}, 4')
        e(f's_mul_i32 s{sT+1}, s{sT}, 1152\ns_add_u32 s{sT+1}, s{sT+1}, {WS_KV}')
        e(f's_mul_i32 s{sT+2}, s{sRB}, 1152\ns_add_u32 s{sT+2}, s{sT+2}, s{sT+1}')
        e(f's_lshl_b32 s{sT+3}, s{sT}, 7\ns_add_u32 s{sT+3}, s{sT+3}, {WS_KVF}')
        e(f's_lshl_b32 s{sT+4}, s{sRB}, 7\ns_add_u32 s{sT+4}, s{sT+4}, s{sT+3}')
        e('s_waitcnt lgkmcnt(0)')
        for i in range(8): e(f'v_add_f32 v{U+i}, v{U+i}, v{D0+i}')
        e(f'buffer_store_dwordx4 v[{U}:{U+3}], v4, s[{SWS}:{SWS+3}], s{sT+2} offen sc1')
        e(f'buffer_store_dwordx4 v[{U+4}:{U+7}], v5, s[{SWS}:{SWS+3}], s{sT+2} offen sc1')
        ts(e, 4)
        PQ = 128
        for crt in range(2):
            phi(ACC + 16 * crt, lambda i: f'v[{RR}:{RR+1}], v[{EP}:{EP+1}] op_sel:[0,{crt},0] op_sel_hi:[1,{crt},0]', PQ + 8 * crt)
        e('s_waitcnt vmcnt(0)')
        get_nonce(e)
        put_flag(e, sT + 4)
        e('v_and_b32 v4, 15, v0\nv_lshlrev_b32 v4, 7, v4')
        poll(e, 4, 6, f's{sT+3}')
        ts(e, 5)
        G = 48
        e(f'v_lshrrev_b32 v4, 2, v0\nv_mul_u32_u24 v4, 1152, v4\nv_and_b32 v5, 3, v0\nv_lshl_add_u32 v4, v5, 4, v4')
        e(f'buffer_load_dwordx4 v[112:115], v4, s[{SWS}:{SWS+3}], s{sT+1} offen offset:1024 sc1')
        for r in range(16):
            if r % 3 == 0 and r: e(f's_add_u32 s{sT+1}, s{sT+1}, {3*1152}')
            e(f'buffer_load_dwordx4 v[{G+4*r}:{G+4*r+3}], v{L16}, s[{SWS}:{SWS+3}], s{sT+1} offen offset:{(r%3)*1152} sc1')
        e(f's_lshl_b32 s{sT}, s{sW}, 10\ns_add_u32 s{sT}, s{sT}, {L_KF}')
        e(f'v_bfe_u32 v6, v0, 4, 1\nv_and_b32 v7, 15, v0\nv_lshl_add_u32 v6, v6, 5, v7\nv_lshlrev_b32 v6, 4, v6\nv_lshl_add_u32 v6, v{HF}, 3, v6\nv_add_u32 v6, s{sT}, v6')
        e(f'v_and_b32 v7, 1, v0\nv_lshrrev_b32 v8, 2, v0\nv_lshl_add_u32 v7, v7, 5, v8\nv_lshlrev_b32 v7, 4, v7\nv_bfe_u32 v8, v0, 1, 1\nv_lshl_add_u32 v7, v8, 3, v7\nv_add_u32 v7, s{sT}, v7')
        e(f'v_add_u32 v8, s{sT}, v{L16}\nv_xor_b32 v9, 1024, v8')
        e('s_waitcnt vmcnt(16)')
        for ror in (4, 8):
            for i in range(4): e(f'v_add_f32_dpp v{112+i}, v{112+i}, v{112+i} row_ror:{ror} row_mask:0xf bank_mask:0xf')
        for sw in (16, 32):
            for i in range(4): e(f'v_mov_b32 v{116+i}, v{112+i}')
            for i in range(4): e(f'v_permlane{sw}_swap_b32 v{116+i}, v{112+i}')
            for i in range(4): e(f'v_add_f32 v{112+i}, v{112+i}, v{116+i}')
        e('v_cvt_pk_bf16_f32 v116, v112, v113\nv_cvt_pk_bf16_f32 v117, v114, v115')
        e('ds_write_b64 v7, v[116:117] offset:256')
        for r in range(1, 16):
            e(f's_waitcnt vmcnt({15-r})')
            for i in (0, 2): e(f'v_pk_add_f32 v[{G+i}:{G+i+1}], v[{G+i}:{G+i+1}], v[{G+4*r+i}:{G+4*r+i+1}]')
        e(f'v_cvt_pk_bf16_f32 v118, v{G}, v{G+1}\nv_cvt_pk_bf16_f32 v119, v{G+2}, v{G+3}')
        e('ds_write_b64 v6, v[118:119]\ns_waitcnt lgkmcnt(0)')
        e('s_barrier')
        e('ds_read_b128 v[144:147], v8\nds_read_b128 v[148:151], v9\ns_waitcnt lgkmcnt(0)')
        for crt in range(2):
            for h in range(2):
                d = ACC + 16 * (2 * crt + h)
                e(f'v_mfma_f32_32x32x16_bf16 v[{d}:{d+15}], v[{144+4*h}:{147+4*h}], v[{PQ+8*crt+4*h}:{PQ+8*crt+4*h+3}], 0')
        e(f's_lshl_b32 s{sT}, s{sRH}, 10\ns_xor_b32 s{sT+1}, s{sT}, 1024')
        for crt in range(2):
            for h in range(2):
                d = ACC + 16 * (2 * crt + h); p = P + 4 * (2 * crt + h)
                e(f'v_add_f32 v{d+8}, v{EP}, v{d+8}\nv_rcp_f32 v{d+8}, v{d+8}')
                e(f's_add_u32 s{sT+2}, s{sY1 if crt else sY0}, s{sT+h}')
                for i in range(0, 8, 2): e(f'v_pk_mul_f32 v[{d+i}:{d+i+1}], v[{d+i}:{d+i+1}], v[{d+8}:{d+9}] op_sel_hi:[1,0]')
                for i in range(4): e(f'v_cvt_pk_bf16_f32 v{p+i}, v{d+2*i}, v{d+2*i+1}')
                e(f'buffer_store_dwordx4 v[{p}:{p+3}], v{L16}, s[{SWS}:{SWS+3}], s{sT+2} offen sc1')
        e(f's_lshl_b32 s{sT}, s{sRB}, 1\ns_add_u32 s{sT}, s{sT}, s{sRH}\ns_lshl_b32 s{sT}, s{sT}, 5\ns_lshl_b32 s{sT+1}, s{sG}, 1')
        e(f's_add_u32 s{sT}, s{sT}, s{sT+1}\ns_add_u32 s{sT}, s{sT}, s{sCH}\ns_lshl_b32 s{sT}, s{sT}, 7\ns_add_u32 s{sT}, s{sT}, {WS_YF+16*128}')
        e('s_waitcnt vmcnt(0)')
        put_flag(e, sT)

def compute_p2(e):
    sRH, sKH = 11, 12
    DA = OPT['DA']
    A0 = 48; BF = A0 + 4 * DA; AB = BF + 24; XR = AB + 6 + (AB & 1); VO = XR + 8
    assert VO < 216
    sA3, sA2, sA1 = 13, 14, 15
    ts(e, 6)
    e(f's_lshl_b32 s{sT}, s{sRB2}, 6\ns_lshl_b32 s{sT+1}, s{sRH}, 5\ns_add_u32 s{sT}, s{sT}, s{sT+1}\ns_lshl_b32 s{sT}, s{sT}, 10')
    e(f's_lshl_b32 s{sT+1}, s{sCB}, 7\ns_add_u32 s{sT}, s{sT}, s{sT+1}\ns_lshl_b32 s{sT+1}, s{sKH}, 6\ns_add_u32 s76, s{sT}, s{sT+1}')
    e(f'v_lshlrev_b32 v{VO}, 10, v{RHO}\nv_lshl_add_u32 v{VO}, v{HF}, 5, v{VO}')
    for k in range(2): e(f'buffer_load_dwordx4 v[{XR+4*k}:{XR+4*k+3}], v{VO}, s[{SX}:{SX+3}], s76 offen offset:{k*16}')
    e(f's_lshl_b32 s{sT}, s{sRB2}, 1\ns_add_u32 s{sT}, s{sT}, s{sRH}\ns_mul_i32 s{sT}, s{sT}, {144*1024}\ns_add_u32 s{sT}, s{sT}, {WS_Y}')
    e(f's_lshl_b32 s{sT+1}, s{sKH}, 12\ns_add_u32 s{sA1}, s{sT}, s{sT+1}\ns_add_u32 s{sA2}, s{sA1}, s{sT+1}\ns_add_u32 s{sA3}, s{sA2}, s{sT+1}')
    e('v_bfe_u32 v2, v0, 2, 2\nv_bfe_u32 v3, v0, 4, 1\nv_bfe_u32 v4, v0, 1, 1\nv_and_b32 v5, 1, v0\nv_bfe_u32 v6, v0, 3, 1')
    e(f'v_lshl_add_u32 v2, v{HF}, 2, v2')
    e('v_lshl_add_u32 v3, v3, 1, v4\nv_lshl_add_u32 v3, v5, 2, v3')
    e(f'v_xor_b32 v6, s{sKH}, v6\nv_lshlrev_b32 v3, 3, v3\nv_lshl_add_u32 v3, v6, 6, v3\nv_lshl_add_u32 v3, v2, 7, v3')
    e(f's_mul_i32 s{sT}, s{sKH}, 24576\nv_add_u32 v{AB}, s{sT}, v3\nv_xor_b32 v{AB+1}, 64, v{AB}')
    for k in (1, 2):
        for t in range(2): e(f'v_add_u32 v{AB+2*k+t}, {49152*k}, v{AB+t}')
    e(f'v_lshlrev_b32 v4, 7, v{RHO}\ns_lshl_b32 s{sT+3}, s{sRB2}, 12\ns_add_u32 s{sT+3}, s{sT+3}, {WS_YF}')
    poll(e, 4, 6, f's{sT+3}')
    ts(e, 7)
    tokA = {}
    def loadA(n):
        r, idx, s = n // 12, (n % 12) // 4, n % 4
        U0 = POS2U[6 * r + idx]; dU = POS2U[6 * r + 3 + idx] - U0
        if s == 0: e(f's_add_u32 s{sT}, s{ {3: sA3, 2: sA2, 1: sA1}[dU] }, {U0*4096}')
        a = A0 + 4 * (n % DA)
        e(f'buffer_load_dwordx4 v[{a}:{a+3}], v{L16}, s[{SWS}:{SWS+3}], s{sT} offen offset:{s*1024} sc1')
        tokA[n] = e.vtok()
    def readB(n, t):
        r, idx, s = n // 12, (n % 12) // 4, n % 4
        b = BF + 8 * (n % 3) + 4 * t
        for j in range(2): e(f'ds_read_b64_tr_b16 v[{b+2*j}:{b+2*j+1}], v{AB+2*(r%3)+t} offset:{idx*8192+s*2048+j*1024}')
    for n in range(DA): loadA(n)
    e('s_barrier')
    ts(e, 8)
    for n in (0, 1):
        for t in range(2): readB(n, t)
    for n in range(72):
        bar = (n % 12 == 10) and (n // 12 in (0, 1, 2, 4))
        nv = e.vm - tokA[n]
        lg = 0 if (bar or n == 71) else 4
        e(f's_waitcnt vmcnt({nv}) lgkmcnt({lg})')
        if bar: e('s_barrier')
        a = A0 + 4 * (n % DA)
        for t in range(2):
            if n + 2 < 72: readB(n + 2, t)
            b = BF + 8 * (n % 3) + 4 * t; d = ACC + 16 * t
            e(f'v_mfma_f32_32x32x16_bf16 v[{d}:{d+15}], v[{b}:{b+3}], v[{a}:{a+3}], ' + ('0' if n == 0 else f'v[{d}:{d+15}]'))
        if n + DA < 72: loadA(n + DA)
    ts(e, 9)
    e(f's_lshl_b32 s{sT}, s{sW}, 12\ns_add_u32 s{sT}, s{sT}, {SCR}\nv_add_u32 v2, s{sT}, v{L16}\nv_xor_b32 v3, 0x2000, v2')
    for q in range(4): e(f'ds_write_b128 v2, v[{ACC+16+4*q}:{ACC+19+4*q}] offset:{q*1024}')
    e('s_mov_b32 s79, 0xffff0000')
    for i in range(8): e(f'v_lshlrev_b32 v{64+2*i}, 16, v{XR+i}\nv_and_b32 v{65+2*i}, s79, v{XR+i}')
    for i in range(0, 16, 2): e(f'v_pk_add_f32 v[{ACC+i}:{ACC+i+1}], v[{ACC+i}:{ACC+i+1}], v[{64+i}:{65+i}]')
    e('s_waitcnt lgkmcnt(0)\ns_barrier')
    for q in range(4): e(f'ds_read_b128 v[{48+4*q}:{51+4*q}], v3 offset:{q*1024}')
    for q in range(4):
        e(f's_waitcnt lgkmcnt({3-q})')
        for i in (4 * q, 4 * q + 2):
            e(f'v_pk_add_f32 v[{ACC+i}:{ACC+i+1}], v[{ACC+i}:{ACC+i+1}], v[{48+i}:{49+i}]')
            e(f'v_cvt_pk_bf16_f32 v{64+i//2}, v{ACC+i}, v{ACC+i+1}')
        if q & 1: e(f'buffer_store_dwordx4 v[{64+4*(q>>1)}:{67+4*(q>>1)}], v{VO}, s[{SOUT}:{SOUT+3}], s76 offen offset:{(q>>1)*16}')
    if DIAG: e('s_waitcnt vmcnt(0)')
    ts(e, 10)
    ts_dump(e, 11, 4)
    e('s_endpgm')

def main():
    e = Emit()
    e('s_cmp_ge_u32 s2, 256\ns_cbranch_scc1 L_end')
    e('s_load_dwordx16 s[16:31], s[0:1], 0\ns_load_dwordx4 s[32:35], s[0:1], 64')
    if DIAG: e(f's_memrealtime s[{sTS}:{sTS+1}]')
    e(f'v_readfirstlane_b32 s{sW}, v0\nv_and_b32 v0, 63, v0')
    e(f's_lshr_b32 s{sLI}, s2, 3\ns_bfe_u32 s{sRB}, s2, 0x10002\ns_lshl_b32 s{sRB}, s{sRB}, 3\ns_lshr_b32 s{sT}, s2, 5\ns_add_u32 s{sRB}, s{sRB}, s{sT}')
    e(f's_and_b32 s{sG}, s2, 3\ns_lshl_b32 s{sG}, s{sG}, 1\ns_and_b32 s{sT}, s{sLI}, 1\ns_add_u32 s{sG}, s{sG}, s{sT}')
    if OPT['rot']:
        e(f's_and_b32 s{sT}, s{sLI}, 3\ns_lshl_b32 s{sT}, s{sT}, 1\ns_add_u32 s{sROT}, s{sRB}, s{sT}')
    else:
        e(f's_mov_b32 s{sROT}, 0')
    e(f's_and_b32 s{sRB2}, s2, 7\ns_lshl_b32 s{sRB2}, s{sRB2}, 2\ns_lshr_b32 s{sT}, s2, 6\ns_add_u32 s{sRB2}, s{sRB2}, s{sT}\ns_and_b32 s{sCB}, s{sLI}, 7')
    e(f's_lshr_b32 s{sW}, s{sW}, 6\ns_bfe_u32 s{sF}, s2, 0x10004')
    e(f's_cmp_ge_u32 s{sW}, 4\ns_cbranch_scc1 L_compute')
    e(f's_cmp_eq_u32 s{sF}, 0\ns_cbranch_scc1 L_helper_A')
    helper(e, 1)
    e('L_helper_A:'); e.vm = 0
    helper(e, 0)
    e('L_compute:'); e.vm = 0
    e(f's_sub_u32 s{sW}, s{sW}, 4\ns_cmp_eq_u32 s{sF}, 0\ns_cbranch_scc1 L_compute_A')
    compute_p1(e, 1)
    e('s_branch L_p2')
    e('L_compute_A:')
    compute_p1(e, 0)
    e('L_p2:')
    compute_p2(e)
    e('L_end:\ns_endpgm\nL_code_end:')
    lines, n = hazard_pass_fast(e.lines)
    hdr = open('cdna_kernels/%s.s.ref' % NAME).read().split('; Override launch')[0]
    out = hdr + f'; @launch grid=(256,1,1) block=(512,1,1) lds={LDS_BYTES}\n'
    out += f'.amdgcn_target "amdgcn-amd-amdhsa--gfx950"\n.text\n.globl {NAME}_kernel\n.p2align 8\n.type {NAME}_kernel,@function\n{NAME}_kernel:\n'
    out += '\n'.join(lines) + '\n'
    out += f'''.section .rodata,"a"
.p2align 6
.amdhsa_kernel {NAME}_kernel
  .amdhsa_next_free_vgpr 256
  .amdhsa_next_free_sgpr 102
  .amdhsa_accum_offset 256
  .amdhsa_group_segment_fixed_size 0
  .amdhsa_kernarg_size 80
  .amdhsa_user_sgpr_count 2
  .amdhsa_user_sgpr_kernarg_segment_ptr 1
  .amdhsa_system_sgpr_workgroup_id_x 1
  .amdhsa_float_denorm_mode_32 3
.end_amdhsa_kernel
'''
    open(sys.argv[1], 'w').write(out)
    print('wrote', sys.argv[1], len(lines), 'lines,', n, 'hazard pads')

main()
```

```python
import sys
from asmlib import *

NAME = 'parallel_sum__linear_attn_block__dense_activation_mish__prompt'
OPT = dict(diag=0, rot=1, DA=24, barpos=3, pf=1)
for a in sys.argv[2:]:
    k, v = a.split('='); OPT[k] = int(v)
DIAG = OPT['diag']

WS_YF = 0x1000
WS_KVF = 0x30000
WS_KV = 0x40000
WS_TS = 0xE0000
WS_Y = 0x100000
WS_SIZE = WS_Y + 64 * 144 * 1024
SLOT = 45056
L_W = 16384; L_S = 40960
SCR = 147456
L_AUG = SCR
L_R = SCR + 2048
L_CS = SCR + 2560
L_KX = SCR + 4608
L_KF = SCR + 4608
L_KF = SCR + 12288 + 0
L_KX = SCR + 4096
L_CS = SCR + 2560
L_CSS = SCR + 12288
LDS_BYTES = 163840

sW, sRB, sG, sF, sROT, sRB2, sCB, sLI = 3, 4, 5, 6, 7, 8, 9, 10
pX, pWQKV, pWO, pW1, pB1, pW2, pOUT, pDBG, pWS = 16, 18, 20, 24, 26, 28, 30, 32, 34
SX, SWs, SW2, SWO, SWS, SOUT, SB1, SDBG = 36, 40, 44, 48, 52, 56, 60, 64
sNON = 68
sT = 70
sTS = 80

LOG2E = 0x3fb8aa3b
EPS6 = 0x358637bd
EPS5 = 0x3727c5ac

def srd(e, d, p, n):
    e(f's_mov_b32 s{d}, s{p}\ns_mov_b32 s{d+1}, s{p+1}\ns_mov_b32 s{d+2}, {n}\ns_mov_b32 s{d+3}, 0x20000')

def ts(e, k):
    if DIAG:
        e(f's_memrealtime s[{sTS+2*k}:{sTS+2*k+1}]\ns_waitcnt lgkmcnt(0)')

def ts_dump(e, nst, wave_off):
    if not DIAG: return
    if DIAG == 3:
        if wave_off == 0: return
        Ls = lab('dd'); Lw = lab('dw')
        e(f's_cmp_lg_u32 s{sW}, 0\ns_cbranch_scc1 {Ls}\ns_cmp_lg_u32 s2, {OPT["wg"]}\ns_cbranch_scc1 {Ls}')
        e(f's_sub_u32 s{sT}, s{sTS+2*OPT["ib"]}, s{sTS+2*OPT["ia"]}\ns_min_u32 s{sT}, s{sT}, 10000\ns_mul_i32 s{sT}, s{sT}, 20')
        e(f'{Lw}:')
        e(f's_memrealtime s[72:73]\ns_waitcnt lgkmcnt(0)\ns_sub_u32 s72, s72, s{sTS+2*(nst-1)}\ns_cmp_lt_u32 s72, s{sT}\ns_cbranch_scc1 {Lw}')
        e(f'{Ls}:')
        return
    if DIAG == 2:
        if wave_off == 0: return
        Ls = lab('dd')
        e(f's_cmp_lg_u32 s{sW}, 0\ns_cbranch_scc1 {Ls}')
        e('s_memtime s[72:73]\ns_waitcnt lgkmcnt(0)\nv_mov_b32 v1, 0')
        for k in range(nst): e(f'v_writelane_b32 v1, s{sTS+2*k}, {2+k}')
        e(f's_not_b32 s{sT}, s{sTS}\nv_writelane_b32 v1, s{sT}, 13')
        e(f's_sub_u32 s72, s72, s22\ns_sub_u32 s73, s{sTS+2*(nst-1)}, s{sTS+2}\ns_cmp_eq_u32 s2, 0\ns_cselect_b32 s72, s72, 0\ns_cselect_b32 s73, s73, 0')
        e('v_writelane_b32 v1, s72, 14\nv_writelane_b32 v1, s73, 15')
        e('v_lshlrev_b32 v2, 2, v0\ns_mov_b64 exec, 0xfffc')
        e(f'buffer_atomic_umax v1, v2, s[{SDBG}:{SDBG+3}], 0 offen\ns_mov_b64 exec, -1')
        e(f'{Ls}:')
        return
    e('v_mov_b32 v1, 0')
    for k in range(nst): e(f'v_writelane_b32 v1, s{sTS+2*k}, {k}')
    e(f's_lshl_b32 s{sT}, s2, 3\ns_add_u32 s{sT}, s{sT}, s{sW}\ns_add_u32 s{sT}, s{sT}, {wave_off}\ns_lshl_b32 s{sT}, s{sT}, 6\ns_add_u32 s{sT}, s{sT}, {WS_TS}')
    e('v_lshlrev_b32 v2, 2, v0\nv_cmp_gt_u32 vcc, 16, v0\ns_and_saveexec_b64 s[72:73], vcc')
    e(f'buffer_store_dword v1, v2, s[{SWS}:{SWS+3}], s{sT} offen\ns_mov_b64 exec, s[72:73]')

_lab = [0]
def lab(p):
    _lab[0] += 1
    return f'L_{p}_{_lab[0]}'

def poll(e, voff, tmp, soff='0'):
    L, D = lab('poll'), lab('pdone')
    e(f's_mov_b32 s{sT+9}, 200000')
    e(f'{L}:')
    e(f'buffer_load_dwordx2 v[{tmp}:{tmp+1}], v{voff}, s[{SWS}:{SWS+3}], {soff} offen sc1')
    e('s_waitcnt vmcnt(0)')
    e(f'v_cmp_eq_u64 vcc, s[{sNON}:{sNON+1}], v[{tmp}:{tmp+1}]')
    e('s_cmp_eq_u64 vcc, -1')
    e(f's_cbranch_scc1 {D}')
    e(f's_sub_u32 s{sT+9}, s{sT+9}, 1\ns_cmp_eq_u32 s{sT+9}, 0\ns_cbranch_scc1 {D}\ns_sleep 1\ns_branch {L}')
    e(f'{D}:')

def interleave(e, groups, fill):
    n = len(groups)
    if n == 0:
        for l in fill: e(l)
        return
    per = len(fill) / n
    done = 0
    for i, g in enumerate(groups):
        for l in g: e(l)
        upto = int(round(per * (i + 1)))
        for l in fill[done:upto]: e(l)
        done = upto

POS2U = list(range(24)) + [24, 25, 28, 26, 27, 29] + list(range(30, 36))

def helper(e, F):
    RS = 3584 if F else 3072
    vX, vWo, vS, vB, vA, vD, vAcc, vL16, vBuf = 2, 6, 8, 9, 12, 20, 36, 11, 112
    sXB, sWB, sHX, sHW, sHS, sSD, sB2 = 11, 12, 13, 14, 15, 78, 77
    e('v_lshrrev_b32 v40, 3, v0\nv_and_b32 v41, 7, v0\nv_lshrrev_b32 v42, 4, v0')
    e('v_xor_b32 v43, v41, v42\nv_lshlrev_b32 v43, 4, v43\nv_lshl_add_u32 v%d, v40, 10, v43' % vX)
    e(f'v_xor_b32 v{vX+1}, 64, v{vX}\nv_add_u32 v{vX+1}, {8192-1024}, v{vX+1}')
    e(f'v_add_u32 v{vX+2}, {2*(8192-1024)}, v{vX}\nv_add_u32 v{vX+3}, {2*(8192-1024)}, v{vX+1}')
    e('v_and_b32 v43, 1, v42\nv_lshlrev_b32 v43, 2, v43\nv_xor_b32 v43, v41, v43\nv_lshlrev_b32 v43, 4, v43')
    e(f'v_mul_u32_u24 v44, {RS}, v40\nv_add_u32 v{vWo}, v44, v43\nv_add_u32 v{vWo+1}, {8*RS-1024}, v{vWo}')
    if F:
        e(f'v_lshrrev_b32 v44, 2, v0\nv_mul_u32_u24 v44, {RS}, v44\nv_and_b32 v45, 3, v0\nv_lshl_add_u32 v{vS}, v45, 4, v44')
    e(f's_lshl_b32 s{sHX}, s{sW}, 12\ns_lshl_b32 s{sHW}, s{sW}, 11\ns_lshl_b32 s{sHS}, s{sW}, 10')
    e(f's_lshl_b32 s{sXB}, s{sRB}, 17\ns_lshl_b32 s{sT}, s{sW}, 15\ns_add_u32 s{sXB}, s{sXB}, s{sT}')
    e(f's_mul_i32 s{sWB}, s{sW}, {16*RS}')
    if F:
        e(f's_lshr_b32 s{sT}, s{sG}, 1\ns_mul_i32 s{sT}, s{sT}, 896\ns_add_u32 s{sWB}, s{sWB}, s{sT}')
        e(f's_and_b32 s{sT}, s{sG}, 1\ns_lshl_b32 s{sT+1}, s{sT}, 9\ns_add_u32 s{sWB}, s{sWB}, s{sT+1}')
        e(f's_mul_i32 s{sSD}, s{sT}, -448\ns_add_u32 s{sSD}, s{sSD}, 384')
    else:
        e(f's_lshl_b32 s{sT}, s{sG}, 7\ns_add_u32 s{sWB}, s{sWB}, s{sT}')
    e('s_waitcnt lgkmcnt(0)')
    srd(e, SX, pX, 2048 * 1024)
    srd(e, SWs, pW1 if F else pWQKV, 512 * RS)
    ust = 128 if F else 1024

    def chunk_groups(c):
        L = (c % 3) * SLOT
        g = []
        pre = [f's_add_u32 s{sT}, s{sROT}, {c}', f's_and_b32 s{sT}, s{sT}, 7', f's_lshl_b32 s{sT+1}, s{sT}, 7',
               f's_add_u32 s{sT+1}, s{sT+1}, s{sXB}', f's_add_u32 m0, s{sHX}, {L}', f's_mul_i32 s{sT+2}, s{sT}, {64*RS}']
        for i in range(4):
            g.append((pre if i == 0 else []) + [f'buffer_load_dwordx4 v{vX+i}, s[{SX}:{SX+3}], s{sT+1} offen offset:{i*1024} lds'])
        for u in range(3):
            pre = [f's_add_u32 m0, s{sHW}, {L+L_W+u*8192}',
                   f's_add_u32 s{sT+2}, s{sT+2}, s{sWB}' if u == 0 else f's_add_u32 s{sT+3}, s{sT+2}, {u*ust}']
            so = sT + 2 if u == 0 else sT + 3
            for i in range(2):
                g.append((pre if i == 0 else []) + [f'buffer_load_dwordx4 v{vWo+i}, s[{SWs}:{SWs+3}], s{so} offen offset:{i*1024} lds'])
        if F:
            g.append([f's_add_u32 m0, s{sHS}, {L+L_S}', f's_add_u32 s{sT+3}, s{sT+2}, s{sSD}',
                      f'buffer_load_dwordx4 v{vS}, s[{SWs}:{SWs+3}], s{sT+3} offen lds'])
        return g

    def b2_groups(pos):
        U = POS2U[pos]
        S = SW2 if U < 28 else SWO
        off = (U if U < 28 else U - 28) * 65536
        g = []
        for i in range(2):
            pre = [f's_add_u32 s{sT+4}, s{sB2}, {off}'] if i == 0 else []
            if pos < 18:
                if i == 0: pre = [f's_add_u32 m0, s{sHW}, {pos*8192}'] + pre
                g.append(pre + [f'buffer_load_dwordx4 v{vB+i}, s[{S}:{S+3}], s{sT+4} offen offset:{i*1024} lds'])
            else:
                r = vBuf + ((pos - 18) * 2 + i) * 4
                g.append(pre + [f'buffer_load_dwordx4 v[{r}:{r+3}], v{vB+i}, s[{S}:{S+3}], s{sT+4} offen offset:{i*1024}'])
        return g

    tok = {}
    for c in (0, 1):
        for g in chunk_groups(c):
            for l in g: e(l)
        tok[c] = e.vtok()
    ts(e, 1)
    srd(e, SW2, pW2, 1792 * 1024); srd(e, SWO, pWO, 512 * 1024); srd(e, SWS, pWS, WS_SIZE)
    e(f'v_lshl_add_u32 v{vB}, v40, 10, v43\nv_add_u32 v{vB+1}, {8192-1024}, v{vB}')
    e(f's_lshl_b32 s{sB2}, s{sW}, 14\ns_lshl_b32 s{sT}, s{sCB}, 7\ns_add_u32 s{sB2}, s{sB2}, s{sT}')
    e(f'v_lshlrev_b32 v{vL16}, 4, v0\nv_add_u32 v{vL16}, s{sHW}, v{vL16}')
    e('v_and_b32 v44, 31, v0\nv_lshrrev_b32 v45, 5, v0\nv_bfe_u32 v46, v0, 1, 3\nv_xor_b32 v46, v45, v46')
    e(f'v_lshlrev_b32 v47, 7, v44\nv_add_u32 v47, s{sHX}, v47')
    for s in range(4):
        e(f'v_xor_b32 v48, {2*s}, v46\nv_lshl_add_u32 v{vA+s}, v48, 4, v47\nv_add_u32 v{vA+4+s}, {2*SLOT}, v{vA+s}')
    for i in range(4): e(f'v_mov_b32 v{vAcc+i}, 0')
    e('s_mov_b32 s79, 0xffff0000')

    def stats(c):
        sl = c % 3
        rd = [f'ds_read_b128 v[{vD+4*s}:{vD+4*s+3}], v{vA+s+(4 if sl == 2 else 0)} offset:{SLOT if sl == 1 else 0}' for s in range(4)]
        va = []
        for d in range(16):
            if d % 4 == 0: va.append(f's_waitcnt lgkmcnt({3-d//4})')
            t = 50 + 2 * (d & 1)
            va += [f'v_lshlrev_b32 v{t}, 16, v{vD+d}', f'v_and_b32 v{t+1}, s79, v{vD+d}',
                   f'v_add_f32 v{vAcc}, v{vAcc}, v{t}', f'v_add_f32 v{vAcc+1}, v{vAcc+1}, v{t+1}',
                   f'v_fmac_f32 v{vAcc+2}, v{t}, v{t}', f'v_fmac_f32 v{vAcc+3}, v{t+1}, v{t+1}']
        return rd, va

    b2q = list(range(18, 36)) + list(range(11, 18)) + list(range(0, 5)) + list(range(5, 11))
    def take_b2(n):
        g = []
        for _ in range(n): g += b2_groups(b2q.pop(0))
        return g
    for c in range(8):
        e.wait_vm(tok[c])
        e('s_barrier')
        if c == 0: ts(e, 2)
        rd, va = stats(c)
        for l in rd: e(l)
        if c + 2 <= 7:
            interleave(e, chunk_groups(c + 2), va); tok[c + 2] = e.vtok()
        elif c == 6:
            interleave(e, take_b2(6), va)
        else:
            interleave(e, take_b2(2), va[:40])
            for l in va[40:]: e(l)
    S, Q = vAcc, vAcc + 2
    e(f'v_add_f32 v{S}, v{S}, v{S+1}\nv_add_f32 v{Q}, v{Q}, v{Q+1}\nv_mov_b32 v{S+1}, v{S}\nv_mov_b32 v{Q+1}, v{Q}')
    e(f'v_permlane32_swap_b32 v{S+1}, v{S}\nv_permlane32_swap_b32 v{Q+1}, v{Q}')
    e(f'v_add_f32 v{S}, v{S}, v{S+1}\nv_add_f32 v{Q}, v{Q}, v{Q+1}')
    e(f'v_mul_f32 v50, 0xbb000000, v{S}')
    e(f'v_mul_f32 v51, 0x3b000000, v{Q}\nv_fma_f32 v51, -v50, v50, v51\nv_max_f32 v51, 0, v51\nv_add_f32 v51, {EPS5}, v51')
    e('v_rsq_f32 v52, v51\nv_mul_f32 v53, v51, v52')
    e('v_cvt_pk_bf16_f32 v57, v50, v53\nv_lshlrev_b32 v54, 16, v57\nv_and_b32 v55, s79, v57')
    e('v_sub_f32 v54, v50, v54\nv_sub_f32 v55, v53, v55\nv_mov_b32 v59, 0')
    e('v_cvt_pk_bf16_f32 v56, v50, v54\nv_cvt_pk_bf16_f32 v58, v55, v59')
    e(f's_lshl_b32 s{sT}, s{sW}, 5\nv_add_u32 v44, s{sT}, v44\nv_lshlrev_b32 v45, 4, v44\nv_lshlrev_b32 v46, 2, v44')
    e(f'v_add_u32 v45, {L_AUG}, v45\nv_add_u32 v46, {L_R}, v46')
    e('ds_write_b128 v45, v[56:59]\nds_write_b32 v46, v52\ns_waitcnt lgkmcnt(0)')
    e('s_barrier')
    e('s_barrier')
    ts(e, 3)
    if not F:
        for g in take_b2(6):
            for l in g: e(l)
        e('s_barrier')
    n = 0
    while b2q:
        for g in take_b2(1):
            for l in g: e(l)
        n += 1
        if n % 8 == 0: e('s_waitcnt vmcnt(40)')
    ts(e, 4)
    if not F:
        e('s_barrier')
    e('s_waitcnt vmcnt(0)')
    ts(e, 5)
    e('s_barrier')
    for r in range(3):
        e('s_barrier')
        if r: e(f'v_add_u32 v{vL16}, 49152, v{vL16}')
        for k in range(12):
            b = vBuf + (r * 12 + k) * 4
            e(f'ds_write_b128 v{vL16}, v[{b}:{b+3}] offset:{(k//2)*8192+(k&1)*1024}')
        e('s_waitcnt lgkmcnt(0)')
    e('s_barrier')
    ts(e, 6)
    ts_dump(e, 7, 0)
    e('s_endpgm')

ACC = 16
FS = (128, 152)
CS = 176; SEL = 192; AX = 196; AW = 204; AS = 208; BI = 212; NV = 216; L16 = 218; HF = 219; RHO = 220; CSA = 221

def get_nonce(e):
    L, D = lab('non'), lab('nond')
    e(f's_mov_b32 s{sT+9}, 200000')
    e(f'{L}:')
    e(f'v_readfirstlane_b32 s{sNON}, v{NV}\nv_readfirstlane_b32 s{sNON+1}, v{NV+1}')
    e(f's_cmp_lg_u32 s{sNON+1}, 0\ns_cbranch_scc1 {D}')
    e(f's_sub_u32 s{sT+9}, s{sT+9}, 1\ns_cmp_eq_u32 s{sT+9}, 0\ns_cbranch_scc1 {D}')
    e(f'buffer_load_dwordx2 v[{NV}:{NV+1}], off, s[{SDBG}:{SDBG+3}], 0 sc1\ns_waitcnt vmcnt(0)\ns_branch {L}')
    e(f'{D}:')

def put_flag(e, soff):
    e(f'v_mov_b32 v2, s{sNON}\nv_mov_b32 v3, s{sNON+1}\ns_mov_b64 exec, 1')
    e(f'buffer_store_dwordx2 v[2:3], off, s[{SWS}:{SWS+3}], s{soff} sc1')
    e('s_mov_b64 exec, -1')

def compute_p1(e, F):
    NT = 7 if F else 6
    sRH, sCH, sDL, sCNT, sSL, sY0, sY1 = 11, 12, 13, 14, 15, 76, 77
    e(f's_and_b32 s{sRH}, s{sW}, 1\ns_lshr_b32 s{sCH}, s{sW}, 1')
    e(f'v_lshlrev_b32 v{L16}, 4, v0\nv_lshrrev_b32 v{HF}, 5, v0\nv_and_b32 v{RHO}, 31, v0')
    e(f'v_bfe_u32 v2, v0, 1, 3\nv_xor_b32 v2, v{HF}, v2')
    e(f's_lshl_b32 s{sT}, s{sRH}, 13\ns_lshl_b32 s{sT+1}, s{sCH}, 12\ns_add_u32 s{sT}, s{sT}, s{sT+1}')
    e(f'v_lshlrev_b32 v3, 7, v{RHO}\nv_add_u32 v3, s{sT}, v3')
    for s in range(4):
        e(f's_xor_b32 s{sT+2}, s{sW}, {s}\ns_lshl_b32 s{sT+2}, s{sT+2}, 1\nv_xor_b32 v4, s{sT+2}, v2')
        e(f'v_lshl_add_u32 v{AX+2*s}, v4, 4, v3\nv_xor_b32 v{AX+2*s+1}, 0x1000, v{AX+2*s}')
    e('v_bfe_u32 v2, v0, 2, 2\nv_bfe_u32 v3, v0, 4, 1\nv_and_b32 v4, 3, v0\nv_bfe_u32 v5, v0, 3, 1')
    if not F: e(f'v_xor_b32 v3, s{sRH}, v3')
    e(f'v_lshl_add_u32 v2, v{HF}, 3, v2')
    e('v_lshlrev_b32 v4, 3, v4\nv_lshl_add_u32 v4, v3, 5, v4')
    e(f'v_xor_b32 v5, s{sCH}, v5\nv_lshl_add_u32 v5, v5, 6, v4\nv_lshl_add_u32 v5, v2, 7, v5\nv_add_u32 v5, {L_W}, v5')
    e(f'v_lshl_add_u32 v6, v2, 6, v4\nv_add_u32 v6, {L_S}, v6')
    for s in range(4):
        e(f's_xor_b32 s{sT+2}, s{sW}, {s}\ns_lshl_b32 s{sT+3}, s{sT+2}, 11\nv_add_u32 v{AW+s}, s{sT+3}, v5')
        if F: e(f's_lshl_b32 s{sT+3}, s{sT+2}, 10\nv_add_u32 v{AS+s}, s{sT+3}, v6')
    e('v_lshrrev_b32 v2, 2, v0\nv_xor_b32 v2, v2, v0\nv_and_b32 v2, 4, v2\nv_cmp_eq_u32 vcc, 0, v2\nv_mov_b32 v3, 0x3f803f80')
    e(f'v_cndmask_b32 v{SEL}, 0, v3, vcc')
    for i in range(1, 4): e(f'v_mov_b32 v{SEL+i}, v{SEL}')
    e('s_waitcnt lgkmcnt(0)')
    srd(e, SWS, pWS, WS_SIZE); srd(e, SDBG, pDBG, 256); srd(e, SX, pX, 2048 * 1024); srd(e, SOUT, pOUT, 2048 * 1024)
    Ln = lab('nonce_skip')
    e(f's_or_b32 s{sT}, s2, s{sW}\ns_cmp_lg_u32 s{sT}, 0\ns_cbranch_scc1 {Ln}')
    e(f's_load_dwordx2 s[{sT+2}:{sT+3}], s[{pWS}:{pWS+1}], 0\ns_waitcnt lgkmcnt(0)')
    e(f's_mul_i32 s{sT+4}, s{sT+2}, 0x4c957f2d\ns_mul_hi_u32 s{sT+5}, s{sT+2}, 0x4c957f2d')
    e(f's_mul_i32 s{sT+6}, s{sT+3}, 0x4c957f2d\ns_add_u32 s{sT+5}, s{sT+5}, s{sT+6}')
    e(f's_mul_i32 s{sT+6}, s{sT+2}, 0x5851f42d\ns_add_u32 s{sT+5}, s{sT+5}, s{sT+6}')
    e(f's_add_u32 s{sT+4}, s{sT+4}, 0xf767814f\ns_addc_u32 s{sT+5}, s{sT+5}, 0x14057b7e\ns_or_b32 s{sT+5}, s{sT+5}, 0x80000000')
    e(f'v_mov_b32 v2, s{sT+4}\nv_mov_b32 v3, s{sT+5}\ns_mov_b64 exec, 1')
    e(f'buffer_store_dwordx2 v[2:3], off, s[{SDBG}:{SDBG+3}], 0 sc1')
    e(f'buffer_store_dwordx2 v[2:3], off, s[{SWS}:{SWS+3}], 0 sc1')
    e('s_mov_b64 exec, -1')
    e(f'{Ln}:')
    if OPT['pf']:
        Lp = lab('pf_skip'); Lq = lab('pc')
        e(f's_cmp_lg_u32 s{sW}, 1\ns_cbranch_scc1 {Lp}')
        e(f's_getpc_b64 s[{sT+2}:{sT+3}]')
        e(f'{Lq}:')
        e(f's_sub_u32 s{sT+2}, s{sT+2}, {Lq}-{NAME}_kernel\ns_subb_u32 s{sT+3}, s{sT+3}, 0')
        e(f's_lshl_b32 s{sT+4}, s{sLI}, 10\nv_add_u32 v2, s{sT+4}, v{L16}\nv_min_u32 v2, L_code_end-{NAME}_kernel-16, v2')
        e(f'global_load_dwordx4 v[252:255], v2, s[{sT+2}:{sT+3}]')
        e(f'{Lp}:')
    e(f's_lshl_b32 s{sT}, s{sRB}, 2\ns_lshl_b32 s{sT+1}, s{sRH}, 1\ns_add_u32 s{sT}, s{sT}, s{sT+1}\ns_add_u32 s{sT}, s{sT}, s{sCH}')
    e(f's_xor_b32 s{sT+1}, s{sT}, 1\ns_mul_i32 s{sY0}, s{sT}, {144*1024}\ns_mul_i32 s{sY1}, s{sT+1}, {144*1024}')
    if F:
        srd(e, SB1, pB1, 1792 * 2)
        e(f's_lshr_b32 s{sT}, s{sG}, 1\ns_mul_i32 s{sT}, s{sT}, 448\ns_and_b32 s{sT+1}, s{sG}, 1')
        e(f's_lshl_b32 s{sT+2}, s{sT+1}, 8\ns_add_u32 s{sT+2}, s{sT+2}, s{sT}\ns_lshl_b32 s{sT+3}, s{sCH}, 5\ns_add_u32 s{sT+2}, s{sT+2}, s{sT+3}')
        e(f's_lshl_b32 s{sT+3}, s{sT+1}, 5\ns_add_u32 s{sT+3}, s{sT+3}, s{sT}\ns_add_u32 s{sT+3}, s{sT+3}, 192')
        e(f'v_lshlrev_b32 v2, 1, v{RHO}\ns_lshl_b32 s{sT+4}, s{sT+2}, 1\ns_lshl_b32 s{sT+5}, s{sT+3}, 1')
        for u in range(3): e(f'buffer_load_ushort v{BI+u}, v2, s[{SB1}:{SB1+3}], s{sT+4} offen offset:{u*128}')
        e(f'buffer_load_ushort v{BI+3}, v2, s[{SB1}:{SB1+3}], s{sT+5} offen')
        e(f's_lshl_b32 s{sT+3}, s{sT+3}, 6\ns_add_u32 s78, s{sY0}, s{sT+3}\ns_add_u32 s78, s78, {WS_Y}')
        e(f's_lshl_b32 s{sT+2}, s{sT+2}, 6\ns_add_u32 s{sT+2}, s{sT+2}, {WS_Y}')
    else:
        e(f's_lshl_b32 s{sT+2}, s{sG}, 12\ns_lshl_b32 s{sT+3}, s{sCH}, 11\ns_add_u32 s{sT+2}, s{sT+2}, s{sT+3}\ns_add_u32 s{sT+2}, s{sT+2}, {WS_Y+112*1024}')
    e(f's_add_u32 s{sY0}, s{sY0}, s{sT+2}\ns_add_u32 s{sY1}, s{sY1}, s{sT+2}')
    for i in range(NT * 16): e(f'v_mov_b32 v{ACC+i}, 0')
    for i in range(16): e(f'v_mov_b32 v{CS+i}, 0')
    e(f's_mov_b32 s{sCNT}, 0\ns_mov_b32 s{sSL}, 0\ns_mov_b32 s75, {-2*SLOT}')
    e('s_setprio 1')

    def reads(s, st):
        b = FS[st]
        r = [f'ds_read_b128 v[{b}:{b+3}], v{AX+2*s}']
        for j in range(2): r.append(f'ds_read_b64_tr_b16 v[{b+8+2*j}:{b+9+2*j}], v{AW+s} offset:{j*512}')
        r.append(f'ds_read_b128 v[{b+4}:{b+7}], v{AX+2*s+1}')
        for u in (1, 2):
            for j in range(2): r.append(f'ds_read_b64_tr_b16 v[{b+8+4*u+2*j}:{b+9+4*u+2*j}], v{AW+s} offset:{u*8192+j*512}')
        if F:
            for j in range(2): r.append(f'ds_read_b64_tr_b16 v[{b+20+2*j}:{b+21+2*j}], v{AS+s} offset:{j*256}')
        return r
    def mf(t, xr, wr):
        a = ACC + 16 * t
        tr = F or t < 2
        A, B = (wr, xr) if tr else (xr, wr)
        return f'v_mfma_f32_32x32x16_bf16 v[{a}:{a+15}], v[{A}:{A+3}], v[{B}:{B+3}], v[{a}:{a+15}]'
    def mfmas(s, st):
        b = FS[st]
        m = []
        for u in range(3):
            for crt in range(2): m.append(mf(2 * u + crt, b + 4 * crt, b + 8 + 4 * u))
            if s % 2 == 0: m.append(f'v_mfma_f32_16x16x32_bf16 v[{CS+4*u}:{CS+4*u+3}], v[{SEL}:{SEL+3}], v[{b+8+4*u}:{b+11+4*u}], v[{CS+4*u}:{CS+4*u+3}]')
        if F:
            m.append(mf(6, b, b + 20))
            if s == 0: m.append(f'v_mfma_f32_16x16x32_bf16 v[{CS+12}:{CS+15}], v[{SEL}:{SEL+3}], v[{b+20}:{b+23}], v[{CS+12}:{CS+15}]')
        return m
    ts(e, 1)
    if DIAG == 2: e('s_memtime s[22:23]\ns_waitcnt lgkmcnt(0)')
    e('s_barrier')
    ts(e, 2)
    for l in reads(0, 0): e(l)
    LK = lab('kloop')
    e(f'{LK}:')
    for s in range(4):
        st = s & 1
        m = mfmas(s, st)
        e('s_waitcnt lgkmcnt(0)')
        if s < 3:
            r = reads(s + 1, st ^ 1)
            upd = []
            if s == 0:
                upd = [f's_add_u32 s{sSL}, s{sSL}, 1', f's_cmp_eq_u32 s{sSL}, 3', f's_cselect_b32 s{sDL}, s75, {SLOT}',
                       f's_cselect_b32 s{sSL}, 0, s{sSL}']
            ad = [AX + 2 * s, AX + 2 * s + 1, AW + s] + ([AS + s] if F else [])
            upd += [f'v_add_u32 v{a}, s{sDL}, v{a}' for a in ad]
            for i, x in enumerate(m):
                e(x)
                for l in r[2 * i:2 * i + 2]: e(l)
                if i == len(m) - 2:
                    for l in upd: e(l)
        else:
            bp = OPT['barpos']
            r = reads(0, st ^ 1)
            ad = [AX + 6, AX + 7, AW + 3] + ([AS + 3] if F else [])
            k = 0
            for i, x in enumerate(m):
                if i == bp: e('s_barrier')
                if i >= bp:
                    n = -(-(len(r) - k) // max(1, len(m) - i - 1)) if i < len(m) - 1 else len(r) - k
                    for l in r[k:k + n]: e(l)
                    k += n
                e(x)
                if i == 0:
                    for a in ad: e(f'v_add_u32 v{a}, s{sDL}, v{a}')
                    e(f's_add_u32 s{sCNT}, s{sCNT}, 1\ns_cmp_lt_u32 s{sCNT}, 8')
    e(f's_cbranch_scc1 {LK}')
    ts(e, 3)
    e(f'buffer_load_dwordx2 v[{NV}:{NV+1}], off, s[{SDBG}:{SDBG+3}], 0 sc1')
    e(f'v_lshlrev_b32 v2, 2, v{RHO}')
    if not F: e(f's_lshl_b32 s{sT}, s{sRH}, 6\nv_xor_b32 v2, s{sT}, v2')
    e(f's_mul_i32 s{sT}, s{sW}, 384\ns_add_u32 s{sT}, s{sT}, {L_CS}\nv_add_u32 v3, s{sT}, v2')
    e(f's_xor_b32 s{sT}, s{sW}, 1\ns_mul_i32 s{sT}, s{sT}, 384\ns_add_u32 s{sT}, s{sT}, {L_CS}\nv_add_u32 v4, s{sT}, v2')
    for u in range(3): e(f'ds_write_b32 v3, v{CS+4*u} offset:{u*128}')
    if F:
        e(f's_lshl_b32 s{sT}, s{sW}, 7\nv_add_u32 v5, {L_CSS}, v2\nv_add_u32 v6, s{sT}, v5\nds_write_b32 v6, v{CS+12}')
    e(f's_lshl_b32 s{sT}, s{sRH}, 6\ns_lshl_b32 s{sT+1}, s{sCH}, 5\ns_add_u32 s{sT}, s{sT}, s{sT+1}')
    e(f'v_add_u32 v7, s{sT}, v{RHO}\nv_lshlrev_b32 v8, 4, v7\nv_xor_b32 v9, 512, v8\nv_add_u32 v8, {L_AUG}, v8\nv_add_u32 v9, {L_AUG}, v9')
    e(f'v_lshlrev_b32 v10, 2, v7\nv_xor_b32 v11, 128, v10\nv_add_u32 v10, {L_R}, v10\nv_add_u32 v11, {L_R}, v11')
    e(f'v_cmp_eq_u32 vcc, 0, v{HF}')
    e('s_waitcnt lgkmcnt(0)')
    e('s_barrier')
    XA = 128; WA = 136; PC = 152; RR = 160; RL = 162; M2 = 164
    for u in range(3): e(f'ds_read_b32 v{PC+u}, v4 offset:{u*128}')
    if F:
        for w in range(4): e(f'ds_read_b32 v{PC+3+w}, v5 offset:{w*128}')
    e(f'ds_read_b128 v[{XA}:{XA+3}], v8\nds_read_b128 v[{XA+4}:{XA+7}], v9\nds_read_b32 v{RR}, v10\nds_read_b32 v{RR+1}, v11')
    RV = 224
    if not F:
        e(f's_lshl_b32 s{sT}, s{sT}, 2\nv_lshlrev_b32 v12, 4, v{HF}\nv_add_u32 v12, s{sT}, v12\nv_xor_b32 v13, 128, v12')
        e(f'v_add_u32 v12, {L_R}, v12\nv_add_u32 v13, {L_R}, v13')
    e('s_waitcnt vmcnt(1) lgkmcnt(0)')
    if not F:
        for crt in range(2):
            for q in range(4): e(f'ds_read_b128 v[{RV+16*crt+4*q}:{RV+16*crt+4*q+3}], v{12+crt} offset:{q*32}')
    e('s_mov_b32 s79, 0xffff0000')
    for u in range(4 if F else 3):
        w = WA + 4 * u
        if u < 3: e(f'v_add_f32 v2, v{CS+4*u}, v{PC+u}')
        else: e(f'v_add_f32 v2, v{PC+3}, v{PC+4}\nv_add_f32 v3, v{PC+5}, v{PC+6}\nv_add_f32 v2, v2, v3')
        e('v_cndmask_b32 v2, 0, v2, vcc')
        e(f'v_cvt_pk_bf16_f32 v{w}, v2, v2\nv_and_b32 v3, s79, v{w}\nv_sub_f32 v3, v2, v3\nv_mov_b32 v{w+3}, 0')
        if F:
            e(f'v_cndmask_b32 v{w+2}, 0, v{BI+u}, vcc\nv_lshlrev_b32 v14, 16, v{w+2}\nv_cvt_pk_bf16_f32 v{w+1}, v3, v14')
        else:
            e(f'v_mov_b32 v{w+2}, 0\nv_cvt_pk_bf16_f32 v{w+1}, v3, v{w+3}')
    order = [0, 1, 2, 3, 4, 5, 6] if F else [2, 3, 4, 5, 0, 1]
    for t in order:
        e(mf(t, XA + 4 * (t & 1) if t < 6 else XA, WA + 4 * (t >> 1)))
    e(f's_mov_b32 s{sT+5}, {LOG2E}')
    for crt in range(2):
        e(f'v_mul_f32 v{RL+crt}, s{sT+5}, v{RR+crt}\nv_mul_f32 v{M2+crt}, -2.0, v{RR+crt}')
    U = 176; P = 192
    def sel2(crt): return f'op_sel:[0,{crt}] op_sel_hi:[1,{crt}]'
    if F:
        for t in range(7):
            a = ACC + 16 * t; crt = t & 1 if t < 6 else 0; p = P + 8 * (t & 1)
            for i in range(0, 16, 2): e(f'v_pk_mul_f32 v[{U+i}:{U+i+1}], v[{a+i}:{a+i+1}], v[{RL}:{RL+1}] {sel2(crt)}')
            for i in range(16): e(f'v_exp_f32 v{U+i}, v{U+i}')
            for i in range(0, 16, 2): e(f'v_pk_add_f32 v[{U+i}:{U+i+1}], v[{U+i}:{U+i+1}], 1.0 op_sel_hi:[1,0]')
            for i in range(0, 16, 2): e(f'v_pk_fma_f32 v[{U+i}:{U+i+1}], v[{U+i}:{U+i+1}], v[{U+i}:{U+i+1}], 1.0 op_sel_hi:[1,1,0]')
            for i in range(16): e(f'v_rcp_f32 v{U+i}, v{U+i}')
            for i in range(0, 16, 2): e(f'v_pk_fma_f32 v[{U+i}:{U+i+1}], v[{U+i}:{U+i+1}], v[{M2}:{M2+1}], v[{RR}:{RR+1}] op_sel:[0,{crt},{crt}] op_sel_hi:[1,{crt},{crt}]')
            for i in range(0, 16, 2): e(f'v_pk_mul_f32 v[{U+i}:{U+i+1}], v[{U+i}:{U+i+1}], v[{a+i}:{a+i+1}]')
            for i in range(8): e(f'v_cvt_pk_bf16_f32 v{p+i}, v{U+2*i}, v{U+2*i+1}')
            if t < 6: e(f's_add_u32 s{sT}, s{sY1 if crt else sY0}, {(t>>1)*4096}'); so = sT
            else: so = 78
            for k in range(2): e(f'buffer_store_dwordx4 v[{p+4*k}:{p+4*k+3}], v{L16}, s[{SWS}:{SWS+3}], s{so} offen offset:{k*1024} sc1')
        ts(e, 4)
        e(f's_lshl_b32 s{sT}, s{sRB}, 1\ns_add_u32 s{sT}, s{sT}, s{sRH}\ns_lshl_b32 s{sT}, s{sT}, 5\ns_lshl_b32 s{sT+1}, s{sG}, 1')
        e(f's_add_u32 s{sT}, s{sT}, s{sT+1}\ns_add_u32 s{sT}, s{sT}, s{sCH}\ns_lshl_b32 s{sT}, s{sT}, 7\ns_add_u32 s{sT}, s{sT}, {WS_YF}')
        e('s_waitcnt vmcnt(0)')
        get_nonce(e)
        put_flag(e, sT)
        ts(e, 5)
    else:
        EP = 166; LG = 168
        e(f'v_mov_b32 v{EP}, {EPS6}\nv_mov_b32 v{LG}, {LOG2E}\nv_mov_b32 v170, 0x3f803f80')
        e(f'v_cmp_gt_u32 vcc, 16, v{RHO}')
        PK = 128; PV = 144; T = 192
        e('s_waitcnt lgkmcnt(0)')
        def phi(a, rsrc, p):
            for i in range(0, 16, 2): e(f'v_pk_fma_f32 v[{T+i}:{T+i+1}], v[{a+i}:{a+i+1}], {rsrc(i)}')
            for i in range(0, 16, 2): e(f'v_pk_mul_f32 v[{U+i}:{U+i+1}], v[{T+i}:{T+i+1}], v[{LG}:{LG+1}] op_sel_hi:[1,0]')
            for i in range(16): e(f'v_exp_f32_e64 v{U+i}, v{U+i} clamp')
            for i in range(16): e(f'v_max_f32 v{T+i}, v{EP}, v{T+i}')
            for i in range(0, 16, 2): e(f'v_pk_add_f32 v[{T+i}:{T+i+1}], v[{T+i}:{T+i+1}], v[{U+i}:{U+i+1}]')
            for i in range(8): e(f'v_cvt_pk_bf16_f32 v{p+i}, v{T+2*i}, v{T+2*i+1}')
        for crt in range(2):
            phi(ACC + 16 * (2 + crt), lambda i: f'v[{RV+16*crt+i}:{RV+16*crt+i+1}], v[{EP}:{EP+1}] op_sel_hi:[1,1,0]', PK + 8 * crt)
        for crt in range(2):
            a = ACC + 16 * (4 + crt)
            for i in range(0, 16, 2): e(f'v_pk_mul_f32 v[{U+i}:{U+i+1}], v[{a+i}:{a+i+1}], v[{RV+16*crt+i}:{RV+16*crt+i+1}]')
            for i in range(8): e(f'v_cvt_pk_bf16_f32 v{PV+8*crt+i}, v{U+2*i}, v{U+2*i+1}')
        B0 = 176; B1 = 192; D0 = ACC + 32; D1 = ACC + 48
        for i in range(16): e(f'v_cndmask_b32 v{B0+i}, v170, v{PV+i}, vcc\nv_cndmask_b32 v{B1+i}, v{PV+i}, v170, vcc')
        for k in range(4):
            for D, B in ((D1, B1), (D0, B0)):
                e(f'v_mfma_f32_32x32x16_bf16 v[{D}:{D+15}], v[{PK+4*k}:{PK+4*k+3}], v[{B+4*k}:{B+4*k+3}], ' + ('0' if k == 0 else f'v[{D}:{D+15}]'))
        e(f's_lshl_b32 s{sT}, s{sW}, 11\ns_add_u32 s{sT}, s{sT}, {L_KX}\nv_xor_b32 v2, 256, v{L16}\nv_add_u32 v2, s{sT}, v2')
        e(f's_xor_b32 s{sT}, s{sW}, 1\ns_lshl_b32 s{sT}, s{sT}, 11\ns_add_u32 s{sT}, s{sT}, {L_KX}\nv_add_u32 v3, s{sT}, v{L16}')
        e(f'v_lshlrev_b32 v4, 8, v{HF}\nv_lshl_add_u32 v4, v{RHO}, 4, v4\nv_add_u32 v5, 512, v4')
        e(f'v_lshlrev_b32 v6, 4, v{HF}\nv_add_u32 v6, 1024, v6\nv_add_u32 v7, 32, v6')
        e('v_cndmask_b32 v4, v6, v4, vcc\nv_cndmask_b32 v5, v7, v5, vcc')
        e(f'v_cmp_ge_u32 vcc, 16, v{RHO}\nv_mov_b32 v6, 0x7ff00000\nv_cndmask_b32 v4, v6, v4, vcc\nv_cndmask_b32 v5, v6, v5, vcc')
        e(f'ds_write_b128 v2, v[{D1+8}:{D1+11}]\nds_write_b128 v2, v[{D1+12}:{D1+15}] offset:1024')
        e('s_waitcnt lgkmcnt(0)')
        e('s_barrier')
        e(f'ds_read_b128 v[{U}:{U+3}], v3\nds_read_b128 v[{U+4}:{U+7}], v3 offset:1024')
        e(f's_lshl_b32 s{sT}, s{sG}, 2\ns_add_u32 s{sT}, s{sT}, s{sW}\ns_lshl_b32 s{sT}, s{sT}, 4')
        e(f's_mul_i32 s{sT+1}, s{sT}, 1152\ns_add_u32 s{sT+1}, s{sT+1}, {WS_KV}')
        e(f's_mul_i32 s{sT+2}, s{sRB}, 1152\ns_add_u32 s{sT+2}, s{sT+2}, s{sT+1}')
        e(f's_lshl_b32 s{sT+3}, s{sT}, 7\ns_add_u32 s{sT+3}, s{sT+3}, {WS_KVF}')
        e(f's_lshl_b32 s{sT+4}, s{sRB}, 7\ns_add_u32 s{sT+4}, s{sT+4}, s{sT+3}')
        e('s_waitcnt lgkmcnt(0)')
        for i in range(8): e(f'v_add_f32 v{U+i}, v{U+i}, v{D0+i}')
        e(f'buffer_store_dwordx4 v[{U}:{U+3}], v4, s[{SWS}:{SWS+3}], s{sT+2} offen sc1')
        e(f'buffer_store_dwordx4 v[{U+4}:{U+7}], v5, s[{SWS}:{SWS+3}], s{sT+2} offen sc1')
        ts(e, 4)
        PQ = 128
        for crt in range(2):
            phi(ACC + 16 * crt, lambda i: f'v[{RR}:{RR+1}], v[{EP}:{EP+1}] op_sel:[0,{crt},0] op_sel_hi:[1,{crt},0]', PQ + 8 * crt)
        e('s_waitcnt vmcnt(0)')
        get_nonce(e)
        put_flag(e, sT + 4)
        e('v_and_b32 v4, 15, v0\nv_lshlrev_b32 v4, 7, v4')
        poll(e, 4, 6, f's{sT+3}')
        ts(e, 5)
        G = 48
        e(f'v_lshrrev_b32 v4, 2, v0\nv_mul_u32_u24 v4, 1152, v4\nv_and_b32 v5, 3, v0\nv_lshl_add_u32 v4, v5, 4, v4')
        e(f'buffer_load_dwordx4 v[112:115], v4, s[{SWS}:{SWS+3}], s{sT+1} offen offset:1024 sc1')
        for r in range(16):
            if r % 3 == 0 and r: e(f's_add_u32 s{sT+1}, s{sT+1}, {3*1152}')
            e(f'buffer_load_dwordx4 v[{G+4*r}:{G+4*r+3}], v{L16}, s[{SWS}:{SWS+3}], s{sT+1} offen offset:{(r%3)*1152} sc1')
        e(f's_lshl_b32 s{sT}, s{sW}, 10\ns_add_u32 s{sT}, s{sT}, {L_KF}')
        e(f'v_bfe_u32 v6, v0, 4, 1\nv_and_b32 v7, 15, v0\nv_lshl_add_u32 v6, v6, 5, v7\nv_lshlrev_b32 v6, 4, v6\nv_lshl_add_u32 v6, v{HF}, 3, v6\nv_add_u32 v6, s{sT}, v6')
        e(f'v_and_b32 v7, 1, v0\nv_lshrrev_b32 v8, 2, v0\nv_lshl_add_u32 v7, v7, 5, v8\nv_lshlrev_b32 v7, 4, v7\nv_bfe_u32 v8, v0, 1, 1\nv_lshl_add_u32 v7, v8, 3, v7\nv_add_u32 v7, s{sT}, v7')
        e(f'v_add_u32 v8, s{sT}, v{L16}\nv_xor_b32 v9, 1024, v8')
        e('s_waitcnt vmcnt(16)')
        for ror in (4, 8):
            for i in range(4): e(f'v_add_f32_dpp v{112+i}, v{112+i}, v{112+i} row_ror:{ror} row_mask:0xf bank_mask:0xf')
        for sw in (16, 32):
            for i in range(4): e(f'v_mov_b32 v{116+i}, v{112+i}')
            for i in range(4): e(f'v_permlane{sw}_swap_b32 v{116+i}, v{112+i}')
            for i in range(4): e(f'v_add_f32 v{112+i}, v{112+i}, v{116+i}')
        e('v_cvt_pk_bf16_f32 v116, v112, v113\nv_cvt_pk_bf16_f32 v117, v114, v115')
        e('ds_write_b64 v7, v[116:117] offset:256')
        for r in range(1, 16):
            e(f's_waitcnt vmcnt({15-r})')
            for i in (0, 2): e(f'v_pk_add_f32 v[{G+i}:{G+i+1}], v[{G+i}:{G+i+1}], v[{G+4*r+i}:{G+4*r+i+1}]')
        e(f'v_cvt_pk_bf16_f32 v118, v{G}, v{G+1}\nv_cvt_pk_bf16_f32 v119, v{G+2}, v{G+3}')
        e('ds_write_b64 v6, v[118:119]\ns_waitcnt lgkmcnt(0)')
        e('s_barrier')
        e('ds_read_b128 v[144:147], v8\nds_read_b128 v[148:151], v9\ns_waitcnt lgkmcnt(0)')
        for crt in range(2):
            for h in range(2):
                d = ACC + 16 * (2 * crt + h)
                e(f'v_mfma_f32_32x32x16_bf16 v[{d}:{d+15}], v[{144+4*h}:{147+4*h}], v[{PQ+8*crt+4*h}:{PQ+8*crt+4*h+3}], 0')
        e(f's_lshl_b32 s{sT}, s{sRH}, 10\ns_xor_b32 s{sT+1}, s{sT}, 1024')
        for crt in range(2):
            for h in range(2):
                d = ACC + 16 * (2 * crt + h); p = P + 4 * (2 * crt + h)
                e(f'v_add_f32 v{d+8}, v{EP}, v{d+8}\nv_rcp_f32 v{d+8}, v{d+8}')
                e(f's_add_u32 s{sT+2}, s{sY1 if crt else sY0}, s{sT+h}')
                for i in range(0, 8, 2): e(f'v_pk_mul_f32 v[{d+i}:{d+i+1}], v[{d+i}:{d+i+1}], v[{d+8}:{d+9}] op_sel_hi:[1,0]')
                for i in range(4): e(f'v_cvt_pk_bf16_f32 v{p+i}, v{d+2*i}, v{d+2*i+1}')
                e(f'buffer_store_dwordx4 v[{p}:{p+3}], v{L16}, s[{SWS}:{SWS+3}], s{sT+2} offen sc1')
        e(f's_lshl_b32 s{sT}, s{sRB}, 1\ns_add_u32 s{sT}, s{sT}, s{sRH}\ns_lshl_b32 s{sT}, s{sT}, 5\ns_lshl_b32 s{sT+1}, s{sG}, 1')
        e(f's_add_u32 s{sT}, s{sT}, s{sT+1}\ns_add_u32 s{sT}, s{sT}, s{sCH}\ns_lshl_b32 s{sT}, s{sT}, 7\ns_add_u32 s{sT}, s{sT}, {WS_YF+16*128}')
        e('s_waitcnt vmcnt(0)')
        put_flag(e, sT)

def compute_p2(e):
    sRH, sKH = 11, 12
    DA = OPT['DA']
    A0 = 48; BF = A0 + 4 * DA; AB = BF + 24; XR = AB + 6 + (AB & 1); VO = XR + 8
    assert VO < 216
    sA3, sA2, sA1 = 13, 14, 15
    ts(e, 6)
    e(f's_lshl_b32 s{sT}, s{sRB2}, 6\ns_lshl_b32 s{sT+1}, s{sRH}, 5\ns_add_u32 s{sT}, s{sT}, s{sT+1}\ns_lshl_b32 s{sT}, s{sT}, 10')
    e(f's_lshl_b32 s{sT+1}, s{sCB}, 7\ns_add_u32 s{sT}, s{sT}, s{sT+1}\ns_lshl_b32 s{sT+1}, s{sKH}, 6\ns_add_u32 s76, s{sT}, s{sT+1}')
    e(f'v_lshlrev_b32 v{VO}, 10, v{RHO}\nv_lshl_add_u32 v{VO}, v{HF}, 5, v{VO}')
    for k in range(2): e(f'buffer_load_dwordx4 v[{XR+4*k}:{XR+4*k+3}], v{VO}, s[{SX}:{SX+3}], s76 offen offset:{k*16}')
    e(f's_lshl_b32 s{sT}, s{sRB2}, 1\ns_add_u32 s{sT}, s{sT}, s{sRH}\ns_mul_i32 s{sT}, s{sT}, {144*1024}\ns_add_u32 s{sT}, s{sT}, {WS_Y}')
    e(f's_lshl_b32 s{sT+1}, s{sKH}, 12\ns_add_u32 s{sA1}, s{sT}, s{sT+1}\ns_add_u32 s{sA2}, s{sA1}, s{sT+1}\ns_add_u32 s{sA3}, s{sA2}, s{sT+1}')
    e('v_bfe_u32 v2, v0, 2, 2\nv_bfe_u32 v3, v0, 4, 1\nv_bfe_u32 v4, v0, 1, 1\nv_and_b32 v5, 1, v0\nv_bfe_u32 v6, v0, 3, 1')
    e(f'v_lshl_add_u32 v2, v{HF}, 2, v2')
    e('v_lshl_add_u32 v3, v3, 1, v4\nv_lshl_add_u32 v3, v5, 2, v3')
    e(f'v_xor_b32 v6, s{sKH}, v6\nv_lshlrev_b32 v3, 3, v3\nv_lshl_add_u32 v3, v6, 6, v3\nv_lshl_add_u32 v3, v2, 7, v3')
    e(f's_mul_i32 s{sT}, s{sKH}, 24576\nv_add_u32 v{AB}, s{sT}, v3\nv_xor_b32 v{AB+1}, 64, v{AB}')
    for k in (1, 2):
        for t in range(2): e(f'v_add_u32 v{AB+2*k+t}, {49152*k}, v{AB+t}')
    e(f'v_lshlrev_b32 v4, 7, v{RHO}\ns_lshl_b32 s{sT+3}, s{sRB2}, 12\ns_add_u32 s{sT+3}, s{sT+3}, {WS_YF}')
    poll(e, 4, 6, f's{sT+3}')
    ts(e, 7)
    tokA = {}
    def loadA(n):
        r, idx, s = n // 12, (n % 12) // 4, n % 4
        U0 = POS2U[6 * r + idx]; dU = POS2U[6 * r + 3 + idx] - U0
        if s == 0: e(f's_add_u32 s{sT}, s{ {3: sA3, 2: sA2, 1: sA1}[dU] }, {U0*4096}')
        a = A0 + 4 * (n % DA)
        e(f'buffer_load_dwordx4 v[{a}:{a+3}], v{L16}, s[{SWS}:{SWS+3}], s{sT} offen offset:{s*1024} sc1')
        tokA[n] = e.vtok()
    def readB(n, t):
        r, idx, s = n // 12, (n % 12) // 4, n % 4
        b = BF + 8 * (n % 3) + 4 * t
        for j in range(2): e(f'ds_read_b64_tr_b16 v[{b+2*j}:{b+2*j+1}], v{AB+2*(r%3)+t} offset:{idx*8192+s*2048+j*1024}')
    for n in range(DA): loadA(n)
    e('s_barrier')
    ts(e, 8)
    for n in (0, 1):
        for t in range(2): readB(n, t)
    for n in range(72):
        bar = (n % 12 == 10) and (n // 12 in (0, 1, 2, 4))
        nv = e.vm - tokA[n]
        lg = 0 if (bar or n == 71) else 4
        e(f's_waitcnt vmcnt({nv}) lgkmcnt({lg})')
        if bar: e('s_barrier')
        a = A0 + 4 * (n % DA)
        for t in range(2):
            if n + 2 < 72: readB(n + 2, t)
            b = BF + 8 * (n % 3) + 4 * t; d = ACC + 16 * t
            e(f'v_mfma_f32_32x32x16_bf16 v[{d}:{d+15}], v[{b}:{b+3}], v[{a}:{a+3}], ' + ('0' if n == 0 else f'v[{d}:{d+15}]'))
        if n + DA < 72: loadA(n + DA)
    ts(e, 9)
    e(f's_lshl_b32 s{sT}, s{sW}, 12\ns_add_u32 s{sT}, s{sT}, {SCR}\nv_add_u32 v2, s{sT}, v{L16}\nv_xor_b32 v3, 0x2000, v2')
    for q in range(4): e(f'ds_write_b128 v2, v[{ACC+16+4*q}:{ACC+19+4*q}] offset:{q*1024}')
    e('s_mov_b32 s79, 0xffff0000')
    for i in range(8): e(f'v_lshlrev_b32 v{64+2*i}, 16, v{XR+i}\nv_and_b32 v{65+2*i}, s79, v{XR+i}')
    for i in range(0, 16, 2): e(f'v_pk_add_f32 v[{ACC+i}:{ACC+i+1}], v[{ACC+i}:{ACC+i+1}], v[{64+i}:{65+i}]')
    e('s_waitcnt lgkmcnt(0)\ns_barrier')
    for q in range(4): e(f'ds_read_b128 v[{48+4*q}:{51+4*q}], v3 offset:{q*1024}')
    for q in range(4):
        e(f's_waitcnt lgkmcnt({3-q})')
        for i in (4 * q, 4 * q + 2):
            e(f'v_pk_add_f32 v[{ACC+i}:{ACC+i+1}], v[{ACC+i}:{ACC+i+1}], v[{48+i}:{49+i}]')
            e(f'v_cvt_pk_bf16_f32 v{64+i//2}, v{ACC+i}, v{ACC+i+1}')
        if q & 1: e(f'buffer_store_dwordx4 v[{64+4*(q>>1)}:{67+4*(q>>1)}], v{VO}, s[{SOUT}:{SOUT+3}], s76 offen offset:{(q>>1)*16}')
    if DIAG: e('s_waitcnt vmcnt(0)')
    ts(e, 10)
    ts_dump(e, 11, 4)
    e('s_endpgm')

def main():
    e = Emit()
    e('s_cmp_ge_u32 s2, 256\ns_cbranch_scc1 L_end')
    e('s_load_dwordx16 s[16:31], s[0:1], 0\ns_load_dwordx4 s[32:35], s[0:1], 64')
    if DIAG: e(f's_memrealtime s[{sTS}:{sTS+1}]')
    e(f'v_readfirstlane_b32 s{sW}, v0\nv_and_b32 v0, 63, v0')
    e(f's_lshr_b32 s{sLI}, s2, 3\ns_bfe_u32 s{sRB}, s2, 0x10002\ns_lshl_b32 s{sRB}, s{sRB}, 3\ns_lshr_b32 s{sT}, s2, 5\ns_add_u32 s{sRB}, s{sRB}, s{sT}')
    e(f's_and_b32 s{sG}, s2, 3\ns_lshl_b32 s{sG}, s{sG}, 1\ns_and_b32 s{sT}, s{sLI}, 1\ns_add_u32 s{sG}, s{sG}, s{sT}')
    if OPT['rot']:
        e(f's_and_b32 s{sT}, s{sLI}, 3\ns_lshl_b32 s{sT}, s{sT}, 1\ns_add_u32 s{sROT}, s{sRB}, s{sT}')
    else:
        e(f's_mov_b32 s{sROT}, 0')
    e(f's_and_b32 s{sRB2}, s2, 7\ns_lshl_b32 s{sRB2}, s{sRB2}, 2\ns_lshr_b32 s{sT}, s2, 6\ns_add_u32 s{sRB2}, s{sRB2}, s{sT}\ns_and_b32 s{sCB}, s{sLI}, 7')
    e(f's_lshr_b32 s{sW}, s{sW}, 6\ns_bfe_u32 s{sF}, s2, 0x10004')
    e(f's_cmp_ge_u32 s{sW}, 4\ns_cbranch_scc1 L_compute')
    e(f's_cmp_eq_u32 s{sF}, 0\ns_cbranch_scc1 L_helper_A')
    helper(e, 1)
    e('L_helper_A:'); e.vm = 0
    helper(e, 0)
    e('L_compute:'); e.vm = 0
    e(f's_sub_u32 s{sW}, s{sW}, 4\ns_cmp_eq_u32 s{sF}, 0\ns_cbranch_scc1 L_compute_A')
    compute_p1(e, 1)
    e('s_branch L_p2')
    e('L_compute_A:')
    compute_p1(e, 0)
    e('L_p2:')
    compute_p2(e)
    e('L_end:\ns_endpgm\nL_code_end:')
    lines, n = hazard_pass_fast(e.lines)
    hdr = open('cdna_kernels/%s.s.ref' % NAME).read().split('; Override launch')[0]
    out = hdr + f'; @launch grid=(256,1,1) block=(512,1,1) lds={LDS_BYTES}\n'
    out += f'.amdgcn_target "amdgcn-amd-amdhsa--gfx950"\n.text\n.globl {NAME}_kernel\n.p2align 8\n.type {NAME}_kernel,@function\n{NAME}_kernel:\n'
    out += '\n'.join(lines) + '\n'
    out += f'''.section .rodata,"a"
.p2align 6
.amdhsa_kernel {NAME}_kernel
  .amdhsa_next_free_vgpr 256
  .amdhsa_next_free_sgpr 102
  .amdhsa_accum_offset 256
  .amdhsa_group_segment_fixed_size 0
  .amdhsa_kernarg_size 80
  .amdhsa_user_sgpr_count 2
  .amdhsa_user_sgpr_kernarg_segment_ptr 1
  .amdhsa_system_sgpr_workgroup_id_x 1
  .amdhsa_float_denorm_mode_32 3
.end_amdhsa_kernel
'''
    open(sys.argv[1], 'w').write(out)
    print('wrote', sys.argv[1], len(lines), 'lines,', n, 'hazard pads')

main()
```

```python
import sys
from asmlib import *

NAME = 'parallel_sum__linear_attn_block__dense_activation_mish__prompt'
OPT = dict(diag=0, rot=1, DA=24, barpos=3, pf=1, nostats=0, nomfma=0, nodma=0, noread=0, nocs=0, prio=1, nob2=0, nost=0, slp=1)
for a in sys.argv[2:]:
    k, v = a.split('='); OPT[k] = int(v)
DIAG = OPT['diag']

WS_YF = 0x1000
WS_KVF = 0x30000
WS_KV = 0x40000
WS_TS = 0xE0000
WS_Y = 0x100000
WS_SIZE = WS_Y + 64 * 144 * 1024
SLOT = 45056
L_W = 16384; L_S = 40960
SCR = 147456
L_AUG = SCR
L_R = SCR + 2048
L_CS = SCR + 2560
L_KX = SCR + 4608
L_KF = SCR + 4608
L_KF = SCR + 12288 + 0
L_KX = SCR + 4096
L_CS = SCR + 2560
L_CSS = SCR + 12288
LDS_BYTES = 163840

sW, sRB, sG, sF, sROT, sRB2, sCB, sLI = 3, 4, 5, 6, 7, 8, 9, 10
pX, pWQKV, pWO, pW1, pB1, pW2, pOUT, pDBG, pWS = 16, 18, 20, 24, 26, 28, 30, 32, 34
SX, SWs, SW2, SWO, SWS, SOUT, SB1, SDBG = 36, 40, 44, 48, 52, 56, 60, 64
sNON = 68
sT = 70
sTS = 80

LOG2E = 0x3fb8aa3b
EPS6 = 0x358637bd
EPS5 = 0x3727c5ac

def srd(e, d, p, n):
    e(f's_mov_b32 s{d}, s{p}\ns_mov_b32 s{d+1}, s{p+1}\ns_mov_b32 s{d+2}, {n}\ns_mov_b32 s{d+3}, 0x20000')

def ts(e, k):
    if DIAG:
        e(f'{"s_memtime" if OPT.get("cyc") else "s_memrealtime"} s[{sTS+2*k}:{sTS+2*k+1}]\ns_waitcnt lgkmcnt(0)')

def ts_dump(e, nst, wave_off):
    if not DIAG: return
    if DIAG == 3:
        if wave_off == 0: return
        Ls = lab('dd'); Lw = lab('dw')
        e(f's_cmp_lg_u32 s{sW}, 0\ns_cbranch_scc1 {Ls}\ns_cmp_lg_u32 s2, {OPT["wg"]}\ns_cbranch_scc1 {Ls}')
        e(f's_sub_u32 s{sT}, s{sTS+2*OPT["ib"]}, s{sTS+2*OPT["ia"]}\ns_min_u32 s{sT}, s{sT}, 10000\ns_mul_i32 s{sT}, s{sT}, 20')
        e(f'{Lw}:')
        e(f's_memrealtime s[72:73]\ns_waitcnt lgkmcnt(0)\ns_sub_u32 s72, s72, s{sTS+2*(nst-1)}\ns_cmp_lt_u32 s72, s{sT}\ns_cbranch_scc1 {Lw}')
        e(f'{Ls}:')
        return
    if DIAG == 2:
        if wave_off == 0: return
        Ls = lab('dd')
        e(f's_cmp_lg_u32 s{sW}, 0\ns_cbranch_scc1 {Ls}')
        e('s_memtime s[72:73]\ns_waitcnt lgkmcnt(0)\nv_mov_b32 v1, 0')
        for k in range(nst): e(f'v_writelane_b32 v1, s{sTS+2*k}, {2+k}')
        e(f's_not_b32 s{sT}, s{sTS}\nv_writelane_b32 v1, s{sT}, 13')
        e(f's_sub_u32 s72, s72, s22\ns_sub_u32 s73, s{sTS+2*(nst-1)}, s{sTS+2}\ns_cmp_eq_u32 s2, 0\ns_cselect_b32 s72, s72, 0\ns_cselect_b32 s73, s73, 0')
        e('v_writelane_b32 v1, s72, 14\nv_writelane_b32 v1, s73, 15')
        e('v_lshlrev_b32 v2, 2, v0\ns_mov_b64 exec, 0xfffc')
        e(f'buffer_atomic_umax v1, v2, s[{SDBG}:{SDBG+3}], 0 offen\ns_mov_b64 exec, -1')
        e(f'{Ls}:')
        return
    e('v_mov_b32 v1, 0')
    for k in range(nst): e(f'v_writelane_b32 v1, s{sTS+2*k}, {k}')
    e(f's_lshl_b32 s{sT}, s2, 3\ns_add_u32 s{sT}, s{sT}, s{sW}\ns_add_u32 s{sT}, s{sT}, {wave_off}\ns_lshl_b32 s{sT}, s{sT}, 6\ns_add_u32 s{sT}, s{sT}, {WS_TS}')
    e('v_lshlrev_b32 v2, 2, v0\nv_cmp_gt_u32 vcc, 16, v0\ns_and_saveexec_b64 s[72:73], vcc')
    e(f'buffer_store_dword v1, v2, s[{SWS}:{SWS+3}], s{sT} offen\ns_mov_b64 exec, s[72:73]')

_lab = [0]
def lab(p):
    _lab[0] += 1
    return f'L_{p}_{_lab[0]}'

def poll(e, voff, tmp, soff='0'):
    L, D = lab('poll'), lab('pdone')
    e(f's_mov_b32 s{sT+9}, 200000')
    e(f'{L}:')
    e(f'buffer_load_dwordx2 v[{tmp}:{tmp+1}], v{voff}, s[{SWS}:{SWS+3}], {soff} offen sc1')
    e('s_waitcnt vmcnt(0)')
    e(f'v_cmp_eq_u64 vcc, s[{sNON}:{sNON+1}], v[{tmp}:{tmp+1}]')
    e('s_cmp_eq_u64 vcc, -1')
    e(f's_cbranch_scc1 {D}')
    e(f's_sub_u32 s{sT+9}, s{sT+9}, 1\ns_cmp_eq_u32 s{sT+9}, 0\ns_cbranch_scc1 {D}\ns_sleep {OPT["slp"]}\ns_branch {L}')
    e(f'{D}:')

def interleave(e, groups, fill):
    n = len(groups)
    if n == 0:
        for l in fill: e(l)
        return
    per = len(fill) / n
    done = 0
    for i, g in enumerate(groups):
        for l in g: e(l)
        upto = int(round(per * (i + 1)))
        for l in fill[done:upto]: e(l)
        done = upto

POS2U = list(range(24)) + [24, 25, 28, 26, 27, 29] + list(range(30, 36))

def helper(e, F):
    RS = 3584 if F else 3072
    vX, vWo, vS, vB, vA, vD, vAcc, vL16, vBuf = 2, 6, 8, 9, 12, 20, 36, 11, 112
    sXB, sWB, sHX, sHW, sHS, sSD, sB2 = 11, 12, 13, 14, 15, 78, 77
    e('v_lshrrev_b32 v40, 3, v0\nv_and_b32 v41, 7, v0\nv_lshrrev_b32 v42, 4, v0')
    e('v_xor_b32 v43, v41, v42\nv_lshlrev_b32 v43, 4, v43\nv_lshl_add_u32 v%d, v40, 10, v43' % vX)
    e(f'v_xor_b32 v{vX+1}, 64, v{vX}\nv_add_u32 v{vX+1}, {8192-1024}, v{vX+1}')
    e(f'v_add_u32 v{vX+2}, {2*(8192-1024)}, v{vX}\nv_add_u32 v{vX+3}, {2*(8192-1024)}, v{vX+1}')
    e('v_and_b32 v43, 1, v42\nv_lshlrev_b32 v43, 2, v43\nv_xor_b32 v43, v41, v43\nv_lshlrev_b32 v43, 4, v43')
    e(f'v_mul_u32_u24 v44, {RS}, v40\nv_add_u32 v{vWo}, v44, v43\nv_add_u32 v{vWo+1}, {8*RS-1024}, v{vWo}')
    if F:
        e(f'v_lshrrev_b32 v44, 2, v0\nv_mul_u32_u24 v44, {RS}, v44\nv_and_b32 v45, 3, v0\nv_lshl_add_u32 v{vS}, v45, 4, v44')
    e(f's_lshl_b32 s{sHX}, s{sW}, 12\ns_lshl_b32 s{sHW}, s{sW}, 11\ns_lshl_b32 s{sHS}, s{sW}, 10')
    e(f's_lshl_b32 s{sXB}, s{sRB}, 17\ns_lshl_b32 s{sT}, s{sW}, 15\ns_add_u32 s{sXB}, s{sXB}, s{sT}')
    e(f's_mul_i32 s{sWB}, s{sW}, {16*RS}')
    if F:
        e(f's_lshr_b32 s{sT}, s{sG}, 1\ns_mul_i32 s{sT}, s{sT}, 896\ns_add_u32 s{sWB}, s{sWB}, s{sT}')
        e(f's_and_b32 s{sT}, s{sG}, 1\ns_lshl_b32 s{sT+1}, s{sT}, 9\ns_add_u32 s{sWB}, s{sWB}, s{sT+1}')
        e(f's_mul_i32 s{sSD}, s{sT}, -448\ns_add_u32 s{sSD}, s{sSD}, 384')
    else:
        e(f's_lshl_b32 s{sT}, s{sG}, 7\ns_add_u32 s{sWB}, s{sWB}, s{sT}')
    e('s_waitcnt lgkmcnt(0)')
    srd(e, SX, pX, 2048 * 1024)
    srd(e, SWs, pW1 if F else pWQKV, 512 * RS)
    ust = 128 if F else 1024

    def chunk_groups(c):
        L = (c % 3) * SLOT
        g = []
        pre = [f's_add_u32 s{sT}, s{sROT}, {c}', f's_and_b32 s{sT}, s{sT}, 7', f's_lshl_b32 s{sT+1}, s{sT}, 7',
               f's_add_u32 s{sT+1}, s{sT+1}, s{sXB}', f's_add_u32 m0, s{sHX}, {L}', f's_mul_i32 s{sT+2}, s{sT}, {64*RS}']
        for i in range(4):
            g.append((pre if i == 0 else []) + [f'buffer_load_dwordx4 v{vX+i}, s[{SX}:{SX+3}], s{sT+1} offen offset:{i*1024} lds'])
        for u in range(3):
            pre = [f's_add_u32 m0, s{sHW}, {L+L_W+u*8192}',
                   f's_add_u32 s{sT+2}, s{sT+2}, s{sWB}' if u == 0 else f's_add_u32 s{sT+3}, s{sT+2}, {u*ust}']
            so = sT + 2 if u == 0 else sT + 3
            for i in range(2):
                g.append((pre if i == 0 else []) + [f'buffer_load_dwordx4 v{vWo+i}, s[{SWs}:{SWs+3}], s{so} offen offset:{i*1024} lds'])
        if F:
            g.append([f's_add_u32 m0, s{sHS}, {L+L_S}', f's_add_u32 s{sT+3}, s{sT+2}, s{sSD}',
                      f'buffer_load_dwordx4 v{vS}, s[{SWs}:{SWs+3}], s{sT+3} offen lds'])
        if OPT['nodma'] and c >= 2: return []
        return g

    def b2_groups(pos):
        U = POS2U[pos]
        S = SW2 if U < 28 else SWO
        off = (U if U < 28 else U - 28) * 65536
        g = []
        for i in range(2):
            pre = [f's_add_u32 s{sT+4}, s{sB2}, {off}'] if i == 0 else []
            if pos < 18:
                if i == 0: pre = [f's_add_u32 m0, s{sHW}, {pos*8192}'] + pre
                g.append(pre + [f'buffer_load_dwordx4 v{vB+i}, s[{S}:{S+3}], s{sT+4} offen offset:{i*1024} lds'])
            else:
                r = vBuf + ((pos - 18) * 2 + i) * 4
                g.append(pre + [f'buffer_load_dwordx4 v[{r}:{r+3}], v{vB+i}, s[{S}:{S+3}], s{sT+4} offen offset:{i*1024}'])
        if OPT['nob2']: return []
        return g

    tok = {}
    for c in (0, 1):
        for g in chunk_groups(c):
            for l in g: e(l)
        tok[c] = e.vtok()
    ts(e, 1)
    srd(e, SW2, pW2, 1792 * 1024); srd(e, SWO, pWO, 512 * 1024); srd(e, SWS, pWS, WS_SIZE)
    e(f'v_lshl_add_u32 v{vB}, v40, 10, v43\nv_add_u32 v{vB+1}, {8192-1024}, v{vB}')
    e(f's_lshl_b32 s{sB2}, s{sW}, 14\ns_lshl_b32 s{sT}, s{sCB}, 7\ns_add_u32 s{sB2}, s{sB2}, s{sT}')
    e(f'v_lshlrev_b32 v{vL16}, 4, v0\nv_add_u32 v{vL16}, s{sHW}, v{vL16}')
    e('v_and_b32 v44, 31, v0\nv_lshrrev_b32 v45, 5, v0\nv_bfe_u32 v46, v0, 1, 3\nv_xor_b32 v46, v45, v46')
    e(f'v_lshlrev_b32 v47, 7, v44\nv_add_u32 v47, s{sHX}, v47')
    for s in range(4):
        e(f'v_xor_b32 v48, {2*s}, v46\nv_lshl_add_u32 v{vA+s}, v48, 4, v47\nv_add_u32 v{vA+4+s}, {2*SLOT}, v{vA+s}')
    for i in range(4): e(f'v_mov_b32 v{vAcc+i}, 0')
    e('s_mov_b32 s79, 0xffff0000')

    def stats(c):
        sl = c % 3
        rd = [f'ds_read_b128 v[{vD+4*s}:{vD+4*s+3}], v{vA+s+(4 if sl == 2 else 0)} offset:{SLOT if sl == 1 else 0}' for s in range(4)]
        va = []
        for d in range(16):
            if d % 4 == 0: va.append(f's_waitcnt lgkmcnt({3-d//4})')
            t = 50 + 2 * (d & 1)
            va += [f'v_lshlrev_b32 v{t}, 16, v{vD+d}', f'v_and_b32 v{t+1}, s79, v{vD+d}',
                   f'v_add_f32 v{vAcc}, v{vAcc}, v{t}', f'v_add_f32 v{vAcc+1}, v{vAcc+1}, v{t+1}',
                   f'v_fmac_f32 v{vAcc+2}, v{t}, v{t}', f'v_fmac_f32 v{vAcc+3}, v{t+1}, v{t+1}']
        if OPT['nostats']: return [], []
        return rd, va

    b2q = list(range(18, 36)) + list(range(11, 18)) + list(range(0, 5)) + list(range(5, 11))
    def take_b2(n):
        g = []
        for _ in range(n): g += b2_groups(b2q.pop(0))
        return g
    for c in range(8):
        e.wait_vm(tok[c])
        e('s_barrier')
        if c == 0: ts(e, 2)
        rd, va = stats(c)
        for l in rd: e(l)
        if c + 2 <= 7:
            interleave(e, chunk_groups(c + 2), va); tok[c + 2] = e.vtok()
        elif c == 6:
            interleave(e, take_b2(6), va)
        else:
            interleave(e, take_b2(2), va[:40])
            for l in va[40:]: e(l)
    S, Q = vAcc, vAcc + 2
    e(f'v_add_f32 v{S}, v{S}, v{S+1}\nv_add_f32 v{Q}, v{Q}, v{Q+1}\nv_mov_b32 v{S+1}, v{S}\nv_mov_b32 v{Q+1}, v{Q}')
    e(f'v_permlane32_swap_b32 v{S+1}, v{S}\nv_permlane32_swap_b32 v{Q+1}, v{Q}')
    e(f'v_add_f32 v{S}, v{S}, v{S+1}\nv_add_f32 v{Q}, v{Q}, v{Q+1}')
    e(f'v_mul_f32 v50, 0xbb000000, v{S}')
    e(f'v_mul_f32 v51, 0x3b000000, v{Q}\nv_fma_f32 v51, -v50, v50, v51\nv_max_f32 v51, 0, v51\nv_add_f32 v51, {EPS5}, v51')
    e('v_rsq_f32 v52, v51\nv_mul_f32 v53, v51, v52')
    e('v_cvt_pk_bf16_f32 v57, v50, v53\nv_lshlrev_b32 v54, 16, v57\nv_and_b32 v55, s79, v57')
    e('v_sub_f32 v54, v50, v54\nv_sub_f32 v55, v53, v55\nv_mov_b32 v59, 0')
    e('v_cvt_pk_bf16_f32 v56, v50, v54\nv_cvt_pk_bf16_f32 v58, v55, v59')
    e(f's_lshl_b32 s{sT}, s{sW}, 5\nv_add_u32 v44, s{sT}, v44\nv_lshlrev_b32 v45, 4, v44\nv_lshlrev_b32 v46, 2, v44')
    e(f'v_add_u32 v45, {L_AUG}, v45\nv_add_u32 v46, {L_R}, v46')
    e('ds_write_b128 v45, v[56:59]\nds_write_b32 v46, v52\ns_waitcnt lgkmcnt(0)')
    e('s_barrier')
    e('s_barrier')
    ts(e, 3)
    if not F:
        for g in take_b2(6):
            for l in g: e(l)
        e('s_barrier')
    n = 0
    while b2q:
        for g in take_b2(1):
            for l in g: e(l)
        n += 1
        if n % 8 == 0: e('s_waitcnt vmcnt(40)')
    ts(e, 4)
    if not F:
        e('s_barrier')
    e('s_waitcnt vmcnt(0)')
    ts(e, 5)
    e('s_barrier')
    for r in range(3):
        e('s_barrier')
        if r: e(f'v_add_u32 v{vL16}, 49152, v{vL16}')
        for k in range(12):
            b = vBuf + (r * 12 + k) * 4
            e(f'ds_write_b128 v{vL16}, v[{b}:{b+3}] offset:{(k//2)*8192+(k&1)*1024}')
        e('s_waitcnt lgkmcnt(0)')
    e('s_barrier')
    ts(e, 6)
    ts_dump(e, 7, 0)
    e('s_endpgm')

ACC = 16
FS = (128, 152)
CS = 176; SEL = 192; AX = 196; AW = 204; AS = 208; BI = 212; NV = 216; L16 = 218; HF = 219; RHO = 220; CSA = 221

def get_nonce(e):
    L, D = lab('non'), lab('nond')
    e(f's_mov_b32 s{sT+9}, 200000')
    e(f'{L}:')
    e(f'v_readfirstlane_b32 s{sNON}, v{NV}\nv_readfirstlane_b32 s{sNON+1}, v{NV+1}')
    e(f's_cmp_lg_u32 s{sNON+1}, 0\ns_cbranch_scc1 {D}')
    e(f's_sub_u32 s{sT+9}, s{sT+9}, 1\ns_cmp_eq_u32 s{sT+9}, 0\ns_cbranch_scc1 {D}')
    e(f'buffer_load_dwordx2 v[{NV}:{NV+1}], off, s[{SDBG}:{SDBG+3}], 0 sc1\ns_waitcnt vmcnt(0)\ns_branch {L}')
    e(f'{D}:')

def put_flag(e, soff):
    e(f'v_mov_b32 v2, s{sNON}\nv_mov_b32 v3, s{sNON+1}\ns_mov_b64 exec, 1')
    e(f'buffer_store_dwordx2 v[2:3], off, s[{SWS}:{SWS+3}], s{soff} sc1')
    e('s_mov_b64 exec, -1')

def compute_p1(e, F):
    NT = 7 if F else 6
    sRH, sCH, sDL, sCNT, sSL, sY0, sY1 = 11, 12, 13, 14, 15, 76, 77
    e(f's_and_b32 s{sRH}, s{sW}, 1\ns_lshr_b32 s{sCH}, s{sW}, 1')
    e(f'v_lshlrev_b32 v{L16}, 4, v0\nv_lshrrev_b32 v{HF}, 5, v0\nv_and_b32 v{RHO}, 31, v0')
    e(f'v_bfe_u32 v2, v0, 1, 3\nv_xor_b32 v2, v{HF}, v2')
    e(f's_lshl_b32 s{sT}, s{sRH}, 13\ns_lshl_b32 s{sT+1}, s{sCH}, 12\ns_add_u32 s{sT}, s{sT}, s{sT+1}')
    e(f'v_lshlrev_b32 v3, 7, v{RHO}\nv_add_u32 v3, s{sT}, v3')
    for s in range(4):
        e(f's_xor_b32 s{sT+2}, s{sW}, {s}\ns_lshl_b32 s{sT+2}, s{sT+2}, 1\nv_xor_b32 v4, s{sT+2}, v2')
        e(f'v_lshl_add_u32 v{AX+2*s}, v4, 4, v3\nv_xor_b32 v{AX+2*s+1}, 0x1000, v{AX+2*s}')
    e('v_bfe_u32 v2, v0, 2, 2\nv_bfe_u32 v3, v0, 4, 1\nv_and_b32 v4, 3, v0\nv_bfe_u32 v5, v0, 3, 1')
    if not F: e(f'v_xor_b32 v3, s{sRH}, v3')
    e(f'v_lshl_add_u32 v2, v{HF}, 3, v2')
    e('v_lshlrev_b32 v4, 3, v4\nv_lshl_add_u32 v4, v3, 5, v4')
    e(f'v_xor_b32 v5, s{sCH}, v5\nv_lshl_add_u32 v5, v5, 6, v4\nv_lshl_add_u32 v5, v2, 7, v5\nv_add_u32 v5, {L_W}, v5')
    e(f'v_lshl_add_u32 v6, v2, 6, v4\nv_add_u32 v6, {L_S}, v6')
    for s in range(4):
        e(f's_xor_b32 s{sT+2}, s{sW}, {s}\ns_lshl_b32 s{sT+3}, s{sT+2}, 11\nv_add_u32 v{AW+s}, s{sT+3}, v5')
        if F: e(f's_lshl_b32 s{sT+3}, s{sT+2}, 10\nv_add_u32 v{AS+s}, s{sT+3}, v6')
    e('v_lshrrev_b32 v2, 2, v0\nv_xor_b32 v2, v2, v0\nv_and_b32 v2, 4, v2\nv_cmp_eq_u32 vcc, 0, v2\nv_mov_b32 v3, 0x3f803f80')
    e(f'v_cndmask_b32 v{SEL}, 0, v3, vcc')
    for i in range(1, 4): e(f'v_mov_b32 v{SEL+i}, v{SEL}')
    e('s_waitcnt lgkmcnt(0)')
    srd(e, SWS, pWS, WS_SIZE); srd(e, SDBG, pDBG, 256); srd(e, SX, pX, 2048 * 1024); srd(e, SOUT, pOUT, 2048 * 1024)
    Ln = lab('nonce_skip')
    e(f's_or_b32 s{sT}, s2, s{sW}\ns_cmp_lg_u32 s{sT}, 0\ns_cbranch_scc1 {Ln}')
    e(f's_load_dwordx2 s[{sT+2}:{sT+3}], s[{pWS}:{pWS+1}], 0\ns_waitcnt lgkmcnt(0)')
    e(f's_mul_i32 s{sT+4}, s{sT+2}, 0x4c957f2d\ns_mul_hi_u32 s{sT+5}, s{sT+2}, 0x4c957f2d')
    e(f's_mul_i32 s{sT+6}, s{sT+3}, 0x4c957f2d\ns_add_u32 s{sT+5}, s{sT+5}, s{sT+6}')
    e(f's_mul_i32 s{sT+6}, s{sT+2}, 0x5851f42d\ns_add_u32 s{sT+5}, s{sT+5}, s{sT+6}')
    e(f's_add_u32 s{sT+4}, s{sT+4}, 0xf767814f\ns_addc_u32 s{sT+5}, s{sT+5}, 0x14057b7e\ns_or_b32 s{sT+5}, s{sT+5}, 0x80000000')
    e(f'v_mov_b32 v2, s{sT+4}\nv_mov_b32 v3, s{sT+5}\ns_mov_b64 exec, 1')
    e(f'buffer_store_dwordx2 v[2:3], off, s[{SDBG}:{SDBG+3}], 0 sc1')
    e(f'buffer_store_dwordx2 v[2:3], off, s[{SWS}:{SWS+3}], 0 sc1')
    e('s_mov_b64 exec, -1')
    e(f'{Ln}:')
    if OPT['pf']:
        Lp = lab('pf_skip'); Lq = lab('pc')
        e(f's_cmp_lg_u32 s{sW}, 1\ns_cbranch_scc1 {Lp}')
        e(f's_getpc_b64 s[{sT+2}:{sT+3}]')
        e(f'{Lq}:')
        e(f's_sub_u32 s{sT+2}, s{sT+2}, {Lq}-{NAME}_kernel\ns_subb_u32 s{sT+3}, s{sT+3}, 0')
        e(f's_lshl_b32 s{sT+4}, s{sLI}, 10\nv_add_u32 v2, s{sT+4}, v{L16}\nv_min_u32 v2, L_code_end-{NAME}_kernel-16, v2')
        e(f'global_load_dwordx4 v[252:255], v2, s[{sT+2}:{sT+3}]')
        e(f'{Lp}:')
    e(f's_lshl_b32 s{sT}, s{sRB}, 2\ns_lshl_b32 s{sT+1}, s{sRH}, 1\ns_add_u32 s{sT}, s{sT}, s{sT+1}\ns_add_u32 s{sT}, s{sT}, s{sCH}')
    e(f's_xor_b32 s{sT+1}, s{sT}, 1\ns_mul_i32 s{sY0}, s{sT}, {144*1024}\ns_mul_i32 s{sY1}, s{sT+1}, {144*1024}')
    if F:
        srd(e, SB1, pB1, 1792 * 2)
        e(f's_lshr_b32 s{sT}, s{sG}, 1\ns_mul_i32 s{sT}, s{sT}, 448\ns_and_b32 s{sT+1}, s{sG}, 1')
        e(f's_lshl_b32 s{sT+2}, s{sT+1}, 8\ns_add_u32 s{sT+2}, s{sT+2}, s{sT}\ns_lshl_b32 s{sT+3}, s{sCH}, 5\ns_add_u32 s{sT+2}, s{sT+2}, s{sT+3}')
        e(f's_lshl_b32 s{sT+3}, s{sT+1}, 5\ns_add_u32 s{sT+3}, s{sT+3}, s{sT}\ns_add_u32 s{sT+3}, s{sT+3}, 192')
        e(f'v_lshlrev_b32 v2, 1, v{RHO}\ns_lshl_b32 s{sT+4}, s{sT+2}, 1\ns_lshl_b32 s{sT+5}, s{sT+3}, 1')
        for u in range(3): e(f'buffer_load_ushort v{BI+u}, v2, s[{SB1}:{SB1+3}], s{sT+4} offen offset:{u*128}')
        e(f'buffer_load_ushort v{BI+3}, v2, s[{SB1}:{SB1+3}], s{sT+5} offen')
        e(f's_lshl_b32 s{sT+3}, s{sT+3}, 6\ns_add_u32 s78, s{sY0}, s{sT+3}\ns_add_u32 s78, s78, {WS_Y}')
        e(f's_lshl_b32 s{sT+2}, s{sT+2}, 6\ns_add_u32 s{sT+2}, s{sT+2}, {WS_Y}')
    else:
        e(f's_lshl_b32 s{sT+2}, s{sG}, 12\ns_lshl_b32 s{sT+3}, s{sCH}, 11\ns_add_u32 s{sT+2}, s{sT+2}, s{sT+3}\ns_add_u32 s{sT+2}, s{sT+2}, {WS_Y+112*1024}')
    e(f's_add_u32 s{sY0}, s{sY0}, s{sT+2}\ns_add_u32 s{sY1}, s{sY1}, s{sT+2}')
    for i in range(NT * 16): e(f'v_mov_b32 v{ACC+i}, 0')
    for i in range(16): e(f'v_mov_b32 v{CS+i}, 0')
    e(f's_mov_b32 s{sCNT}, 0\ns_mov_b32 s{sSL}, 0\ns_mov_b32 s75, {-2*SLOT}')
    if OPT['prio']: e('s_setprio 1')

    def reads(s, st):
        b = FS[st]
        r = [f'ds_read_b128 v[{b}:{b+3}], v{AX+2*s}']
        for j in range(2): r.append(f'ds_read_b64_tr_b16 v[{b+8+2*j}:{b+9+2*j}], v{AW+s} offset:{j*512}')
        r.append(f'ds_read_b128 v[{b+4}:{b+7}], v{AX+2*s+1}')
        for u in (1, 2):
            for j in range(2): r.append(f'ds_read_b64_tr_b16 v[{b+8+4*u+2*j}:{b+9+4*u+2*j}], v{AW+s} offset:{u*8192+j*512}')
        if F:
            for j in range(2): r.append(f'ds_read_b64_tr_b16 v[{b+20+2*j}:{b+21+2*j}], v{AS+s} offset:{j*256}')
        if OPT['noread']: return []
        return r
    def mf(t, xr, wr):
        a = ACC + 16 * t
        tr = F or t < 2
        A, B = (wr, xr) if tr else (xr, wr)
        return f'v_mfma_f32_32x32x16_bf16 v[{a}:{a+15}], v[{A}:{A+3}], v[{B}:{B+3}], v[{a}:{a+15}]'
    def mfmas(s, st):
        b = FS[st]
        m = []
        for u in range(3):
            for crt in range(2): m.append(mf(2 * u + crt, b + 4 * crt, b + 8 + 4 * u))
            if s % 2 == 0: m.append(f'v_mfma_f32_16x16x32_bf16 v[{CS+4*u}:{CS+4*u+3}], v[{SEL}:{SEL+3}], v[{b+8+4*u}:{b+11+4*u}], v[{CS+4*u}:{CS+4*u+3}]')
        if F:
            m.append(mf(6, b, b + 20))
            if s == 0: m.append(f'v_mfma_f32_16x16x32_bf16 v[{CS+12}:{CS+15}], v[{SEL}:{SEL+3}], v[{b+20}:{b+23}], v[{CS+12}:{CS+15}]')
        if OPT['nocs']: m = [x for x in m if '16x16x32' not in x]
        if OPT['nomfma']: m = ['s_nop 0' for x in m]
        return m
    ts(e, 1)
    if DIAG == 2: e('s_memtime s[22:23]\ns_waitcnt lgkmcnt(0)')
    e('s_barrier')
    ts(e, 2)
    for l in reads(0, 0): e(l)
    LK = lab('kloop')
    e(f'{LK}:')
    for s in range(4):
        st = s & 1
        m = mfmas(s, st)
        e('s_waitcnt lgkmcnt(0)')
        if s < 3:
            r = reads(s + 1, st ^ 1)
            upd = []
            if s == 0:
                upd = [f's_add_u32 s{sSL}, s{sSL}, 1', f's_cmp_eq_u32 s{sSL}, 3', f's_cselect_b32 s{sDL}, s75, {SLOT}',
                       f's_cselect_b32 s{sSL}, 0, s{sSL}']
            ad = [AX + 2 * s, AX + 2 * s + 1, AW + s] + ([AS + s] if F else [])
            upd += [f'v_add_u32 v{a}, s{sDL}, v{a}' for a in ad]
            for i, x in enumerate(m):
                e(x)
                for l in r[2 * i:2 * i + 2]: e(l)
                if i == len(m) - 2:
                    for l in upd: e(l)
        else:
            bp = OPT['barpos']
            r = reads(0, st ^ 1)
            ad = [AX + 6, AX + 7, AW + 3] + ([AS + 3] if F else [])
            k = 0
            for i, x in enumerate(m):
                if i == bp: e('s_barrier')
                if i >= bp:
                    n = -(-(len(r) - k) // max(1, len(m) - i - 1)) if i < len(m) - 1 else len(r) - k
                    for l in r[k:k + n]: e(l)
                    k += n
                e(x)
                if i == 0:
                    for a in ad: e(f'v_add_u32 v{a}, s{sDL}, v{a}')
                    e(f's_add_u32 s{sCNT}, s{sCNT}, 1\ns_cmp_lt_u32 s{sCNT}, 8')
    e(f's_cbranch_scc1 {LK}')
    ts(e, 3)
    e(f'buffer_load_dwordx2 v[{NV}:{NV+1}], off, s[{SDBG}:{SDBG+3}], 0 sc1')
    e(f'v_lshlrev_b32 v2, 2, v{RHO}')
    if not F: e(f's_lshl_b32 s{sT}, s{sRH}, 6\nv_xor_b32 v2, s{sT}, v2')
    e(f's_mul_i32 s{sT}, s{sW}, 384\ns_add_u32 s{sT}, s{sT}, {L_CS}\nv_add_u32 v3, s{sT}, v2')
    e(f's_xor_b32 s{sT}, s{sW}, 1\ns_mul_i32 s{sT}, s{sT}, 384\ns_add_u32 s{sT}, s{sT}, {L_CS}\nv_add_u32 v4, s{sT}, v2')
    for u in range(3): e(f'ds_write_b32 v3, v{CS+4*u} offset:{u*128}')
    if F:
        e(f's_lshl_b32 s{sT}, s{sW}, 7\nv_add_u32 v5, {L_CSS}, v2\nv_add_u32 v6, s{sT}, v5\nds_write_b32 v6, v{CS+12}')
    e(f's_lshl_b32 s{sT}, s{sRH}, 6\ns_lshl_b32 s{sT+1}, s{sCH}, 5\ns_add_u32 s{sT}, s{sT}, s{sT+1}')
    e(f'v_add_u32 v7, s{sT}, v{RHO}\nv_lshlrev_b32 v8, 4, v7\nv_xor_b32 v9, 512, v8\nv_add_u32 v8, {L_AUG}, v8\nv_add_u32 v9, {L_AUG}, v9')
    e(f'v_lshlrev_b32 v10, 2, v7\nv_xor_b32 v11, 128, v10\nv_add_u32 v10, {L_R}, v10\nv_add_u32 v11, {L_R}, v11')
    e(f'v_cmp_eq_u32 vcc, 0, v{HF}')
    e('s_waitcnt lgkmcnt(0)')
    e('s_barrier')
    XA = 128; WA = 136; PC = 152; RR = 160; RL = 162; M2 = 164
    for u in range(3): e(f'ds_read_b32 v{PC+u}, v4 offset:{u*128}')
    if F:
        for w in range(4): e(f'ds_read_b32 v{PC+3+w}, v5 offset:{w*128}')
    e(f'ds_read_b128 v[{XA}:{XA+3}], v8\nds_read_b128 v[{XA+4}:{XA+7}], v9\nds_read_b32 v{RR}, v10\nds_read_b32 v{RR+1}, v11')
    RV = 224
    if not F:
        e(f's_lshl_b32 s{sT}, s{sT}, 2\nv_lshlrev_b32 v12, 4, v{HF}\nv_add_u32 v12, s{sT}, v12\nv_xor_b32 v13, 128, v12')
        e(f'v_add_u32 v12, {L_R}, v12\nv_add_u32 v13, {L_R}, v13')
    e('s_waitcnt vmcnt(1) lgkmcnt(0)')
    if not F:
        for crt in range(2):
            for q in range(4): e(f'ds_read_b128 v[{RV+16*crt+4*q}:{RV+16*crt+4*q+3}], v{12+crt} offset:{q*32}')
    e('s_mov_b32 s79, 0xffff0000')
    for u in range(4 if F else 3):
        w = WA + 4 * u
        if u < 3: e(f'v_add_f32 v2, v{CS+4*u}, v{PC+u}')
        else: e(f'v_add_f32 v2, v{PC+3}, v{PC+4}\nv_add_f32 v3, v{PC+5}, v{PC+6}\nv_add_f32 v2, v2, v3')
        e('v_cndmask_b32 v2, 0, v2, vcc')
        e(f'v_cvt_pk_bf16_f32 v{w}, v2, v2\nv_and_b32 v3, s79, v{w}\nv_sub_f32 v3, v2, v3\nv_mov_b32 v{w+3}, 0')
        if F:
            e(f'v_cndmask_b32 v{w+2}, 0, v{BI+u}, vcc\nv_lshlrev_b32 v14, 16, v{w+2}\nv_cvt_pk_bf16_f32 v{w+1}, v3, v14')
        else:
            e(f'v_mov_b32 v{w+2}, 0\nv_cvt_pk_bf16_f32 v{w+1}, v3, v{w+3}')
    order = [0, 1, 2, 3, 4, 5, 6] if F else [2, 3, 4, 5, 0, 1]
    for t in order:
        e(mf(t, XA + 4 * (t & 1) if t < 6 else XA, WA + 4 * (t >> 1)))
    e(f's_mov_b32 s{sT+5}, {LOG2E}')
    for crt in range(2):
        e(f'v_mul_f32 v{RL+crt}, s{sT+5}, v{RR+crt}\nv_mul_f32 v{M2+crt}, -2.0, v{RR+crt}')
    U = 176; P = 192
    def sel2(crt): return f'op_sel:[0,{crt}] op_sel_hi:[1,{crt}]'
    if F:
        for t in range(7):
            a = ACC + 16 * t; crt = t & 1 if t < 6 else 0; p = P + 8 * (t & 1)
            for i in range(0, 16, 2): e(f'v_pk_mul_f32 v[{U+i}:{U+i+1}], v[{a+i}:{a+i+1}], v[{RL}:{RL+1}] {sel2(crt)}')
            for i in range(16): e(f'v_exp_f32 v{U+i}, v{U+i}')
            for i in range(0, 16, 2): e(f'v_pk_add_f32 v[{U+i}:{U+i+1}], v[{U+i}:{U+i+1}], 1.0 op_sel_hi:[1,0]')
            for i in range(0, 16, 2): e(f'v_pk_fma_f32 v[{U+i}:{U+i+1}], v[{U+i}:{U+i+1}], v[{U+i}:{U+i+1}], 1.0 op_sel_hi:[1,1,0]')
            for i in range(16): e(f'v_rcp_f32 v{U+i}, v{U+i}')
            for i in range(0, 16, 2): e(f'v_pk_fma_f32 v[{U+i}:{U+i+1}], v[{U+i}:{U+i+1}], v[{M2}:{M2+1}], v[{RR}:{RR+1}] op_sel:[0,{crt},{crt}] op_sel_hi:[1,{crt},{crt}]')
            for i in range(0, 16, 2): e(f'v_pk_mul_f32 v[{U+i}:{U+i+1}], v[{U+i}:{U+i+1}], v[{a+i}:{a+i+1}]')
            for i in range(8): e(f'v_cvt_pk_bf16_f32 v{p+i}, v{U+2*i}, v{U+2*i+1}')
            if t < 6: e(f's_add_u32 s{sT}, s{sY1 if crt else sY0}, {(t>>1)*4096}'); so = sT
            else: so = 78
            for k in range(0 if OPT['nost'] else 2): e(f'buffer_store_dwordx4 v[{p+4*k}:{p+4*k+3}], v{L16}, s[{SWS}:{SWS+3}], s{so} offen offset:{k*1024} sc1')
        ts(e, 4)
        e(f's_lshl_b32 s{sT}, s{sRB}, 1\ns_add_u32 s{sT}, s{sT}, s{sRH}\ns_lshl_b32 s{sT}, s{sT}, 5\ns_lshl_b32 s{sT+1}, s{sG}, 1')
        e(f's_add_u32 s{sT}, s{sT}, s{sT+1}\ns_add_u32 s{sT}, s{sT}, s{sCH}\ns_lshl_b32 s{sT}, s{sT}, 7\ns_add_u32 s{sT}, s{sT}, {WS_YF}')
        e('s_waitcnt vmcnt(0)')
        get_nonce(e)
        put_flag(e, sT)
        ts(e, 5)
    else:
        EP = 166; LG = 168
        e(f'v_mov_b32 v{EP}, {EPS6}\nv_mov_b32 v{LG}, {LOG2E}\nv_mov_b32 v170, 0x3f803f80')
        e(f'v_cmp_gt_u32 vcc, 16, v{RHO}')
        PK = 128; PV = 144; T = 192
        e('s_waitcnt lgkmcnt(0)')
        def phi(a, rsrc, p):
            for i in range(0, 16, 2): e(f'v_pk_fma_f32 v[{T+i}:{T+i+1}], v[{a+i}:{a+i+1}], {rsrc(i)}')
            for i in range(0, 16, 2): e(f'v_pk_mul_f32 v[{U+i}:{U+i+1}], v[{T+i}:{T+i+1}], v[{LG}:{LG+1}] op_sel_hi:[1,0]')
            for i in range(16): e(f'v_exp_f32_e64 v{U+i}, v{U+i} clamp')
            for i in range(16): e(f'v_max_f32 v{T+i}, v{EP}, v{T+i}')
            for i in range(0, 16, 2): e(f'v_pk_add_f32 v[{T+i}:{T+i+1}], v[{T+i}:{T+i+1}], v[{U+i}:{U+i+1}]')
            for i in range(8): e(f'v_cvt_pk_bf16_f32 v{p+i}, v{T+2*i}, v{T+2*i+1}')
        for crt in range(2):
            phi(ACC + 16 * (2 + crt), lambda i: f'v[{RV+16*crt+i}:{RV+16*crt+i+1}], v[{EP}:{EP+1}] op_sel_hi:[1,1,0]', PK + 8 * crt)
        for crt in range(2):
            a = ACC + 16 * (4 + crt)
            for i in range(0, 16, 2): e(f'v_pk_mul_f32 v[{U+i}:{U+i+1}], v[{a+i}:{a+i+1}], v[{RV+16*crt+i}:{RV+16*crt+i+1}]')
            for i in range(8): e(f'v_cvt_pk_bf16_f32 v{PV+8*crt+i}, v{U+2*i}, v{U+2*i+1}')
        B0 = 176; B1 = 192; D0 = ACC + 32; D1 = ACC + 48
        for i in range(16): e(f'v_cndmask_b32 v{B0+i}, v170, v{PV+i}, vcc\nv_cndmask_b32 v{B1+i}, v{PV+i}, v170, vcc')
        for k in range(4):
            for D, B in ((D1, B1), (D0, B0)):
                e(f'v_mfma_f32_32x32x16_bf16 v[{D}:{D+15}], v[{PK+4*k}:{PK+4*k+3}], v[{B+4*k}:{B+4*k+3}], ' + ('0' if k == 0 else f'v[{D}:{D+15}]'))
        e(f's_lshl_b32 s{sT}, s{sW}, 11\ns_add_u32 s{sT}, s{sT}, {L_KX}\nv_xor_b32 v2, 256, v{L16}\nv_add_u32 v2, s{sT}, v2')
        e(f's_xor_b32 s{sT}, s{sW}, 1\ns_lshl_b32 s{sT}, s{sT}, 11\ns_add_u32 s{sT}, s{sT}, {L_KX}\nv_add_u32 v3, s{sT}, v{L16}')
        e(f'v_lshlrev_b32 v4, 8, v{HF}\nv_lshl_add_u32 v4, v{RHO}, 4, v4\nv_add_u32 v5, 512, v4')
        e(f'v_lshlrev_b32 v6, 4, v{HF}\nv_add_u32 v6, 1024, v6\nv_add_u32 v7, 32, v6')
        e('v_cndmask_b32 v4, v6, v4, vcc\nv_cndmask_b32 v5, v7, v5, vcc')
        e(f'v_cmp_ge_u32 vcc, 16, v{RHO}\nv_mov_b32 v6, 0x7ff00000\nv_cndmask_b32 v4, v6, v4, vcc\nv_cndmask_b32 v5, v6, v5, vcc')
        e(f'ds_write_b128 v2, v[{D1+8}:{D1+11}]\nds_write_b128 v2, v[{D1+12}:{D1+15}] offset:1024')
        e('s_waitcnt lgkmcnt(0)')
        e('s_barrier')
        e(f'ds_read_b128 v[{U}:{U+3}], v3\nds_read_b128 v[{U+4}:{U+7}], v3 offset:1024')
        e(f's_lshl_b32 s{sT}, s{sG}, 2\ns_add_u32 s{sT}, s{sT}, s{sW}\ns_lshl_b32 s{sT}, s{sT}, 4')
        e(f's_mul_i32 s{sT+1}, s{sT}, 1152\ns_add_u32 s{sT+1}, s{sT+1}, {WS_KV}')
        e(f's_mul_i32 s{sT+2}, s{sRB}, 1152\ns_add_u32 s{sT+2}, s{sT+2}, s{sT+1}')
        e(f's_lshl_b32 s{sT+3}, s{sT}, 7\ns_add_u32 s{sT+3}, s{sT+3}, {WS_KVF}')
        e(f's_lshl_b32 s{sT+4}, s{sRB}, 7\ns_add_u32 s{sT+4}, s{sT+4}, s{sT+3}')
        e('s_waitcnt lgkmcnt(0)')
        for i in range(8): e(f'v_add_f32 v{U+i}, v{U+i}, v{D0+i}')
        e(f'buffer_store_dwordx4 v[{U}:{U+3}], v4, s[{SWS}:{SWS+3}], s{sT+2} offen sc1')
        e(f'buffer_store_dwordx4 v[{U+4}:{U+7}], v5, s[{SWS}:{SWS+3}], s{sT+2} offen sc1')
        ts(e, 4)
        PQ = 128
        for crt in range(2):
            phi(ACC + 16 * crt, lambda i: f'v[{RR}:{RR+1}], v[{EP}:{EP+1}] op_sel:[0,{crt},0] op_sel_hi:[1,{crt},0]', PQ + 8 * crt)
        e('s_waitcnt vmcnt(0)')
        get_nonce(e)
        put_flag(e, sT + 4)
        e('v_and_b32 v4, 15, v0\nv_lshlrev_b32 v4, 7, v4')
        poll(e, 4, 6, f's{sT+3}')
        ts(e, 5)
        G = 48
        e(f'v_lshrrev_b32 v4, 2, v0\nv_mul_u32_u24 v4, 1152, v4\nv_and_b32 v5, 3, v0\nv_lshl_add_u32 v4, v5, 4, v4')
        e(f'buffer_load_dwordx4 v[112:115], v4, s[{SWS}:{SWS+3}], s{sT+1} offen offset:1024 sc1')
        for r in range(16):
            if r % 3 == 0 and r: e(f's_add_u32 s{sT+1}, s{sT+1}, {3*1152}')
            e(f'buffer_load_dwordx4 v[{G+4*r}:{G+4*r+3}], v{L16}, s[{SWS}:{SWS+3}], s{sT+1} offen offset:{(r%3)*1152} sc1')
        e(f's_lshl_b32 s{sT}, s{sW}, 10\ns_add_u32 s{sT}, s{sT}, {L_KF}')
        e(f'v_bfe_u32 v6, v0, 4, 1\nv_and_b32 v7, 15, v0\nv_lshl_add_u32 v6, v6, 5, v7\nv_lshlrev_b32 v6, 4, v6\nv_lshl_add_u32 v6, v{HF}, 3, v6\nv_add_u32 v6, s{sT}, v6')
        e(f'v_and_b32 v7, 1, v0\nv_lshrrev_b32 v8, 2, v0\nv_lshl_add_u32 v7, v7, 5, v8\nv_lshlrev_b32 v7, 4, v7\nv_bfe_u32 v8, v0, 1, 1\nv_lshl_add_u32 v7, v8, 3, v7\nv_add_u32 v7, s{sT}, v7')
        e(f'v_add_u32 v8, s{sT}, v{L16}\nv_xor_b32 v9, 1024, v8')
        e('s_waitcnt vmcnt(16)')
        for ror in (4, 8):
            for i in range(4): e(f'v_add_f32_dpp v{112+i}, v{112+i}, v{112+i} row_ror:{ror} row_mask:0xf bank_mask:0xf')
        for sw in (16, 32):
            for i in range(4): e(f'v_mov_b32 v{116+i}, v{112+i}')
            for i in range(4): e(f'v_permlane{sw}_swap_b32 v{116+i}, v{112+i}')
            for i in range(4): e(f'v_add_f32 v{112+i}, v{112+i}, v{116+i}')
        e('v_cvt_pk_bf16_f32 v116, v112, v113\nv_cvt_pk_bf16_f32 v117, v114, v115')
        e('ds_write_b64 v7, v[116:117] offset:256')
        for r in range(1, 16):
            e(f's_waitcnt vmcnt({15-r})')
            for i in (0, 2): e(f'v_pk_add_f32 v[{G+i}:{G+i+1}], v[{G+i}:{G+i+1}], v[{G+4*r+i}:{G+4*r+i+1}]')
        e(f'v_cvt_pk_bf16_f32 v118, v{G}, v{G+1}\nv_cvt_pk_bf16_f32 v119, v{G+2}, v{G+3}')
        e('ds_write_b64 v6, v[118:119]\ns_waitcnt lgkmcnt(0)')
        e('s_barrier')
        e('ds_read_b128 v[144:147], v8\nds_read_b128 v[148:151], v9\ns_waitcnt lgkmcnt(0)')
        for crt in range(2):
            for h in range(2):
                d = ACC + 16 * (2 * crt + h)
                e(f'v_mfma_f32_32x32x16_bf16 v[{d}:{d+15}], v[{144+4*h}:{147+4*h}], v[{PQ+8*crt+4*h}:{PQ+8*crt+4*h+3}], 0')
        e(f's_lshl_b32 s{sT}, s{sRH}, 10\ns_xor_b32 s{sT+1}, s{sT}, 1024')
        for crt in range(2):
            for h in range(2):
                d = ACC + 16 * (2 * crt + h); p = P + 4 * (2 * crt + h)
                e(f'v_add_f32 v{d+8}, v{EP}, v{d+8}\nv_rcp_f32 v{d+8}, v{d+8}')
                e(f's_add_u32 s{sT+2}, s{sY1 if crt else sY0}, s{sT+h}')
                for i in range(0, 8, 2): e(f'v_pk_mul_f32 v[{d+i}:{d+i+1}], v[{d+i}:{d+i+1}], v[{d+8}:{d+9}] op_sel_hi:[1,0]')
                for i in range(4): e(f'v_cvt_pk_bf16_f32 v{p+i}, v{d+2*i}, v{d+2*i+1}')
                e(f'buffer_store_dwordx4 v[{p}:{p+3}], v{L16}, s[{SWS}:{SWS+3}], s{sT+2} offen sc1')
        e(f's_lshl_b32 s{sT}, s{sRB}, 1\ns_add_u32 s{sT}, s{sT}, s{sRH}\ns_lshl_b32 s{sT}, s{sT}, 5\ns_lshl_b32 s{sT+1}, s{sG}, 1')
        e(f's_add_u32 s{sT}, s{sT}, s{sT+1}\ns_add_u32 s{sT}, s{sT}, s{sCH}\ns_lshl_b32 s{sT}, s{sT}, 7\ns_add_u32 s{sT}, s{sT}, {WS_YF+16*128}')
        e('s_waitcnt vmcnt(0)')
        put_flag(e, sT)

def compute_p2(e):
    sRH, sKH = 11, 12
    DA = OPT['DA']
    A0 = 48; BF = A0 + 4 * DA; AB = BF + 24; XR = AB + 6 + (AB & 1); VO = XR + 8
    assert VO < 216
    sA3, sA2, sA1 = 13, 14, 15
    ts(e, 6)
    e(f's_lshl_b32 s{sT}, s{sRB2}, 6\ns_lshl_b32 s{sT+1}, s{sRH}, 5\ns_add_u32 s{sT}, s{sT}, s{sT+1}\ns_lshl_b32 s{sT}, s{sT}, 10')
    e(f's_lshl_b32 s{sT+1}, s{sCB}, 7\ns_add_u32 s{sT}, s{sT}, s{sT+1}\ns_lshl_b32 s{sT+1}, s{sKH}, 6\ns_add_u32 s76, s{sT}, s{sT+1}')
    e(f'v_lshlrev_b32 v{VO}, 10, v{RHO}\nv_lshl_add_u32 v{VO}, v{HF}, 5, v{VO}')
    for k in range(2): e(f'buffer_load_dwordx4 v[{XR+4*k}:{XR+4*k+3}], v{VO}, s[{SX}:{SX+3}], s76 offen offset:{k*16}')
    e(f's_lshl_b32 s{sT}, s{sRB2}, 1\ns_add_u32 s{sT}, s{sT}, s{sRH}\ns_mul_i32 s{sT}, s{sT}, {144*1024}\ns_add_u32 s{sT}, s{sT}, {WS_Y}')
    e(f's_lshl_b32 s{sT+1}, s{sKH}, 12\ns_add_u32 s{sA1}, s{sT}, s{sT+1}\ns_add_u32 s{sA2}, s{sA1}, s{sT+1}\ns_add_u32 s{sA3}, s{sA2}, s{sT+1}')
    e('v_bfe_u32 v2, v0, 2, 2\nv_bfe_u32 v3, v0, 4, 1\nv_bfe_u32 v4, v0, 1, 1\nv_and_b32 v5, 1, v0\nv_bfe_u32 v6, v0, 3, 1')
    e(f'v_lshl_add_u32 v2, v{HF}, 2, v2')
    e('v_lshl_add_u32 v3, v3, 1, v4\nv_lshl_add_u32 v3, v5, 2, v3')
    e(f'v_xor_b32 v6, s{sKH}, v6\nv_lshlrev_b32 v3, 3, v3\nv_lshl_add_u32 v3, v6, 6, v3\nv_lshl_add_u32 v3, v2, 7, v3')
    e(f's_mul_i32 s{sT}, s{sKH}, 24576\nv_add_u32 v{AB}, s{sT}, v3\nv_xor_b32 v{AB+1}, 64, v{AB}')
    for k in (1, 2):
        for t in range(2): e(f'v_add_u32 v{AB+2*k+t}, {49152*k}, v{AB+t}')
    e(f'v_lshlrev_b32 v4, 7, v{RHO}\ns_lshl_b32 s{sT+3}, s{sRB2}, 12\ns_add_u32 s{sT+3}, s{sT+3}, {WS_YF}')
    poll(e, 4, 6, f's{sT+3}')
    ts(e, 7)
    tokA = {}
    def loadA(n):
        r, idx, s = n // 12, (n % 12) // 4, n % 4
        U0 = POS2U[6 * r + idx]; dU = POS2U[6 * r + 3 + idx] - U0
        if s == 0: e(f's_add_u32 s{sT}, s{ {3: sA3, 2: sA2, 1: sA1}[dU] }, {U0*4096}')
        a = A0 + 4 * (n % DA)
        e(f'buffer_load_dwordx4 v[{a}:{a+3}], v{L16}, s[{SWS}:{SWS+3}], s{sT} offen offset:{s*1024} sc1')
        tokA[n] = e.vtok()
    def readB(n, t):
        r, idx, s = n // 12, (n % 12) // 4, n % 4
        b = BF + 8 * (n % 3) + 4 * t
        for j in range(2): e(f'ds_read_b64_tr_b16 v[{b+2*j}:{b+2*j+1}], v{AB+2*(r%3)+t} offset:{idx*8192+s*2048+j*1024}')
    for n in range(DA): loadA(n)
    e('s_barrier')
    ts(e, 8)
    for n in (0, 1):
        for t in range(2): readB(n, t)
    for n in range(72):
        bar = (n % 12 == 10) and (n // 12 in (0, 1, 2, 4))
        nv = e.vm - tokA[n]
        lg = 0 if (bar or n == 71) else 4
        e(f's_waitcnt vmcnt({nv}) lgkmcnt({lg})')
        if bar: e('s_barrier')
        a = A0 + 4 * (n % DA)
        for t in range(2):
            if n + 2 < 72: readB(n + 2, t)
            b = BF + 8 * (n % 3) + 4 * t; d = ACC + 16 * t
            e(f'v_mfma_f32_32x32x16_bf16 v[{d}:{d+15}], v[{b}:{b+3}], v[{a}:{a+3}], ' + ('0' if n == 0 else f'v[{d}:{d+15}]'))
        if n + DA < 72: loadA(n + DA)
    ts(e, 9)
    e(f's_lshl_b32 s{sT}, s{sW}, 12\ns_add_u32 s{sT}, s{sT}, {SCR}\nv_add_u32 v2, s{sT}, v{L16}\nv_xor_b32 v3, 0x2000, v2')
    for q in range(4): e(f'ds_write_b128 v2, v[{ACC+16+4*q}:{ACC+19+4*q}] offset:{q*1024}')
    e('s_mov_b32 s79, 0xffff0000')
    for i in range(8): e(f'v_lshlrev_b32 v{64+2*i}, 16, v{XR+i}\nv_and_b32 v{65+2*i}, s79, v{XR+i}')
    for i in range(0, 16, 2): e(f'v_pk_add_f32 v[{ACC+i}:{ACC+i+1}], v[{ACC+i}:{ACC+i+1}], v[{64+i}:{65+i}]')
    e('s_waitcnt lgkmcnt(0)\ns_barrier')
    for q in range(4): e(f'ds_read_b128 v[{48+4*q}:{51+4*q}], v3 offset:{q*1024}')
    for q in range(4):
        e(f's_waitcnt lgkmcnt({3-q})')
        for i in (4 * q, 4 * q + 2):
            e(f'v_pk_add_f32 v[{ACC+i}:{ACC+i+1}], v[{ACC+i}:{ACC+i+1}], v[{48+i}:{49+i}]')
            e(f'v_cvt_pk_bf16_f32 v{64+i//2}, v{ACC+i}, v{ACC+i+1}')
        if q & 1: e(f'buffer_store_dwordx4 v[{64+4*(q>>1)}:{67+4*(q>>1)}], v{VO}, s[{SOUT}:{SOUT+3}], s76 offen offset:{(q>>1)*16}')
    if DIAG: e('s_waitcnt vmcnt(0)')
    ts(e, 10)
    ts_dump(e, 11, 4)
    e('s_endpgm')

def main():
    e = Emit()
    e('s_cmp_ge_u32 s2, 256\ns_cbranch_scc1 L_end')
    e('s_load_dwordx16 s[16:31], s[0:1], 0\ns_load_dwordx4 s[32:35], s[0:1], 64')
    if DIAG: e(f'{"s_memtime" if OPT.get("cyc") else "s_memrealtime"} s[{sTS}:{sTS+1}]')
    e(f'v_readfirstlane_b32 s{sW}, v0\nv_and_b32 v0, 63, v0')
    e(f's_lshr_b32 s{sLI}, s2, 3\ns_bfe_u32 s{sRB}, s2, 0x10002\ns_lshl_b32 s{sRB}, s{sRB}, 3\ns_lshr_b32 s{sT}, s2, 5\ns_add_u32 s{sRB}, s{sRB}, s{sT}')
    e(f's_and_b32 s{sG}, s2, 3\ns_lshl_b32 s{sG}, s{sG}, 1\ns_and_b32 s{sT}, s{sLI}, 1\ns_add_u32 s{sG}, s{sG}, s{sT}')
    if OPT['rot']:
        e(f's_and_b32 s{sT}, s{sLI}, 3\ns_lshl_b32 s{sT}, s{sT}, 1\ns_add_u32 s{sROT}, s{sRB}, s{sT}')
    else:
        e(f's_mov_b32 s{sROT}, 0')
    e(f's_and_b32 s{sRB2}, s2, 7\ns_lshl_b32 s{sRB2}, s{sRB2}, 2\ns_lshr_b32 s{sT}, s2, 6\ns_add_u32 s{sRB2}, s{sRB2}, s{sT}\ns_and_b32 s{sCB}, s{sLI}, 7')
    e(f's_lshr_b32 s{sW}, s{sW}, 6\ns_bfe_u32 s{sF}, s2, 0x10004')
    e(f's_cmp_ge_u32 s{sW}, 4\ns_cbranch_scc1 L_compute')
    e(f's_cmp_eq_u32 s{sF}, 0\ns_cbranch_scc1 L_helper_A')
    helper(e, 1)
    e('L_helper_A:'); e.vm = 0
    helper(e, 0)
    e('L_compute:'); e.vm = 0
    e(f's_sub_u32 s{sW}, s{sW}, 4\ns_cmp_eq_u32 s{sF}, 0\ns_cbranch_scc1 L_compute_A')
    compute_p1(e, 1)
    e('s_branch L_p2')
    e('L_compute_A:')
    compute_p1(e, 0)
    e('L_p2:')
    compute_p2(e)
    e('L_end:\ns_endpgm\nL_code_end:')
    lines, n = hazard_pass_fast(e.lines)
    hdr = open('cdna_kernels/%s.s.ref' % NAME).read().split('; Override launch')[0]
    out = hdr + f'; @launch grid=(256,1,1) block=(512,1,1) lds={LDS_BYTES}\n'
    out += f'.amdgcn_target "amdgcn-amd-amdhsa--gfx950"\n.text\n.globl {NAME}_kernel\n.p2align 8\n.type {NAME}_kernel,@function\n{NAME}_kernel:\n'
    out += '\n'.join(lines) + '\n'
    out += f'''.section .rodata,"a"
.p2align 6
.amdhsa_kernel {NAME}_kernel
  .amdhsa_next_free_vgpr 256
  .amdhsa_next_free_sgpr 102
  .amdhsa_accum_offset 256
  .amdhsa_group_segment_fixed_size 0
  .amdhsa_kernarg_size 80
  .amdhsa_user_sgpr_count 2
  .amdhsa_user_sgpr_kernarg_segment_ptr 1
  .amdhsa_system_sgpr_workgroup_id_x 1
  .amdhsa_float_denorm_mode_32 3
.end_amdhsa_kernel
'''
    open(sys.argv[1], 'w').write(out)
    print('wrote', sys.argv[1], len(lines), 'lines,', n, 'hazard pads')

main()
```

```python
import re

TRANS = ('v_exp_f32', 'v_log_f32', 'v_rcp_f32', 'v_rsq_f32', 'v_sqrt_f32', 'v_sin_f32', 'v_cos_f32', 'v_rcp_iflag_f32')

def regs_of(tok):
    tok = tok.strip()
    tok = tok.lstrip('-')
    m = re.fullmatch(r'abs\((.*)\)', tok) or re.fullmatch(r'\|(.*)\|', tok)
    if m: tok = m.group(1)
    m = re.fullmatch(r'([vsa])(\d+)', tok)
    if m: return [(m.group(1), int(m.group(2)))]
    m = re.fullmatch(r'([vsa])\[(\d+):(\d+)\]', tok)
    if m: return [(m.group(1), i) for i in range(int(m.group(2)), int(m.group(3)) + 1)]
    if tok == 'vcc': return [('s', 106), ('s', 107)]
    if tok == 'vcc_lo': return [('s', 106)]
    if tok == 'vcc_hi': return [('s', 107)]
    if tok == 'exec_lo': return [('s', 126)]
    if tok == 'exec_hi': return [('s', 127)]
    if tok == 'exec': return [('s', 126), ('s', 127)]
    if tok == 'm0': return [('s', 124)]
    return []

class Ins:
    def __init__(self, text):
        self.text = text
        t = text.split(';')[0].strip()
        self.label = None
        self.op = None
        self.w = set(); self.r = set()
        self.srcc = set(); self.srcab = set(); self.data = set()
        if t.endswith(':'):
            self.label = t[:-1]; return
        if not t or t.startswith('.'):
            return
        parts = t.split(None, 1)
        self.op = op = parts[0]
        rest = parts[1] if len(parts) > 1 else ''
        ops = []; cur = ''; d = 0
        for ch in rest:
            if ch == '[': d += 1
            if ch == ']': d -= 1
            if ch == ',' and d == 0: ops.append(cur); cur = ''
            else: cur += ch
        if cur.strip(): ops.append(cur)
        mods = ''
        if ops:
            last = ops[-1].strip().split(None, 1)
            ops[-1] = last[0]
            mods = last[1] if len(last) > 1 else ''
        self.ops = ops; self.mods = mods
        R = [regs_of(o) for o in ops]
        base = re.sub(r'_(e32|e64|dpp|sdwa)$', '', op)
        self.base = base
        self.is_mfma = op.startswith('v_mfma')
        self.is_valu = op.startswith('v_') and not self.is_mfma
        self.is_trans = base in TRANS
        self.is_dpp = op.endswith('_dpp') or 'row_' in mods or 'quad_perm' in mods
        self.is_vmem = op.startswith(('buffer_', 'global_'))
        self.is_ds = op.startswith('ds_')
        self.is_salu = op.startswith('s_')
        self.is_ldsdma = self.is_vmem and (' lds' in ' ' + mods or '_lds_' in op)
        self.is_perm = 'permlane' in op
        self.is_branch = op.startswith(('s_branch', 's_cbranch'))
        self.target = ops[0].strip() if self.is_branch else None
        if self.is_mfma:
            self.w |= set(R[0]); self.srcab = set(R[1]) | set(R[2]); self.srcc = set(R[3]); self.r = self.srcab | self.srcc
            self.passes = 8 if '32x32x16' in op else 4 if ('16x16x32' in op or '16x16x16' in op) else None
            assert self.passes
        elif self.is_valu:
            if self.is_perm:
                self.w |= set(R[0]) | set(R[1]); self.r |= set(R[0]) | set(R[1])
            elif base in ('v_add_co_u32', 'v_sub_co_u32', 'v_addc_co_u32'):
                self.w |= set(R[0]) | set(R[1])
                for x in R[2:]: self.r |= set(x)
            else:
                self.w |= set(R[0])
                for x in R[1:]: self.r |= set(x)
                if base in ('v_fmac_f32', 'v_dot2c_f32_bf16', 'v_writelane_b32') or self.is_dpp: self.r |= set(R[0])
                if base.startswith('v_cmpx'): self.w |= {('s', 126), ('s', 127)}
        elif self.is_ds:
            if op.startswith(('ds_read', 'ds_bpermute', 'ds_swizzle', 'ds_permute')):
                self.w |= set(R[0])
                for x in R[1:]: self.r |= set(x)
            else:
                for x in R: self.r |= set(x)
        elif self.is_vmem:
            if op in ('buffer_wbl2', 'buffer_inv'):
                pass
            elif self.is_ldsdma:
                for x in R: self.r |= set(x)
                self.r.add(('s', 124))
            elif '_load_' in op:
                self.w |= set(R[0])
                for x in R[1:]: self.r |= set(x)
                if 'd16' in op: self.r |= set(R[0])
            else:
                for x in R: self.r |= set(x)
                self.data = set(R[0]) if op.startswith('buffer_') else set(R[1])
                if not op.endswith(('x3', 'x4')): self.data = set()
                if 'atomic' in op and 'sc0' in mods: self.w |= set(R[0])
        elif self.is_salu:
            if op.startswith(('s_cmp', 's_waitcnt', 's_nop', 's_barrier', 's_branch', 's_cbranch', 's_endpgm', 's_setprio', 's_sleep', 's_bitcmp', 's_atomic')):
                for x in R: self.r |= set(x)
            else:
                if R: self.w |= set(R[0])
                for x in R[1:]: self.r |= set(x)
                if 'saveexec' in op: self.w |= {('s', 126), ('s', 127)}
        else:
            raise ValueError('unknown instruction: ' + text)

    def states(self):
        if self.op is None: return 0
        if self.op == 's_nop': return int(self.ops[0], 0) + 1
        return 1

def need(p, c):
    n = 0
    vw = {x for x in p.w if x[0] != 's'}
    sw = {x for x in p.w if x[0] == 's'}
    if p.is_valu:
        if c.is_mfma and vw & c.r: n = max(n, 2)
        if c.is_valu and c.is_dpp and vw & c.r: n = max(n, 2)
        if c.is_valu and c.is_perm and vw & c.r: n = max(n, 2)
        if c.is_valu and c.base in ('v_readfirstlane_b32', 'v_readlane_b32') and vw & c.r: n = max(n, 1)
        if p.is_trans and (c.is_valu or c.is_mfma or c.is_vmem or c.is_ds) and vw & c.r: n = max(n, 1)
        if sw:
            if c.is_vmem and sw & c.r: n = max(n, 5)
            if (c.is_valu) and sw & c.r: n = max(n, 4 if c.base in ('v_readlane_b32', 'v_writelane_b32') else 2)
            if c.is_valu and c.base == 'v_cndmask_b32' and len(c.ops) == 4 and sw & set(regs_of(c.ops[3])): n = max(n, 2)
            if c.is_salu and sw & c.r: n = max(n, 1)
            if ('s', 126) in sw and (c.is_mfma or c.is_valu): n = max(n, 5)
    if p.is_mfma:
        big = {4: 8, 8: 12}[p.passes]
        if c.is_mfma:
            if p.w & c.srcab: n = max(n, big)
            if p.w & c.srcc and not (p.w == c.srcc and p.passes == c.passes): n = max(n, {4: 6, 8: 10}[p.passes])
            if p.w & c.w and not (p.w == c.srcc and p.passes == c.passes): n = max(n, big)
        elif c.is_valu or c.is_vmem or c.is_ds:
            if p.w & (c.r | c.w): n = max(n, big)
            if p.srcc & c.w: n = max(n, {4: 3, 8: 7}[p.passes])
    if p.is_vmem and p.data and (c.is_valu or c.is_mfma) and p.data & c.w: n = max(n, 2)
    if p.is_vmem and p.data and (c.is_vmem or c.is_ds) and p.data & c.w: n = max(n, 1)
    if p.is_salu and ('s', 124) in p.w and c.is_vmem and c.is_ldsdma: n = max(n, 1)
    return n

MAXD = 12
def hazard_pass(lines):
    total = 0
    while True:
        ins = [Ins(l) for l in lines]
        labels = {i.label: k for k, i in enumerate(ins) if i.label}
        preds = {}
        for k, i in enumerate(ins):
            if i.op and i.is_branch: preds.setdefault(labels[i.target], []).append(k)
        def required(k):
            c = ins[k]; worst = 0
            stack = [(k - 1, 0)]; seen = set()
            while stack:
                j, d = stack.pop()
                while j >= 0 and d < MAXD:
                    if (j, d) in seen: break
                    seen.add((j, d))
                    p = ins[j]
                    if p.label:
                        for b in preds.get(j, []): stack.append((b, d))
                        q = j - 1
                        while q >= 0 and ins[q].op is None and not ins[q].label: q -= 1
                        if q >= 0 and ins[q].op in ('s_branch', 's_endpgm'): break
                        j -= 1; continue
                    if p.op is None: j -= 1; continue
                    worst = max(worst, need(p, c) - d)
                    d += p.states(); j -= 1
            return worst
        fix = None
        out = []
        changed = False
        for k, i in enumerate(ins):
            if i.op and not changed:
                r = required(k)
                if r > 0:
                    out.append('    s_nop %d    ; hazard pad' % (r - 1)); total += 1
                    changed = True; first = k
            out.append(lines[k])
        lines = out
        if not changed: return lines, total

def hazard_pass_fast(lines):
    ins = []
    out = []
    n = 0
    for l in lines:
        c = Ins(l)
        if c.op:
            d = 0; worst = 0
            for p in reversed(ins):
                if d >= MAXD: break
                if p.op is None: continue
                if p.op in ('s_branch', 's_endpgm'): break
                worst = max(worst, need(p, c) - d)
                d += p.states()
            if worst > 0:
                t = '    s_nop %d    ; hazard pad' % (worst - 1)
                out.append(t); ins.append(Ins(t)); n += 1
        out.append(l); ins.append(c)
    out, m = hazard_pass(out)
    return out, n + m

class Emit:
    def __init__(self):
        self.lines = []
        self.vm = 0
        self.lg = 0
    def __call__(self, s):
        for l in s.split('\n'):
            l = l.strip()
            if not l: continue
            if l.endswith(':'): self.lines.append(l); continue
            self.lines.append('    ' + l)
            op = l.split()[0]
            if op.startswith(('buffer_', 'global_')): self.vm += 1
            if op.startswith('ds_'): self.lg += 1
        return self
    def c(self, s): self.lines.append('    ; ' + s)
    def vtok(self): return self.vm
    def ltok(self): return self.lg
    def wait_vm(self, tok):
        n = self.vm - tok
        assert 0 <= n <= 63, n
        self('s_waitcnt vmcnt(%d)' % n)
    def wait_lg(self, tok):
        n = self.lg - tok
        assert 0 <= n, n
        self('s_waitcnt lgkmcnt(%d)' % min(n, 15))

def vr(a, n=1):
    return 'v%d' % a if n == 1 else 'v[%d:%d]' % (a, a + n - 1)
def sr(a, n=1):
    return 's%d' % a if n == 1 else 's[%d:%d]' % (a, a + n - 1)
```

```python
import sys
from asmlib import *

NAME = 'parallel_sum__linear_attn_block__dense_activation_mish__prompt'
OPT = dict(diag=0, rot=2, DU=3, pf=1, wpf=1, thr=0, slp=4, nostats=0, nomfma=0, nocs=0, nob2=0, nost=0, noread=0, nochk=0, kts2=0, wpc=0, hprio=0, p2noa=0, p2nom=0, p2nor=0, p2sc=1, p2now=0, noswz=0, b2a=6, b2b=5, cyc=0, wg=0, ia=0, ib=0)
for a in sys.argv[2:]:
    k, v = a.split('='); assert k in OPT, k; OPT[k] = int(v)
DIAG = OPT['diag']

WS_YF = 0x1000
WS_RS = 0x22000
WS_KV = 0x50000
WS_TS = 0xE0000
WS_CS = 0x100000
WS_Y = 0x200000
YRT = 72 * 1024
WS_SIZE = WS_Y + 128 * YRT
SLOT = 45056
L_W = 16384; L_S = 40960
SCR = 147456
L_R = SCR
L_NM = SCR + 512
L_CS = SCR + 1024
L_BT = SCR + 2048
L_NON = SCR + 4096
L_KX = SCR + 4096
L_KF = SCR + 12288
LDS_BYTES = 163840
RSLOT = (12 * 8192, 0, 6 * 8192)

sW, sRB, sG, sF, sKC, sRB2, sCB, sLI = 3, 4, 5, 6, 7, 8, 9, 10
pX, pWQKV, pWO, pW1, pB1, pW2, pOUT, pDBG, pWS = 16, 18, 20, 24, 26, 28, 30, 32, 34
SX, SWs, SW2, SWO, SWS, SOUT, SB1, SDBG = 36, 40, 44, 48, 52, 56, 60, 64
sNON = 68
sT = 70
sSPIN = 79
sTS = 80

import struct
def fl(x): return '0x%08x' % struct.unpack('<I', struct.pack('<f', x))[0]
LOG2E = 1.4426950408889634

def srd(e, d, p, n):
    e(f's_mov_b32 s{d}, s{p}\ns_mov_b32 s{d+1}, s{p+1}\ns_mov_b32 s{d+2}, {n}\ns_mov_b32 s{d+3}, 0x20000')

TSI = 's_memtime' if OPT['cyc'] else 's_memrealtime'
def ts(e, k):
    if DIAG: e(f'{TSI} s[{sTS+2*k}:{sTS+2*k+1}]\ns_waitcnt lgkmcnt(0)')

_lab = [0]
def lab(p):
    _lab[0] += 1
    return f'L_{p}_{_lab[0]}'

def ts_dump(e, nst, wave_off):
    if not DIAG: return
    if DIAG == 3:
        if wave_off == 0: return
        Ls = lab('dd'); Lw = lab('dw')
        e(f's_cmp_lg_u32 s{sW}, 0\ns_cbranch_scc1 {Ls}\ns_cmp_lg_u32 s2, {OPT["wg"]}\ns_cbranch_scc1 {Ls}')
        e(f's_sub_u32 s{sT}, s{sTS+2*OPT["ib"]}, s{sTS+2*OPT["ia"]}\ns_min_u32 s{sT}, s{sT}, 10000\ns_mul_i32 s{sT}, s{sT}, 20')
        e(f'{Lw}:')
        e(f's_memrealtime s[72:73]\ns_waitcnt lgkmcnt(0)\ns_sub_u32 s72, s72, s{sTS+2*(nst-1)}\ns_cmp_lt_u32 s72, s{sT}\ns_cbranch_scc1 {Lw}')
        e(f'{Ls}:')
        return
    e('v_mov_b32 v1, v60' if wave_off == 0 else 'v_mov_b32 v1, 0')
    for k in range(nst): e(f'v_writelane_b32 v1, s{sTS+2*k}, {k}')
    e(f's_lshl_b32 s{sT}, s2, 3\ns_add_u32 s{sT}, s{sT}, s{sW}\ns_add_u32 s{sT}, s{sT}, {wave_off}\ns_lshl_b32 s{sT}, s{sT}, 6\ns_add_u32 s{sT}, s{sT}, {WS_TS}')
    e('v_lshlrev_b32 v2, 2, v0\ns_mov_b64 exec, 0xffff')
    e(f'buffer_store_dword v1, v2, s[{SWS}:{SWS+3}], s{sT} offen\ns_mov_b64 exec, -1')

def spin_tail(e, L, D):
    e(f's_sub_u32 s{sSPIN}, s{sSPIN}, 1\ns_cmp_eq_u32 s{sSPIN}, 0\ns_cbranch_scc1 {D}\ns_sleep {OPT["slp"]}\ns_branch {L}')

def poll(e, voff, tmp, soff, issued=False):
    L, D, M = lab('poll'), lab('pdone'), lab('pmid')
    e(f's_mov_b32 s{sSPIN}, 200000')
    if issued: e(f's_branch {M}')
    e(f'{L}:')
    e(f'buffer_load_dwordx2 v[{tmp}:{tmp+1}], v{voff}, s[{SWS}:{SWS+3}], {soff} offen sc1')
    if issued: e(f'{M}:')
    e('s_waitcnt vmcnt(0)')
    e(f'v_cmp_eq_u64 vcc, s[{sNON}:{sNON+1}], v[{tmp}:{tmp+1}]')
    e(f's_cmp_eq_u64 vcc, -1\ns_cbranch_scc1 {D}')
    spin_tail(e, L, D)
    e(f'{D}:')

def get_nonce(e, nv):
    L, D = lab('non'), lab('nond')
    e(f's_mov_b32 s{sSPIN}, 200000')
    e(f'{L}:')
    e(f'v_readfirstlane_b32 s{sNON}, v{nv}\nv_readfirstlane_b32 s{sNON+1}, v{nv+1}')
    e(f's_cmp_lg_u32 s{sNON+1}, 0\ns_cbranch_scc1 {D}')
    e(f's_sub_u32 s{sSPIN}, s{sSPIN}, 1\ns_cmp_eq_u32 s{sSPIN}, 0\ns_cbranch_scc1 {D}')
    e(f'buffer_load_dwordx2 v[{nv}:{nv+1}], off, s[{SDBG}:{SDBG+3}], 0 sc1\ns_waitcnt vmcnt(0)\ns_branch {L}')
    e(f'{D}:')

def put_flag(e, soff):
    e(f'v_mov_b32 v2, s{sNON}\nv_mov_b32 v3, s{sNON+1}\nv_lshlrev_b32 v4, 3, v0\ns_mov_b64 exec, 0xffff')
    e(f'buffer_store_dwordx2 v[2:3], v4, s[{SWS}:{SWS+3}], s{soff} offen sc1')
    e('s_mov_b64 exec, -1')

def interleave(e, groups, fill):
    n = len(groups)
    if n == 0:
        for l in fill: e(l)
        return
    per = len(fill) / n
    done = 0
    for i, g in enumerate(groups):
        for l in g: e(l)
        upto = int(round(per * (i + 1)))
        for l in fill[done:upto]: e(l)
        done = upto

POS2U = list(range(24)) + [24, 25, 28, 26, 27, 29] + list(range(30, 36))

def helper(e):
    vX, vWo, vS, vB, vL16, vA, vD, vAcc, vBuf = 2, 6, 8, 9, 11, 12, 20, 36, 112
    sXB, sWB, sHX, sHW, sHS = 11, 12, 13, 14, 15
    sUST, sSD, sCK, sL, sB2, sK0, sCSB, sRSB = 23, 76, 77, 78, 60, 61, 62, 63
    e('v_lshrrev_b32 v40, 3, v0\nv_and_b32 v41, 7, v0\nv_lshrrev_b32 v42, 4, v0')
    e(f'v_xor_b32 v43, v41, v42\nv_lshlrev_b32 v43, 4, v43\nv_lshl_add_u32 v{vX}, v40, 10, v43')
    e(f'v_xor_b32 v{vX+1}, 64, v{vX}\nv_add_u32 v{vX+1}, {8192-1024}, v{vX+1}')
    e(f'v_add_u32 v{vX+2}, {2*(8192-1024)}, v{vX}\nv_add_u32 v{vX+3}, {2*(8192-1024)}, v{vX+1}')
    e(f's_lshl_b32 s{sHX}, s{sW}, 12\ns_lshl_b32 s{sXB}, s{sRB}, 17\ns_lshl_b32 s{sT}, s{sW}, 15\ns_add_u32 s{sXB}, s{sXB}, s{sT}')
    e(f's_lshl_b32 s{sT+1}, s{sKC}, 7\ns_add_u32 s{sT+1}, s{sT+1}, s{sXB}\ns_mov_b32 m0, s{sHX}')
    e(f's_mov_b32 s{SX+2}, {2048*1024}\ns_mov_b32 s{SX+3}, 0x20000\ns_mov_b32 s{SWs+3}, 0x20000')
    e(f's_lshr_b32 s{sT}, s{sG}, 1\ns_mul_i32 s{sT}, s{sT}, 896\ns_and_b32 s{sT+2}, s{sG}, 1\ns_lshl_b32 s{sT+3}, s{sT+2}, 9\ns_add_u32 s{sT}, s{sT}, s{sT+3}')
    e(f's_mul_i32 s{sSD}, s{sT+2}, -448\ns_add_u32 s{sSD}, s{sSD}, 384\ns_lshl_b32 s{sT+2}, s{sG}, 7')
    e(f's_lshl_b32 s{sT+3}, s{sF}, 9\ns_add_u32 s{sT+3}, s{sT+3}, 3072')
    e(f's_lshl_b32 s{sCK}, s{sT+3}, 6\ns_lshl_b32 s{SWs+2}, s{sT+3}, 9\ns_mul_i32 s{sWB}, s{sT+3}, s{sW}\ns_lshl_b32 s{sWB}, s{sWB}, 4')
    e('v_and_b32 v43, 1, v42\nv_lshlrev_b32 v43, 1, v43\nv_xor_b32 v43, v41, v43\nv_lshlrev_b32 v43, 4, v43')
    if OPT['noswz']: e('v_lshlrev_b32 v43, 4, v41')
    e(f'v_mad_u32_u24 v{vWo}, v40, s{sT+3}, v43\ns_lshl_b32 s{sT+4}, s{sT+3}, 3\ns_sub_u32 s{sT+4}, s{sT+4}, 1024')
    e(f'v_xor_b32 v{vWo+1}, 64, v{vWo}\nv_add_u32 v{vWo+1}, s{sT+4}, v{vWo+1}')
    e('v_lshrrev_b32 v44, 2, v0\nv_and_b32 v45, 3, v0\nv_and_b32 v46, 2, v42\nv_xor_b32 v45, v45, v46\nv_lshlrev_b32 v45, 4, v45')
    e(f'v_mad_u32_u24 v{vS}, v44, s{sT+3}, v45')
    e(f's_lshl_b32 s{sHW}, s{sW}, 11\ns_lshl_b32 s{sHS}, s{sW}, 10\ns_add_u32 s{sHS}, s{sHS}, {L_S}')
    e(f's_cmp_lg_u32 s{sF}, 0\ns_cselect_b32 s{sT}, s{sT}, s{sT+2}\ns_add_u32 s{sWB}, s{sWB}, s{sT}\ns_mov_b32 s{sL}, 0')
    e('s_waitcnt lgkmcnt(0)')
    e(f's_mov_b32 s{SX}, s{pX}\ns_mov_b32 s{SX+1}, s{pX+1}')
    e(f's_cmp_lg_u32 s{sF}, 0\ns_cselect_b32 s{SWs}, s{pW1}, s{pWQKV}\ns_cselect_b32 s{SWs+1}, s{pW1+1}, s{pWQKV+1}')
    e(f's_movk_i32 s{sUST}, 1024\ns_cselect_b32 s{sUST}, 128, s{sUST}')

    def chunk_groups(first=False):
        g = []
        pre = [] if first else [f's_lshl_b32 s{sT+1}, s{sKC}, 7', f's_add_u32 m0, s{sL}, s{sHX}', f's_add_u32 s{sT+1}, s{sT+1}, s{sXB}']
        for i in range(4):
            g.append((pre if i == 0 else []) + [f'buffer_load_dwordx4 v{vX+i}, s[{SX}:{SX+3}], s{sT+1} offen offset:{i*1024} lds'])
        for u in range(3):
            if u == 0: pre = [f's_add_u32 s{sT+4}, s{sL}, s{sHW}', f's_mul_i32 s{sT+2}, s{sKC}, s{sCK}', f's_add_u32 m0, s{sT+4}, {L_W}', f's_add_u32 s{sT+2}, s{sT+2}, s{sWB}']
            else: pre = [f's_add_u32 m0, s{sT+4}, {L_W+u*8192}', f's_add_u32 s{sT+3}, s{sT+2 if u == 1 else sT+3}, s{sUST}']
            so = sT + 2 if u == 0 else sT + 3
            for i in range(2):
                g.append((pre if i == 0 else []) + [f'buffer_load_dwordx4 v{vWo+i}, s[{SWs}:{SWs+3}], s{so} offen offset:{i*1024} lds'])
        Ls = lab('nostrip')
        g.append([f's_cmp_eq_u32 s{sF}, 0', f's_cbranch_scc1 {Ls}', f's_add_u32 m0, s{sL}, s{sHS}', f's_add_u32 s{sT+3}, s{sT+2}, s{sSD}',
                  f'buffer_load_dwordx4 v{vS}, s[{SWs}:{SWs+3}], s{sT+3} offen lds', f'{Ls}:',
                  f's_add_u32 s{sKC}, s{sKC}, 1', f's_and_b32 s{sKC}, s{sKC}, 7', f's_add_u32 s{sL}, s{sL}, {SLOT}',
                  f's_cmp_eq_u32 s{sL}, {3*SLOT}', f's_cselect_b32 s{sL}, 0, s{sL}'])
        return g

    def b2_groups(pos):
        U = POS2U[pos]
        S = SW2 if U < 28 else SWO
        off = (U if U < 28 else U - 28) * 65536
        g = []
        for i in range(2):
            pre = [f's_add_u32 s{sT+4}, s{sB2}, {off}'] if i == 0 else []
            if pos < 18:
                if i == 0: pre = [f's_add_u32 m0, s{sHW}, {RSLOT[pos//6]+(pos%6)*8192}'] + pre
                g.append(pre + [f'buffer_load_dwordx4 v{vB+i}, s[{S}:{S+3}], s{sT+4} offen offset:{i*1024} lds'])
            else:
                r = vBuf + ((pos - 18) * 2 + i) * 4
                g.append(pre + [f'buffer_load_dwordx4 v[{r}:{r+3}], v{vB+i}, s[{S}:{S+3}], s{sT+4} offen offset:{i*1024}'])
        if OPT['nob2']: return []
        return g

    def issue(groups):
        for g in groups:
            for l in g:
                e(l)
                if l.startswith(f'buffer_load_dwordx4 v{vS},'): e.vm -= 1
    tok = {}
    e(f's_mov_b32 s{sK0}, s{sKC}')
    for c in (0, 1):
        issue(chunk_groups(c == 0)); tok[c] = e.vtok()
    ts(e, 1)
    srd(e, SW2, pW2, 1792 * 1024); srd(e, SWO, pWO, 512 * 1024); srd(e, SWS, pWS, WS_SIZE)
    e(f'v_lshlrev_b32 v43, 1, v42\nv_xor_b32 v43, v41, v43\nv_lshlrev_b32 v43, 4, v43')
    e(f'v_lshl_add_u32 v{vB}, v40, 10, v43\nv_add_u32 v{vB+1}, {8192-1024}, v{vB}')
    e(f's_and_b32 s{sT}, s{sRB2}, 1\ns_xor_b32 s{sT}, s{sT}, s{sW}\ns_lshl_b32 s{sB2}, s{sT}, 14\ns_lshl_b32 s{sT}, s{sCB}, 7\ns_add_u32 s{sB2}, s{sB2}, s{sT}')
    e(f'v_lshlrev_b32 v{vL16}, 4, v0')
    vN, vT, vCG, vRG, vRW, vMK = 12, 13, 14, 15, 16, 17
    e(f'v_and_b32 v{vN}, 15, v0\nv_lshlrev_b32 v{vN}, 4, v{vN}\ns_lshl_b32 s{sT}, s{sW}, 8\nv_add_u32 v{vN}, s{sT}, v{vN}')
    e(f'v_add_u32 v{vT}, {L_CS}, v{vN}\nv_lshl_add_u32 v{vCG}, v42, 10, v{vN}')
    e(f's_lshl_b32 s{sCSB}, s{sF}, 3\ns_add_u32 s{sCSB}, s{sCSB}, s{sG}\ns_lshl_b32 s{sCSB}, s{sCSB}, 13\ns_add_u32 s{sCSB}, s{sCSB}, {WS_CS}')
    e(f'v_bfe_u32 v44, v0, 1, 4\nv_and_b32 v45, 1, v0\nv_lshlrev_b32 v45, 4, v45\nv_lshl_add_u32 v{vRG}, v44, 7, v45')
    e(f's_lshl_b32 s{sRSB}, s{sRB}, 13\ns_add_u32 s{sRSB}, s{sRSB}, s{sHW}\ns_add_u32 s{sRSB}, s{sRSB}, {WS_RS}')
    e(f'v_and_b32 v44, 31, v0\ns_lshl_b32 s{sT}, s{sW}, 7\ns_add_u32 s{sT}, s{sT}, {L_R}\nv_lshl_add_u32 v{vRW}, v44, 2, s{sT}')
    e(f'v_mov_b32 v{vMK}, 0xff\nv_mov_b32 v44, {L_NON}')
    def kts(c, two=0):
        if DIAG == 1 and two == OPT['kts2']: e(f'{TSI} s[100:101]\ns_waitcnt lgkmcnt(0)\nv_writelane_b32 v60, s100, {7+c}')
    b2q = list(range(36))
    def take_b2(n):
        g = []
        for _ in range(n): g += b2_groups(b2q.pop(0))
        return g
    TG = 56
    def gather_loads():
        for q in range(2): e(f'buffer_load_dwordx4 v[{20+4*q}:{23+4*q}], v{vCG}, s[{SWS}:{SWS+3}], s{sCSB if q == 0 else sT+5} offen sc1')
        e(f'buffer_load_dwordx4 v[28:31], v{vRG}, s[{SWS}:{SWS+3}], s{sRSB} offen sc1')
    for c in range(8):
        e.wait_vm(tok[c])
        e('s_barrier')
        kts(c)
        if c == OPT['wpc'] and OPT['wpf']:
            e(f's_lshl_b32 s{sT}, s2, 2\ns_add_u32 s{sT}, s{sT}, s{sW}\ns_mul_i32 s{sT+1}, s{sT}, 1792\ns_lshl_b32 s{sT}, s{sT}, 9')
            e(f'buffer_load_dwordx4 v[56:59], v{vL16}, s[{SW2}:{SW2+3}], s{sT+1} offen')
            e(f'buffer_load_dwordx4 v[56:59], v{vL16}, s[{SW2}:{SW2+3}], s{sT+1} offen offset:768')
            e(f'v_min_u32 v55, 496, v{vL16}\nbuffer_load_dwordx4 v[56:59], v55, s[{SWO}:{SWO+3}], s{sT} offen')
        if c == 0: e('ds_read_b64 v[18:19], v44')
        if c == 1: e(f'ds_read_b128 v[20:23], v{vT}')
        if c == 5:
            e(f's_add_u32 s{sT+5}, s{sCSB}, 4096')
            gather_loads(); tg = e.vtok()
        if c + 2 <= 7:
            issue(chunk_groups()); tok[c + 2] = e.vtok()
        elif c == 6:
            issue(take_b2(6)); tr0 = e.vtok()
        else:
            issue(take_b2(OPT['b2b']))
        if c == 0:
            e(f's_waitcnt lgkmcnt(0)\nv_readfirstlane_b32 s{sNON}, v18\nv_readfirstlane_b32 s{sNON+1}, v19')
            for i in range(4): e(f's_bfe_u32 s{TG+i}, s{sNON}, {0x80000+8*i}')
        if c == 1:
            e(f's_lshl_b32 s{sT}, s{sK0}, 10\ns_add_u32 s{sT}, s{sT}, s{sCSB}\ns_waitcnt lgkmcnt(0)')
            for i in range(4): e(f'v_add_u32 v{20+i}, 0x80, v{20+i}')
            for i in range(4): e(f'v_bfi_b32 v{20+i}, v{vMK}, s{TG+i}, v{20+i}')
            e(f's_mov_b64 exec, 0xffff\nbuffer_store_dwordx4 v[20:23], v{vN}, s[{SWS}:{SWS+3}], s{sT} offen sc1\ns_mov_b64 exec, -1')
        if c == 6 and not OPT['nochk']:
            L, Dn = lab('xchk'), lab('xdone')
            e(f's_mov_b32 s{sSPIN}, 200000\ns_setprio 2')
            e.wait_vm(tg)
            e(f'{L}:')
            for i in range(8): e(f'v_xor_b32 v{20+i}, s{TG+(i&3)}, v{20+i}')
            e(f'v_or3_b32 v32, v20, v21, v22\nv_or3_b32 v32, v32, v23, v24\nv_or3_b32 v32, v32, v25, v26\nv_or_b32 v32, v32, v27\nv_and_b32 v32, v{vMK}, v32')
            e(f'v_cmp_ne_u64 s[{sT}:{sT+1}], s[{sNON}:{sNON+1}], v[30:31]\nv_cmp_ne_u32 vcc, 0, v32\ns_or_b64 vcc, vcc, s[{sT}:{sT+1}]')
            e(f's_cbranch_scc0 {Dn}')
            e(f's_sub_u32 s{sSPIN}, s{sSPIN}, 1\ns_cmp_eq_u32 s{sSPIN}, 0\ns_cbranch_scc1 {Dn}\ns_sleep {OPT["slp"]}')
            vm0 = e.vm
            gather_loads(); e.vm = vm0
            e(f's_waitcnt vmcnt(0)\ns_branch {L}')
            e(f'{Dn}:')
            e(f'ds_write_b32 v{vRW}, v28\nds_write_b32 v{vRW}, v29 offset:512')
            for i in range(4): e(f'v_add_f32 v{20+i}, v{20+i}, v{24+i}')
            for sw in (16, 32):
                for i in range(4): e(f'v_mov_b32 v{24+i}, v{20+i}')
                for i in range(4): e(f'v_permlane{sw}_swap_b32 v{24+i}, v{20+i}')
                for i in range(4): e(f'v_add_f32 v{20+i}, v{20+i}, v{24+i}')
            e(f'ds_write_b128 v{vT}, v[20:23]\ns_setprio 0')
    e(f's_waitcnt vmcnt({e.vm - tr0}) lgkmcnt(0)')
    e('s_barrier')
    kts(8)
    ts(e, 2)
    thr = OPT['thr']
    def issue_b2(n):
        for k, g in enumerate(take_b2(n)):
            for l in g: e(l)
            if thr: e(f's_waitcnt vmcnt({thr})')
            elif k % 16 == 15: e('s_waitcnt vmcnt(40)')
    def abar():
        Lb = lab('abar')
        e(f's_cmp_lg_u32 s{sF}, 0\ns_cbranch_scc1 {Lb}\ns_barrier\n{Lb}:')
    issue_b2(7)
    abar()
    issue_b2(len(b2q))
    ts(e, 3)
    abar()
    e(f'v_add_u32 v{vL16}, s{sHW}, v{vL16}')
    for r in range(3): e(f'v_add_u32 v{20+r}, {RSLOT[r]}, v{vL16}')
    def refill(k0, k1):
        for k in range(k0, k1):
            if OPT['p2now']: continue
            b = vBuf + k * 4; r, kk = k // 12, k % 12
            e(f'ds_write_b128 v{20+r}, v[{b}:{b+3}] offset:{(kk//2)*8192+(kk&1)*1024}')
        e('s_waitcnt lgkmcnt(0)')
    e('s_barrier')
    kts(0, 1)
    e('s_waitcnt vmcnt(0)')
    ts(e, 4)
    refill(0, 12)
    if OPT['hprio']: e(f's_setprio {OPT["hprio"]}')
    kts(1, 1)
    e(f'v_and_b32 v4, 15, v0\nv_lshlrev_b32 v4, 7, v4\ns_lshl_b32 s{sT+3}, s{sRB2}, 12\ns_add_u32 s{sT+3}, s{sT+3}, {WS_YF+2048}')
    e('s_barrier')
    kts(2, 1)
    e('s_barrier')
    kts(3, 1)
    refill(12, 20)
    kts(4, 1)
    e('s_barrier')
    kts(5, 1)
    refill(20, 28)
    kts(6, 1)
    Lo = lab('noopoll')
    e(f's_cmp_lg_u32 s{sW}, 0\ns_cbranch_scc1 {Lo}')
    e(f'buffer_load_dwordx2 v[6:7], v4, s[{SWS}:{SWS+3}], s{sT+3} offen sc1')
    e(f'{Lo}:')
    e('s_barrier')
    kts(7, 1)
    refill(28, 36)
    kts(8, 1)
    Lo = lab('noopoll')
    e(f's_cmp_lg_u32 s{sW}, 0\ns_cbranch_scc1 {Lo}')
    poll(e, 4, 6, f's{sT+3}', True)
    e(f's_cmp_lg_u32 s2, 0\ns_cbranch_scc1 {Lo}')
    e(f'v_mov_b32 v2, s{sNON}\nv_mov_b32 v3, s{sNON+1}\ns_mov_b64 exec, 1')
    e(f'buffer_store_dwordx2 v[2:3], off, s[{SWS}:{SWS+3}], 0 sc1\ns_mov_b64 exec, -1')
    e(f'{Lo}:')
    ts(e, 5)
    e('s_barrier')
    ts(e, 6)
    ts_dump(e, 7, 0)
    e('s_endpgm')

ACC = 16
XF = 128; WR = 160; CS = 192; SEL = 208; AX = 212; AW = 216; AS = 220; CSW = 224; L16 = 225; L16B = 226; G4 = 227; N16 = 228; NV = 230
sRH, sCH = 11, 12

def compute_common(e):
    e(f's_sub_u32 s{sW}, s{sW}, 4\ns_setprio 1\ns_and_b32 s{sRH}, s{sW}, 1\ns_lshr_b32 s{sCH}, s{sW}, 1')
    e(f'v_lshlrev_b32 v{L16}, 4, v0\nv_lshrrev_b32 v{G4}, 4, v0\nv_and_b32 v{N16}, 15, v0\nv_add_u32 v{L16B}, {YRT}, v{L16}')
    e('s_waitcnt lgkmcnt(0)')
    e(f's_load_dwordx2 s[{sNON}:{sNON+1}], s[{pWS}:{pWS+1}], 0')
    srd(e, SX, pX, 2048 * 1024)
    e(f's_lshl_b32 s{sT}, s{sF}, 3\ns_add_u32 s{sT}, s{sT}, s{sG}\ns_lshl_b32 s{sT}, s{sT}, 2\ns_add_u32 s{sT}, s{sT}, s{sW}')
    e(f's_lshl_b32 s{sT+1}, s{sRB}, 6\ns_add_u32 s23, s{sT}, s{sT+1}\ns_lshl_b32 s{sT+1}, s23, 11')
    for k in range(2): e(f'buffer_load_dwordx4 v[{XF+4*k}:{XF+4*k+3}], v{L16}, s[{SX}:{SX+3}], s{sT+1} offen offset:{k*1024}')
    srd(e, SWS, pWS, WS_SIZE)
    if OPT['pf']:
        Lp = lab('pf_skip'); Lq = lab('pc')
        e(f's_cmp_lg_u32 s{sW}, 1\ns_cbranch_scc1 {Lp}')
        e(f's_getpc_b64 s[{sT+2}:{sT+3}]')
        e(f'{Lq}:')
        e(f's_sub_u32 s{sT+2}, s{sT+2}, {Lq}-{NAME}_kernel\ns_subb_u32 s{sT+3}, s{sT+3}, 0')
        e(f's_lshl_b32 s{sT+4}, s{sLI}, 10\nv_add_u32 v2, s{sT+4}, v{L16}\nv_min_u32 v2, L_code_end-{NAME}_kernel-16, v2')
        e(f'global_load_dwordx4 v[252:255], v2, s[{sT+2}:{sT+3}]')
        e(f'{Lp}:')
    srd(e, SOUT, pOUT, 2048 * 1024)
    e(f's_lshl_b32 s{sT}, s{sCH}, 2\nv_bfe_u32 v2, v0, 1, 3\nv_xor_b32 v2, v{G4}, v2\nv_xor_b32 v2, s{sT}, v2')
    e(f's_lshl_b32 s{sT}, s{sRH}, 13\ns_lshl_b32 s{sT+1}, s{sCH}, 12\ns_add_u32 s{sT}, s{sT}, s{sT+1}')
    e(f'v_lshlrev_b32 v3, 7, v{N16}\nv_add_u32 v3, s{sT}, v3\nv_lshl_add_u32 v{AX}, v2, 4, v3')
    e(f'v_xor_b32 v{AX+1}, 0x1000, v{AX}\nv_xor_b32 v{AX+2}, 64, v{AX}\nv_xor_b32 v{AX+3}, 64, v{AX+1}')
    e(f'v_bfe_u32 v2, v0, 2, 2\nv_lshl_add_u32 v2, v{G4}, 3, v2\ns_lshl_b32 s{sT}, s{sCH}, 5\nv_add_u32 v2, s{sT}, v2')
    e('v_and_b32 v4, 3, v0\nv_lshlrev_b32 v4, 3, v4\nv_bfe_u32 v5, v0, 3, 2')
    e(f'v_xor_b32 v5, s{sW}, v5\nv_lshl_add_u32 v5, v5, 5, v4\nv_lshl_add_u32 v5, v2, 7, v5\nv_add_u32 v{AW}, {L_W}, v5')
    e(f'v_xor_b32 v{AW+1}, 32, v{AW}\nv_xor_b32 v{AW+2}, 0x1000, v{AW}\nv_xor_b32 v{AW+3}, 0x1000, v{AW+1}')
    e(f'v_bfe_u32 v5, v0, 4, 1\nv_xor_b32 v5, s{sRH}, v5\nv_lshl_add_u32 v6, v5, 5, v4\nv_lshl_add_u32 v6, v2, 6, v6\nv_add_u32 v{AS}, {L_S}, v6')
    e(f'v_xor_b32 v{AS+1}, 32, v{AS}\nv_xor_b32 v{AS+2}, 0x800, v{AS}\nv_xor_b32 v{AS+3}, 0x800, v{AS+1}')
    e(f'v_and_b32 v2, 3, v0\nv_cmp_eq_u32 vcc, 0, v2\nv_mov_b32 v3, 0x3f803f80')
    e(f's_lshl_b32 s{sT}, s{sCH}, 9\ns_lshl_b32 s{sT+1}, s{sRH}, 6\ns_add_u32 s{sT}, s{sT}, s{sT+1}\ns_add_u32 s{sT}, s{sT}, {L_CS}')
    e(f'v_cndmask_b32 v{SEL}, 0, v3, vcc\nv_lshl_add_u32 v{CSW}, v{N16}, 2, s{sT}')
    for i in range(1, 4): e(f'v_mov_b32 v{SEL+i}, v{SEL}')
    for i in range(96): e(f'v_mov_b32 v{ACC+i}, 0')
    for i in range(16): e(f'v_mov_b32 v{CS+i}, 0')
    e(f's_lshl_b32 s{sT}, s{sRB}, 2\ns_lshl_b32 s{sT+1}, s{sRH}, 1\ns_add_u32 s{sT}, s{sT}, s{sT+1}\ns_add_u32 s{sT}, s{sT}, s{sCH}')
    e(f's_xor_b32 s{sT+1}, s{sT}, 1\ns_mul_i32 s76, s{sT}, {2*YRT}\ns_mul_i32 s77, s{sT+1}, {2*YRT}')
    e(f's_mov_b32 s14, 0\ns_mov_b32 s15, 0\ns_mov_b32 s22, {-2*SLOT}')

def rowstats(e):
    e('s_waitcnt lgkmcnt(0)')
    e(f's_mul_i32 s{sT+4}, s{sNON}, 0x4c957f2d\ns_mul_hi_u32 s{sT+5}, s{sNON}, 0x4c957f2d')
    e(f's_mul_i32 s{sT}, s{sNON+1}, 0x4c957f2d\ns_add_u32 s{sT+5}, s{sT+5}, s{sT}')
    e(f's_mul_i32 s{sT}, s{sNON}, 0x5851f42d\ns_add_u32 s{sT+5}, s{sT+5}, s{sT}')
    e(f's_add_u32 s{sNON}, s{sT+4}, 0xf767814f\ns_addc_u32 s{sNON+1}, s{sT+5}, 0x14057b7e')
    R = 144
    e(f'v_mov_b32 v{R+2}, s{sNON}\nv_mov_b32 v{R+3}, s{sNON+1}\nv_mov_b32 v10, {L_NON}\nds_write_b64 v10, v[{R+2}:{R+3}]')
    e(f's_mov_b32 s{sT}, 0xffff0000\ns_waitcnt vmcnt(0)')
    S = 136
    for k in range(2):
        for d in range(4):
            w = XF + 4 * k + d
            e(f'v_lshlrev_b32 v10, 16, v{w}\nv_and_b32 v11, s{sT}, v{w}')
            if d == 0: e(f'v_add_f32 v{S+2*k}, v10, v11\nv_mul_f32 v{S+2*k+1}, v10, v10')
            else: e(f'v_add_f32 v{S+2*k}, v{S+2*k}, v10\nv_fmac_f32 v{S+2*k+1}, v10, v10\nv_add_f32 v{S+2*k}, v{S+2*k}, v11')
            e(f'v_fmac_f32 v{S+2*k+1}, v11, v11')
    for ror in (1, 2, 4, 8):
        for i in range(4): e(f'v_add_f32_dpp v{S+i}, v{S+i}, v{S+i} row_ror:{ror} row_mask:0xf bank_mask:0xf')
    for sw in (16, 32):
        for i in range(4): e(f'v_mov_b32 v{S+4+i}, v{S+i}')
        for i in range(4): e(f'v_permlane{sw}_swap_b32 v{S+4+i}, v{S+i}')
        for i in range(4): e(f'v_add_f32 v{S+i}, v{S+i}, v{S+4+i}')
    e(f'v_and_b32 v10, 1, v0\nv_cmp_eq_u32 vcc, 0, v10\ns_lshl_b32 s{sT}, s23, 7\ns_add_u32 s{sT}, s{sT}, {WS_RS}')
    e(f'v_cndmask_b32 v{S}, v{S+2}, v{S}, vcc\nv_cndmask_b32 v{S+1}, v{S+3}, v{S+1}, vcc')
    e(f'v_mul_f32 v10, {fl(-1/512)}, v{S}\nv_mul_f32 v11, {fl(1/512)}, v{S+1}\nv_fma_f32 v11, -v10, v10, v11\nv_max_f32 v11, 0, v11\nv_add_f32 v11, {fl(1e-5)}, v11')
    e(f'v_rsq_f32 v11, v11\nv_mul_f32 v{R}, {fl(LOG2E)}, v11\nv_mul_f32 v{R+1}, v{R}, v10')
    e(f's_mov_b64 exec, 0xff\nbuffer_store_dwordx4 v[{R}:{R+3}], v{L16}, s[{SWS}:{SWS+3}], s{sT} offen sc1\ns_mov_b64 exec, -1')

def acc_main(u, rt, jj): return ACC + ((u * 4 + rt) * 2 + jj) * 4
def acc_strip(rt, jj): return ACC + 96 + (rt * 2 + jj) * 4

def compute_p1(e, F):
    sDL, sCNT, sSL, sY0, sY1, sYS = 13, 14, 15, 76, 77, 78
    if F:
        srd(e, SB1, pB1, 1792 * 2)
        e(f's_lshr_b32 s{sT}, s{sG}, 1\ns_mul_i32 s{sT}, s{sT}, 448\ns_and_b32 s{sT+1}, s{sG}, 1')
        e(f's_lshl_b32 s{sT+2}, s{sT+1}, 8\ns_add_u32 s{sT+2}, s{sT+2}, s{sT}\ns_lshl_b32 s{sT+3}, s{sCH}, 5\ns_add_u32 s{sT+2}, s{sT+2}, s{sT+3}')
        e(f's_lshl_b32 s{sT+3}, s{sT+1}, 5\ns_add_u32 s{sT+3}, s{sT+3}, s{sT}\ns_add_u32 s{sT+3}, s{sT+3}, 192')
        e(f'v_lshl_add_u32 v2, v5, 4, v{N16}\nv_lshrrev_b32 v3, 5, v0\nv_lshl_add_u32 v4, v3, 6, v2\nv_add_u32 v4, s{sT+2}, v4\nv_lshlrev_b32 v4, 1, v4')
        e(f's_add_u32 s{sT+4}, s{sT+2}, 128\nv_mov_b32 v6, s{sT+4}\nv_mov_b32 v7, s{sT+3}\nv_cmp_eq_u32 vcc, 0, v3')
        e(f'buffer_load_ushort v8, v4, s[{SB1}:{SB1+3}], 0 offen')
        e('v_cndmask_b32 v6, v7, v6, vcc\nv_add_lshl_u32 v6, v6, v2, 1')
        e(f'buffer_load_ushort v9, v6, s[{SB1}:{SB1+3}], 0 offen')
        e(f's_lshl_b32 s{sT+3}, s{sT+3}, 5\ns_add_u32 s{sYS}, s{sY0}, s{sT+3}\ns_add_u32 s{sYS}, s{sYS}, {WS_Y}')
        e(f's_lshl_b32 s{sT+2}, s{sT+2}, 5\ns_add_u32 s{sT+2}, s{sT+2}, {WS_Y}')
        for i in range(16): e(f'v_mov_b32 v{ACC+96+i}, 0')
        e(f's_lshl_b32 s{sT}, s{sW}, 9\ns_add_u32 s{sT}, s{sT}, {L_BT}\nv_lshl_add_u32 v2, v0, 2, s{sT}')
        rowstats(e)
        e(f'v_lshlrev_b32 v8, 16, v8\nv_lshlrev_b32 v9, 16, v9\nv_mul_f32 v8, {fl(LOG2E)}, v8\nv_mul_f32 v9, {fl(LOG2E)}, v9')
        e('ds_write_b32 v2, v8\nds_write_b32 v2, v9 offset:256\ns_waitcnt lgkmcnt(0)')
    else:
        rowstats(e)
        e('s_waitcnt lgkmcnt(0)')
        e(f's_lshl_b32 s{sT+2}, s{sG}, 11\ns_lshl_b32 s{sT+3}, s{sCH}, 10\ns_add_u32 s{sT+2}, s{sT+2}, s{sT+3}\ns_add_u32 s{sT+2}, s{sT+2}, {WS_Y+56*1024}')
    e(f's_add_u32 s{sY0}, s{sY0}, s{sT+2}\ns_add_u32 s{sY1}, s{sY1}, s{sT+2}')

    seq = [(0, 0), (1, 0), (2, 0), (3, 0), (3, 1), (0, 1), (1, 1), (2, 1)] if F else [(0, 0), (1, 0), (2, 0), (0, 1), (1, 1), (2, 1)]
    NP = len(seq); RING = 4 if F else 3
    def wreads(p):
        u, jj = seq[p]; b = WR + 8 * (p % RING)
        if OPT['noread']: return ['s_nop 0'] * 4
        if u < 3: return [f'ds_read_b64_tr_b16 v[{b+4*s+2*j}:{b+4*s+2*j+1}], v{AW+2*s+jj} offset:{u*8192+j*512}' for s in range(2) for j in range(2)]
        return [f'ds_read_b64_tr_b16 v[{b+4*s+2*j}:{b+4*s+2*j+1}], v{AS+2*s+jj} offset:{j*256}' for s in range(2) for j in range(2)]
    def xreads(rt):
        if OPT['noread']: return ['s_nop 0'] * 2
        return [f'ds_read_b128 v[{XF+8*rt+4*s}:{XF+8*rt+4*s+3}], v{AX+2*s+(rt>>1)} offset:{(rt&1)*2048}' for s in range(2)]
    def mfma(d, a, b): return f'v_mfma_f32_16x16x32_bf16 v[{d}:{d+3}], v[{a}:{a+3}], v[{b}:{b+3}], v[{d}:{d+3}]'
    def mfmas(p, first):
        u, jj = seq[p]; b = WR + 8 * (p % RING)
        m = []
        for rt in range(4 if u < 3 else 2):
            d = acc_main(u, rt, jj) if u < 3 else acc_strip(rt, jj)
            for s in range(2):
                w, x = b + 4 * s, XF + 8 * rt + 4 * s
                m.append((rt, mfma(d, w, x) if (F or u == 0) else mfma(d, x, w)))
        if jj == 0 and first:
            c = [(None, mfma(CS + 4 * u, SEL, b + 4 * s)) for s in range(2 if u < 3 else 1)]
            m = c + m if p == 0 else m + c
        if OPT['nomfma']: m = [(rt, 's_nop 0') for rt, _ in m]
        return m
    ts(e, 1)
    e('s_barrier')
    ts(e, 2)
    tokW = {}; tokX = {}
    for l in wreads(0): e(l)
    tokW[0] = e.ltok()
    w1 = wreads(1)
    for rt in range(4):
        e(w1[rt])
        if rt == 3: tokW[1] = e.ltok()
        for l in xreads(rt): e(l)
        tokX[rt] = e.ltok()
    LK = lab('kloop')
    for first in (True, False):
        if not first: e(f'{LK}:')
        for p in range(NP):
            m = mfmas(p, first)
            ex = list(wreads((p + 2) % NP))
            nW = len(ex)
            if p == 0: ex += [f's_add_u32 s{sSL}, s{sSL}, 1', f's_cmp_eq_u32 s{sSL}, 3', f's_cselect_b32 s{sDL}, s22, {SLOT}', f's_cselect_b32 s{sSL}, 0, s{sSL}']
            if p == 1: ex += [f'v_add_u32 v{a}, s{sDL}, v{a}' for a in (AW, AW + 2, AX, AX + 1)]
            if p == 2: ex += [f'v_add_u32 v{a}, s{sDL}, v{a}' for a in (AX + 2, AX + 3)]
            if p == NP - 3 and first: ex += [f'ds_write_b32 v{CSW}, v{CS+4*u} offset:{u*128}' for u in range(4 if F else 3)]
            if p == NP - 2:
                ex += [f'v_add_u32 v{a}, s{sDL}, v{a}' for a in [AW + 1, AW + 3] + ([AS, AS + 1, AS + 2, AS + 3] if F else [])]
                ex += [f's_add_u32 s{sCNT}, s{sCNT}, 1', f's_cmp_lt_u32 s{sCNT}, 8']
                e('s_waitcnt lgkmcnt(0)\ns_barrier')
            elif p != NP - 1:
                e.wait_lg(tokW[p])
            seen = set()
            k = 0
            for i, (rt, x) in enumerate(m):
                if p == 0 and rt is not None and rt not in seen:
                    e.wait_lg(tokX[rt]); seen.add(rt)
                e(x)
                if p == NP - 1:
                    if i % 2 == 0:
                        e(ex[i // 2])
                        if i == 6: tokW[1] = e.ltok()
                    else:
                        for l in xreads(i // 2): e(l)
                        tokX[i // 2] = e.ltok()
                else:
                    n = -(-(len(ex) - k) // (len(m) - i))
                    n = max(n, 1 if k < len(ex) else 0)
                    for l in ex[k:k + n]:
                        e(l); k += 1
                        if k == nW: tokW[(p + 2) % NP] = e.ltok()
    e(f's_cbranch_scc1 {LK}')
    ts(e, 3)
    e(f's_lshl_b32 s{sT}, s{sRH}, 8\ns_lshl_b32 s{sT+1}, s{sCH}, 7\ns_add_u32 s{sT}, s{sT}, s{sT+1}\ns_add_u32 s{sT}, s{sT}, {L_R}')
    e(f'v_lshl_add_u32 v2, v{N16}, 2, s{sT}\nv_xor_b32 v3, 128, v2')
    e(f's_lshl_b32 s{sT+1}, s{sCH}, 9\ns_lshl_b32 s{sT+2}, s{sRH}, 6\ns_add_u32 s{sT+1}, s{sT+1}, s{sT+2}\ns_add_u32 s{sT+1}, s{sT+1}, {L_CS}')
    e(f'v_lshl_add_u32 v4, v{G4}, 4, s{sT+1}\nv_xor_b32 v5, 64, v4')
    H = 192; U = 208
    if F:
        CSV = 128; BV = 160; C2 = 232; RL = 240; NL = 244; KK = 248; P = 232
        e(f's_lshl_b32 s{sT+2}, s{sW}, 9\ns_add_u32 s{sT+2}, s{sT+2}, {L_BT}\nv_lshl_add_u32 v6, v{G4}, 4, s{sT+2}')
        e('v_xor_b32 v7, 0x200, v4\nv_xor_b32 v8, 0x200, v5')
        for rt in range(4):
            e(f'ds_read_b32 v{RL+rt}, v{2+(rt>>1)} offset:{(rt&1)*64}\nds_read_b32 v{NL+rt}, v{2+(rt>>1)} offset:{(rt&1)*64+512}')
        tk = {}
        for u in range(4):
            for jj in range(2):
                t = 2 * u + jj
                e(f'ds_read_b128 v[{CSV+4*t}:{CSV+4*t+3}], v{4+jj} offset:{u*128}\nds_read_b128 v[{BV+4*t}:{BV+4*t+3}], v6 offset:{t*64}')
            tk[u] = e.ltok()
        for jj in range(2): e(f'ds_read_b128 v[{10+0}:{13}], v7 offset:384' if jj == 0 else f'ds_read_b128 v[250:253], v8 offset:384')
        e(f'v_mov_b32 v{KK}, {fl(-2/LOG2E)}\nv_mov_b32 v{KK+1}, {fl(1/LOG2E)}')
        for u in range(4):
            if u == 0: e.wait_lg(tk[0])
            if u == 1:
                e('s_waitcnt lgkmcnt(0)')
                for i in (0, 2):
                    e(f'v_pk_add_f32 v[{CSV+24+i}:{CSV+25+i}], v[{CSV+24+i}:{CSV+25+i}], v[{10+i}:{11+i}]')
                    e(f'v_pk_add_f32 v[{CSV+28+i}:{CSV+29+i}], v[{CSV+28+i}:{CSV+29+i}], v[{250+i}:{251+i}]')
            for p in range(2 if u < 3 else 1):
                a = acc_main(u, 2 * p, 0) if u < 3 else acc_strip(0, 0)
                for i in range(0, 16, 2):
                    o = i >> 3; c = 8 * u + (i & 7)
                    e(f'v_pk_fma_f32 v[{H+i}:{H+i+1}], v[{CSV+c}:{CSV+c+1}], v[{NL+2*p}:{NL+2*p+1}], v[{BV+c}:{BV+c+1}] op_sel:[0,{o},0] op_sel_hi:[1,{o},1]')
                for i in range(0, 16, 2):
                    o = i >> 3
                    e(f'v_pk_fma_f32 v[{H+i}:{H+i+1}], v[{a+i}:{a+i+1}], v[{RL+2*p}:{RL+2*p+1}], v[{H+i}:{H+i+1}] op_sel:[0,{o},0] op_sel_hi:[1,{o},1]')
                for i in range(16): e(f'v_exp_f32 v{U+i}, v{H+i}')
                for i in range(0, 16, 2): e(f'v_pk_add_f32 v[{U+i}:{U+i+1}], v[{U+i}:{U+i+1}], 1.0 op_sel_hi:[1,0]')
                for i in range(0, 16, 2): e(f'v_pk_fma_f32 v[{U+i}:{U+i+1}], v[{U+i}:{U+i+1}], v[{U+i}:{U+i+1}], 1.0 op_sel_hi:[1,1,0]')
                for i in range(16): e(f'v_rcp_f32 v{U+i}, v{U+i}')
                for i in range(0, 16, 2): e(f'v_pk_fma_f32 v[{U+i}:{U+i+1}], v[{U+i}:{U+i+1}], v[{KK}:{KK+1}], v[{KK}:{KK+1}] op_sel:[0,0,1] op_sel_hi:[1,0,1]')
                for i in range(0, 16, 2): e(f'v_pk_mul_f32 v[{U+i}:{U+i+1}], v[{U+i}:{U+i+1}], v[{H+i}:{H+i+1}]')
                for i in range(8): e(f'v_cvt_pk_bf16_f32 v{P+i}, v{U+2*i}, v{U+2*i+1}')
                if u < 2: so, off = (sY1 if p else sY0), u * 2048
                elif u == 2: e(f's_add_u32 s{sT}, s{sY1 if p else sY0}, 4096'); so, off = sT, 0
                else: so, off = sYS, 0
                for k in range(0 if OPT['nost'] else 2):
                    e(f'buffer_store_dwordx4 v[{P+4*k}:{P+4*k+3}], v{L16B if k else L16}, s[{SWS}:{SWS+3}], s{so} offen offset:{off} sc1')
        ts(e, 4)
        e(f's_lshl_b32 s{sT}, s{sRB}, 1\ns_add_u32 s{sT}, s{sT}, s{sRH}\ns_lshl_b32 s{sT}, s{sT}, 5\ns_lshl_b32 s{sT+1}, s{sG}, 1')
        e(f's_add_u32 s{sT}, s{sT}, s{sT+1}\ns_add_u32 s{sT}, s{sT}, s{sCH}\ns_lshl_b32 s{sT}, s{sT}, 7\ns_add_u32 s{sT}, s{sT}, {WS_YF}')
        p2_preread(e)
        e('s_waitcnt vmcnt(0)')
        put_flag(e, sT)
        ts(e, 5)
    else:
        RV = 128; NVV = 144; CK = 160; CSQ = 164; RL = 172; NL = 176; EP = 180; ONE = 184; PK = 232; PV = ACC + 32; D = ACC + 64; PQ = 128
        e(f'v_lshl_add_u32 v6, v{G4}, 4, s{sT}\nv_xor_b32 v7, 128, v6')
        e(f'v_xor_b32 v8, 64, v{CSW}')
        for jj in range(2):
            e(f'ds_read_b32 v{CK+jj}, v{CSW if jj == 0 else 8} offset:128\nds_read_b32 v{CK+2+jj}, v{CSW if jj == 0 else 8} offset:256')
        tk = {}
        for rt in range(4):
            e(f'ds_read_b128 v[{RV+4*rt}:{RV+4*rt+3}], v{6+(rt>>1)} offset:{(rt&1)*64}\nds_read_b128 v[{NVV+4*rt}:{NVV+4*rt+3}], v{6+(rt>>1)} offset:{(rt&1)*64+512}')
            tk[rt] = e.ltok()
        for jj in range(2): e(f'ds_read_b128 v[{CSQ+4*jj}:{CSQ+4*jj+3}], v{4+jj}')
        for rt in range(4):
            e(f'ds_read_b32 v{RL+rt}, v{2+(rt>>1)} offset:{(rt&1)*64}\nds_read_b32 v{NL+rt}, v{2+(rt>>1)} offset:{(rt&1)*64+512}')
        e(f'v_mov_b32 v{EP}, {fl(1e-6*LOG2E)}\nv_mov_b32 v{EP+1}, {fl(1/LOG2E)}')
        for i in range(4): e(f'v_mov_b32 v{ONE+i}, 0x3f803f80')
        def phi_tail(dst):
            for i in range(16): e(f'v_exp_f32_e64 v{U+i}, v{H+i} clamp')
            for i in range(16): e(f'v_max_f32 v{H+i}, v{EP}, v{H+i}')
            for i in range(0, 16, 2): e(f'v_pk_fma_f32 v[{H+i}:{H+i+1}], v[{H+i}:{H+i+1}], v[{EP}:{EP+1}], v[{U+i}:{U+i+1}] op_sel:[0,1,0] op_sel_hi:[1,1,1]')
            for i in range(0, 16, 2): e(f'v_cvt_pk_bf16_f32 v{dst(i)}, v{H+i}, v{H+i+1}')
        def kvdst(base, p): return lambda i: base + ((i >> 2) & 1) * 8 + p * 4 + (i >> 3) * 2 + ((i >> 1) & 1)
        for p in range(2):
            e.wait_lg(tk[2 * p + 1])
            a = acc_main(1, 2 * p, 0)
            for i in range(0, 16, 2):
                r = 8 * p + (i >> 3) * 4 + (i & 3); jj = (i >> 2) & 1
                e(f'v_pk_fma_f32 v[{H+i}:{H+i+1}], v[{NVV+r}:{NVV+r+1}], v[{CK}:{CK+1}], v[{EP}:{EP+1}] op_sel:[0,{jj},0] op_sel_hi:[1,{jj},0]')
            for i in range(0, 16, 2):
                r = 8 * p + (i >> 3) * 4 + (i & 3)
                e(f'v_pk_fma_f32 v[{H+i}:{H+i+1}], v[{a+i}:{a+i+1}], v[{RV+r}:{RV+r+1}], v[{H+i}:{H+i+1}]')
            phi_tail(kvdst(PK, p))
        for p in range(2):
            a = acc_main(2, 2 * p, 0)
            for i in range(0, 16, 2):
                r = 8 * p + (i >> 3) * 4 + (i & 3); jj = (i >> 2) & 1
                e(f'v_pk_mul_f32 v[{H+i}:{H+i+1}], v[{NVV+r}:{NVV+r+1}], v[{CK+2}:{CK+3}] op_sel:[0,{jj}] op_sel_hi:[1,{jj}]')
            for i in range(0, 16, 2):
                r = 8 * p + (i >> 3) * 4 + (i & 3)
                e(f'v_pk_fma_f32 v[{H+i}:{H+i+1}], v[{a+i}:{a+i+1}], v[{RV+r}:{RV+r+1}], v[{H+i}:{H+i+1}]')
            for i in range(0, 16, 2): e(f'v_cvt_pk_bf16_f32 v{kvdst(PV, p)(i)}, v{H+i}, v{H+i+1}')
        for h in (1, 0):
            d = D + 8 * (1 - h)
            for p in range(2):
                e(f'v_mfma_f32_16x16x32_bf16 v[{d}:{d+3}], v[{PK+8*h+4*p}:{PK+8*h+4*p+3}], v[{PV+8*h+4*p}:{PV+8*h+4*p+3}], ' + ('0' if p == 0 else f'v[{d}:{d+3}]'))
            for p in range(2):
                e(f'v_mfma_f32_16x16x32_bf16 v[{d+4}:{d+7}], v[{PK+8*h+4*p}:{PK+8*h+4*p+3}], v[{ONE}:{ONE+3}], ' + ('0' if p == 0 else f'v[{d+4}:{d+7}]'))
        e(f's_lshl_b32 s{sT}, s{sW}, 11\ns_add_u32 s{sT}, s{sT}, {L_KX}\nv_add_u32 v6, s{sT}, v{L16}\nv_xor_b32 v7, 0x800, v6')
        e(f'ds_write_b128 v6, v[{D}:{D+3}]\nds_write_b128 v6, v[{D+4}:{D+7}] offset:1024')
        e(f's_lshl_b32 s{sT}, s{sG}, 2\ns_add_u32 s{sT}, s{sT}, s{sW}\ns_mul_i32 s23, s{sT}, {16*1152}\ns_add_u32 s23, s23, {WS_KV}')
        e(f's_mul_i32 s{sT+2}, s{sRB}, 1152\ns_add_u32 s{sT+2}, s{sT+2}, s23')
        e(f'v_lshlrev_b32 v9, 4, v{G4}\nv_lshl_add_u32 v8, v{N16}, 6, v9\nv_cmp_gt_u32 vcc, 2, v{N16}\nv_mov_b32 v10, 0x7ff00000')
        e(f'v_mul_u32_u24 v11, 1152, v{N16}\nv_add_u32 v11, v11, v9\nv_cndmask_b32 v8, v10, v8, vcc\nv_mov_b32 v12, 0xfff')
        TG = 60
        for i in range(4): e(f's_lshr_b64 s[{sT+4}:{sT+5}], s[{sNON}:{sNON+1}], {12*i}\ns_and_b32 s{TG+i}, s{sT+4}, 0xfff')
        e('s_waitcnt lgkmcnt(0)')
        e('s_barrier')
        e(f'ds_read_b128 v[{U}:{U+3}], v7\nds_read_b128 v[{U+4}:{U+7}], v7 offset:1024')
        for k in range(2):
            e(f's_waitcnt lgkmcnt({1-k})')
            for i in range(4 * k, 4 * k + 4): e(f'v_add_f32 v{D+i}, v{U+i}, v{D+8+i}')
            for i in range(4 * k, 4 * k + 4): e(f'v_add_u32 v{D+i}, 0x800, v{D+i}')
            for i in range(4 * k, 4 * k + 4): e(f'v_bfi_b32 v{D+i}, v12, s{TG+(i&3)}, v{D+i}')
            if k == 0: e(f'buffer_store_dwordx4 v[{D}:{D+3}], v{L16}, s[{SWS}:{SWS+3}], s{sT+2} offen sc1')
            else: e(f'buffer_store_dwordx4 v[{D+4}:{D+7}], v8, s[{SWS}:{SWS+3}], s{sT+2} offen offset:1024 sc1')
        ts(e, 4)
        for p in range(2):
            a = acc_main(0, 2 * p, 0)
            for i in range(0, 16, 2):
                o = i >> 3; c = i & 7
                e(f'v_pk_fma_f32 v[{H+i}:{H+i+1}], v[{CSQ+c}:{CSQ+c+1}], v[{NL+2*p}:{NL+2*p+1}], v[{EP}:{EP+1}] op_sel:[0,{o},0] op_sel_hi:[1,{o},0]')
            for i in range(0, 16, 2):
                o = i >> 3
                e(f'v_pk_fma_f32 v[{H+i}:{H+i+1}], v[{a+i}:{a+i+1}], v[{RL+2*p}:{RL+2*p+1}], v[{H+i}:{H+i+1}] op_sel:[0,{o},0] op_sel_hi:[1,{o},1]')
            phi_tail(lambda i: PQ + 8 * p + (i >> 1))
        e('s_setprio 0')
        Z = 112; G = 48
        L, Dn = lab('zpoll'), lab('zdone')
        e(f's_mov_b32 s{sSPIN}, 200000')
        e(f'{L}:')
        e(f'buffer_load_dwordx4 v[{Z}:{Z+3}], v11, s[{SWS}:{SWS+3}], s23 offen offset:1024 sc1\ns_waitcnt vmcnt(0)')
        for i in range(4): e(f'v_xor_b32 v{Z+i}, s{TG+i}, v{Z+i}')
        e(f'v_or3_b32 v13, v{Z}, v{Z+1}, v{Z+2}\nv_or_b32 v13, v13, v{Z+3}\nv_and_b32 v13, v12, v13\nv_cmp_ne_u32 vcc, 0, v13')
        e(f's_cmp_eq_u64 vcc, 0\ns_cbranch_scc1 {Dn}')
        spin_tail(e, L, Dn)
        e(f'{Dn}:')
        e('s_setprio 1')
        ts(e, 5)
        L, Dn = lab('gather'), lab('gdone')
        e(f's_mov_b32 s{sSPIN}, 20000')
        e(f'{L}:')
        e(f's_mov_b32 s{sT+1}, s23')
        for r in range(16):
            if r % 3 == 0 and r: e(f's_add_u32 s{sT+1}, s{sT+1}, {3*1152}')
            e(f'buffer_load_dwordx4 v[{G+4*r}:{G+4*r+3}], v{L16}, s[{SWS}:{SWS+3}], s{sT+1} offen offset:{(r%3)*1152} sc1')
        e('v_mov_b32 v13, 0')
        for r in range(16):
            b = G + 4 * r
            e(f's_waitcnt vmcnt({15-r})')
            for i in range(4): e(f'v_xor_b32 v{b+i}, s{TG+i}, v{b+i}')
            e(f'v_or3_b32 v13, v13, v{b}, v{b+1}\nv_or3_b32 v13, v13, v{b+2}, v{b+3}')
            if r:
                for i in (0, 2): e(f'v_pk_add_f32 v[{G+i}:{G+i+1}], v[{G+i}:{G+i+1}], v[{b+i}:{b+i+1}]')
        e(f'v_and_b32 v13, v12, v13\nv_cmp_ne_u32 vcc, 0, v13\ns_cmp_eq_u64 vcc, 0\ns_cbranch_scc1 {Dn}')
        spin_tail(e, L, Dn)
        e(f'{Dn}:')
        for ror in (1, 2, 4, 8):
            for i in range(4): e(f'v_add_f32_dpp v{Z+i}, v{Z+i}, v{Z+i} row_ror:{ror} row_mask:0xf bank_mask:0xf')
        KF = 144
        e(f's_lshl_b32 s{sT}, s{sW}, 10\ns_add_u32 s{sT}, s{sT}, {L_KF}\nv_add_u32 v6, s{sT}, v{L16}\nv_xor_b32 v7, 0x400, v6')
        e(f'v_cvt_pk_bf16_f32 v{KF}, v{G}, v{G+1}\nv_cvt_pk_bf16_f32 v{KF+1}, v{G+2}, v{G+3}')
        e(f'v_cvt_pk_bf16_f32 v{KF+2}, v{Z}, v{Z+1}\nv_cvt_pk_bf16_f32 v{KF+3}, v{Z+2}, v{Z+3}')
        e(f'ds_write_b128 v6, v[{KF}:{KF+3}]')
        def omf(h):
            for rt in range(4):
                d = ACC + 16 * rt + 8 * h; q = PQ + 4 * rt + 2 * h
                e(f'v_mfma_f32_16x16x16_bf16 v[{d}:{d+3}], v[{KF+4*h}:{KF+4*h+1}], v[{q}:{q+1}], 0')
                e(f'v_mfma_f32_16x16x16_bf16 v[{d+4}:{d+7}], v[{KF+4*h+2}:{KF+4*h+3}], v[{q}:{q+1}], 0')
        omf(0)
        e('s_waitcnt lgkmcnt(0)')
        e('s_barrier')
        e(f'ds_read_b128 v[{KF+4}:{KF+7}], v7')
        P = 192
        def ofin(h):
            for rt in range(4):
                d = ACC + 16 * rt + 8 * h
                e(f'v_fmamk_f32 v{d+4}, v{d+4}, {fl(LOG2E)}, v{EP}')
            for rt in range(4): e(f'v_rcp_f32 v{ACC+16*rt+8*h+4}, v{ACC+16*rt+8*h+4}')
            for rt in range(4):
                d = ACC + 16 * rt + 8 * h
                for i in (0, 2): e(f'v_pk_mul_f32 v[{d+i}:{d+i+1}], v[{d+i}:{d+i+1}], v[{d+4}:{d+5}] op_sel_hi:[1,0]')
            for rt in range(4):
                d = ACC + 16 * rt + 8 * h
                for i in range(2): e(f'v_cvt_pk_bf16_f32 v{P+4*rt+2*h+i}, v{d+2*i}, v{d+2*i+1}')
                if h: e(f'buffer_store_dwordx4 v[{P+4*rt}:{P+4*rt+3}], v{L16B if rt&1 else L16}, s[{SWS}:{SWS+3}], s{sY1 if rt>>1 else sY0} offen sc1')
        e('s_waitcnt lgkmcnt(0)')
        omf(1)
        ofin(0)
        ofin(1)
        e(f's_lshl_b32 s{sT}, s{sRB}, 1\ns_add_u32 s{sT}, s{sT}, s{sRH}\ns_lshl_b32 s{sT}, s{sT}, 5\ns_lshl_b32 s{sT+1}, s{sG}, 1')
        e(f's_add_u32 s{sT}, s{sT}, s{sT+1}\ns_add_u32 s{sT}, s{sT}, s{sCH}\ns_lshl_b32 s{sT}, s{sT}, 7\ns_add_u32 s{sT}, s{sT}, {WS_YF+2048}')
        p2_preread(e)
        e('s_waitcnt vmcnt(0)')
        put_flag(e, sT)

DU = OPT['DU']
BR = 48; A0 = BR + 96; AB = A0 + 16 * DU; VA = AB + 4; VO = VA + 2; XR = 232
assert VO < 225
def readB(q):
    n, ct = q // 4, q % 4
    b = BR + 8 * (q % 12)
    if OPT['p2nor']: return ['s_nop 0'] * 4
    return [f'ds_read_b64_tr_b16 v[{b+4*s+2*j}:{b+4*s+2*j+1}], v{AB+ct} offset:{(n%3)*8192+s*4096+j*2048}' for s in range(2) for j in range(2)]

def p2_preread(e):
    e('v_lshrrev_b32 v2, 2, v0\nv_bfe_u32 v3, v0, 3, 2\nv_and_b32 v4, 3, v0\nv_lshlrev_b32 v4, 3, v4\nv_lshl_add_u32 v4, v3, 5, v4\nv_lshl_add_u32 v4, v2, 7, v4')
    e(f's_mul_i32 s{sT+1}, s{sCH}, 24576\ns_add_u32 s{sT+1}, s{sT+1}, {RSLOT[0]}\nv_add_u32 v{AB}, s{sT+1}, v4')
    for ct in range(1, 4): e(f'v_xor_b32 v{AB+ct}, {32*ct}, v{AB}')
    for q in range(12):
        for l in readB(q): e(l)

def compute_p2(e):
    sKH = sCH
    sA3, sA2, sA1, sO = 13, 14, 15, 76
    ts(e, 6)
    e(f's_lshl_b32 s{sT}, s{sRB2}, 2\ns_lshl_b32 s{sT+1}, s{sRH}, 1\ns_add_u32 s{sT}, s{sT}, s{sT+1}')
    e(f's_add_u32 s{sT+1}, s{sT}, s{sKH}\ns_lshl_b32 s{sT+1}, s{sT+1}, 14\ns_lshl_b32 s{sT+2}, s{sCB}, 7\ns_add_u32 s{sO}, s{sT+1}, s{sT+2}')
    e(f'v_bfe_u32 v2, v0, 4, 1\nv_lshrrev_b32 v3, 5, v0\nv_lshlrev_b32 v3, 4, v3\nv_lshl_add_u32 v3, v2, 5, v3\nv_lshl_add_u32 v{VO}, v{N16}, 10, v3')
    for h in range(2): e(f'buffer_load_dwordx4 v[{XR+4*h}:{XR+4*h+3}], v{VO}, s[{SX}:{SX+3}], s{sO} offen offset:{h*64}')
    e('s_waitcnt lgkmcnt(0)\ns_barrier')
    e(f's_mul_i32 s{sT}, s{sT}, {YRT}\ns_add_u32 s{sT}, s{sT}, {WS_Y}')
    e(f's_lshl_b32 s{sT+1}, s{sKH}, 11\ns_add_u32 s{sA1}, s{sT}, s{sT+1}\ns_add_u32 s{sA2}, s{sA1}, s{sT+1}\ns_add_u32 s{sA3}, s{sA2}, s{sT+1}')
    e(f's_mul_i32 s{sT}, s{sKH}, {YRT}\ns_sub_u32 s{sT+1}, {YRT}, s{sT}\nv_add_u32 v{VA}, s{sT}, v{L16}\nv_add_u32 v{VA+1}, s{sT+1}, v{L16}')
    e('s_waitcnt vmcnt(0)\ns_mov_b32 s22, 0xffff0000')
    for h in range(2):
        for i in range(2): e(f'v_permlane16_swap_b32 v{XR+4*h+i}, v{XR+4*h+2+i}')
    for i in range(8): e(f'v_lshlrev_b32 v{ACC+2*i}, 16, v{XR+i}\nv_and_b32 v{ACC+2*i+1}, s22, v{XR+i}')
    Lw = lab('nopoll')
    e(f's_cmp_lg_u32 s{sW}, 0\ns_cbranch_scc1 {Lw}')
    e(f'v_lshlrev_b32 v4, 7, v{N16}\ns_lshl_b32 s{sT+3}, s{sRB2}, 12\ns_add_u32 s{sT+3}, s{sT+3}, {WS_YF}')
    poll(e, 4, 6, f's{sT+3}')
    e(f'{Lw}:')
    ts(e, 7)
    e('s_barrier')
    ts(e, 8)
    tokA = {}
    def loadA(n):
        r, idx = n // 3, n % 3
        U0 = POS2U[6 * r + idx]; dU = POS2U[6 * r + 3 + idx] - U0
        L = [f's_add_u32 s{sT}, s{ {3: sA3, 2: sA2, 1: sA1}[dU] }, {U0*2048}']
        for rt in range(2):
            for s in range(2):
                a = A0 + 16 * (n % DU) + 8 * rt + 4 * s
                L.append('s_nop 0' if OPT['p2noa'] else f'buffer_load_dwordx4 v[{a}:{a+3}], v{VA+rt}, s[{SWS}:{SWS+3}], s{sT} offen offset:{s*1024} sc1')
        return L
    for n in range(DU):
        for l in loadA(n): e(l)
        tokA[n] = e.vtok()
    OFIRST = 14
    LA = 11
    for q in range(72):
        n, ct = q // 4, q % 4
        qq = q + LA
        bar = qq in (24, 36, 48)
        obar = (ct == 3 and n + DU == OFIRST)
        assert not obar or (q > 37 and q + LA <= 60)
        w = []
        if ct == 0: w.append(f'vmcnt({e.vm - tokA[n]})')
        if bar or q == 72 - LA + 1: w.append('lgkmcnt(0)')
        elif ct == 0 and q >= 12 and q <= 72 - LA: w.append('lgkmcnt(12)')
        if w: e('s_waitcnt ' + ' '.join(w))
        if bar or obar: e('s_barrier')
        ex = []
        if 12 <= qq < 72:
            c2 = qq % 4
            if qq % 12 < 4:
                r2 = qq // 12
                ex.append(f'v_add_u32 v{AB+c2}, {(RSLOT[r2%3]-RSLOT[(r2-1)%3]) & 0xffffffff}, v{AB+c2}')
            ex += readB(qq)
        la = loadA(n + DU) if (ct == 3 and n + DU < 18) else []
        k = 0
        for i in range(4):
            rt, s = i >> 1, i & 1
            d = ACC + 16 * rt + 4 * ct; a = A0 + 16 * (n % DU) + 8 * rt + 4 * s; b = BR + 8 * (q % 12) + 4 * s
            c = '0' if (n == 0 and s == 0 and rt == 1) else f'v[{d}:{d+3}]'
            e('s_nop 0' if OPT['p2nom'] else f'v_mfma_f32_16x16x32_bf16 v[{d}:{d+3}], v[{b}:{b+3}], v[{a}:{a+3}], {c}')
            nx = -(-(len(ex) - k) // (4 - i))
            for l in ex[k:k + nx]: e(l)
            k += nx
            if la:
                if i == 0: e(la[0])
                e(la[1 + i])
        if la: tokA[n + DU] = e.vtok()
    ts(e, 9)
    e(f's_lshl_b32 s{sT}, s{sW}, 12\ns_add_u32 s{sT}, s{sT}, {SCR}\nv_add_u32 v2, s{sT}, v{L16}\nv_xor_b32 v3, 0x2000, v2')
    for q in range(4): e(f'ds_write_b128 v2, v[{ACC+16+4*q}:{ACC+19+4*q}] offset:{q*1024}')
    e('s_waitcnt lgkmcnt(0)\ns_barrier')
    for q in range(4): e(f'ds_read_b128 v[{48+4*q}:{51+4*q}], v3 offset:{q*1024}')
    for q in range(4):
        e(f's_waitcnt lgkmcnt({3-q})')
        for i in (4 * q, 4 * q + 2):
            e(f'v_pk_add_f32 v[{ACC+i}:{ACC+i+1}], v[{ACC+i}:{ACC+i+1}], v[{48+i}:{49+i}]')
            e(f'v_cvt_pk_bf16_f32 v{64+i//2}, v{ACC+i}, v{ACC+i+1}')
        if q & 1:
            h = q >> 1
            for i in range(2): e(f'v_permlane16_swap_b32 v{64+4*h+i}, v{64+4*h+2+i}')
            e(f'buffer_store_dwordx4 v[{64+4*h}:{67+4*h}], v{VO}, s[{SOUT}:{SOUT+3}], s{sO} offen offset:{h*64}')
    if DIAG: e('s_waitcnt vmcnt(0)')
    ts(e, 10)
    ts_dump(e, 11, 4)
    e('s_endpgm')

def main():
    e = Emit()
    e('s_load_dwordx16 s[16:31], s[0:1], 0\ns_load_dwordx4 s[32:35], s[0:1], 64')
    e('s_cmp_ge_u32 s2, 256\ns_cbranch_scc1 L_end')
    if DIAG: e(f'{TSI} s[{sTS}:{sTS+1}]')
    e(f'v_readfirstlane_b32 s{sW}, v0\nv_and_b32 v0, 63, v0')
    e(f's_lshr_b32 s{sLI}, s2, 3\ns_bfe_u32 s{sRB}, s2, 0x10002\ns_lshl_b32 s{sRB}, s{sRB}, 3\ns_lshr_b32 s{sT}, s2, 5\ns_add_u32 s{sRB}, s{sRB}, s{sT}')
    e(f's_and_b32 s{sG}, s2, 3\ns_lshl_b32 s{sG}, s{sG}, 1\ns_and_b32 s{sT+1}, s{sLI}, 1\ns_add_u32 s{sG}, s{sG}, s{sT+1}')
    if OPT['rot'] == 2:
        e(f's_add_u32 s{sT}, s{sT}, s2\ns_and_b32 s{sT}, s{sT}, 3\ns_lshl_b32 s{sT}, s{sT}, 1')
        e(f's_lshr_b32 s{sT+1}, s2, 2\ns_add_u32 s{sT+1}, s{sT+1}, s{sLI}\ns_and_b32 s{sT+1}, s{sT+1}, 1\ns_add_u32 s{sKC}, s{sT}, s{sT+1}')
    else:
        e(f's_mov_b32 s{sKC}, 0')
    e(f's_and_b32 s{sRB2}, s2, 7\ns_lshl_b32 s{sRB2}, s{sRB2}, 2\ns_lshr_b32 s{sT}, s2, 6\ns_add_u32 s{sRB2}, s{sRB2}, s{sT}\ns_and_b32 s{sCB}, s{sLI}, 7')
    e(f's_lshr_b32 s{sW}, s{sW}, 6\ns_bfe_u32 s{sF}, s2, 0x10004')
    e(f's_cmp_ge_u32 s{sW}, 4\ns_cbranch_scc1 L_compute')
    helper(e)
    e('L_compute:')
    compute_common(e)
    e(f's_cmp_eq_u32 s{sF}, 0\ns_cbranch_scc1 L_compute_A')
    compute_p1(e, 1)
    e('s_branch L_p2')
    e('L_compute_A:')
    compute_p1(e, 0)
    e('L_p2:')
    compute_p2(e)
    e('L_end:\ns_endpgm\nL_code_end:')
    lines, n = hazard_pass_fast(e.lines)
    hdr = open('cdna_kernels/%s.s.ref' % NAME).read().split('; Override launch')[0]
    out = hdr + f'; @launch grid=(256,1,1) block=(512,1,1) lds={LDS_BYTES}\n'
    out += f'.amdgcn_target "amdgcn-amd-amdhsa--gfx950"\n.text\n.globl {NAME}_kernel\n.p2align 8\n.type {NAME}_kernel,@function\n{NAME}_kernel:\n'
    out += '\n'.join(lines) + '\n'
    out += f'''.section .rodata,"a"
.p2align 6
.amdhsa_kernel {NAME}_kernel
  .amdhsa_next_free_vgpr 256
  .amdhsa_next_free_sgpr 102
  .amdhsa_accum_offset 256
  .amdhsa_group_segment_fixed_size 0
  .amdhsa_kernarg_size 80
  .amdhsa_user_sgpr_count 2
  .amdhsa_user_sgpr_kernarg_segment_ptr 1
  .amdhsa_system_sgpr_workgroup_id_x 1
  .amdhsa_float_denorm_mode_32 3
.end_amdhsa_kernel
'''
    open(sys.argv[1], 'w').write(out)
    print('wrote', sys.argv[1], len(lines), 'lines,', n, 'hazard pads')

main()
```

```python
import sys, struct
from asmlib import *

NAME = 'parallel_sum__linear_attn_block__dense_activation_mish__prompt'
OPT = dict(diag=0, cyc=0, kts2=0, wg=0, ia=0, ib=0,
           pf=1, wpf=0, t3=0, t3c=0, q3=1, nb=0, b2b=5, sp=0, sp0=4, spn=4, thr=0, cpf=1, p2map=1, burst=1, bsp=6, alldma=0, ysc=1, noepi=0, hp0=0, hp1=0, hp2=0, zslp=4, seq=0, l2pf=1, slp=2, xpos=600, osc=0,
           nomfma=0, nob2=0, nost=0, p2noa=0, p2nom=0, p2now=0)
for a in sys.argv[2:]:
    k, v = a.split('='); assert k in OPT, k; OPT[k] = int(v)
DIAG = OPT['diag']

WS_RS = 0x1000
WS_CS = 0x30000
WS_KV = 0x50000
WS_TS = 0xE0000
WS_YF = 0x100000
WS_Y = 0x200000
YRT = 72 * 1024
WS_SIZE = WS_Y + 128 * YRT
SLOT = 45056
L_W = 16384; L_S = 40960
SCR = 147456
L_R = SCR
L_CS = SCR + 1024
L_BT = SCR + 2048
L_KX = SCR + 4096
L_KF = SCR + 2048
L_KF = SCR + 12288
L_SY = 3 * SLOT + 0
LDS_BYTES = 163840
RSLOT = (12 * 8192, 0, 6 * 8192)
L_SYA = SCR + 2048; L_SYF = SCR + 4096

sW, sRB, sG, sF, sKC, sRB2, sCB, sLI = 3, 4, 5, 6, 7, 8, 9, 10
pX, pWQKV, pWO, pW1, pB1, pW2, pOUT, pDBG, pWS = 16, 18, 20, 24, 26, 28, 30, 32, 34
SX, SWs, SW2, SWO, SWS, SOUT, SB1 = 36, 40, 44, 48, 52, 56, 60
sSY = 64
sNON = 68
sT = 70
sSPIN = 79
sTS = 80

KTS = (16, 18, 20, 24, 26, 28, 30, 32, 34)
def fl(x): return '0x%08x' % struct.unpack('<I', struct.pack('<f', x))[0]
LOG2E = 1.4426950408889634

def srd(e, d, p, n):
    e(f's_mov_b32 s{d}, s{p}\ns_mov_b32 s{d+1}, s{p+1}\ns_mov_b32 s{d+2}, {n}\ns_mov_b32 s{d+3}, 0x20000')

TSI = 's_memtime' if OPT['cyc'] else 's_memrealtime'
def ts(e, k):
    if DIAG: e(f'{TSI} s[{sTS+2*k}:{sTS+2*k+1}]\ns_waitcnt lgkmcnt(0)')

_lab = [0]
def lab(p):
    _lab[0] += 1
    return f'L_{p}_{_lab[0]}'

def ts_dump(e, nst, wave_off):
    if not DIAG: return
    if DIAG == 3:
        if wave_off == 0: return
        Ls = lab('dd'); Lw = lab('dw')
        e(f's_cmp_lg_u32 s{sW}, 0\ns_cbranch_scc1 {Ls}\ns_cmp_lg_u32 s2, {OPT["wg"]}\ns_cbranch_scc1 {Ls}')
        e(f's_sub_u32 s{sT}, s{sTS+2*OPT["ib"]}, s{sTS+2*OPT["ia"]}\ns_min_u32 s{sT}, s{sT}, 10000\ns_mul_i32 s{sT}, s{sT}, 20')
        e(f'{Lw}:')
        e(f's_memrealtime s[72:73]\ns_waitcnt lgkmcnt(0)\ns_sub_u32 s72, s72, s{sTS+2*(nst-1)}\ns_cmp_lt_u32 s72, s{sT}\ns_cbranch_scc1 {Lw}')
        e(f'{Ls}:')
        return
    e('v_mov_b32 v1, 0')
    if wave_off == 0:
        for c in range(9): e(f'v_writelane_b32 v1, s{KTS[c]}, {7+c}')
    for k in range(nst): e(f'v_writelane_b32 v1, s{sTS+2*k}, {k}')
    e(f's_lshl_b32 s{sT}, s2, 3\ns_add_u32 s{sT}, s{sT}, s{sW}\ns_add_u32 s{sT}, s{sT}, {wave_off}\ns_lshl_b32 s{sT}, s{sT}, 6\ns_add_u32 s{sT}, s{sT}, {WS_TS}')
    e('v_lshlrev_b32 v2, 2, v0\ns_mov_b64 exec, 0xffff')
    e(f'buffer_store_dword v1, v2, s[{SWS}:{SWS+3}], s{sT} offen\ns_mov_b64 exec, -1')

def spin_init(e, n=200000): e(f's_mov_b32 s{sSPIN}, {n}')
def spin_tail(e, L, D, slp=None):
    slp = OPT['slp'] if slp is None else slp
    e(f's_sub_u32 s{sSPIN}, s{sSPIN}, 1\ns_cmp_eq_u32 s{sSPIN}, 0\ns_cbranch_scc1 {D}')
    if slp: e(f's_sleep {slp}')
    e(f's_branch {L}')

def poll_load(voff, tmp, soff, off): return f'buffer_load_dwordx2 v[{tmp}:{tmp+1}], v{voff}, s[{SWS}:{SWS+3}], s{soff} offen offset:{off} sc1'
def poll(e, voff, tmp, soff, off):
    L, D, M = lab('poll'), lab('pdone'), lab('pmid')
    spin_init(e)
    e(f's_branch {M}')
    e(f'{L}:')
    e(poll_load(voff, tmp, soff, off))
    e(f'{M}:')
    e('s_waitcnt vmcnt(0)')
    e(f'v_cmp_eq_u64 vcc, s[{sNON}:{sNON+1}], v[{tmp}:{tmp+1}]')
    e(f's_cmp_eq_u64 vcc, -1\ns_cbranch_scc1 {D}')
    spin_tail(e, L, D)
    e(f'{D}:')

FV = 12
def put_flag(e, soff, off):
    e('s_mov_b64 exec, 0xffff')
    e(f'buffer_store_dwordx2 v[{FV}:{FV+1}], v{FV+2}, s[{SWS}:{SWS+3}], s{soff} offen offset:{off} sc1')
    e('s_mov_b64 exec, -1')

UN = [0, 1, 4, 5, 7, 8, 11, 12, 2, 6, 9, 13, 3, 10, 28, 29, 30, 31]
def unit(n, kh): return UN[n] + kh * (14 if n < 14 else 4)
if OPT['seq']: unit = lambda n, kh: 6 * (n // 3) + 3 * kh + n % 3
POS2U = [unit(3 * (p // 6) + p % 3, (p % 6) // 3) for p in range(36)]
assert sorted(POS2U) == list(range(36))

def helper(e):
    vX, vWo, vS, vB, vL16, vBuf = 2, 6, 8, 9, 11, 112
    sXB, sWB, sHX, sHW, sHS = 11, 12, 13, 14, 15
    sUST, sSD, sCK, sL, sB2, sK0, sCSB, sRSB = 23, 76, 77, 78, 60, 61, 62, 63
    e('v_lshrrev_b32 v40, 3, v0\nv_and_b32 v41, 7, v0\nv_lshrrev_b32 v42, 4, v0')
    e(f'v_xor_b32 v43, v41, v42\nv_lshlrev_b32 v43, 4, v43\nv_lshl_add_u32 v{vX}, v40, 10, v43')
    e(f'v_xor_b32 v{vX+1}, 64, v{vX}\nv_add_u32 v{vX+1}, {8192-1024}, v{vX+1}')
    e(f'v_add_u32 v{vX+2}, {2*(8192-1024)}, v{vX}\nv_add_u32 v{vX+3}, {2*(8192-1024)}, v{vX+1}')
    e(f's_lshl_b32 s{sHX}, s{sW}, 12\ns_lshl_b32 s{sXB}, s{sRB}, 17\ns_lshl_b32 s{sT}, s{sW}, 15\ns_add_u32 s{sXB}, s{sXB}, s{sT}')
    e(f's_lshl_b32 s{sT+1}, s{sKC}, 7\ns_add_u32 s{sT+1}, s{sT+1}, s{sXB}\ns_mov_b32 m0, s{sHX}')
    e(f's_mov_b32 s{SX+2}, {2048*1024}\ns_mov_b32 s{SX+3}, 0x20000\ns_mov_b32 s{SWs+3}, 0x20000')
    e(f's_lshr_b32 s{sT}, s{sG}, 1\ns_mul_i32 s{sT}, s{sT}, 896\ns_and_b32 s{sT+2}, s{sG}, 1\ns_lshl_b32 s{sT+3}, s{sT+2}, 9\ns_add_u32 s{sT}, s{sT}, s{sT+3}')
    e(f's_mul_i32 s{sSD}, s{sT+2}, -448\ns_add_u32 s{sSD}, s{sSD}, 384\ns_lshl_b32 s{sT+2}, s{sG}, 7')
    e(f's_lshl_b32 s{sT+3}, s{sF}, 9\ns_add_u32 s{sT+3}, s{sT+3}, 3072')
    e(f's_lshl_b32 s{sCK}, s{sT+3}, 6\ns_lshl_b32 s{SWs+2}, s{sT+3}, 9\ns_mul_i32 s{sWB}, s{sT+3}, s{sW}\ns_lshl_b32 s{sWB}, s{sWB}, 4')
    e('v_and_b32 v43, 1, v42\nv_lshlrev_b32 v43, 1, v43\nv_xor_b32 v43, v41, v43\nv_lshlrev_b32 v43, 4, v43')
    e(f'v_mad_u32_u24 v{vWo}, v40, s{sT+3}, v43\ns_lshl_b32 s{sT+4}, s{sT+3}, 3\ns_sub_u32 s{sT+4}, s{sT+4}, 1024')
    e(f'v_xor_b32 v{vWo+1}, 64, v{vWo}\nv_add_u32 v{vWo+1}, s{sT+4}, v{vWo+1}')
    e('v_lshrrev_b32 v44, 2, v0\nv_and_b32 v45, 3, v0\nv_and_b32 v46, 2, v42\nv_xor_b32 v45, v45, v46\nv_lshlrev_b32 v45, 4, v45')
    e(f'v_mad_u32_u24 v{vS}, v44, s{sT+3}, v45')
    e(f's_lshl_b32 s{sHW}, s{sW}, 11\ns_lshl_b32 s{sHS}, s{sW}, 10\ns_add_u32 s{sHS}, s{sHS}, {L_S}')
    e(f's_cmp_lg_u32 s{sF}, 0\ns_cselect_b32 s{sT}, s{sT}, s{sT+2}\ns_add_u32 s{sWB}, s{sWB}, s{sT}\ns_mov_b32 s{sL}, 0\ns_mov_b32 s{sK0}, s{sKC}')
    e('s_waitcnt lgkmcnt(0)')
    e(f's_mov_b32 s{SX}, s{pX}\ns_mov_b32 s{SX+1}, s{pX+1}')

    def chunk_groups(first=False):
        g = []
        pre = [] if first else [f's_lshl_b32 s{sT+1}, s{sKC}, 7', f's_add_u32 m0, s{sL}, s{sHX}', f's_add_u32 s{sT+1}, s{sT+1}, s{sXB}']
        for i in range(4):
            g.append((pre if i == 0 else []) + [f'buffer_load_dwordx4 v{vX+i}, s[{SX}:{SX+3}], s{sT+1} offen offset:{i*1024} lds'])
        if first:
            g.append([f's_cmp_lg_u32 s{sF}, 0', f's_cselect_b32 s{SWs}, s{pW1}, s{pWQKV}', f's_cselect_b32 s{SWs+1}, s{pW1+1}, s{pWQKV+1}',
                      f's_movk_i32 s{sUST}, 1024', f's_cselect_b32 s{sUST}, 128, s{sUST}'])
        for u in range(3):
            if u == 0: pre = [f's_add_u32 s{sT+4}, s{sL}, s{sHW}', f's_mul_i32 s{sT+2}, s{sKC}, s{sCK}', f's_add_u32 m0, s{sT+4}, {L_W}', f's_add_u32 s{sT+2}, s{sT+2}, s{sWB}']
            else: pre = [f's_add_u32 m0, s{sT+4}, {L_W+u*8192}', f's_add_u32 s{sT+3}, s{sT+2 if u == 1 else sT+3}, s{sUST}']
            so = sT + 2 if u == 0 else sT + 3
            for i in range(2):
                g.append((pre if i == 0 else []) + [f'buffer_load_dwordx4 v{vWo+i}, s[{SWs}:{SWs+3}], s{so} offen offset:{i*1024} lds'])
        Ls = lab('nostrip')
        g.append([f's_cmp_eq_u32 s{sF}, 0', f's_cbranch_scc1 {Ls}', f's_add_u32 m0, s{sL}, s{sHS}', f's_add_u32 s{sT+3}, s{sT+2}, s{sSD}',
                  f'buffer_load_dwordx4 v{vS}, s[{SWs}:{SWs+3}], s{sT+3} offen lds', f'{Ls}:',
                  f's_add_u32 s{sKC}, s{sKC}, 1', f's_and_b32 s{sKC}, s{sKC}, 7', f's_add_u32 s{sL}, s{sL}, {SLOT}',
                  f's_cmp_eq_u32 s{sL}, {3*SLOT}', f's_cselect_b32 s{sL}, 0, s{sL}'])
        return g

    def b2_groups(pos):
        U = POS2U[pos]
        S = SW2 if U < 28 else SWO
        off = (U if U < 28 else U - 28) * 65536
        g = []
        for i in range(2):
            pre = [f's_add_u32 s{sT+4}, s{sB2}, {off}'] if i == 0 else []
            if pos < 18 or OPT['alldma']:
                if i == 0: pre = [f's_add_u32 m0, s{sHW}, {RSLOT[(pos//6)%3]+(pos%6)*8192}'] + pre
                g.append(pre + [f'buffer_load_dwordx4 v{vB+i}, s[{S}:{S+3}], s{sT+4} offen offset:{i*1024} lds'])
            else:
                r = vBuf + ((pos - 18) * 2 + i) * 4
                g.append(pre + [f'buffer_load_dwordx4 v[{r}:{r+3}], v{vB+i}, s[{S}:{S+3}], s{sT+4} offen offset:{i*1024}'])
        if OPT['nob2']: return []
        return g

    def issue(groups):
        for g in groups:
            for l in g:
                e(l)
                if l.startswith(f'buffer_load_dwordx4 v{vS},'): e.vm -= 1
    tok = {}
    for c in (0, 1):
        issue(chunk_groups(c == 0)); tok[c] = e.vtok()
    ts(e, 1)
    srd(e, SW2, pW2, 1792 * 1024); srd(e, SWO, pWO, 512 * 1024); srd(e, SWS, pWS, WS_SIZE)
    e(f'v_lshlrev_b32 v43, 1, v42\nv_xor_b32 v43, v41, v43\nv_lshlrev_b32 v43, 4, v43')
    e(f'v_lshl_add_u32 v{vB}, v40, 10, v43\nv_add_u32 v{vB+1}, {8192-1024}, v{vB}')
    e(f's_and_b32 s{sT}, s{sRB2}, 1\ns_xor_b32 s{sT}, s{sT}, s{sW}\ns_lshl_b32 s{sB2}, s{sT}, 14\ns_lshl_b32 s{sT}, s{sCB}, 7\ns_add_u32 s{sB2}, s{sB2}, s{sT}')
    e(f'v_lshlrev_b32 v{vL16}, 4, v0')
    vN, vT, vTG, vRG, vRW, vSY = 12, 13, 14, 15, 16, 17
    e(f's_lshl_b32 s{sT}, s{sW}, 8\nv_lshl_add_u32 v{vN}, v0, 2, s{sT}\nv_add_u32 v{vT}, {L_CS}, v{vN}')
    e(f's_lshl_b32 s{sCSB}, s{sF}, 3\ns_add_u32 s{sCSB}, s{sCSB}, s{sG}\ns_lshl_b32 s{sCSB}, s{sCSB}, 13\ns_add_u32 s{sCSB}, s{sCSB}, {WS_CS}')
    e(f'v_bfe_u32 v44, v0, 1, 4\nv_and_b32 v45, 1, v0\nv_lshlrev_b32 v45, 4, v45\nv_lshl_add_u32 v{vRG}, v44, 7, v45')
    e(f's_lshl_b32 s{sRSB}, s{sRB}, 13\ns_add_u32 s{sRSB}, s{sRSB}, s{sHW}\ns_add_u32 s{sRSB}, s{sRSB}, {WS_RS}')
    e(f'v_and_b32 v44, 31, v0\ns_lshl_b32 s{sT}, s{sW}, 7\ns_add_u32 s{sT}, s{sT}, {L_R}\nv_lshl_add_u32 v{vRW}, v44, 2, s{sT}')
    e(f'v_mov_b32 v{vSY}, s{sSY}\nv_and_b32 v45, 3, v0\nv_lshlrev_b32 v45, 3, v45')
    pA, pB, pC, pD = 56, 58, 64 + 2, 94
    e(f's_lshl_b32 s{sT}, s{sLI}, 2\ns_add_u32 s{sT}, s{sT}, s{sW}\ns_lshl_b32 s{sT}, s{sT}, 9\ns_and_b32 s{sT+1}, s2, 1\ns_lshl_b32 s{sT+1}, s{sT+1}, 6\ns_add_u32 s{sT}, s{sT}, s{sT+1}')
    e(f's_and_b32 s{sT+1}, s{sW}, 1\ns_xor_b32 s{sT+1}, s{sT+1}, 1\ns_lshl_b32 s{sT+1}, s{sT+1}, 6\ns_xor_b32 s{sT+1}, s{sT+1}, s{sT}')
    e(f's_add_u32 s{pC}, s{pWO}, s{sT}\ns_addc_u32 s{pC+1}, s{pWO+1}, 0\ns_add_u32 s{pD}, s{pWO}, s{sT+1}\ns_addc_u32 s{pD+1}, s{pWO+1}, 0')
    e(f's_add_u32 s{sT}, s{sT}, 0xe0000\ns_add_u32 s{sT+1}, s{sT+1}, 0xe0000')
    e(f's_add_u32 s{pA}, s{pW2}, s{sT}\ns_addc_u32 s{pA+1}, s{pW2+1}, 0\ns_add_u32 s{pB}, s{pW2}, s{sT+1}\ns_addc_u32 s{pB+1}, s{pW2+1}, 0')
    spq = list(range(36))
    def spf(n):
        for _ in range(min(n, len(spq))):
            U = POS2U[spq.pop(0)]
            if not OPT['sp']: continue
            a, b, off = (pA, pB, U * 65536 - 0xe0000) if U < 28 else (pC, pD, (U - 28) * 65536)
            for k in range(4): e(f's_load_dword s{96+k}, s[{a}:{a+1}], {off+k*128}')
            e(f's_load_dword s96, s[{b}:{b+1}], {off+384}')
    def cpf():
        if not OPT['cpf']: return
        Lq = lab('pc')
        e(f's_getpc_b64 s[{sT}:{sT+1}]')
        e(f'{Lq}:')
        e(f's_lshl_b32 s{sT+2}, s{sLI}, 2\ns_add_u32 s{sT+2}, s{sT+2}, s{sW}\ns_mul_i32 s{sT+2}, s{sT+2}, 192\ns_min_u32 s{sT+2}, s{sT+2}, L_code_end-{Lq}-132')
        e(f's_add_u32 s{sT}, s{sT}, s{sT+2}\ns_addc_u32 s{sT+1}, s{sT+1}, 0')
        for k in range(3): e(f's_load_dword s{96+k}, s[{sT}:{sT+1}], {k*64}')
    spf(OPT['sp0'])
    if OPT['l2pf']:
        e(f's_lshl_b32 s{sT}, s{sLI}, 2\ns_add_u32 s{sT}, s{sT}, s{sW}\ns_mul_i32 s{sT+1}, s{sT}, 14\nv_min_u32 v50, 13, v0\nv_add_u32 v50, s{sT+1}, v50')
        e(f'v_lshrrev_b32 v51, 2, v50\nv_and_b32 v50, 3, v50\nv_lshlrev_b32 v50, 7, v50\nv_lshl_add_u32 v50, v51, 10, v50')
        e(f'v_and_b32 v51, 3, v0\nv_lshlrev_b32 v51, 7, v51\ns_lshl_b32 s{sT}, s{sT}, 10\nv_add_u32 v51, s{sT}, v51')
    def l2pf(k):
        if not OPT['l2pf']: return
        e(f's_lshr_b32 s{sT}, s2, 1\ns_add_u32 s{sT}, s{sT}, {k}\ns_and_b32 s{sT}, s{sT}, 3\ns_and_b32 s{sT+1}, s2, 1\ns_lshl_b32 s{sT+1}, s{sT+1}, 9')
        e(f's_mul_i32 s{sT+2}, s{sT}, {448*1024}\ns_add_u32 s{sT+2}, s{sT+2}, s{sT+1}\ns_lshl_b32 s{sT}, s{sT}, 17\ns_add_u32 s{sT}, s{sT}, s{sT+1}')
        e(f'buffer_load_dword v56, v50, s[{SW2}:{SW2+3}], s{sT+2} offen\nbuffer_load_dword v56, v51, s[{SWO}:{SWO+3}], s{sT} offen')
    def kts(c, two=0):
        if DIAG == 1 and two == OPT['kts2']: e(f'{TSI} s[{KTS[c]}:{KTS[c]+1}]' + ('\ns_waitcnt lgkmcnt(0)' if two == 1 else ''))
    dq = list(range(18)); rq = list(range(18, 36))
    def take(q, n):
        g = []
        for _ in range(min(n, len(q))): g += b2_groups(q.pop(0))
        return g
    def gather_loads():
        for k in range(8): e(f'buffer_load_dword v{20+k}, v{vN}, s[{SWS}:{SWS+3}], s{sCSB if k < 4 else sT+5} offen offset:{(k&3)*1024} sc1')
        e(f'buffer_load_dwordx4 v[28:31], v{vRG}, s[{SWS}:{SWS+3}], s{sRSB} offen sc1')
    if OPT['hp0']: e(f's_setprio {OPT["hp0"]}')
    for c in range(8):
        e.wait_vm(tok[c])
        if c == 7: kts(3, 2)
        e('s_barrier')
        kts(c)
        if c == 6: kts(0, 2)
        if c == 7: kts(4, 2)
        if c == 0:
            e(f'ds_read_b64 v[18:19], v{vSY}')
            if OPT['wpf']:
                e(f's_lshl_b32 s{sT}, s2, 2\ns_add_u32 s{sT}, s{sT}, s{sW}\ns_mul_i32 s{sT+1}, s{sT}, 1792\ns_lshl_b32 s{sT}, s{sT}, 9')
                e(f'buffer_load_dwordx4 v[56:59], v{vL16}, s[{SW2}:{SW2+3}], s{sT+1} offen')
                e(f'buffer_load_dwordx4 v[56:59], v{vL16}, s[{SW2}:{SW2+3}], s{sT+1} offen offset:768')
                e(f'v_min_u32 v55, 496, v{vL16}\nbuffer_load_dwordx4 v[56:59], v55, s[{SWO}:{SWO+3}], s{sT} offen')
        if OPT['t3'] and c == OPT['t3c']:
            e(f's_lshl_b32 s{sT}, s{sLI}, 2\ns_add_u32 s{sT}, s{sT}, s{sW}\ns_mul_i32 s{sT+1}, s{sT}, {14*1024}\ns_lshl_b32 s{sT}, s{sT}, 12')
            e(f'v_min_u32 v55, 13, v0\nv_lshlrev_b32 v55, 10, v55\nbuffer_load_dword v56, v55, s[{SW2}:{SW2+3}], s{sT+1} offen offset:384')
            e(f'v_min_u32 v55, 0xc00, v55\nbuffer_load_dword v56, v55, s[{SWO}:{SWO+3}], s{sT} offen offset:384')
        if c == 1: e(f'ds_read_b32 v20, v{vT}')
        if c == 6:
            e(f's_add_u32 s{sT+5}, s{sCSB}, 4096')
            gather_loads(); tg = e.vtok()
        if c == 7:
            L, Dn = lab('xchk'), lab('xdone')
            spin_init(e)
            e.wait_vm(tg)
            e(f'{L}:')
            for i in range(8): e(f'v_xor_b32 v{20+i}, v{vTG}, v{20+i}')
            e('v_or3_b32 v32, v20, v21, v22\nv_or3_b32 v32, v32, v23, v24\nv_or3_b32 v32, v32, v25, v26\nv_or_b32 v32, v32, v27\nv_and_b32 v32, 0xff, v32')
            e(f'v_xor_b32 v30, v18, v30\nv_xor_b32 v31, v19, v31\nv_or3_b32 v32, v32, v30, v31\nv_cmp_ne_u32 vcc, 0, v32')
            e(f's_cmp_eq_u64 vcc, 0\ns_cbranch_scc1 {Dn}')
            e(f's_sub_u32 s{sSPIN}, s{sSPIN}, 1\ns_cmp_eq_u32 s{sSPIN}, 0\ns_cbranch_scc1 {Dn}\ns_sleep 2')
            vm0 = e.vm
            gather_loads(); e.vm = vm0
            e(f's_waitcnt vmcnt(0)\ns_branch {L}')
            e(f'{Dn}:')
            e(f'ds_write_b32 v{vRW}, v28\nds_write_b32 v{vRW}, v29 offset:512')
            kts(2, 2)
            for a, b in ((20, 21), (22, 23), (24, 25), (26, 27), (20, 22), (24, 26), (20, 24)): e(f'v_add_f32 v{a}, v{a}, v{b}')
            e(f'ds_write_b32 v{vT}, v20')
        if c + 2 <= 7:
            if c == 0: l2pf(0)
            issue(chunk_groups()); tok[c + 2] = e.vtok()
            if c in (2, 3, 4): l2pf(c - 1)
            if c >= 2: issue(take(rq, OPT['nb']))
        elif c == 6:
            issue(take(dq, 6)); tr0 = e.vtok(); kts(1, 2)
        else:
            issue(take(dq, OPT['b2b'])); kts(5, 2)
        if c == 0:
            e(f's_waitcnt lgkmcnt(0)\nv_readfirstlane_b32 s{sNON}, v18\nv_readfirstlane_b32 s{sNON+1}, v19\nv_bfe_u32 v{vTG}, v18, v45, 8')
        if c == 1:
            e(f's_lshl_b32 s{sT}, s{sK0}, 10\ns_add_u32 s{sT}, s{sT}, s{sCSB}\ns_movk_i32 s{sT+1}, 0xff\ns_waitcnt lgkmcnt(0)')
            e(f'v_add_u32 v20, 0x80, v20\nv_bfi_b32 v20, s{sT+1}, v{vTG}, v20')
            e(f'buffer_store_dword v20, v{vN}, s[{SWS}:{SWS+3}], s{sT} offen sc1')
        if c == 4: cpf()
        if c < 7: spf(OPT['spn'])
    kts(6, 2)
    e(f's_waitcnt vmcnt({e.vm - tr0}) lgkmcnt(0)')
    kts(7, 2)
    e('s_barrier')
    kts(8); kts(8, 2)
    ts(e, 2)
    spf(36)
    e(f's_setprio {OPT["hp1"]}')
    nA = 2 * (len(dq) + max(0, len(rq) - 12)); tA = e.vtok()
    for k, g in enumerate(take(dq, 18) + take(rq, 18)):
        for l in g: e(l)
        if k + 1 == nA: tA = e.vtok()
        if OPT['thr']: e(f's_waitcnt vmcnt({OPT["thr"]})')
        elif k % 16 == 15: e('s_waitcnt vmcnt(40)')
    ts(e, 3)
    e(f's_setprio {OPT["hp2"]}')
    e(f'v_add_u32 v{vL16}, s{sHW}, v{vL16}')
    for r in range(3): e(f'v_add_u32 v{20+r}, {RSLOT[r]}, v{vL16}')
    e(f'v_and_b32 v4, 15, v0\nv_lshlrev_b32 v4, 7, v4\ns_lshl_b32 s{sT+3}, s{sRB2}, 13\ns_add_u32 s{sT+3}, s{sT+3}, {WS_YF}\ns_add_u32 s{sT+4}, s{sT+3}, 4096')
    def refill(k0, k1):
        for k in range(k0, k1):
            if OPT['p2now']: continue
            b = vBuf + k * 4; r, kk = k // 12, k % 12
            e(f'ds_write_b128 v{20+r}, v[{b}:{b+3}] offset:{(kk//2)*8192+(kk&1)*1024}')
    def w0(fn):
        Lo = lab('w0')
        e(f's_cmp_lg_u32 s{sW}, 0\ns_cbranch_scc1 {Lo}')
        fn(Lo)
        e(f'{Lo}:')
    L, Dn = lab('free'), lab('freed')
    spin_init(e, 2000000)
    e.wait_vm(tA)
    ts(e, 4)
    e(f'{L}:')
    e(f'ds_read_b128 v[24:27], v{vSY} offset:16\ns_waitcnt lgkmcnt(0)\nv_and_b32 v24, v24, v25\nv_and_b32 v26, v26, v27\nv_and_b32 v24, v24, v26')
    e(f'v_readfirstlane_b32 s{sT}, v24\ns_cmp_lg_u32 s{sT}, 0\ns_cbranch_scc1 {Dn}')
    spin_tail(e, L, Dn, 1)
    e(f'{Dn}:')
    kts(0, 1)
    w0(lambda Lo: e(poll_load(4, 6, sT + 3, 0)))
    refill(0, 12)
    w0(lambda Lo: poll(e, 4, 6, sT + 3, 0))
    e('s_waitcnt lgkmcnt(0)')
    kts(1, 1)
    e('s_barrier')
    kts(2, 1)
    def f(Lo):
        e(poll_load(4, 6, sT + 3, 2048)); poll(e, 4, 6, sT + 3, 2048)
    w0(f)
    e('s_waitcnt vmcnt(0)\ns_barrier')
    kts(3, 1)
    refill(12, 21)
    kts(4, 1)
    e('s_barrier')
    kts(5, 1)
    refill(21, 29)
    w0(lambda Lo: e(poll_load(4, 6, sT + 4, 0)))
    e(f's_waitcnt lgkmcnt({0 if OPT["p2now"] else 5})')
    kts(6, 1)
    e('s_barrier')
    kts(7, 1)
    refill(29, 36)
    def f(Lo):
        poll(e, 4, 6, sT + 4, 0)
        e(f's_cmp_lg_u32 s2, 0\ns_cbranch_scc1 {Lo}')
        e(f's_mov_b64 exec, 1\nbuffer_store_dwordx2 v[18:19], off, s[{SWS}:{SWS+3}], 0 sc1\ns_mov_b64 exec, -1')
    w0(f)
    e('s_waitcnt lgkmcnt(0)')
    kts(8, 1)
    ts(e, 5)
    e('s_barrier')
    ts(e, 6)
    ts_dump(e, 7, 0)
    e('s_endpgm')

ACC = 16
XF = 128; WR = 160; CS = 192; SEL = 208; AX = 212; AW = 216; AS = 220; CSW = 224; L16 = 225; L16B = 226; G4 = 227; N16 = 228; SYV = 229
sRH, sCH = 11, 12
sC0, sCS_ = 65, 66
sFL = 67

def compute_early(e):
    e(f's_sub_u32 s{sW}, s{sW}, 4\ns_setprio 1\ns_and_b32 s{sRH}, s{sW}, 1\ns_lshr_b32 s{sCH}, s{sW}, 1')
    e(f'v_lshlrev_b32 v{L16}, 4, v0\nv_and_b32 v{N16}, 15, v0')
    e(f's_lshl_b32 s{sT}, s{sF}, 3\ns_add_u32 s{sT}, s{sT}, s{sG}\ns_lshl_b32 s{sT}, s{sT}, 2\ns_add_u32 s{sT}, s{sT}, s{sW}')
    e(f's_lshl_b32 s{sT+1}, s{sRB}, 6\ns_add_u32 s13, s{sT}, s{sT+1}\ns_lshl_b32 s{sT+1}, s13, 11')
    e(f's_mov_b32 s{SX+2}, {2048*1024}\ns_mov_b32 s{SX+3}, 0x20000\ns_mov_b32 s{SB1+2}, {1792*2}\ns_mov_b32 s{SB1+3}, 0x20000')
    e(f's_lshr_b32 s{sT}, s{sG}, 1\ns_mul_i32 s{sT}, s{sT}, 448\ns_and_b32 s{sT+2}, s{sG}, 1')
    e(f's_lshl_b32 s{sC0}, s{sT+2}, 8\ns_add_u32 s{sC0}, s{sC0}, s{sT}\ns_lshl_b32 s{sT+3}, s{sCH}, 5\ns_add_u32 s{sC0}, s{sC0}, s{sT+3}')
    e(f's_lshl_b32 s{sCS_}, s{sT+2}, 5\ns_add_u32 s{sCS_}, s{sCS_}, s{sT}\ns_add_u32 s{sCS_}, s{sCS_}, 192')
    e(f'v_bfe_u32 v5, v0, 4, 1\nv_xor_b32 v5, s{sRH}, v5\nv_lshl_add_u32 v2, v5, 4, v{N16}\nv_lshrrev_b32 v3, 5, v0')
    e(f'v_lshl_add_u32 v4, v3, 6, v2\nv_add_lshl_u32 v4, v4, s{sC0}, 1')
    e(f's_sub_u32 s{sT}, s{sCS_}, s{sC0}\ns_sub_u32 s{sT}, s{sT}, 128\nv_mul_lo_u32 v6, v3, s{sT}\nv_add3_u32 v6, v6, v2, s{sC0}\nv_add_u32 v6, 128, v6\nv_lshlrev_b32 v6, 1, v6')
    e('s_waitcnt lgkmcnt(0)')
    e(f's_mov_b32 s{SX}, s{pX}\ns_mov_b32 s{SX+1}, s{pX+1}')
    for k in range(2): e(f'buffer_load_dwordx4 v[{XF+4*k}:{XF+4*k+3}], v{L16}, s[{SX}:{SX+3}], s{sT+1} offen offset:{k*1024}')
    e(f's_load_dwordx2 s[{sNON}:{sNON+1}], s[{pWS}:{pWS+1}], 0')
    e(f's_mov_b32 s{SB1}, s{pB1}\ns_mov_b32 s{SB1+1}, s{pB1+1}')
    e(f'buffer_load_ushort v8, v4, s[{SB1}:{SB1+3}], 0 offen\nbuffer_load_ushort v9, v6, s[{SB1}:{SB1+3}], 0 offen')
    e('s_branch L_compute')

def compute_common(e):
    srd(e, SWs, pWQKV, 512 * 3072)
    Lp = lab('pf_skip'); Lq = lab('pc'); Lr = lab('pf_done')
    e(f's_cmp_lg_u32 s{sW}, 1\ns_cbranch_scc1 {Lp}')
    e(f's_getpc_b64 s[{sT+2}:{sT+3}]')
    e(f'{Lq}:')
    e(f's_sub_u32 s{sT+2}, s{sT+2}, {Lq}-{NAME}_kernel\ns_subb_u32 s{sT+3}, s{sT+3}, 0')
    e(f's_lshl_b32 s{sT+4}, s{sLI}, 10\nv_add_u32 v2, s{sT+4}, v{L16}\nv_min_u32 v2, ' + (f'L_code_end-{NAME}_kernel-16' if OPT['pf'] else '0') + ', v2')
    e(f'global_load_dwordx4 v[252:255], v2, s[{sT+2}:{sT+3}]\ns_branch {Lr}')
    e(f'{Lp}:')
    e(f's_and_b32 s{sT}, s2, 3\ns_xor_b32 s{sT}, s{sT}, 1\ns_or_b32 s{sT}, s{sT}, s{sW}\ns_mul_i32 s{sT+1}, s{sLI}, {48*1024}')
    e(f's_cmp_eq_u32 s{sT}, {0 if OPT["q3"] else 99}\ns_cselect_b32 s{sT+1}, s{sT+1}, 0x7ff00000\nv_min_u32 v2, 47, v0\nv_lshlrev_b32 v2, 10, v2')
    e(f'buffer_load_dword v252, v2, s[{SWs}:{SWs+3}], s{sT+1} offen offset:384')
    e(f'{Lr}:')
    e(f'v_lshrrev_b32 v{G4}, 4, v0\nv_add_u32 v{L16B}, {YRT}, v{L16}\nv_lshlrev_b32 v{FV+2}, 3, v0')
    srd(e, SWS, pWS, WS_SIZE); srd(e, SOUT, pOUT, 2048 * 1024)
    e(f's_lshl_b32 s{sT}, s{sCH}, 2\nv_bfe_u32 v2, v0, 1, 3\nv_xor_b32 v2, v{G4}, v2\nv_xor_b32 v2, s{sT}, v2')
    e(f's_lshl_b32 s{sT}, s{sRH}, 13\ns_lshl_b32 s{sT+1}, s{sCH}, 12\ns_add_u32 s{sT}, s{sT}, s{sT+1}')
    e(f'v_lshlrev_b32 v3, 7, v{N16}\nv_add_u32 v3, s{sT}, v3\nv_lshl_add_u32 v{AX}, v2, 4, v3')
    e(f'v_xor_b32 v{AX+1}, 0x1000, v{AX}\nv_xor_b32 v{AX+2}, 64, v{AX}\nv_xor_b32 v{AX+3}, 64, v{AX+1}')
    e(f'v_bfe_u32 v2, v0, 2, 2\nv_lshl_add_u32 v2, v{G4}, 3, v2\ns_lshl_b32 s{sT}, s{sCH}, 5\nv_add_u32 v2, s{sT}, v2')
    e('v_and_b32 v4, 3, v0\nv_cmp_eq_u32 vcc, 0, v4\nv_lshlrev_b32 v4, 3, v4\nv_bfe_u32 v7, v0, 3, 2')
    e(f'v_xor_b32 v7, s{sW}, v7\nv_lshl_add_u32 v7, v7, 5, v4\nv_lshl_add_u32 v7, v2, 7, v7\nv_add_u32 v{AW}, {L_W}, v7')
    e(f'v_xor_b32 v{AW+1}, 32, v{AW}\nv_xor_b32 v{AW+2}, 0x1000, v{AW}\nv_xor_b32 v{AW+3}, 0x1000, v{AW+1}')
    e(f'v_lshl_add_u32 v6, v5, 5, v4\nv_lshl_add_u32 v6, v2, 6, v6\nv_add_u32 v{AS}, {L_S}, v6')
    e(f'v_xor_b32 v{AS+1}, 32, v{AS}\nv_xor_b32 v{AS+2}, 0x800, v{AS}\nv_xor_b32 v{AS+3}, 0x800, v{AS+1}')
    e('v_mov_b32 v3, 0x3f803f80')
    e(f's_lshl_b32 s{sT}, s{sCH}, 9\ns_lshl_b32 s{sT+1}, s{sRH}, 6\ns_add_u32 s{sT}, s{sT}, s{sT+1}\ns_add_u32 s{sT}, s{sT}, {L_CS}')
    e(f'v_cndmask_b32 v{SEL}, 0, v3, vcc\nv_lshl_add_u32 v{CSW}, v{N16}, 2, s{sT}')
    for i in range(1, 4): e(f'v_mov_b32 v{SEL+i}, v{SEL}')
    e(f's_lshl_b32 s{sT}, s{sRB}, 1\ns_add_u32 s{sT}, s{sT}, s{sRH}\ns_lshl_b32 s{sFL}, s{sT}, 6\ns_lshl_b32 s{sT}, s{sT}, 1\ns_add_u32 s{sT}, s{sT}, s{sCH}')
    e(f's_xor_b32 s{sT+1}, s{sT}, 1\ns_mul_i32 s76, s{sT}, {2*YRT}\ns_mul_i32 s77, s{sT+1}, {2*YRT}')
    e(f's_lshl_b32 s{sT}, s{sG}, 1\ns_add_u32 s{sFL}, s{sFL}, s{sT}\ns_add_u32 s{sFL}, s{sFL}, s{sCH}\ns_lshl_b32 s{sFL}, s{sFL}, 7\ns_add_u32 s{sFL}, s{sFL}, {WS_YF}')
    e(f's_mov_b32 s14, 0\ns_mov_b32 s15, 0\ns_mov_b32 s22, {-2*SLOT}')
    e('s_waitcnt lgkmcnt(0)')
    e(f's_mul_i32 s{sT+4}, s{sNON}, 0x4c957f2d\ns_mul_hi_u32 s{sT+5}, s{sNON}, 0x4c957f2d')
    e(f's_mul_i32 s{sT}, s{sNON+1}, 0x4c957f2d\ns_add_u32 s{sT+5}, s{sT+5}, s{sT}')
    e(f's_mul_i32 s{sT}, s{sNON}, 0x5851f42d\ns_add_u32 s{sT+5}, s{sT+5}, s{sT}')
    e(f's_add_u32 s{sNON}, s{sT+4}, 0xf767814f\ns_addc_u32 s{sNON+1}, s{sT+5}, 0x14057b7e')
    e(f'v_mov_b32 v{FV}, s{sNON}\nv_mov_b32 v{FV+1}, s{sNON+1}\nv_mov_b32 v2, s{sSY}\ns_lshl_b32 s{sT}, s{sW}, 2\nv_add_u32 v{SYV}, s{sT}, v2\nv_mov_b32 v3, 0')
    e(f'ds_write_b64 v2, v[{FV}:{FV+1}]\nds_write_b32 v{SYV}, v3 offset:16\nds_write_b32 v{SYV}, v3 offset:32\nds_write_b32 v{SYV}, v3 offset:48')
    e(f's_mov_b32 s{sT}, 0xffff0000\ns_waitcnt vmcnt(3)')
    S = 136; R = FV - 2
    for k in range(2):
        for d in range(4):
            w = XF + 4 * k + d
            e(f'v_lshlrev_b32 v2, 16, v{w}\nv_and_b32 v3, s{sT}, v{w}')
            if d == 0: e(f'v_add_f32 v{S+2*k}, v2, v3\nv_mul_f32 v{S+2*k+1}, v2, v2')
            else: e(f'v_add_f32 v{S+2*k}, v{S+2*k}, v2\nv_fmac_f32 v{S+2*k+1}, v2, v2\nv_add_f32 v{S+2*k}, v{S+2*k}, v3')
            e(f'v_fmac_f32 v{S+2*k+1}, v3, v3')
    for i in range(2): e(f'v_permlane32_swap_b32 v{S+i}, v{S+2+i}')
    for i in range(2): e(f'v_add_f32 v{S+i}, v{S+i}, v{S+2+i}')
    for i in range(2): e(f'v_mov_b32 v{S+2+i}, v{S+i}')
    for i in range(2): e(f'v_permlane16_swap_b32 v{S+2+i}, v{S+i}')
    for i in range(2): e(f'v_add_f32 v{S+i}, v{S+i}, v{S+2+i}')
    for ror in (1, 2, 4, 8):
        for i in range(2): e(f'v_add_f32_dpp v{S+i}, v{S+i}, v{S+i} row_ror:{ror} row_mask:0xf bank_mask:0xf')
    e(f's_lshl_b32 s{sT}, s13, 7\ns_add_u32 s{sT}, s{sT}, {WS_RS}')
    e(f'v_mul_f32 v2, {fl(-1/512)}, v{S}\nv_mul_f32 v3, {fl(1/512)}, v{S+1}\nv_fma_f32 v3, -v2, v2, v3\nv_max_f32 v3, 0, v3\nv_add_f32 v3, {fl(1e-5)}, v3')
    e(f'v_rsq_f32 v3, v3\nv_lshrrev_b32 v4, 5, v0\nv_lshlrev_b32 v4, 4, v4\nv_lshl_add_u32 v4, v{N16}, 5, v4\nv_mul_f32 v{R}, {fl(LOG2E)}, v3\nv_mul_f32 v{R+1}, v{R}, v2')
    e(f's_mov_b32 exec_lo, 0xf\ns_mov_b32 exec_hi, 0xf\nbuffer_store_dwordx4 v[{R}:{R+3}], v4, s[{SWS}:{SWS+3}], s{sT} offen sc1\ns_mov_b64 exec, -1')

def acc_main(u, rt, jj): return ACC + ((u * 4 + rt) * 2 + jj) * 4
def acc_strip(rt, jj): return ACC + 96 + (rt * 2 + jj) * 4

DU = 3
BR = 48; A0 = BR + 96; AB = 244; VA = 248; VO = 250; XR = 32
sAU, sAO, sO = 13, 14, 15
def readB(q):
    n, ct = q // 4, q % 4
    b = BR + 8 * (q % 12)
    return [f'ds_read_b64_tr_b16 v[{b+4*s+2*j}:{b+4*s+2*j+1}], v{AB+ct} offset:{(n%3)*8192+s*4096+j*2048}' for s in range(2) for j in range(2)]

def p2_prep(e):
    sKH = sCH
    e(f's_lshl_b32 s{sT}, s{sRB2}, 2\ns_lshl_b32 s{sT+1}, s{sRH}, 1\ns_add_u32 s{sT}, s{sT}, s{sT+1}')
    e(f's_add_u32 s{sT+1}, s{sT}, s{sKH}\ns_lshl_b32 s{sT+1}, s{sT+1}, 14\ns_lshl_b32 s{sT+2}, s{sCB}, 7\ns_add_u32 s{sO}, s{sT+1}, s{sT+2}')
    e(f'v_bfe_u32 v2, v0, 4, 1\nv_lshrrev_b32 v3, 5, v0\nv_lshlrev_b32 v3, 4, v3\nv_lshl_add_u32 v3, v2, 5, v3\nv_lshl_add_u32 v{VO}, v{N16}, 10, v3')
    for h in range(2): e(f'buffer_load_dwordx4 v[{XR+4*h}:{XR+4*h+3}], v{VO}, s[{SX}:{SX+3}], s{sO} offen offset:{h*64}')
    e('v_lshrrev_b32 v2, 2, v0\nv_bfe_u32 v3, v0, 3, 2\nv_and_b32 v4, 3, v0\nv_lshlrev_b32 v4, 3, v4\nv_lshl_add_u32 v4, v3, 5, v4\nv_lshl_add_u32 v4, v2, 7, v4')
    e(f's_mul_i32 s{sT+1}, s{sKH}, 24576\ns_add_u32 s{sT+1}, s{sT+1}, {RSLOT[0]}\nv_add_u32 v{AB}, s{sT+1}, v4')
    for ct in range(1, 4): e(f'v_xor_b32 v{AB+ct}, {32*ct}, v{AB}')
    for q in range(12):
        for l in readB(q): e(l)
    e(f'v_mov_b32 v2, -1\nds_write_b32 v{SYV}, v2 offset:16')
    e(f's_mul_i32 s{sT}, s{sT}, {YRT}\ns_add_u32 s{sT}, s{sT}, {WS_Y}')
    e(f's_mul_i32 s{sT+1}, s{sKH}, {14*2048}\ns_add_u32 s{sAU}, s{sT}, s{sT+1}\ns_lshl_b32 s{sT+1}, s{sKH}, 13\ns_add_u32 s{sAO}, s{sT}, s{sT+1}')
    e(f's_mul_i32 s{sT}, s{sKH}, {YRT}\ns_sub_u32 s{sT+1}, {YRT}, s{sT}\nv_add_u32 v{VA}, s{sT}, v{L16}\nv_add_u32 v{VA+1}, s{sT+1}, v{L16}')

def p2_accinit(e):
    e('s_mov_b32 s22, 0xffff0000')
    for h in range(2):
        for i in range(2): e(f'v_permlane16_swap_b32 v{XR+4*h+i}, v{XR+4*h+2+i}')
    for i in range(8): e(f'v_lshlrev_b32 v{ACC+2*i}, 16, v{XR+i}\nv_and_b32 v{ACC+2*i+1}, s22, v{XR+i}')

def pair_wait(e, off, reads):
    L, Dn = lab('pair'), lab('paird')
    spin_init(e, 2000000)
    e(f'{L}:')
    e(f'ds_read_b32 v3, v15 offset:{off}')
    for l in reads: e(l)
    e(f's_waitcnt lgkmcnt({len(reads)})\nv_readfirstlane_b32 s{sT+5}, v3\ns_cmp_lg_u32 s{sT+5}, 0\ns_cbranch_scc1 {Dn}')
    spin_tail(e, L, Dn, 0)
    e(f'{Dn}:')

def compute_p1(e, F):
    sDL, sCNT, sSL, sY0, sY1, sYS = 13, 14, 15, 76, 77, 78
    if F:
        e(f's_lshl_b32 s{sT+3}, s{sCS_}, 5\ns_add_u32 s{sYS}, s{sY0}, s{sT+3}\ns_add_u32 s{sYS}, s{sYS}, {WS_Y}')
        e(f's_lshl_b32 s{sT+2}, s{sC0}, 5\ns_add_u32 s{sT+2}, s{sT+2}, {WS_Y}')
        e(f's_lshl_b32 s{sT}, s{sW}, 9\ns_add_u32 s{sT}, s{sT}, {L_BT}\nv_lshl_add_u32 v2, v0, 2, s{sT}')
        e('s_waitcnt vmcnt(2)')
        e(f'v_lshlrev_b32 v8, 16, v8\nv_lshlrev_b32 v9, 16, v9\nv_mul_f32 v8, {fl(LOG2E)}, v8\nv_mul_f32 v9, {fl(LOG2E)}, v9')
        e('ds_write_b32 v2, v8\nds_write_b32 v2, v9 offset:256')
    else:
        e(f's_lshl_b32 s{sT+2}, s{sG}, 11\ns_lshl_b32 s{sT+3}, s{sCH}, 10\ns_add_u32 s{sT+2}, s{sT+2}, s{sT+3}\ns_add_u32 s{sT+2}, s{sT+2}, {WS_Y+56*1024}')
    e(f's_add_u32 s{sY0}, s{sY0}, s{sT+2}\ns_add_u32 s{sY1}, s{sY1}, s{sT+2}\ns_waitcnt lgkmcnt(0)')

    seq = [(0, 0), (1, 0), (2, 0), (3, 0), (3, 1), (0, 1), (1, 1), (2, 1)] if F else [(0, 0), (1, 0), (2, 0), (0, 1), (1, 1), (2, 1)]
    NP = len(seq); RING = 4 if F else 3
    def wreads(p):
        u, jj = seq[p]; b = WR + 8 * (p % RING)
        if u < 3: return [f'ds_read_b64_tr_b16 v[{b+4*s+2*j}:{b+4*s+2*j+1}], v{AW+2*s+jj} offset:{u*8192+j*512}' for s in range(2) for j in range(2)]
        return [f'ds_read_b64_tr_b16 v[{b+4*s+2*j}:{b+4*s+2*j+1}], v{AS+2*s+jj} offset:{j*256}' for s in range(2) for j in range(2)]
    def xreads(rt):
        return [f'ds_read_b128 v[{XF+8*rt+4*s}:{XF+8*rt+4*s+3}], v{AX+2*s+(rt>>1)} offset:{(rt&1)*2048}' for s in range(2)]
    def mfma(d, a, b, z): return f'v_mfma_f32_16x16x32_bf16 v[{d}:{d+3}], v[{a}:{a+3}], v[{b}:{b+3}], ' + ('0' if z else f'v[{d}:{d+3}]')
    def mfmas(p, first):
        u, jj = seq[p]; b = WR + 8 * (p % RING)
        m = []
        for rt in range(4 if u < 3 else 2):
            d = acc_main(u, rt, jj) if u < 3 else acc_strip(rt, jj)
            for s in range(2):
                w, x = b + 4 * s, XF + 8 * rt + 4 * s; z = first and s == 0
                m.append((rt, mfma(d, w, x, z) if (F or u == 0) else mfma(d, x, w, z)))
        if jj == 0 and first:
            m = [(None, mfma(CS + 4 * u, SEL, b + 4 * s, s == 0)) for s in range(2 if u < 3 else 1)] + m
        if OPT['nomfma']: m = [(rt, 's_nop 0') for rt, _ in m]
        return m
    ts(e, 1)
    e('s_barrier')
    ts(e, 2)
    tokW = {}; tokX = {}
    for l in wreads(0): e(l)
    tokW[0] = e.ltok()
    w1 = wreads(1)
    for rt in range(4):
        e(w1[rt])
        if rt == 3: tokW[1] = e.ltok()
        for l in xreads(rt): e(l)
        tokX[rt] = e.ltok()
    LK = lab('kloop')
    for first in (True, False):
        if not first: e(f'{LK}:')
        for p in range(NP):
            m = mfmas(p, first)
            ex = list(wreads((p + 2) % NP))
            nW = len(ex)
            if first and 1 <= p <= (4 if F else 3):
                ex = [f'ds_write_b32 v{CSW}, v{CS+4*(p-1)} offset:{(p-1)*128}'] + ex; nW += 1
            if p == 0: ex += [f's_add_u32 s{sSL}, s{sSL}, 1', f's_cmp_eq_u32 s{sSL}, 3', f's_cselect_b32 s{sDL}, s22, {SLOT}', f's_cselect_b32 s{sSL}, 0, s{sSL}']
            if p == 1: ex += [f'v_add_u32 v{a}, s{sDL}, v{a}' for a in (AW, AW + 2, AX, AX + 1)]
            if p == 2: ex += [f'v_add_u32 v{a}, s{sDL}, v{a}' for a in (AX + 2, AX + 3)]
            if p == NP - 3 and F: ex += [f'v_add_u32 v{a}, s{sDL}, v{a}' for a in (AS, AS + 1, AS + 2, AS + 3)]
            if p == NP - 2:
                ex += [f'v_add_u32 v{a}, s{sDL}, v{a}' for a in (AW + 1, AW + 3)]
                ex += [f's_add_u32 s{sCNT}, s{sCNT}, 1', f's_cmp_lt_u32 s{sCNT}, 8']
                e('s_waitcnt lgkmcnt(0)\ns_barrier')
            elif p != NP - 1:
                e.wait_lg(tokW[p])
            seen = set()
            k = 0
            for i, (rt, x) in enumerate(m):
                if p == 0 and rt is not None and rt not in seen:
                    e.wait_lg(tokX[rt]); seen.add(rt)
                e(x)
                if p == NP - 1:
                    if i % 2 == 0:
                        e(ex[i // 2])
                        if i == 6: tokW[1] = e.ltok()
                    else:
                        for l in xreads(i // 2): e(l)
                        tokX[i // 2] = e.ltok()
                else:
                    n = -(-(len(ex) - k) // (len(m) - i))
                    for l in ex[k:k + n]:
                        e(l); k += 1
                        if k == nW: tokW[(p + 2) % NP] = e.ltok()
    e(f's_cbranch_scc1 {LK}')
    ts(e, 3)
    e('s_waitcnt vmcnt(0)')
    e(f's_lshl_b32 s{sT}, s{sRH}, 8\ns_lshl_b32 s{sT+1}, s{sCH}, 7\ns_add_u32 s{sT}, s{sT}, s{sT+1}\ns_add_u32 s{sT}, s{sT}, {L_R}')
    e(f'v_lshl_add_u32 v2, v{N16}, 2, s{sT}\nv_xor_b32 v3, 128, v2')
    e(f's_lshl_b32 s{sT+1}, s{sCH}, 9\ns_lshl_b32 s{sT+2}, s{sRH}, 6\ns_add_u32 s{sT+1}, s{sT+1}, s{sT+2}\ns_add_u32 s{sT+1}, s{sT+1}, {L_CS}')
    e(f'v_lshl_add_u32 v4, v{G4}, 4, s{sT+1}\nv_xor_b32 v5, 64, v4')
    H = 192
    if F:
        CSV = 128; BV = 160; RL = 240; NL = 244; KK = 248; P = 232; U = 208
        e(f's_lshl_b32 s{sT+2}, s{sW}, 9\ns_add_u32 s{sT+2}, s{sT+2}, {L_BT}\nv_lshl_add_u32 v6, v{G4}, 4, s{sT+2}')
        tk = {}
        for u in range(4):
            for jj in range(2):
                t = 2 * u + jj
                e(f'ds_read_b128 v[{CSV+4*t}:{CSV+4*t+3}], v{4+jj} offset:{u*128}\nds_read_b128 v[{BV+4*t}:{BV+4*t+3}], v6 offset:{t*64}')
            if u == 0:
                for nm, o in ((NL, 512), (RL, 0)):
                    for rt in range(4): e(f'ds_read_b32 v{nm+rt}, v{2+(rt>>1)} offset:{(rt&1)*64+o}')
                e('v_xor_b32 v7, 0x200, v4\nv_xor_b32 v8, 0x200, v5')
            tk[u] = e.ltok()
        e('ds_read_b128 v[252:255], v8 offset:384\nds_read_b128 v[8:11], v7 offset:384')
        e(f'v_mov_b32 v{KK}, {fl(-2/LOG2E)}\nv_mov_b32 v{KK+1}, {fl(1/LOG2E)}')
        e(f's_add_u32 s{sT}, s{sY0}, 4096\ns_add_u32 s{sT+1}, s{sY1}, 4096')
        held = []; pend = []
        for u in range(4):
            if u == 0: e.wait_lg(tk[0])
            if u == 1:
                e('s_waitcnt lgkmcnt(0)')
                for i in (0, 2):
                    e(f'v_pk_add_f32 v[{CSV+24+i}:{CSV+25+i}], v[{CSV+24+i}:{CSV+25+i}], v[{8+i}:{9+i}]')
                    e(f'v_pk_add_f32 v[{CSV+28+i}:{CSV+29+i}], v[{CSV+28+i}:{CSV+29+i}], v[{252+i}:{253+i}]')
            for p in range(2 if u < 3 else 1):
                a = acc_main(u, 2 * p, 0) if u < 3 else acc_strip(0, 0)
                L = []
                for i in range(0, 16, 2):
                    o = i >> 3; c = 8 * u + (i & 7)
                    L.append(f'v_pk_fma_f32 v[{H+i}:{H+i+1}], v[{CSV+c}:{CSV+c+1}], v[{NL+2*p}:{NL+2*p+1}], v[{BV+c}:{BV+c+1}] op_sel:[0,{o},0] op_sel_hi:[1,{o},1]')
                for i in range(0, 16, 2):
                    o = i >> 3
                    L.append(f'v_pk_fma_f32 v[{H+i}:{H+i+1}], v[{a+i}:{a+i+1}], v[{RL+2*p}:{RL+2*p+1}], v[{H+i}:{H+i+1}] op_sel:[0,{o},0] op_sel_hi:[1,{o},1]')
                for i in range(16): L.append(f'v_exp_f32 v{U+i}, v{H+i}')
                for i in range(0, 16, 2): L.append(f'v_pk_add_f32 v[{U+i}:{U+i+1}], v[{U+i}:{U+i+1}], 1.0 op_sel_hi:[1,0]')
                for i in range(0, 16, 2): L.append(f'v_pk_fma_f32 v[{U+i}:{U+i+1}], v[{U+i}:{U+i+1}], v[{U+i}:{U+i+1}], 1.0 op_sel_hi:[1,1,0]')
                for i in range(16): L.append(f'v_rcp_f32 v{U+i}, v{U+i}')
                for i in range(0, 16, 2): L.append(f'v_pk_fma_f32 v[{U+i}:{U+i+1}], v[{U+i}:{U+i+1}], v[{KK}:{KK+1}], v[{KK}:{KK+1}] op_sel:[0,0,1] op_sel_hi:[1,0,1]')
                for i in range(0, 16, 2): L.append(f'v_pk_mul_f32 v[{U+i}:{U+i+1}], v[{U+i}:{U+i+1}], v[{H+i}:{H+i+1}]')
                for i in range(8): L.append(f'v_cvt_pk_bf16_f32 v{a+i}, v{U+2*i}, v{U+2*i+1}')
                if OPT['noepi']: L = ['s_sleep 8'] + ['s_nop 0'] * 1
                gi = 2 * u + p
                for i, l in enumerate(L):
                    if gi * 100 + i == OPT['xpos']:
                        assert not pend
                        e.wait_vm(tX); put_flag(e, sFL, 0)
                    if pend and i % OPT['bsp'] == 0:
                        e(pend.pop(0))
                        if not pend: tX = e.vtok()
                    e(l)
                so, off = ((sY1 if p else sY0), u * 2048) if u < 2 else ((sT + 1 if p else sT), 0) if u == 2 else (sYS, 0)
                for k in range(0 if OPT['nost'] else 2):
                    held.append(f'buffer_store_dwordx4 v[{a+4*k}:{a+4*k+3}], v{L16B if k else L16}, s[{SWS}:{SWS+3}], s{so} offen offset:{off}' + (' sc1' if OPT['ysc'] else ''))
                if OPT['burst'] and gi == 3: pend = held; held = []
                elif not OPT['burst'] or gi == 6:
                    for l in held: e(l)
                    held = []
                if gi == 3: tX = e.vtok()
        tY = e.vtok()
        ts(e, 4)
        p2_prep(e)
        e.wait_vm(tY)
        if OPT['xpos'] < 0: put_flag(e, sFL, 0)
        put_flag(e, sFL, 2048)
        ts(e, 5)
        e('s_waitcnt vmcnt(1)')
        p2_accinit(e)
        ts(e, 6)
    else:
        RV = 128; NVV = 144; CK = 160; CSQ = 164; RL = 172; NL = 176; EP = 230; ONE = 184; PK = 232; PV = ACC + 32; D = ACC + 64; PQ = 208; U = 112
        e(f'v_lshl_add_u32 v6, v{G4}, 4, s{sT}\nv_xor_b32 v7, 128, v6')
        e(f'v_xor_b32 v8, 64, v{CSW}')
        for jj in range(2):
            e(f'ds_read_b32 v{CK+jj}, v{CSW if jj == 0 else 8} offset:128\nds_read_b32 v{CK+2+jj}, v{CSW if jj == 0 else 8} offset:256')
        tk = {}
        for rt in range(4):
            e(f'ds_read_b128 v[{NVV+4*rt}:{NVV+4*rt+3}], v{6+(rt>>1)} offset:{(rt&1)*64+512}\nds_read_b128 v[{RV+4*rt}:{RV+4*rt+3}], v{6+(rt>>1)} offset:{(rt&1)*64}')
            tk[rt] = e.ltok()
        for jj in range(2): e(f'ds_read_b128 v[{CSQ+4*jj}:{CSQ+4*jj+3}], v{4+jj}')
        for rt in range(4):
            e(f'ds_read_b32 v{RL+rt}, v{2+(rt>>1)} offset:{(rt&1)*64}\nds_read_b32 v{NL+rt}, v{2+(rt>>1)} offset:{(rt&1)*64+512}')
        e(f'v_mov_b32 v{EP}, {fl(1e-6*LOG2E)}\nv_mov_b32 v{EP+1}, {fl(1/LOG2E)}')
        for i in range(4): e(f'v_mov_b32 v{ONE+i}, 0x3f803f80')
        def phi_tail(dst):
            for i in range(16): e(f'v_exp_f32_e64 v{U+i}, v{H+i} clamp')
            for i in range(16): e(f'v_max_f32 v{H+i}, v{EP}, v{H+i}')
            for i in range(0, 16, 2): e(f'v_pk_fma_f32 v[{H+i}:{H+i+1}], v[{H+i}:{H+i+1}], v[{EP}:{EP+1}], v[{U+i}:{U+i+1}] op_sel:[0,1,0] op_sel_hi:[1,1,1]')
            for i in range(0, 16, 2): e(f'v_cvt_pk_bf16_f32 v{dst(i)}, v{H+i}, v{H+i+1}')
        def kvdst(base, p): return lambda i: base + ((i >> 2) & 1) * 8 + p * 4 + (i >> 3) * 2 + ((i >> 1) & 1)
        for p in range(2):
            e.wait_lg(tk[2 * p + 1])
            a = acc_main(1, 2 * p, 0)
            for i in range(0, 16, 2):
                r = 8 * p + (i >> 3) * 4 + (i & 3); jj = (i >> 2) & 1
                e(f'v_pk_fma_f32 v[{H+i}:{H+i+1}], v[{NVV+r}:{NVV+r+1}], v[{CK}:{CK+1}], v[{EP}:{EP+1}] op_sel:[0,{jj},0] op_sel_hi:[1,{jj},0]')
            for i in range(0, 16, 2):
                r = 8 * p + (i >> 3) * 4 + (i & 3)
                e(f'v_pk_fma_f32 v[{H+i}:{H+i+1}], v[{a+i}:{a+i+1}], v[{RV+r}:{RV+r+1}], v[{H+i}:{H+i+1}]')
            phi_tail(kvdst(PK, p))
        for p in range(2):
            a = acc_main(2, 2 * p, 0)
            for i in range(0, 16, 2):
                r = 8 * p + (i >> 3) * 4 + (i & 3); jj = (i >> 2) & 1
                e(f'v_pk_mul_f32 v[{H+i}:{H+i+1}], v[{NVV+r}:{NVV+r+1}], v[{CK+2}:{CK+3}] op_sel:[0,{jj}] op_sel_hi:[1,{jj}]')
            for i in range(0, 16, 2):
                r = 8 * p + (i >> 3) * 4 + (i & 3)
                e(f'v_pk_fma_f32 v[{H+i}:{H+i+1}], v[{a+i}:{a+i+1}], v[{RV+r}:{RV+r+1}], v[{H+i}:{H+i+1}]')
            for i in range(0, 16, 2): e(f'v_cvt_pk_bf16_f32 v{kvdst(PV, p)(i)}, v{H+i}, v{H+i+1}')
        for h in (1, 0):
            d = D + 8 * (1 - h)
            for p in range(2): e(mfma(d + 4, PK + 8 * h + 4 * p, ONE, p == 0))
            for p in range(2): e(mfma(d, PK + 8 * h + 4 * p, PV + 8 * h + 4 * p, p == 0))
        e(f's_lshl_b32 s{sT}, s{sW}, 11\ns_add_u32 s{sT}, s{sT}, {L_KX}\nv_add_u32 v6, s{sT}, v{L16}\nv_xor_b32 v7, 0x800, v6\nv_xor_b32 v15, 4, v{SYV}\nv_mov_b32 v2, -1')
        e(f'ds_write_b128 v6, v[{D}:{D+3}]\nds_write_b128 v6, v[{D+4}:{D+7}] offset:1024\nds_write_b32 v{SYV}, v2 offset:32')
        e(f's_lshl_b32 s{sT}, s{sG}, 2\ns_add_u32 s{sT}, s{sT}, s{sW}\ns_mul_i32 s23, s{sT}, {16*1152}\ns_add_u32 s23, s23, {WS_KV}')
        e(f's_mul_i32 s{sT+2}, s{sRB}, 1152\ns_add_u32 s{sT+2}, s{sT+2}, s23')
        e(f'v_lshlrev_b32 v9, 4, v{G4}\nv_lshl_add_u32 v8, v{N16}, 6, v9\nv_cmp_gt_u32 vcc, 2, v{N16}\nv_mov_b32 v10, 0x7ff00000')
        e(f'v_mul_u32_u24 v11, 1152, v{N16}\nv_add_u32 v11, v11, v9\nv_cndmask_b32 v8, v10, v8, vcc\nv_mov_b32 v10, 0xfff')
        TG = 60
        for i in range(4): e(f's_lshr_b64 s[{sT}:{sT+1}], s[{sNON}:{sNON+1}], {12*i}\ns_and_b32 s{TG+i}, s{sT}, 0xfff')
        pair_wait(e, 32, [f'ds_read_b128 v[{U}:{U+3}], v7', f'ds_read_b128 v[{U+4}:{U+7}], v7 offset:1024'])
        for k in range(2):
            e(f's_waitcnt lgkmcnt({1-k})')
            for i in range(4 * k, 4 * k + 4): e(f'v_add_f32 v{D+i}, v{U+i}, v{D+8+i}')
            for i in range(4 * k, 4 * k + 4): e(f'v_add_u32 v{D+i}, 0x800, v{D+i}')
            for i in range(4 * k, 4 * k + 4): e(f'v_bfi_b32 v{D+i}, v10, s{TG+(i&3)}, v{D+i}')
            if k == 0: e(f'buffer_store_dwordx4 v[{D}:{D+3}], v{L16}, s[{SWS}:{SWS+3}], s{sT+2} offen sc1')
            else: e(f'buffer_store_dwordx4 v[{D+4}:{D+7}], v8, s[{SWS}:{SWS+3}], s{sT+2} offen offset:1024 sc1')
        ts(e, 4)
        for p in range(2):
            a = acc_main(0, 2 * p, 0)
            for i in range(0, 16, 2):
                o = i >> 3; c = i & 7
                e(f'v_pk_fma_f32 v[{H+i}:{H+i+1}], v[{CSQ+c}:{CSQ+c+1}], v[{NL+2*p}:{NL+2*p+1}], v[{EP}:{EP+1}] op_sel:[0,{o},0] op_sel_hi:[1,{o},0]')
            for i in range(0, 16, 2):
                o = i >> 3
                e(f'v_pk_fma_f32 v[{H+i}:{H+i+1}], v[{a+i}:{a+i+1}], v[{RL+2*p}:{RL+2*p+1}], v[{H+i}:{H+i+1}] op_sel:[0,{o},0] op_sel_hi:[1,{o},1]')
            phi_tail(lambda i: PQ + 8 * p + (i >> 1))
        Z = 232; G = 144; KF = 236; sM = 65
        zload = f'buffer_load_dwordx4 v[{Z}:{Z+3}], v11, s[{SWS}:{SWS+3}], s23 offen offset:1024 sc1'
        p2_prep(e)
        e(f's_lshl_b32 s{sT}, s{sW}, 10\ns_add_u32 s{sT}, s{sT}, {L_KF}\nv_add_u32 v6, s{sT}, v{L16}\nv_xor_b32 v7, 0x400, v6')
        L, Dn, Fin = lab('zpoll'), lab('zdone'), lab('gdone')
        spin_init(e)
        e(f'{L}:')
        e(zload + '\ns_waitcnt vmcnt(0)')
        for i in range(4): e(f'v_xor_b32 v{Z+i}, s{TG+i}, v{Z+i}')
        e(f'v_or3_b32 v3, v{Z}, v{Z+1}, v{Z+2}\nv_or_b32 v3, v3, v{Z+3}\nv_and_b32 v3, v10, v3\nv_cmp_ne_u32 vcc, 0, v3')
        e(f's_cmp_eq_u64 vcc, 0\ns_cbranch_scc1 {Dn}')
        spin_tail(e, L, Fin, OPT['zslp'])
        e(f'{Dn}:')
        ts(e, 5)
        for r in range(16):
            if r % 4 == 0: e(f's_add_u32 s{sT+1}, s23, {r*1152}')
            e(f'buffer_load_dwordx4 v[{G+4*r}:{G+4*r+3}], v{L16}, s[{SWS}:{SWS+3}], s{sT+1} offen offset:{(r&3)*1152} sc1')
        for ror in (1, 2, 4, 8):
            for i in range(4): e(f'v_add_f32_dpp v{Z+i}, v{Z+i}, v{Z+i} row_ror:{ror} row_mask:0xf bank_mask:0xf')
        e(f'v_cvt_pk_bf16_f32 v{KF+2}, v{Z}, v{Z+1}\nv_cvt_pk_bf16_f32 v{KF+3}, v{Z+2}, v{Z+3}\nv_mov_b32 v3, 0')
        for r in range(16):
            b = G + 4 * r
            e(f's_waitcnt vmcnt({15-r})')
            for i in range(4): e(f'v_xor_b32 v{b+i}, s{TG+i}, v{b+i}')
            e(f'v_or3_b32 v3, v3, v{b}, v{b+1}\nv_or3_b32 v3, v3, v{b+2}, v{b+3}')
            if r:
                for i in (0, 2): e(f'v_pk_add_f32 v[{G+i}:{G+i+1}], v[{G+i}:{G+i+1}], v[{b+i}:{b+i+1}]')
        e(f'v_and_b32 v3, v10, v3\nv_cmp_ne_u32 vcc, 0, v3\ns_cmp_eq_u64 vcc, 0\ns_cbranch_scc1 {Fin}')
        spin_tail(e, L, Fin, 1)
        e(f'{Fin}:')
        e(f'v_cvt_pk_bf16_f32 v{KF}, v{G}, v{G+1}\nv_cvt_pk_bf16_f32 v{KF+1}, v{G+2}, v{G+3}\nv_mov_b32 v2, -1')
        e(f'ds_write_b128 v6, v[{KF}:{KF+3}]\nds_write_b32 v{SYV}, v2 offset:48')
        OD = 144; P = 208
        def omf(h):
            for rt in range(4):
                d = OD + 16 * rt + 8 * h; q = PQ + 4 * rt + 2 * h
                e(f'v_mfma_f32_16x16x16_bf16 v[{d+4}:{d+7}], v[{KF+4*h+2}:{KF+4*h+3}], v[{q}:{q+1}], 0')
                e(f'v_mfma_f32_16x16x16_bf16 v[{d}:{d+3}], v[{KF+4*h}:{KF+4*h+1}], v[{q}:{q+1}], 0')
        def ofin(h):
            for rt in range(4):
                d = OD + 16 * rt + 8 * h
                e(f'v_fmamk_f32 v{d+4}, v{d+4}, {fl(LOG2E)}, v{EP}')
            for rt in range(4): e(f'v_rcp_f32 v{OD+16*rt+8*h+4}, v{OD+16*rt+8*h+4}')
            for rt in range(4):
                d = OD + 16 * rt + 8 * h
                for i in (0, 2): e(f'v_pk_mul_f32 v[{d+i}:{d+i+1}], v[{d+i}:{d+i+1}], v[{d+4}:{d+5}] op_sel_hi:[1,0]')
            for rt in range(4):
                d = OD + 16 * rt + 8 * h
                for i in range(2): e(f'v_cvt_pk_bf16_f32 v{P+4*rt+2*h+i}, v{d+2*i}, v{d+2*i+1}')
                if h: e(f'buffer_store_dwordx4 v[{P+4*rt}:{P+4*rt+3}], v{L16B if rt&1 else L16}, s[{SWS}:{SWS+3}], s{sY1 if rt>>1 else sY0} offen sc1')
        omf(0)
        p2_accinit(e)
        ofin(0)
        pair_wait(e, 48, [f'ds_read_b128 v[{KF+4}:{KF+7}], v7'])
        e('s_waitcnt lgkmcnt(0)')
        omf(1)
        ofin(1)
        e(f's_add_u32 s{sFL}, s{sFL}, 4096')
        ts(e, 6)

def compute_p2(e):
    ts(e, 7)
    e('s_waitcnt lgkmcnt(0)\ns_barrier')
    ts(e, 8)
    tokA = {}
    def loadA(n):
        L = [f's_add_u32 s{sT}, s{sAU if n < 14 else sAO}, {UN[n]*2048}']
        for rt in range(2):
            for s in range(2):
                a = A0 + 16 * (n % DU) + 8 * rt + 4 * s
                L.append('s_nop 0' if OPT['p2noa'] else f'buffer_load_dwordx4 v[{a}:{a+3}], v{VA+rt}, s[{SWS}:{SWS+3}], s{sT} offen offset:{s*1024} sc1')
        return L
    t0 = e.vtok()
    for n in range(DU):
        for l in loadA(n): e(l)
        tokA[n] = e.vtok()
    Lf = lab('noflag')
    e(f's_cmp_lg_u32 s{sF}, 0\ns_cbranch_scc1 {Lf}')
    e.wait_vm(t0)
    put_flag(e, sFL, 0); e.vm -= 1
    e(f'{Lf}:')
    LA = 11
    for q in range(72):
        n, ct = q // 4, q % 4
        qq = q + LA
        free = q in (15, 27)
        bar = free or q in (37, 47)
        w = []
        if ct == 0: w.append(f'vmcnt({e.vm - tokA[n]})')
        if free: w.append('lgkmcnt(8)')
        elif q == 72 - LA + 3: w.append('lgkmcnt(0)')
        elif ct == 0 and 12 <= q <= 72 - LA: w.append('lgkmcnt(12)')
        if w: e('s_waitcnt ' + ' '.join(w))
        if bar: e('s_barrier')
        ex = []
        if 12 <= qq < 72:
            c2 = qq % 4
            if qq % 12 < 4:
                r2 = qq // 12
                ex.append(f'v_add_u32 v{AB+c2}, {(RSLOT[r2%3]-RSLOT[(r2-1)%3]) & 0xffffffff}, v{AB+c2}')
            ex += readB(qq)
        la = loadA(n + DU) if (ct == 3 and n + DU < 18) else []
        k = 0
        for i in range(4):
            rt, s = i >> 1, i & 1
            d = ACC + 16 * rt + 4 * ct; a = A0 + 16 * (n % DU) + 8 * rt + 4 * s; b = BR + 8 * (q % 12) + 4 * s
            c = '0' if (n == 0 and s == 0 and rt == 1) else f'v[{d}:{d+3}]'
            e('s_nop 0' if OPT['p2nom'] else f'v_mfma_f32_16x16x32_bf16 v[{d}:{d+3}], v[{b}:{b+3}], v[{a}:{a+3}], {c}')
            nx = -(-(len(ex) - k) // (4 - i))
            for l in ex[k:k + nx]: e(l)
            k += nx
            if la:
                if i == 0: e(la[0])
                e(la[1 + i])
        if la: tokA[n + DU] = e.vtok()
        if q == 64: e(f's_lshl_b32 s{sT+1}, s{sW}, 12\ns_add_u32 s{sT+1}, s{sT+1}, {SCR}')
        if q == 65: e(f'v_add_u32 v2, s{sT+1}, v{L16}')
        if q == 66: e('v_xor_b32 v3, 0x2000, v2')
        if q >= 70: e(f'ds_write_b128 v2, v[{ACC+16+4*(q-70)}:{ACC+19+4*(q-70)}] offset:{(q-70)*1024}')
    ts(e, 9)
    for q in range(2, 4): e(f'ds_write_b128 v2, v[{ACC+16+4*q}:{ACC+19+4*q}] offset:{q*1024}')
    e('s_waitcnt lgkmcnt(0)\ns_barrier')
    for q in range(4): e(f'ds_read_b128 v[{48+4*q}:{51+4*q}], v3 offset:{q*1024}')
    for q in range(4):
        e(f's_waitcnt lgkmcnt({3-q})')
        for i in (4 * q, 4 * q + 2):
            e(f'v_pk_add_f32 v[{ACC+i}:{ACC+i+1}], v[{ACC+i}:{ACC+i+1}], v[{48+i}:{49+i}]')
            e(f'v_cvt_pk_bf16_f32 v{64+i//2}, v{ACC+i}, v{ACC+i+1}')
        if q & 1:
            h = q >> 1
            for i in range(2): e(f'v_permlane16_swap_b32 v{64+4*h+i}, v{64+4*h+2+i}')
            e(f'buffer_store_dwordx4 v[{64+4*h}:{67+4*h}], v{VO}, s[{SOUT}:{SOUT+3}], s{sO} offen offset:{h*64}' + (' sc1' if OPT['osc'] == 1 else ' nt' if OPT['osc'] == 2 else ''))
    if DIAG: e('s_waitcnt vmcnt(0)')
    ts(e, 10)
    ts_dump(e, 11, 4)
    e('s_endpgm')

def main():
    e = Emit()
    e('s_load_dwordx16 s[16:31], s[0:1], 0\ns_load_dwordx4 s[32:35], s[0:1], 64')
    e('s_cmp_ge_u32 s2, 256\ns_cbranch_scc1 L_end')
    if DIAG: e(f'{TSI} s[{sTS}:{sTS+1}]')
    e(f'v_readfirstlane_b32 s{sW}, v0\nv_and_b32 v0, 63, v0')
    e(f's_lshr_b32 s{sLI}, s2, 3\ns_bfe_u32 s{sRB}, s2, 0x10002\ns_lshl_b32 s{sRB}, s{sRB}, 3\ns_lshr_b32 s{sT}, s2, 5\ns_add_u32 s{sRB}, s{sRB}, s{sT}')
    e(f's_and_b32 s{sG}, s2, 3\ns_lshl_b32 s{sG}, s{sG}, 1\ns_and_b32 s{sT+1}, s{sLI}, 1\ns_add_u32 s{sG}, s{sG}, s{sT+1}')
    e(f's_add_u32 s{sT}, s{sT}, s2\ns_and_b32 s{sT}, s{sT}, 3\ns_lshl_b32 s{sT}, s{sT}, 1')
    e(f's_lshr_b32 s{sT+1}, s2, 2\ns_add_u32 s{sT+1}, s{sT+1}, s{sLI}\ns_and_b32 s{sT+1}, s{sT+1}, 1\ns_add_u32 s{sKC}, s{sT}, s{sT+1}')
    if OPT['p2map']:
        e(f's_and_b32 s{sRB2}, s2, 6\ns_lshl_b32 s{sRB2}, s{sRB2}, 2\ns_lshr_b32 s{sT}, s2, 5\ns_add_u32 s{sRB2}, s{sRB2}, s{sT}')
        e(f's_and_b32 s{sCB}, s2, 1\ns_lshl_b32 s{sCB}, s{sCB}, 2\ns_and_b32 s{sT}, s{sLI}, 3\ns_add_u32 s{sCB}, s{sCB}, s{sT}')
    else:
        e(f's_and_b32 s{sRB2}, s2, 7\ns_lshl_b32 s{sRB2}, s{sRB2}, 2\ns_lshr_b32 s{sT}, s2, 6\ns_add_u32 s{sRB2}, s{sRB2}, s{sT}\ns_and_b32 s{sCB}, s{sLI}, 7')
    e(f's_lshr_b32 s{sW}, s{sW}, 6\ns_bfe_u32 s{sF}, s2, 0x10004\ns_lshl_b32 s{sSY}, s{sF}, 11\ns_add_u32 s{sSY}, s{sSY}, {L_SYA}')
    e(f's_cmp_lt_u32 s{sW}, 4\ns_cbranch_scc1 L_helper')
    compute_early(e)
    e('L_helper:')
    helper(e)
    e('L_compute:')
    compute_common(e)
    e(f's_cmp_eq_u32 s{sF}, 0\ns_cbranch_scc1 L_compute_A')
    compute_p1(e, 1)
    e('s_branch L_p2')
    e('L_compute_A:')
    compute_p1(e, 0)
    e('L_p2:')
    compute_p2(e)
    e('L_end:\ns_endpgm\nL_code_end:')
    lines, n = hazard_pass_fast(e.lines)
    hdr = open('cdna_kernels/%s.s.ref' % NAME).read().split('; Override launch')[0]
    out = hdr + f'; @launch grid=(256,1,1) block=(512,1,1) lds={LDS_BYTES}\n'
    out += f'.amdgcn_target "amdgcn-amd-amdhsa--gfx950"\n.text\n.globl {NAME}_kernel\n.p2align 8\n.type {NAME}_kernel,@function\n{NAME}_kernel:\n'
    out += '\n'.join(lines) + '\n'
    out += f'''.section .rodata,"a"
.p2align 6
.amdhsa_kernel {NAME}_kernel
  .amdhsa_next_free_vgpr 256
  .amdhsa_next_free_sgpr 102
  .amdhsa_accum_offset 256
  .amdhsa_group_segment_fixed_size 0
  .amdhsa_kernarg_size 80
  .amdhsa_user_sgpr_count 2
  .amdhsa_user_sgpr_kernarg_segment_ptr 1
  .amdhsa_system_sgpr_workgroup_id_x 1
  .amdhsa_float_denorm_mode_32 3
.end_amdhsa_kernel
'''
    open(sys.argv[1], 'w').write(out)
    print('wrote', sys.argv[1], len(lines), 'lines,', n, 'hazard pads')

main()
```

```python
import sys, struct
from asmlib import *

NAME = 'parallel_sum__linear_attn_block__dense_activation_mish__prompt'
OPT = dict(diag=0, cyc=0, kts2=0, wg=0, ia=0, ib=0,
           pf=0, wpf=1, t3=1, t3c=4, q3=1, nb=0, b2b=5, sp=0, sp0=4, spn=4, thr=0, cpf=1, ld=0, rotp=0, nors=0, ecut=0, kap=1, hole=0, fw=0, fr=0, fl=0, apoll=1, azp=0, cnt=0, nozp=1, w1=4, w2=2, w3=11, zdel=0, p1map=0, asc=1, fsc=1, early=1, p2map=0, burst=2, bsp=6, alldma=0, ysc=1, noepi=0, hp0=0, hp1=0, hp2=0, zslp=4, seq=0, l2pf=0, slp=2, xpos=387, xpos1=640, pl=10, osc=2,
           nomfma=0, nob2=0, nost=0, p2noa=0, p2nom=0, p2now=0)
assert not any(a == 'burst=1' for a in sys.argv)
for a in sys.argv[2:]:
    k, v = a.split('='); assert k in OPT, k; OPT[k] = int(v)
DIAG = OPT['diag']

WS_RS = 0x1000
WS_CS = 0x30000
WS_KV = 0x50000
WS_TS = 0xE0000
WS_YF = 0x100000
WS_Y = 0x200000
FS = 2048 if OPT['hole'] else 1024
YRT = 72 * FS
WS_SIZE = WS_Y + 128 * YRT
SLOT = 45056
L_W = 16384; L_S = 40960
SCR = 147456
L_R = SCR
L_CS = SCR + 1024
L_BT = SCR + 2048
L_KX = SCR + 4096
L_KF = SCR + 2048
L_KF = SCR + 12288
L_SY = 3 * SLOT + 0
LDS_BYTES = 163840
RSLOT = (12 * 8192, 0, 6 * 8192)
L_SYA = SCR + 2048; L_SYF = SCR + 4096

sW, sRB, sG, sF, sKC, sRB2, sCB, sLI = 3, 4, 5, 6, 7, 8, 9, 10
pX, pWQKV, pWO, pW1, pB1, pW2, pOUT, pDBG, pWS = 16, 18, 20, 24, 26, 28, 30, 32, 34
SX, SWs, SW2, SWO, SWS, SOUT, SB1 = 36, 40, 44, 48, 52, 56, 60
sSY = 64
sNON = 68
sT = 70
sSPIN = 79
sNN = 76
sTS = 80

KTS = (16, 18, 20, 24, 26, 28, 30, 32, 34)
SC = {0: '', 1: ' sc1', 2: ' nt', 3: ' sc0'}
def fl(x): return '0x%08x' % struct.unpack('<I', struct.pack('<f', x))[0]
LOG2E = 1.4426950408889634

def srd(e, d, p, n):
    e(f's_mov_b32 s{d}, s{p}\ns_mov_b32 s{d+1}, s{p+1}\ns_mov_b32 s{d+2}, {n}\ns_mov_b32 s{d+3}, 0x20000')

TSI = 's_memtime' if OPT['cyc'] else 's_memrealtime'
def ts(e, k, st=0):
    if OPT['kts2'] == 3 and 2 <= k <= 5 and not st and HELP[0]: return
    if st and OPT['kts2'] != 3: return
    if DIAG: e(f'{TSI} s[{sTS+2*k}:{sTS+2*k+1}]\ns_waitcnt lgkmcnt(0)')

HELP = [False]
_lab = [0]
def lab(p):
    _lab[0] += 1
    return f'L_{p}_{_lab[0]}'

def ts_dump(e, nst, wave_off):
    if not DIAG: return
    if DIAG == 3:
        if wave_off == 0: return
        Ls = lab('dd'); Lw = lab('dw')
        e(f's_cmp_lg_u32 s{sW}, 0\ns_cbranch_scc1 {Ls}\ns_cmp_lg_u32 s2, {OPT["wg"]}\ns_cbranch_scc1 {Ls}')
        e(f's_sub_u32 s{sT}, s{sTS+2*OPT["ib"]}, s{sTS+2*OPT["ia"]}\ns_min_u32 s{sT}, s{sT}, 10000\ns_mul_i32 s{sT}, s{sT}, 20')
        e(f'{Lw}:')
        e(f's_memrealtime s[72:73]\ns_waitcnt lgkmcnt(0)\ns_sub_u32 s72, s72, s{sTS+2*(nst-1)}\ns_cmp_lt_u32 s72, s{sT}\ns_cbranch_scc1 {Lw}')
        e(f'{Ls}:')
        return
    e('v_mov_b32 v1, 0')
    if wave_off == 0:
        for c in range(9): e(f'v_writelane_b32 v1, s{KTS[c]}, {7+c}')
    for k in range(nst): e(f'v_writelane_b32 v1, s{sTS+2*k}, {k}')
    e(f's_lshl_b32 s{sT}, s2, 3\ns_add_u32 s{sT}, s{sT}, s{sW}\ns_add_u32 s{sT}, s{sT}, {wave_off}\ns_lshl_b32 s{sT}, s{sT}, 6\ns_add_u32 s{sT}, s{sT}, {WS_TS}')
    e('v_lshlrev_b32 v2, 2, v0\ns_mov_b64 exec, 0xffff')
    e(f'buffer_store_dword v1, v2, s[{SWS}:{SWS+3}], s{sT} offen\ns_mov_b64 exec, -1')

def spin_init(e, n=200000): e(f's_mov_b32 s{sSPIN}, {n}')
def spin_tail(e, L, D, slp=None):
    slp = OPT['slp'] if slp is None else slp
    e(f's_sub_u32 s{sSPIN}, s{sSPIN}, 1\ns_cmp_eq_u32 s{sSPIN}, 0\ns_cbranch_scc1 {D}')
    if slp: e(f's_sleep {slp}')
    e(f's_branch {L}')

PF = 40
sFP = 66
FSTR = 128 if OPT['fl'] else 4
FPH = 16 * 128 if OPT['fl'] else 128
def poll(e, phase, PF):
    L, D = lab('poll'), lab('pdone')
    spin_init(e)
    e(f'{L}:')
    if OPT['fr'] == 0:
        if OPT['fl']:
            for i in range(16): e(f's_load_dword s{PF+i}, s[{sFP}:{sFP+1}], {phase*FPH+i*128} glc')
            e('s_waitcnt lgkmcnt(0)')
        else: e(f's_load_dwordx16 s[{PF}:{PF+15}], s[{sFP}:{sFP+1}], {phase*128} glc\ns_waitcnt lgkmcnt(0)')
        for i in range(8): e(f's_xor_b64 s[{PF+2*i}:{PF+2*i+1}], s[{PF+2*i}:{PF+2*i+1}], s[{sNN}:{sNN+1}]')
        for st in (2, 4, 8):
            for i in range(0, 16, 2 * st): e(f's_or_b64 s[{PF+i}:{PF+i+1}], s[{PF+i}:{PF+i+1}], s[{PF+i+st}:{PF+i+st+1}]')
    else:
        e(f'v_mov_b32 v6, 0\nv_mul_u32_u24 v4, {FSTR}, v0\nv_add_u32 v4, {phase*FPH}, v4\ns_mov_b64 exec, 0xffff')
        e(f'global_atomic_or v6, v4, v6, s[{sFP}:{sFP+1}] sc0 sc1\ns_mov_b64 exec, -1\ns_waitcnt vmcnt(0)')
        e(f'v_cmp_eq_u32 vcc, s{sNON}, v6\ns_andn2_b32 s{sT}, 0xffff, vcc_lo')
    e(f's_cbranch_scc0 {D}')
    spin_tail(e, L, D)
    e(f'{D}:')

FV = 12
def put_flag(e, phase):
    if OPT['fw'] == 0: e(f's_atomic_swap s{sNON}, s[{sFP}:{sFP+1}], {phase*FPH}')
    elif OPT['fl']: e(f'v_lshlrev_b32 v2, 2, v0\nv_add_u32 v2, {phase*FPH}, v2\ns_mov_b32 exec_hi, 0\nglobal_store_dword v2, v{FV}, s[{sFP}:{sFP+1}] sc1\ns_mov_b64 exec, -1')
    else: e(f'v_mov_b32 v2, {phase*FPH}\ns_mov_b64 exec, 1\nglobal_store_dword v2, v{FV}, s[{sFP}:{sFP+1}] sc1\ns_mov_b64 exec, -1')

def unit_ref(n):
    return (n & 3, n >> 2) if n < 12 else (4 + n - 12, 0) if n < 14 else (6 + n - 14, 0)
def unit_bases(e, b2, bo, scale, R):
    for j in range(4):
        e(f's_add_u32 s{sT}, s{sCB}, {j}\ns_and_b32 s{sT}, s{sT}, 3' if OPT['rotp'] else f's_mov_b32 s{sT}, {j}')
        e(f's_mul_i32 s{R[6+j]}, s{sT}, {scale}\ns_add_u32 s{R[6+j]}, s{R[6+j]}, s{bo}')
        e(f's_lshr_b32 s{sT+1}, s{sT}, 1\ns_and_b32 s{sT}, s{sT}, 1')
        if j < 2: e(f's_mul_i32 s{R[4+j]}, s{sT}, {7*scale}\ns_add_u32 s{R[4+j]}, s{R[4+j]}, s{b2}\ns_add_u32 s{R[4+j]}, s{R[4+j]}, {3*scale}')
        e(f's_mul_i32 s{sT+1}, s{sT+1}, {7*scale}\ns_mul_i32 s{sT}, s{sT}, {4*scale}\ns_add_u32 s{R[j]}, s{sT}, s{sT+1}\ns_add_u32 s{R[j]}, s{R[j]}, s{b2}')
UB = (56, 57, 58, 59, 94, 95, 96, 97, 98, 99)
UC = (40, 41, 42, 43, 44, 45, 46, 47, 48, 49)

def helper(e):
    vX, vWo, vS, vB, vL16, vBuf = 2, 6, 8, 9, 11, 112
    sXB, sWB, sHX, sHW, sHS = 11, 12, 13, 14, 15
    sUST, sSD, sCK, sL, sB2, sK0, sCSB, sRSB = 23, 76, 77, 78, 60, 61, 62, 63
    e('v_lshrrev_b32 v40, 3, v0\nv_and_b32 v41, 7, v0\nv_lshrrev_b32 v42, 4, v0')
    e(f'v_xor_b32 v43, v41, v42\nv_lshlrev_b32 v43, 4, v43\nv_lshl_add_u32 v{vX}, v40, 10, v43')
    e(f'v_xor_b32 v{vX+1}, 64, v{vX}\nv_add_u32 v{vX+1}, {8192-1024}, v{vX+1}')
    e(f'v_add_u32 v{vX+2}, {2*(8192-1024)}, v{vX}\nv_add_u32 v{vX+3}, {2*(8192-1024)}, v{vX+1}')
    e(f's_lshl_b32 s{sHX}, s{sW}, 12\ns_lshl_b32 s{sXB}, s{sRB}, 17\ns_lshl_b32 s{sT}, s{sW}, 15\ns_add_u32 s{sXB}, s{sXB}, s{sT}')
    e(f's_lshl_b32 s{sT+1}, s{sKC}, 7\ns_add_u32 s{sT+1}, s{sT+1}, s{sXB}\ns_mov_b32 m0, s{sHX}')
    e(f's_mov_b32 s{SX+2}, {2048*1024}\ns_mov_b32 s{SX+3}, 0x20000\ns_mov_b32 s{SWs+3}, 0x20000')
    e(f's_lshr_b32 s{sT}, s{sG}, 1\ns_mul_i32 s{sT}, s{sT}, 896\ns_and_b32 s{sT+2}, s{sG}, 1\ns_lshl_b32 s{sT+3}, s{sT+2}, 9\ns_add_u32 s{sT}, s{sT}, s{sT+3}')
    e(f's_mul_i32 s{sSD}, s{sT+2}, -448\ns_add_u32 s{sSD}, s{sSD}, 384\ns_lshl_b32 s{sT+2}, s{sG}, 7')
    e(f's_lshl_b32 s{sT+3}, s{sF}, 9\ns_add_u32 s{sT+3}, s{sT+3}, 3072')
    e(f's_lshl_b32 s{sCK}, s{sT+3}, 6\ns_lshl_b32 s{SWs+2}, s{sT+3}, 9\ns_mul_i32 s{sWB}, s{sT+3}, s{sW}\ns_lshl_b32 s{sWB}, s{sWB}, 4')
    e('v_and_b32 v43, 1, v42\nv_lshlrev_b32 v43, 1, v43\nv_xor_b32 v43, v41, v43\nv_lshlrev_b32 v43, 4, v43')
    e(f'v_mad_u32_u24 v{vWo}, v40, s{sT+3}, v43\ns_lshl_b32 s{sT+4}, s{sT+3}, 3\ns_sub_u32 s{sT+4}, s{sT+4}, 1024')
    e(f'v_xor_b32 v{vWo+1}, 64, v{vWo}\nv_add_u32 v{vWo+1}, s{sT+4}, v{vWo+1}')
    e('v_lshrrev_b32 v44, 2, v0\nv_and_b32 v45, 3, v0\nv_and_b32 v46, 2, v42\nv_xor_b32 v45, v45, v46\nv_lshlrev_b32 v45, 4, v45')
    e(f'v_mad_u32_u24 v{vS}, v44, s{sT+3}, v45')
    e(f's_lshl_b32 s{sHW}, s{sW}, 11\ns_lshl_b32 s{sHS}, s{sW}, 10\ns_add_u32 s{sHS}, s{sHS}, {L_S}')
    e(f's_cmp_lg_u32 s{sF}, 0\ns_cselect_b32 s{sT}, s{sT}, s{sT+2}\ns_add_u32 s{sWB}, s{sWB}, s{sT}\ns_mov_b32 s{sL}, 0\ns_mov_b32 s{sK0}, s{sKC}')
    e('s_waitcnt lgkmcnt(0)')
    ts(e, 2, 1)
    e(f's_mov_b32 s{SX}, s{pX}\ns_mov_b32 s{SX+1}, s{pX+1}')

    def chunk_groups(first=False):
        g = []
        pre = [] if first else [f's_lshl_b32 s{sT+1}, s{sKC}, 7', f's_add_u32 m0, s{sL}, s{sHX}', f's_add_u32 s{sT+1}, s{sT+1}, s{sXB}']
        for i in range(4):
            g.append((pre if i == 0 else []) + [f'buffer_load_dwordx4 v{vX+i}, s[{SX}:{SX+3}], s{sT+1} offen offset:{i*1024} lds'])
        if first:
            g.append([f's_cmp_lg_u32 s{sF}, 0', f's_cselect_b32 s{SWs}, s{pW1}, s{pWQKV}', f's_cselect_b32 s{SWs+1}, s{pW1+1}, s{pWQKV+1}',
                      f's_movk_i32 s{sUST}, 1024', f's_cselect_b32 s{sUST}, 128, s{sUST}'])
        for u in range(3):
            if u == 0: pre = [f's_add_u32 s{sT+4}, s{sL}, s{sHW}', f's_mul_i32 s{sT+2}, s{sKC}, s{sCK}', f's_add_u32 m0, s{sT+4}, {L_W}', f's_add_u32 s{sT+2}, s{sT+2}, s{sWB}']
            else: pre = [f's_add_u32 m0, s{sT+4}, {L_W+u*8192}', f's_add_u32 s{sT+3}, s{sT+2 if u == 1 else sT+3}, s{sUST}']
            so = sT + 2 if u == 0 else sT + 3
            for i in range(2):
                g.append((pre if i == 0 else []) + [f'buffer_load_dwordx4 v{vWo+i}, s[{SWs}:{SWs+3}], s{so} offen offset:{i*1024} lds'])
        Ls = lab('nostrip')
        g.append([f's_cmp_eq_u32 s{sF}, 0', f's_cbranch_scc1 {Ls}', f's_add_u32 m0, s{sL}, s{sHS}', f's_add_u32 s{sT+3}, s{sT+2}, s{sSD}',
                  f'buffer_load_dwordx4 v{vS}, s[{SWs}:{SWs+3}], s{sT+3} offen lds', f'{Ls}:',
                  f's_add_u32 s{sKC}, s{sKC}, 1', f's_and_b32 s{sKC}, s{sKC}, 7', f's_add_u32 s{sL}, s{sL}, {SLOT}',
                  f's_cmp_eq_u32 s{sL}, {3*SLOT}', f's_cselect_b32 s{sL}, 0, s{sL}'])
        return g

    def b2_groups(pos, dma=False):
        n, kh = 3 * (pos // 6) + pos % 3, (pos % 6) // 3
        S = SW2 if n < 14 else SWO
        j, c = unit_ref(n)
        off = (c + kh * (14 if n < 14 else 4)) * 65536
        g = []
        for i in range(2):
            pre = [f's_add_u32 s{sT+4}, s{UB[j]}, {off}'] if i == 0 else []
            if pos < 18 or dma:
                if i == 0: pre = [f's_add_u32 m0, s{sHW}, {RSLOT[(pos//6)%3]+(pos%6)*8192}'] + pre
                g.append(pre + [f'buffer_load_dwordx4 v{vB+i}, s[{S}:{S+3}], s{sT+4} offen offset:{i*1024} lds'])
            else:
                r = vBuf + ((pos - 18) * 2 + i) * 4
                g.append(pre + [f'buffer_load_dwordx4 v[{r}:{r+3}], v{vB+i}, s[{S}:{S+3}], s{sT+4} offen offset:{i*1024}'])
        if OPT['nob2']: return []
        return g

    def issue(groups):
        for g in groups:
            for l in g:
                e(l)
                if l.startswith(f'buffer_load_dwordx4 v{vS},'): e.vm -= 1
    tok = {}
    for c in ((0,) if OPT['early'] else (0, 1)):
        issue(chunk_groups(c == 0)); tok[c] = e.vtok()
    ts(e, 3, 1)
    srd(e, SW2, pW2, 1792 * 1024); srd(e, SWO, pWO, 512 * 1024); srd(e, SWS, pWS, WS_SIZE)
    e(f'v_lshlrev_b32 v43, 1, v42\nv_xor_b32 v43, v41, v43\nv_lshlrev_b32 v43, 4, v43')
    e(f'v_lshl_add_u32 v{vB}, v40, 10, v43\nv_add_u32 v{vB+1}, {8192-1024}, v{vB}')
    e(f's_and_b32 s{sT}, s{sRB2}, 1\ns_xor_b32 s{sT}, s{sT}, s{sW}\ns_lshl_b32 s{sB2}, s{sT}, 14\ns_lshl_b32 s{sT}, s{sCB}, 7\ns_add_u32 s{sB2}, s{sB2}, s{sT}')
    e(f'v_lshlrev_b32 v{vL16}, 4, v0')
    e(f's_mul_i32 s{sT}, s{sRB2}, {4*FPH}\ns_add_u32 s{sT}, s{sT}, {WS_YF}\ns_add_u32 s{sFP}, s{pWS}, s{sT}\ns_addc_u32 s{sFP+1}, s{pWS+1}, 0')
    unit_bases(e, sB2, sB2, 65536, UB)
    vN, vT, vTG, vRG, vRW, vSY = 12, 13, 14, 15, 16, 17
    e(f's_lshl_b32 s{sT}, s{sW}, 8\nv_lshl_add_u32 v{vN}, v0, 2, s{sT}\nv_add_u32 v{vT}, {L_CS}, v{vN}')
    e(f's_lshl_b32 s{sCSB}, s{sF}, 3\ns_add_u32 s{sCSB}, s{sCSB}, s{sG}\ns_lshl_b32 s{sCSB}, s{sCSB}, 13\ns_add_u32 s{sCSB}, s{sCSB}, {WS_CS}')
    e(f'v_bfe_u32 v44, v0, 1, 4\nv_and_b32 v45, 1, v0\nv_lshlrev_b32 v45, 4, v45\nv_lshl_add_u32 v{vRG}, v44, 7, v45')
    e(f's_lshl_b32 s{sRSB}, s{sRB}, 13\ns_add_u32 s{sRSB}, s{sRSB}, s{sHW}\ns_add_u32 s{sRSB}, s{sRSB}, {WS_RS}')
    e(f'v_and_b32 v44, 31, v0\ns_lshl_b32 s{sT}, s{sW}, 7\ns_add_u32 s{sT}, s{sT}, {L_R}\nv_lshl_add_u32 v{vRW}, v44, 2, s{sT}')
    e(f'v_mov_b32 v{vSY}, s{sSY}\nv_and_b32 v45, 3, v0\nv_lshlrev_b32 v45, 3, v45')
    def cpf():
        if not OPT['cpf']: return
        Lq = lab('pc')
        e(f's_getpc_b64 s[{sT}:{sT+1}]')
        e(f'{Lq}:')
        e(f's_lshl_b32 s{sT+2}, s{sLI}, 2\ns_add_u32 s{sT+2}, s{sT+2}, s{sW}\ns_mul_i32 s{sT+2}, s{sT+2}, 192\ns_min_u32 s{sT+2}, s{sT+2}, L_code_end-{Lq}-132')
        e(f's_add_u32 s{sT}, s{sT}, s{sT+2}\ns_addc_u32 s{sT+1}, s{sT+1}, 0')
        for k in range(3): e(f's_load_dword s65, s[{sT}:{sT+1}], {k*64}')
    if OPT['l2pf']:
        e(f's_lshl_b32 s{sT}, s{sLI}, 2\ns_add_u32 s{sT}, s{sT}, s{sW}\ns_mul_i32 s{sT+1}, s{sT}, 14\nv_min_u32 v50, 13, v0\nv_add_u32 v50, s{sT+1}, v50')
        e(f'v_lshrrev_b32 v51, 2, v50\nv_and_b32 v50, 3, v50\nv_lshlrev_b32 v50, 7, v50\nv_lshl_add_u32 v50, v51, 10, v50')
        e(f'v_and_b32 v51, 3, v0\nv_lshlrev_b32 v51, 7, v51\ns_lshl_b32 s{sT}, s{sT}, 10\nv_add_u32 v51, s{sT}, v51')
    def l2pf(k):
        if not OPT['l2pf']: return
        e(f's_lshr_b32 s{sT}, s2, 1\ns_add_u32 s{sT}, s{sT}, {k}\ns_and_b32 s{sT}, s{sT}, 3\ns_and_b32 s{sT+1}, s2, 1\ns_lshl_b32 s{sT+1}, s{sT+1}, 9')
        e(f's_mul_i32 s{sT+2}, s{sT}, {448*1024}\ns_add_u32 s{sT+2}, s{sT+2}, s{sT+1}\ns_lshl_b32 s{sT}, s{sT}, 17\ns_add_u32 s{sT}, s{sT}, s{sT+1}')
        e(f'buffer_load_dword v56, v50, s[{SW2}:{SW2+3}], s{sT+2} offen\nbuffer_load_dword v56, v51, s[{SWO}:{SWO+3}], s{sT} offen')
    def kts(c, two=0):
        if DIAG == 1 and two == OPT['kts2']: e(f'{TSI} s[{KTS[c]}:{KTS[c]+1}]' + ('\ns_waitcnt lgkmcnt(0)' if two == 1 else ''))
    dq = list(range(18)); rq = list(range(18, 36))
    def take(q, n):
        g = []
        for _ in range(min(n, len(q))): g += b2_groups(q.pop(0))
        return g
    def gather_loads():
        for k in range(8): e(f'buffer_load_dword v{20+k}, v{vN}, s[{SWS}:{SWS+3}], s{sCSB if k < 4 else sT+5} offen offset:{(k&3)*1024} sc1')
        e(f'buffer_load_dwordx4 v[28:31], v{vRG}, s[{SWS}:{SWS+3}], s{sRSB} offen sc1')
    ts(e, 4, 1)
    if OPT['kts2'] == 3 and OPT['cnt']:
        e('s_waitcnt vmcnt(0)'); ts(e, 5, 1)
    if OPT['early']:
        issue(chunk_groups()); tok[1] = e.vtok()
    ts(e, 1)
    if OPT['hp0']: e(f's_setprio {OPT["hp0"]}')
    for c in range(8):
        e.wait_vm(tok[c])
        if c == 7: kts(3, 2)
        e('s_barrier')
        kts(c)
        if c == 6: kts(0, 2)
        if c == 7: kts(4, 2)
        if c == 0:
            e(f'ds_read_b64 v[18:19], v{vSY}')
            if OPT['wpf']:
                e(f's_lshl_b32 s{sT}, s2, 2\ns_add_u32 s{sT}, s{sT}, s{sW}\ns_mul_i32 s{sT+1}, s{sT}, 1792\ns_lshl_b32 s{sT}, s{sT}, 9')
                e(f'buffer_load_dwordx4 v[56:59], v{vL16}, s[{SW2}:{SW2+3}], s{sT+1} offen')
                e(f'buffer_load_dwordx4 v[56:59], v{vL16}, s[{SW2}:{SW2+3}], s{sT+1} offen offset:768')
                e(f'v_min_u32 v55, 496, v{vL16}\nbuffer_load_dwordx4 v[56:59], v55, s[{SWO}:{SWO+3}], s{sT} offen')
        if OPT['t3'] and c == OPT['t3c']:
            e(f's_lshl_b32 s{sT}, s{sLI}, 2\ns_add_u32 s{sT}, s{sT}, s{sW}\ns_mul_i32 s{sT+1}, s{sT}, {14*1024}\ns_lshl_b32 s{sT}, s{sT}, 12')
            e(f'v_min_u32 v55, 13, v0\nv_lshlrev_b32 v55, 10, v55\nbuffer_load_dword v56, v55, s[{SW2}:{SW2+3}], s{sT+1} offen offset:384')
            e(f'v_min_u32 v55, 0xc00, v55\nbuffer_load_dword v56, v55, s[{SWO}:{SWO+3}], s{sT} offen offset:384')
        if c == 1: e(f'ds_read_b32 v20, v{vT}')
        if c == 6:
            e(f's_add_u32 s{sT+5}, s{sCSB}, 4096')
            gather_loads(); tg = e.vtok()
        if c == 7:
            L, Dn = lab('xchk'), lab('xdone')
            spin_init(e)
            e.wait_vm(tg)
            e(f'{L}:')
            for i in range(8): e(f'v_xor_b32 v{20+i}, v{vTG}, v{20+i}')
            e('v_or3_b32 v32, v20, v21, v22\nv_or3_b32 v32, v32, v23, v24\nv_or3_b32 v32, v32, v25, v26\nv_or_b32 v32, v32, v27\nv_and_b32 v32, 0xff, v32')
            e(f'v_xor_b32 v30, v18, v30\nv_xor_b32 v31, v19, v31\nv_or3_b32 v32, v32, v30, v31\nv_cmp_ne_u32 vcc, 0, v32')
            e(f's_cmp_eq_u64 vcc, 0\ns_cbranch_scc1 {Dn}')
            e(f's_sub_u32 s{sSPIN}, s{sSPIN}, 1\ns_cmp_eq_u32 s{sSPIN}, 0\ns_cbranch_scc1 {Dn}\ns_sleep 2')
            vm0 = e.vm
            gather_loads(); e.vm = vm0
            e(f's_waitcnt vmcnt(0)\ns_branch {L}')
            e(f'{Dn}:')
            e(f'ds_write_b32 v{vRW}, v28\nds_write_b32 v{vRW}, v29 offset:512')
            kts(2, 2)
            for a, b in ((20, 21), (22, 23), (24, 25), (26, 27), (20, 22), (24, 26), (20, 24)): e(f'v_add_f32 v{a}, v{a}, v{b}')
            e(f'ds_write_b32 v{vT}, v20')
        if c + 2 <= 7:
            if c == 0: l2pf(0)
            issue(chunk_groups()); tok[c + 2] = e.vtok()
            if c in (2, 3, 4): l2pf(c - 1)
            if c >= 2: issue(take(rq, OPT['nb']))
        elif c == 6:
            issue(take(dq, 6)); tr0 = e.vtok(); kts(1, 2)
        else:
            issue(take(dq, OPT['b2b'])); kts(5, 2)
        if c == 0:
            e(f's_waitcnt lgkmcnt(0)\nv_readfirstlane_b32 s{sNON}, v18\nv_readfirstlane_b32 s{sNON+1}, v19\nv_bfe_u32 v{vTG}, v18, v45, 8')
        if c == 1:
            e(f's_lshl_b32 s{sT}, s{sK0}, 10\ns_add_u32 s{sT}, s{sT}, s{sCSB}\ns_movk_i32 s{sT+1}, 0xff\ns_waitcnt lgkmcnt(0)')
            e(f'v_add_u32 v20, 0x80, v20\nv_bfi_b32 v20, s{sT+1}, v{vTG}, v20')
            e(f'buffer_store_dword v20, v{vN}, s[{SWS}:{SWS+3}], s{sT} offen sc1')
        if c == 4: cpf()
    kts(6, 2)
    e(f's_waitcnt vmcnt({e.vm - tr0}) lgkmcnt(0)')
    kts(7, 2)
    e('s_barrier')
    kts(8); kts(8, 2)
    ts(e, 2)
    e(f's_setprio {OPT["hp1"]}')
    late = [p for p in rq if p >= 36 - OPT['ld']]; rq = [p for p in rq if p not in late]
    def w0(fn):
        Lo = lab('w0'); vm0 = e.vm
        e(f's_cmp_lg_u32 s{sW}, 0\ns_cbranch_scc1 {Lo}')
        fn(Lo)
        e(f'{Lo}:'); e.vm = vm0
    e(f's_mov_b32 s{sNN}, s{sNON}\ns_mov_b32 s{sNN+1}, s{sNON}')
    nD = 2 * len(dq); tD = e.vtok()
    for k, g in enumerate(take(dq, 18) + take(rq, 18)):
        for l in g: e(l)
        if k + 1 == nD: tD = e.vtok()
        if OPT['thr']: e(f's_waitcnt vmcnt({OPT["thr"]})')
        elif k % 16 == 15: e('s_waitcnt vmcnt(40)')
    ts(e, 3)
    e(f's_setprio {OPT["hp2"]}')
    e(f'v_add_u32 v{vL16}, s{sHW}, v{vL16}')
    for r in range(3): e(f'v_add_u32 v{20+r}, {RSLOT[r]}, v{vL16}')
    def refill(k0, k1):
        for k in range(k0, k1):
            if 18 + k // 2 in late:
                for l in b2_groups(18 + k // 2, True)[k & 1]: e(l)
                continue
            if OPT['p2now']: continue
            b = vBuf + k * 4; r, kk = k // 12, k % 12
            e(f'ds_write_b128 v{20+r}, v[{b}:{b+3}] offset:{(kk//2)*8192+(kk&1)*1024}')
    e.wait_vm(tD)
    ts(e, 4)
    w0(lambda Lo: poll(e, 0, 36))
    kts(0, 1)
    e('s_barrier')
    kts(1, 1)
    e(f's_waitcnt vmcnt({max(0, 24 - 2 * OPT["ld"])})')
    refill(0, 12)
    w0(lambda Lo: poll(e, 1, 36))
    e('s_barrier')
    kts(2, 1)
    if OPT['ld'] <= 12: e('s_waitcnt vmcnt(0)')
    e('s_barrier')
    kts(3, 1)
    assert OPT['ld'] == 0
    n1 = 12 + OPT['w1']; n2 = n1 + OPT['w2']; n3 = n2 + OPT['w3']
    assert n2 <= 24 <= n3 <= 36
    lA = e.ltok()
    refill(12, n1)
    w0(lambda Lo: poll(e, 2, 36))
    e.wait_lg(lA)
    e('s_barrier')
    kts(4, 1)
    refill(n1, n2)
    e('s_barrier')
    kts(5, 1)
    refill(n2, 24); lB = e.ltok()
    refill(24, n3)
    def f(Lo):
        poll(e, 3, 36)
        e(f's_cmp_lg_u32 s2, 0\ns_cbranch_scc1 {Lo}')
        e(f's_mov_b64 exec, 1\nbuffer_store_dwordx2 v[18:19], off, s[{SWS}:{SWS+3}], 0 sc1\ns_mov_b64 exec, -1')
    w0(f)
    e.wait_lg(lB)
    kts(6, 1)
    e('s_barrier')
    kts(7, 1)
    refill(n3, 36)
    e('s_waitcnt lgkmcnt(0)')
    ts(e, 5)
    e('s_barrier')
    kts(8, 1)
    ts(e, 6)
    ts_dump(e, 7, 0)
    e('s_endpgm')

ACC = 16
XF = 128; WR = 160; CS = 192; SEL = 208; AX = 212; AW = 216; AS = 220; CSW = 224; L16 = 225; L16B = 226; G4 = 227; N16 = 228; SYV = 229
sRH, sCH = 11, 12
sC0, sCS_ = 65, 78
LY = 14
BR = 48; A0 = BR + 96; AB = 244; VA = 248; VO = 1; XR = 32
sAU, sAO, sO, sV0, sV1, sTR, sTC, sKV, sKR = 16, 17, 18, 19, 20, 21, 24, 25, 26
TG = 28

def compute_early(e):
    e(f's_sub_u32 s{sW}, s{sW}, 4\ns_setprio 1\ns_and_b32 s{sRH}, s{sW}, 1\ns_lshr_b32 s{sCH}, s{sW}, 1')
    e(f'v_lshlrev_b32 v{L16}, 4, v0\nv_and_b32 v{N16}, 15, v0')
    e(f's_lshl_b32 s{sT}, s{sF}, 3\ns_add_u32 s{sT}, s{sT}, s{sG}\ns_lshl_b32 s{sT}, s{sT}, 2\ns_add_u32 s{sT}, s{sT}, s{sW}')
    e(f's_lshl_b32 s{sT+1}, s{sRB}, 6\ns_add_u32 s13, s{sT}, s{sT+1}\ns_lshl_b32 s{sT+1}, s13, 11')
    e(f's_mov_b32 s{SX+2}, {2048*1024}\ns_mov_b32 s{SX+3}, 0x20000\ns_mov_b32 s{SB1+2}, {1792*2}\ns_mov_b32 s{SB1+3}, 0x20000')
    e(f's_lshr_b32 s{sT}, s{sG}, 1\ns_mul_i32 s{sT}, s{sT}, 448\ns_and_b32 s{sT+2}, s{sG}, 1')
    e(f's_lshl_b32 s{sC0}, s{sT+2}, 8\ns_add_u32 s{sC0}, s{sC0}, s{sT}\ns_lshl_b32 s{sT+3}, s{sCH}, 5\ns_add_u32 s{sC0}, s{sC0}, s{sT+3}')
    e(f's_lshl_b32 s{sCS_}, s{sT+2}, 5\ns_add_u32 s{sCS_}, s{sCS_}, s{sT}\ns_add_u32 s{sCS_}, s{sCS_}, 192')
    e(f'v_bfe_u32 v5, v0, 4, 1\nv_xor_b32 v5, s{sRH}, v5\nv_lshl_add_u32 v2, v5, 4, v{N16}\nv_lshrrev_b32 v3, 5, v0')
    e(f'v_lshl_add_u32 v4, v3, 6, v2\nv_add_lshl_u32 v4, v4, s{sC0}, 1')
    e(f's_sub_u32 s{sT}, s{sCS_}, s{sC0}\ns_sub_u32 s{sT}, s{sT}, 128\nv_mul_lo_u32 v6, v3, s{sT}\nv_add3_u32 v6, v6, v2, s{sC0}\nv_add_u32 v6, 128, v6\nv_lshlrev_b32 v6, 1, v6')
    e('s_waitcnt lgkmcnt(0)')
    e(f's_mov_b32 s{SX}, s{pX}\ns_mov_b32 s{SX+1}, s{pX+1}')
    if OPT['nors']: e(f's_mov_b32 s{sT+1}, 0x7ff00000')
    for k in range(2): e(f'buffer_load_dwordx4 v[{XF+4*k}:{XF+4*k+3}], v{L16}, s[{SX}:{SX+3}], s{sT+1} offen offset:{k*1024}')
    e(f's_load_dwordx2 s[{sNON}:{sNON+1}], s[{pWS}:{pWS+1}], 0')
    e(f's_mov_b32 s{SB1}, s{pB1}\ns_mov_b32 s{SB1+1}, s{pB1+1}')
    e(f'buffer_load_ushort v8, v4, s[{SB1}:{SB1+3}], 0 offen\nbuffer_load_ushort v9, v6, s[{SB1}:{SB1+3}], 0 offen')
    e('s_branch L_compute')

def compute_common(e):
    srd(e, SWs, pWQKV, 512 * 3072)
    Lp = lab('pf_skip'); Lq = lab('pc'); Lr = lab('pf_done')
    e(f's_cmp_lg_u32 s{sW}, 1\ns_cbranch_scc1 {Lp}')
    e(f's_getpc_b64 s[{sT+2}:{sT+3}]')
    e(f'{Lq}:')
    e(f's_sub_u32 s{sT+2}, s{sT+2}, {Lq}-{NAME}_kernel\ns_subb_u32 s{sT+3}, s{sT+3}, 0')
    e(f's_lshl_b32 s{sT+4}, s{sLI}, 10\nv_add_u32 v2, s{sT+4}, v{L16}\nv_min_u32 v2, ' + (f'L_code_end-{NAME}_kernel-16' if OPT['pf'] else '0') + ', v2')
    e(f'global_load_dwordx4 v[252:255], v2, s[{sT+2}:{sT+3}]\ns_branch {Lr}')
    e(f'{Lp}:')
    e(f's_and_b32 s{sT}, s2, 3\ns_xor_b32 s{sT}, s{sT}, 1\ns_or_b32 s{sT}, s{sT}, s{sW}\ns_mul_i32 s{sT+1}, s{sLI}, {48*1024}')
    if OPT['p1map']: e(f's_mov_b32 s{sT}, s{sW}')
    e(f's_cmp_eq_u32 s{sT}, {0 if OPT["q3"] else 99}\ns_cselect_b32 s{sT+1}, s{sT+1}, 0x7ff00000\nv_min_u32 v2, 47, v0\nv_lshlrev_b32 v2, 10, v2')
    e(f'buffer_load_dword v252, v2, s[{SWs}:{SWs+3}], s{sT+1} offen offset:384')
    e(f'{Lr}:')
    if OPT['hole']: e(f'v_add_u32 v2, 8, v0\nv_and_b32 v2, 64, v2\nv_lshl_add_u32 v2, v2, 1, v{L16}\nv_add_u32 v{LY}, 512, v2')
    else: e(f'v_mov_b32 v{LY}, v{L16}')
    e(f'v_lshrrev_b32 v{G4}, 4, v0\nv_add_u32 v{L16B}, {YRT}, v{LY}')
    srd(e, SWS, pWS, WS_SIZE); srd(e, SOUT, pOUT, 2048 * 1024)
    e(f's_lshl_b32 s{sT}, s{sCH}, 2\nv_bfe_u32 v2, v0, 1, 3\nv_xor_b32 v2, v{G4}, v2\nv_xor_b32 v2, s{sT}, v2')
    e(f's_lshl_b32 s{sT}, s{sRH}, 13\ns_lshl_b32 s{sT+1}, s{sCH}, 12\ns_add_u32 s{sT}, s{sT}, s{sT+1}')
    e(f'v_lshlrev_b32 v3, 7, v{N16}\nv_add_u32 v3, s{sT}, v3\nv_lshl_add_u32 v{AX}, v2, 4, v3')
    e(f'v_xor_b32 v{AX+1}, 0x1000, v{AX}\nv_xor_b32 v{AX+2}, 64, v{AX}\nv_xor_b32 v{AX+3}, 64, v{AX+1}')
    e(f'v_bfe_u32 v2, v0, 2, 2\nv_lshl_add_u32 v2, v{G4}, 3, v2\ns_lshl_b32 s{sT}, s{sCH}, 5\nv_add_u32 v2, s{sT}, v2')
    e('v_and_b32 v4, 3, v0\nv_cmp_eq_u32 vcc, 0, v4\nv_lshlrev_b32 v4, 3, v4\nv_bfe_u32 v7, v0, 3, 2')
    e(f'v_xor_b32 v7, s{sW}, v7\nv_lshl_add_u32 v7, v7, 5, v4\nv_lshl_add_u32 v7, v2, 7, v7\nv_add_u32 v{AW}, {L_W}, v7')
    e(f'v_xor_b32 v{AW+1}, 32, v{AW}\nv_xor_b32 v{AW+2}, 0x1000, v{AW}\nv_xor_b32 v{AW+3}, 0x1000, v{AW+1}')
    e(f'v_lshl_add_u32 v6, v5, 5, v4\nv_lshl_add_u32 v6, v2, 6, v6\nv_add_u32 v{AS}, {L_S}, v6')
    e(f'v_xor_b32 v{AS+1}, 32, v{AS}\nv_xor_b32 v{AS+2}, 0x800, v{AS}\nv_xor_b32 v{AS+3}, 0x800, v{AS+1}')
    e('v_mov_b32 v3, 0x3f803f80')
    e(f's_lshl_b32 s{sT}, s{sCH}, 9\ns_lshl_b32 s{sT+1}, s{sRH}, 6\ns_add_u32 s{sT}, s{sT}, s{sT+1}\ns_add_u32 s{sT}, s{sT}, {L_CS}')
    e(f'v_cndmask_b32 v{SEL}, 0, v3, vcc\nv_lshl_add_u32 v{CSW}, v{N16}, 2, s{sT}')
    for i in range(1, 4): e(f'v_mov_b32 v{SEL+i}, v{SEL}')
    e(f's_lshl_b32 s{sT}, s{sRB}, 1\ns_add_u32 s{sT}, s{sT}, s{sRH}\ns_mul_i32 s{sT+2}, s{sT}, {4*FPH//FSTR}\ns_lshl_b32 s{sT}, s{sT}, 1\ns_add_u32 s{sT}, s{sT}, s{sCH}')
    e(f's_xor_b32 s{sT+1}, s{sT}, 1\ns_mul_i32 s76, s{sT}, {2*YRT}\ns_mul_i32 s77, s{sT+1}, {2*YRT}')
    e(f's_lshl_b32 s{sT}, s{sG}, 1\ns_add_u32 s{sT+2}, s{sT+2}, s{sT}\ns_add_u32 s{sT+2}, s{sT+2}, s{sCH}\ns_mul_i32 s{sT+2}, s{sT+2}, {FSTR}\ns_add_u32 s{sT+2}, s{sT+2}, {WS_YF}')
    e(f's_xor_b32 s{sT}, s{sF}, 1\ns_mul_i32 s{sT}, s{sT}, {FPH}\ns_add_u32 s{sT+2}, s{sT+2}, s{sT}')
    e(f's_add_u32 s{sFP}, s{pWS}, s{sT+2}\ns_addc_u32 s{sFP+1}, s{pWS+1}, 0')
    e(f's_mov_b32 s14, 0\ns_mov_b32 s15, 0\ns_mov_b32 s22, {-2*SLOT}')
    e('s_waitcnt lgkmcnt(0)')
    e(f's_mul_i32 s{sT+4}, s{sNON}, 0x4c957f2d\ns_mul_hi_u32 s{sT+5}, s{sNON}, 0x4c957f2d')
    e(f's_mul_i32 s{sT}, s{sNON+1}, 0x4c957f2d\ns_add_u32 s{sT+5}, s{sT+5}, s{sT}')
    e(f's_mul_i32 s{sT}, s{sNON}, 0x5851f42d\ns_add_u32 s{sT+5}, s{sT+5}, s{sT}')
    e(f's_add_u32 s{sNON}, s{sT+4}, 0xf767814f\ns_addc_u32 s{sNON+1}, s{sT+5}, 0x14057b7e')
    e(f'v_mov_b32 v{FV}, s{sNON}\nv_mov_b32 v{FV+1}, s{sNON+1}\nv_mov_b32 v2, s{sSY}\ns_lshl_b32 s{sT}, s{sW}, 2\nv_add_u32 v{SYV}, s{sT}, v2\nv_mov_b32 v3, 0')
    e(f'ds_write_b64 v2, v[{FV}:{FV+1}]\nds_write_b32 v{SYV}, v3 offset:32\nds_write_b32 v{SYV}, v3 offset:48')
    e(f's_lshl_b32 s{sT}, s{sRB2}, 2\ns_lshl_b32 s{sT+1}, s{sRH}, 1\ns_add_u32 s{sT}, s{sT}, s{sT+1}')
    e(f's_add_u32 s{sT+1}, s{sT}, s{sCH}\ns_lshl_b32 s{sT+1}, s{sT+1}, 14\ns_lshl_b32 s{sT+2}, s{sCB}, 7\ns_add_u32 s{sO}, s{sT+1}, s{sT+2}')
    e(f'v_bfe_u32 v2, v0, 4, 1\nv_lshrrev_b32 v3, 5, v0\nv_lshlrev_b32 v3, 4, v3\nv_lshl_add_u32 v3, v2, 5, v3\nv_lshl_add_u32 v{VO}, v{N16}, 10, v3')
    e(f's_mul_i32 s{sT}, s{sT}, {YRT}\ns_add_u32 s{sT}, s{sT}, {WS_Y}')
    e(f's_mul_i32 s{sT+1}, s{sCH}, {14*2*FS}\ns_add_u32 s{sAU}, s{sT}, s{sT+1}\ns_mul_i32 s{sT+1}, s{sCH}, {4*2*FS}\ns_add_u32 s{sAO}, s{sT}, s{sT+1}\ns_add_u32 s{sAO}, s{sAO}, {28*2*FS}')
    unit_bases(e, sAU, sAO, 2 * FS, UC)
    e(f's_mul_i32 s{sV0}, s{sCH}, {YRT}\ns_sub_u32 s{sV1}, {YRT}, s{sV0}')
    e('v_lshrrev_b32 v2, 2, v0\nv_bfe_u32 v3, v0, 3, 2\nv_and_b32 v4, 3, v0\nv_lshlrev_b32 v4, 3, v4\nv_lshl_add_u32 v4, v3, 5, v4\nv_lshl_add_u32 v4, v2, 7, v4')
    e(f's_mul_i32 s{sT+1}, s{sCH}, 24576\ns_add_u32 s{sT+1}, s{sT+1}, {RSLOT[0]}\nv_add_u32 v15, s{sT+1}, v4')
    e(f's_lshl_b32 s{sTR}, s{sRH}, 8\ns_lshl_b32 s{sT+1}, s{sCH}, 7\ns_add_u32 s{sTR}, s{sTR}, s{sT+1}\ns_add_u32 s{sTR}, s{sTR}, {L_R}')
    e(f's_lshl_b32 s{sTC}, s{sCH}, 9\ns_lshl_b32 s{sT+2}, s{sRH}, 6\ns_add_u32 s{sTC}, s{sTC}, s{sT+2}\ns_add_u32 s{sTC}, s{sTC}, {L_CS}')
    e(f's_mov_b32 s{sT}, 0xffff0000\ns_waitcnt vmcnt(3)')
    S = 136; R = FV - 2
    for k in range(2):
        for d in range(4):
            w = XF + 4 * k + d
            e(f'v_lshlrev_b32 v2, 16, v{w}\nv_and_b32 v3, s{sT}, v{w}')
            if d == 0: e(f'v_add_f32 v{S+2*k}, v2, v3\nv_mul_f32 v{S+2*k+1}, v2, v2')
            else: e(f'v_add_f32 v{S+2*k}, v{S+2*k}, v2\nv_fmac_f32 v{S+2*k+1}, v2, v2\nv_add_f32 v{S+2*k}, v{S+2*k}, v3')
            e(f'v_fmac_f32 v{S+2*k+1}, v3, v3')
    for i in range(2): e(f'v_permlane32_swap_b32 v{S+i}, v{S+2+i}')
    for i in range(2): e(f'v_add_f32 v{S+i}, v{S+i}, v{S+2+i}')
    for i in range(2): e(f'v_mov_b32 v{S+2+i}, v{S+i}')
    for i in range(2): e(f'v_permlane16_swap_b32 v{S+2+i}, v{S+i}')
    for i in range(2): e(f'v_add_f32 v{S+i}, v{S+i}, v{S+2+i}')
    for ror in (1, 2, 4, 8):
        for i in range(2): e(f'v_add_f32_dpp v{S+i}, v{S+i}, v{S+i} row_ror:{ror} row_mask:0xf bank_mask:0xf')
    e(f's_lshl_b32 s{sT}, s13, 7\ns_add_u32 s{sT}, s{sT}, {WS_RS}')
    e(f'v_mul_f32 v2, {fl(-1/512)}, v{S}\nv_mul_f32 v3, {fl(1/512)}, v{S+1}\nv_fma_f32 v3, -v2, v2, v3\nv_max_f32 v3, 0, v3\nv_add_f32 v3, {fl(1e-5)}, v3')
    e(f'v_rsq_f32 v3, v3\nv_lshrrev_b32 v4, 5, v0\nv_lshlrev_b32 v4, 4, v4\nv_lshl_add_u32 v4, v{N16}, 5, v4\nv_mul_f32 v{R}, {fl(LOG2E)}, v3\nv_mul_f32 v{R+1}, v{R}, v2')
    e(f's_mov_b32 exec_lo, 0xf\ns_mov_b32 exec_hi, 0xf\nbuffer_store_dwordx4 v[{R}:{R+3}], v4, s[{SWS}:{SWS+3}], s{sT} offen sc1\ns_mov_b64 exec, -1')

def acc_main(u, rt, jj): return ACC + ((u * 4 + rt) * 2 + jj) * 4
def acc_strip(rt, jj): return ACC + 96 + (rt * 2 + jj) * 4

DU = 3
def readB(q):
    n, ct = q // 4, q % 4
    b = BR + 8 * (q % 12)
    return [f'ds_read_b64_tr_b16 v[{b+4*s+2*j}:{b+4*s+2*j+1}], v{AB+ct} offset:{(n%3)*8192+s*4096+j*2048}' for s in range(2) for j in range(2)]

def p2_prep(e):
    for h in range(2): e(f'buffer_load_dwordx4 v[{XR+4*h}:{XR+4*h+3}], v{VO}, s[{SX}:{SX+3}], s{sO} offen offset:{h*64}')
    for ct in range(4): e(f'v_xor_b32 v{AB+ct}, {32*ct}, v15')
    for q in range(12):
        for l in readB(q): e(l)
    e(f'v_add_u32 v{VA}, s{sV0}, v{LY}\nv_add_u32 v{VA+1}, s{sV1}, v{LY}')

def p2_accinit(e):
    e('s_mov_b32 s22, 0xffff0000')
    for h in range(2):
        for i in range(2): e(f'v_permlane16_swap_b32 v{XR+4*h+i}, v{XR+4*h+2+i}')
    for i in range(8): e(f'v_lshlrev_b32 v{ACC+2*i}, 16, v{XR+i}\nv_and_b32 v{ACC+2*i+1}, s22, v{XR+i}')

def pair_wait(e, off, reads):
    L, Dn = lab('pair'), lab('paird')
    spin_init(e, 2000000)
    e(f'{L}:')
    e(f'ds_read_b32 v3, v9 offset:{off}')
    for l in reads: e(l)
    e(f's_waitcnt lgkmcnt({len(reads)})\nv_readfirstlane_b32 s{sT+5}, v3\ns_cmp_lg_u32 s{sT+5}, 0\ns_cbranch_scc1 {Dn}')
    spin_tail(e, L, Dn, 0)
    e(f'{Dn}:')

def compute_p1(e, F):
    sDL, sCNT, sSL, sY0, sY1, sYS = 13, 14, 15, 76, 77, 78
    if F:
        e(f's_mul_i32 s{sT+3}, s{sCS_}, {FS//32}\ns_add_u32 s{sYS}, s{sY0}, s{sT+3}\ns_add_u32 s{sYS}, s{sYS}, {WS_Y}')
        e(f's_mul_i32 s{sT+2}, s{sC0}, {FS//32}\ns_add_u32 s{sT+2}, s{sT+2}, {WS_Y}')
        e(f's_lshl_b32 s{sT}, s{sW}, 9\ns_add_u32 s{sT}, s{sT}, {L_BT}\nv_lshl_add_u32 v2, v0, 2, s{sT}')
        e('s_waitcnt vmcnt(2)')
        e(f'v_lshlrev_b32 v8, 16, v8\nv_lshlrev_b32 v9, 16, v9\nv_mul_f32 v8, {fl(LOG2E)}, v8\nv_mul_f32 v9, {fl(LOG2E)}, v9')
        e('ds_write_b32 v2, v8\nds_write_b32 v2, v9 offset:256')
    else:
        e(f's_lshl_b32 s{sT}, s{sG}, 2\ns_add_u32 s{sT}, s{sT}, s{sW}\ns_mul_i32 s{sKV}, s{sT}, {16*1152}\ns_add_u32 s{sKV}, s{sKV}, {WS_KV}')
        e(f's_mul_i32 s{sKR}, s{sRB}, 1152\ns_add_u32 s{sKR}, s{sKR}, s{sKV}')
        for i in range(4): e(f's_lshr_b64 s[{sT}:{sT+1}], s[{sNON}:{sNON+1}], {12*i}\ns_and_b32 s{TG+i}, s{sT}, 0xfff')
        e(f's_lshl_b32 s{sT+2}, s{sG}, 1\ns_add_u32 s{sT+2}, s{sT+2}, s{sCH}\ns_mul_i32 s{sT+2}, s{sT+2}, {FS}\ns_add_u32 s{sT+2}, s{sT+2}, {WS_Y+56*FS}')
    e(f's_add_u32 s{sY0}, s{sY0}, s{sT+2}\ns_add_u32 s{sY1}, s{sY1}, s{sT+2}\ns_waitcnt lgkmcnt(0)')

    seq = [(0, 0), (1, 0), (2, 0), (3, 0), (3, 1), (0, 1), (1, 1), (2, 1)] if F else [(0, 0), (1, 0), (2, 0), (0, 1), (1, 1), (2, 1)]
    NP = len(seq); RING = 4 if F else 3
    def wreads(p):
        u, jj = seq[p]; b = WR + 8 * (p % RING)
        if u < 3: return [f'ds_read_b64_tr_b16 v[{b+4*s+2*j}:{b+4*s+2*j+1}], v{AW+2*s+jj} offset:{u*8192+j*512}' for s in range(2) for j in range(2)]
        return [f'ds_read_b64_tr_b16 v[{b+4*s+2*j}:{b+4*s+2*j+1}], v{AS+2*s+jj} offset:{j*256}' for s in range(2) for j in range(2)]
    def xreads(rt):
        return [f'ds_read_b128 v[{XF+8*rt+4*s}:{XF+8*rt+4*s+3}], v{AX+2*s+(rt>>1)} offset:{(rt&1)*2048}' for s in range(2)]
    def mfma(d, a, b, z): return f'v_mfma_f32_16x16x32_bf16 v[{d}:{d+3}], v[{a}:{a+3}], v[{b}:{b+3}], ' + ('0' if z else f'v[{d}:{d+3}]')
    def mfmas(p, first):
        u, jj = seq[p]; b = WR + 8 * (p % RING)
        m = []
        for rt in range(4 if u < 3 else 2):
            d = acc_main(u, rt, jj) if u < 3 else acc_strip(rt, jj)
            for s in range(2):
                w, x = b + 4 * s, XF + 8 * rt + 4 * s; z = first and s == 0
                m.append((rt, mfma(d, w, x, z) if (F or u == 0) else mfma(d, x, w, z)))
        if jj == 0 and first:
            m = [(None, mfma(CS + 4 * u, SEL, b + 4 * s, s == 0)) for s in range(2 if u < 3 else 1)] + m
        if OPT['nomfma']: m = [(rt, 's_nop 0') for rt, _ in m]
        return m
    ts(e, 1)
    e('s_barrier')
    ts(e, 2)
    tokW = {}; tokX = {}
    for l in wreads(0): e(l)
    tokW[0] = e.ltok()
    w1 = wreads(1)
    for rt in range(4):
        e(w1[rt])
        if rt == 3: tokW[1] = e.ltok()
        for l in xreads(rt): e(l)
        tokX[rt] = e.ltok()
    LK = lab('kloop')
    for first in (True, False):
        if not first: e(f'{LK}:')
        for p in range(NP):
            m = mfmas(p, first)
            ex = list(wreads((p + 2) % NP))
            nW = len(ex)
            if first and 1 <= p <= (4 if F else 3):
                ex = [f'ds_write_b32 v{CSW}, v{CS+4*(p-1)} offset:{(p-1)*128}'] + ex; nW += 1
            if p == 0: ex += [f's_add_u32 s{sSL}, s{sSL}, 1', f's_cmp_eq_u32 s{sSL}, 3', f's_cselect_b32 s{sDL}, s22, {SLOT}', f's_cselect_b32 s{sSL}, 0, s{sSL}']
            if p == 1: ex += [f'v_add_u32 v{a}, s{sDL}, v{a}' for a in (AW, AW + 2, AX, AX + 1)]
            if p == 2: ex += [f'v_add_u32 v{a}, s{sDL}, v{a}' for a in (AX + 2, AX + 3)]
            if p == NP - 3 and F: ex += [f'v_add_u32 v{a}, s{sDL}, v{a}' for a in (AS, AS + 1, AS + 2, AS + 3)]
            if p == NP - 2:
                ex += [f'v_add_u32 v{a}, s{sDL}, v{a}' for a in (AW + 1, AW + 3)]
                ex += [f's_add_u32 s{sCNT}, s{sCNT}, 1', f's_cmp_lt_u32 s{sCNT}, 8']
                e('s_waitcnt lgkmcnt(0)\ns_barrier')
            elif p != NP - 1:
                e.wait_lg(tokW[p])
            seen = set()
            k = 0
            for i, (rt, x) in enumerate(m):
                if p == 0 and rt is not None and rt not in seen:
                    e.wait_lg(tokX[rt]); seen.add(rt)
                e(x)
                if p == NP - 1:
                    if i % 2 == 0:
                        e(ex[i // 2])
                        if i == 6: tokW[1] = e.ltok()
                    else:
                        for l in xreads(i // 2): e(l)
                        tokX[i // 2] = e.ltok()
                else:
                    n = -(-(len(ex) - k) // (len(m) - i))
                    for l in ex[k:k + n]:
                        e(l); k += 1
                        if k == nW: tokW[(p + 2) % NP] = e.ltok()
    e(f's_cbranch_scc1 {LK}')
    ts(e, 3)
    e('s_waitcnt vmcnt(0)')
    e(f'v_lshl_add_u32 v2, v{N16}, 2, s{sTR}\nv_xor_b32 v3, 128, v2')
    e(f'v_lshl_add_u32 v4, v{G4}, 4, s{sTC}\nv_xor_b32 v5, 64, v4')
    H = 192
    if F:
        CSV = 128; BV = 160; RL = 240; NL = 244; KK = 248; P = 232; U = 208
        e(f's_lshl_b32 s{sT+2}, s{sW}, 9\ns_add_u32 s{sT+2}, s{sT+2}, {L_BT}\nv_lshl_add_u32 v6, v{G4}, 4, s{sT+2}')
        tk = {}
        for u in range(4):
            for jj in range(2):
                t = 2 * u + jj
                e(f'ds_read_b128 v[{CSV+4*t}:{CSV+4*t+3}], v{4+jj} offset:{u*128}\nds_read_b128 v[{BV+4*t}:{BV+4*t+3}], v6 offset:{t*64}')
            if u == 0:
                for nm, o in ((NL, 512), (RL, 0)):
                    for rt in range(4): e(f'ds_read_b32 v{nm+rt}, v{2+(rt>>1)} offset:{(rt&1)*64+o}')
                e('v_xor_b32 v7, 0x200, v4\nv_xor_b32 v8, 0x200, v5')
            tk[u] = e.ltok()
        e('ds_read_b128 v[252:255], v8 offset:384\nds_read_b128 v[8:11], v7 offset:384')
        e(f'v_mov_b32 v{KK}, {fl(-2/LOG2E)}\nv_mov_b32 v{KK+1}, {fl(1/LOG2E)}')
        for u in (1, 2): e(f's_add_u32 s{sT+2*u-2}, s{sY0}, {2*u*FS}\ns_add_u32 s{sT+2*u-1}, s{sY1}, {2*u*FS}')
        held = []; pend = []
        for u in range(4):
            if u == 0: e.wait_lg(tk[0])
            if u == 1:
                e('s_waitcnt lgkmcnt(0)')
                for i in (0, 2):
                    e(f'v_pk_add_f32 v[{CSV+24+i}:{CSV+25+i}], v[{CSV+24+i}:{CSV+25+i}], v[{8+i}:{9+i}]')
                    e(f'v_pk_add_f32 v[{CSV+28+i}:{CSV+29+i}], v[{CSV+28+i}:{CSV+29+i}], v[{252+i}:{253+i}]')
            for p in range(2 if u < 3 else 1):
                a = acc_main(u, 2 * p, 0) if u < 3 else acc_strip(0, 0)
                L = []
                for i in range(0, 16, 2):
                    o = i >> 3; c = 8 * u + (i & 7)
                    L.append(f'v_pk_fma_f32 v[{H+i}:{H+i+1}], v[{CSV+c}:{CSV+c+1}], v[{NL+2*p}:{NL+2*p+1}], v[{BV+c}:{BV+c+1}] op_sel:[0,{o},0] op_sel_hi:[1,{o},1]')
                for i in range(0, 16, 2):
                    o = i >> 3
                    L.append(f'v_pk_fma_f32 v[{H+i}:{H+i+1}], v[{a+i}:{a+i+1}], v[{RL+2*p}:{RL+2*p+1}], v[{H+i}:{H+i+1}] op_sel:[0,{o},0] op_sel_hi:[1,{o},1]')
                for i in range(16): L.append(f'v_exp_f32 v{U+i}, v{H+i}')
                for i in range(0, 16, 2): L.append(f'v_pk_add_f32 v[{U+i}:{U+i+1}], v[{U+i}:{U+i+1}], 1.0 op_sel_hi:[1,0]')
                for i in range(0, 16, 2): L.append(f'v_pk_fma_f32 v[{U+i}:{U+i+1}], v[{U+i}:{U+i+1}], v[{U+i}:{U+i+1}], 1.0 op_sel_hi:[1,1,0]')
                for i in range(16): L.append(f'v_rcp_f32 v{U+i}, v{U+i}' if i >= OPT['ecut'] else 's_setprio 1')
                for i in range(0, 16, 2): L.append(f'v_pk_fma_f32 v[{U+i}:{U+i+1}], v[{U+i}:{U+i+1}], v[{KK}:{KK+1}], v[{KK}:{KK+1}] op_sel:[0,0,1] op_sel_hi:[1,0,1]')
                for i in range(0, 16, 2): L.append(f'v_pk_mul_f32 v[{U+i}:{U+i+1}], v[{U+i}:{U+i+1}], v[{H+i}:{H+i+1}]')
                for i in range(8): L.append(f'v_cvt_pk_bf16_f32 v{a+i}, v{U+2*i}, v{U+2*i+1}')
                if OPT['noepi']: L = ['s_sleep 8'] + ['s_nop 0'] * 1
                gi = 2 * u + p
                for i, l in enumerate(L):
                    if gi * 100 + i == OPT['xpos']:
                        ts(e, 5); e.wait_vm(tX0); put_flag(e, 0); ts(e, 6)
                    if gi * 100 + i == OPT['xpos1']:
                        e.wait_vm(tX); put_flag(e, 1)
                    if pend and i % OPT['bsp'] == 0:
                        e(pend.pop(0))
                        if not pend: tX = e.vtok()
                    e(l)
                so, off = ((sY1 if p else sY0) if u == 0 else sT + 2 * u - 2 + p if u < 3 else sYS), 0
                for k in range(0 if OPT['nost'] else 2):
                    held.append(f'buffer_store_dwordx4 v[{a+4*k}:{a+4*k+3}], v{L16B if k else LY}, s[{SWS}:{SWS+3}], s{so} offen offset:{off}' + SC[OPT['ysc']])
                if OPT['burst'] == 0 or gi in {2: (1, 3, 6), 3: (1, 3, 5, 6)}[OPT['burst']]:
                    for l in held: e(l)
                    held = []
                if gi == 3: tX = e.vtok()
                if gi == 1: tX0 = e.vtok()
        ts(e, 4)
        p2_prep(e)
    else:
        RV = 128; NVV = 144; CK = 160; CSQ = 164; RL = 172; NL = 176; EP = 230; ONE = 180; PK = 232; PV = 248; D1 = 240; D0 = 184; PQ = 208; U = 112
        e(f'v_lshl_add_u32 v6, v{G4}, 4, s{sTR}\nv_xor_b32 v7, 128, v6\nv_xor_b32 v8, 64, v{CSW}')
        for jj in range(2):
            e(f'ds_read_b32 v{CK+jj}, v{CSW if jj == 0 else 8} offset:128\nds_read_b32 v{CK+2+jj}, v{CSW if jj == 0 else 8} offset:256')
        for rt in range(4): e(f'ds_read_b128 v[{NVV+4*rt}:{NVV+4*rt+3}], v{6+(rt>>1)} offset:{(rt&1)*64+512}')
        tN = e.ltok()
        for rt in range(4): e(f'ds_read_b128 v[{RV+4*rt}:{RV+4*rt+3}], v{6+(rt>>1)} offset:{(rt&1)*64}')
        tR = e.ltok()
        for jj in range(2): e(f'ds_read_b128 v[{CSQ+4*jj}:{CSQ+4*jj+3}], v{4+jj}')
        for rt in range(4):
            e(f'ds_read_b32 v{RL+rt}, v{2+(rt>>1)} offset:{(rt&1)*64}\nds_read_b32 v{NL+rt}, v{2+(rt>>1)} offset:{(rt&1)*64+512}')
        e(f'v_mov_b32 v{EP}, {fl(1e-6*LOG2E)}\nv_mov_b32 v{EP+1}, {fl(1/LOG2E)}')
        def phi_tail(dst, mid=None):
            for i in range(16): e(f'v_exp_f32_e64 v{U+i}, v{H+i} clamp')
            if mid: mid()
            for i in range(16): e(f'v_max_f32 v{H+i}, v{EP}, v{H+i}')
            for i in range(0, 16, 2): e(f'v_pk_fma_f32 v[{H+i}:{H+i+1}], v[{H+i}:{H+i+1}], v[{EP}:{EP+1}], v[{U+i}:{U+i+1}] op_sel:[0,1,0] op_sel_hi:[1,1,1]')
            for i in range(0, 16, 2): e(f'v_cvt_pk_bf16_f32 v{dst(i)}, v{H+i}, v{H+i+1}')
        def send():
            e(f'ds_write_b128 v6, v[{D1}:{D1+3}]\nds_write_b128 v6, v[{D1+4}:{D1+7}] offset:1024\nds_write_b32 v{SYV}, v{ONE} offset:32')
        for h in (1, 0):
            ak = lambda i: acc_main(1, i >> 2, h) + (i & 3); av = lambda i: acc_main(2, i >> 2, h) + (i & 3)
            if h: e.wait_lg(tN)
            for i in range(0, 16, 2): e(f'v_pk_fma_f32 v[{H+i}:{H+i+1}], v[{NVV+i}:{NVV+i+1}], v[{CK}:{CK+1}], v[{EP}:{EP+1}] op_sel:[0,{h},0] op_sel_hi:[1,{h},0]')
            if h: e.wait_lg(tR)
            for i in range(0, 16, 2): e(f'v_pk_fma_f32 v[{H+i}:{H+i+1}], v[{ak(i)}:{ak(i)+1}], v[{RV+i}:{RV+i+1}], v[{H+i}:{H+i+1}]')
            if not h: send()
            phi_tail(lambda i: PK + (i >> 1))
            for i in range(0, 16, 2): e(f'v_pk_mul_f32 v[{H+i}:{H+i+1}], v[{NVV+i}:{NVV+i+1}], v[{CK+2}:{CK+3}] op_sel:[0,{h}] op_sel_hi:[1,{h}]')
            for i in range(0, 16, 2): e(f'v_pk_fma_f32 v[{H+i}:{H+i+1}], v[{av(i)}:{av(i)+1}], v[{RV+i}:{RV+i+1}], v[{H+i}:{H+i+1}]')
            if h:
                for i in range(4): e(f'v_mov_b32 v{ONE+i}, 0x3f803f80')
            for i in range(0, 16, 2): e(f'v_cvt_pk_bf16_f32 v{PV+(i>>1)}, v{H+i}, v{H+i+1}')
            d = D1 if h else D0
            for p in range(2): e(mfma(d + 4, PK + 4 * p, ONE, p == 0))
            for p in range(2): e(mfma(d, PK + 4 * p, PV + 4 * p, p == 0))
            if h:
                e(f's_lshl_b32 s{sT}, s{sW}, 11\ns_add_u32 s{sT}, s{sT}, {L_KX}\nv_add_u32 v6, s{sT}, v{L16}\nv_xor_b32 v7, 0x800, v6')
                e(f'v_lshlrev_b32 v9, 4, v{G4}\nv_lshl_add_u32 v8, v{N16}, 6, v9\nv_cmp_gt_u32 vcc, 2, v{N16}\nv_mov_b32 v10, 0x7ff00000')
                e(f'v_mul_u32_u24 v11, 1152, v{N16}\nv_add_u32 v11, v11, v9\nv_cndmask_b32 v8, v10, v8, vcc\nv_mov_b32 v10, 0xfff\nv_xor_b32 v9, 4, v{SYV}')
        pair_wait(e, 32, [f'ds_read_b128 v[{U}:{U+3}], v7', f'ds_read_b128 v[{U+4}:{U+7}], v7 offset:1024'])
        for k in range(2):
            e(f's_waitcnt lgkmcnt({1-k})')
            for i in range(4 * k, 4 * k + 4): e(f'v_add_f32 v{D0+i}, v{U+i}, v{D0+i}')
            for i in range(4 * k, 4 * k + 4): e(f'v_add_u32 v{D0+i}, 0x800, v{D0+i}')
            for i in range(4 * k, 4 * k + 4): e(f'v_bfi_b32 v{D0+i}, v10, s{TG+(i&3)}, v{D0+i}')
            if k == 0: e(f'buffer_store_dwordx4 v[{D0}:{D0+3}], v{L16}, s[{SWS}:{SWS+3}], s{sKR} offen sc1')
            else: e(f'buffer_store_dwordx4 v[{D0+4}:{D0+7}], v8, s[{SWS}:{SWS+3}], s{sKR} offen offset:1024 sc1')
        ts(e, 4)
        for p in range(2):
            a = acc_main(0, 2 * p, 0)
            for i in range(0, 16, 2):
                o = i >> 3; c = i & 7
                e(f'v_pk_fma_f32 v[{H+i}:{H+i+1}], v[{CSQ+c}:{CSQ+c+1}], v[{NL+2*p}:{NL+2*p+1}], v[{EP}:{EP+1}] op_sel:[0,{o},0] op_sel_hi:[1,{o},0]')
            for i in range(0, 16, 2):
                o = i >> 3
                e(f'v_pk_fma_f32 v[{H+i}:{H+i+1}], v[{a+i}:{a+i+1}], v[{RL+2*p}:{RL+2*p+1}], v[{H+i}:{H+i+1}] op_sel:[0,{o},0] op_sel_hi:[1,{o},1]')
            phi_tail(lambda i: PQ + 8 * p + (i >> 1))
        Z = 232; G = 144; KF = 236; sM = 65
        zload = f'buffer_load_dwordx4 v[{Z}:{Z+3}], v11, s[{SWS}:{SWS+3}], s{sKV} offen offset:1024 sc1'
        p2_prep(e)
        e(f's_lshl_b32 s{sT}, s{sW}, 10\ns_add_u32 s{sT}, s{sT}, {L_KF}\nv_add_u32 v6, s{sT}, v{L16}\nv_xor_b32 v7, 0x400, v6')
        L, Dn, Fin = lab('zpoll'), lab('zdone'), lab('gdone')
        spin_init(e)
        if OPT['cnt']: e('s_mov_b32 s32, 0\ns_mov_b32 s33, 0')
        if OPT['zdel']: e(f's_sleep {OPT["zdel"]}')
        e(f'{L}:')
        if OPT['cnt']: e('s_add_u32 s32, s32, 100')
        if OPT['nozp']:
            ts(e, 5)
        elif OPT['azp']:
            e(f'v_mov_b32 v3, 0\ns_mov_b64 exec, 0xffff\nbuffer_atomic_or v3, v11, s[{SWS}:{SWS+3}], s{sKV} offen offset:1024 sc0 sc1\ns_mov_b64 exec, -1\ns_waitcnt vmcnt(0)')
            e(f'v_xor_b32 v3, s{TG}, v3\nv_and_b32 v3, v10, v3\nv_cmp_ne_u32 vcc, 0, v3')
            e(f's_and_b32 s{sT}, 0xffff, vcc_lo\ns_cbranch_scc0 {Dn}')
            spin_tail(e, L, Fin, OPT['zslp'])
            e(f'{Dn}:')
            ts(e, 5)
            e(zload)
        else:
            e(zload + '\ns_waitcnt vmcnt(0)')
            for i in range(4): e(f'v_xor_b32 v{Z+i}, s{TG+i}, v{Z+i}')
            e(f'v_or3_b32 v3, v{Z}, v{Z+1}, v{Z+2}\nv_or_b32 v3, v3, v{Z+3}\nv_and_b32 v3, v10, v3\nv_cmp_ne_u32 vcc, 0, v3')
            e(f's_cmp_eq_u64 vcc, 0\ns_cbranch_scc1 {Dn}')
            spin_tail(e, L, Fin, OPT['zslp'])
            e(f'{Dn}:')
            ts(e, 5)
        if OPT['cnt']: e('s_add_u32 s33, s33, 100')
        for r in range(16):
            if r % 4 == 0: e(f's_add_u32 s{sT+1}, s{sKV}, {r*1152}')
            e(f'buffer_load_dwordx4 v[{G+4*r}:{G+4*r+3}], v{L16}, s[{SWS}:{SWS+3}], s{sT+1} offen offset:{(r&3)*1152} sc1')
        def zsum():
            for ror in (1, 2, 4, 8):
                for i in range(4): e(f'v_add_f32_dpp v{Z+i}, v{Z+i}, v{Z+i} row_ror:{ror} row_mask:0xf bank_mask:0xf')
            e(f'v_cvt_pk_bf16_f32 v{KF+2}, v{Z}, v{Z+1}\nv_cvt_pk_bf16_f32 v{KF+3}, v{Z+2}, v{Z+3}')
        nz = 0
        if OPT['nozp']:
            e(zload + '\nv_mov_b32 v3, 0'); nz = 1
        elif OPT['azp']:
            e('s_waitcnt vmcnt(16)')
            for i in range(4): e(f'v_xor_b32 v{Z+i}, s{TG+i}, v{Z+i}')
            e(f'v_or3_b32 v3, v{Z}, v{Z+1}, v{Z+2}\nv_or_b32 v3, v3, v{Z+3}')
            zsum()
        else:
            e('v_mov_b32 v3, 0'); zsum()
        for r in range(16):
            b = G + 4 * r
            e(f's_waitcnt vmcnt({15-r+nz})')
            for i in range(4): e(f'v_xor_b32 v{b+i}, s{TG+i}, v{b+i}')
            e(f'v_or3_b32 v3, v3, v{b}, v{b+1}\nv_or3_b32 v3, v3, v{b+2}, v{b+3}')
            if r:
                for i in (0, 2): e(f'v_pk_add_f32 v[{G+i}:{G+i+1}], v[{G+i}:{G+i+1}], v[{b+i}:{b+i+1}]')
        if nz:
            e('s_waitcnt vmcnt(0)')
            for i in range(4): e(f'v_xor_b32 v{Z+i}, s{TG+i}, v{Z+i}')
            e(f'v_or3_b32 v3, v3, v{Z}, v{Z+1}\nv_or3_b32 v3, v3, v{Z+2}, v{Z+3}')
            zsum()
        e(f'v_and_b32 v3, v10, v3\nv_cmp_ne_u32 vcc, 0, v3\ns_cmp_eq_u64 vcc, 0\ns_cbranch_scc1 {Fin}')
        spin_tail(e, L, Fin, 1)
        e(f'{Fin}:')
        e(f'v_cvt_pk_bf16_f32 v{KF}, v{G}, v{G+1}\nv_cvt_pk_bf16_f32 v{KF+1}, v{G+2}, v{G+3}\nv_mov_b32 v2, -1')
        e(f'ds_write_b128 v6, v[{KF}:{KF+3}]\nds_write_b32 v{SYV}, v2 offset:48')
        OD = 144; P = 208
        def omf(h):
            for rt in range(4):
                d = OD + 16 * rt + 8 * h; q = PQ + 4 * rt + 2 * h
                e(f'v_mfma_f32_16x16x16_bf16 v[{d+4}:{d+7}], v[{KF+4*h+2}:{KF+4*h+3}], v[{q}:{q+1}], 0')
                e(f'v_mfma_f32_16x16x16_bf16 v[{d}:{d+3}], v[{KF+4*h}:{KF+4*h+1}], v[{q}:{q+1}], 0')
        def ofin(h):
            for rt in range(4):
                d = OD + 16 * rt + 8 * h
                e(f'v_fmamk_f32 v{d+4}, v{d+4}, {fl(LOG2E)}, v{EP}')
            for rt in range(4): e(f'v_rcp_f32 v{OD+16*rt+8*h+4}, v{OD+16*rt+8*h+4}')
            for rt in range(4):
                d = OD + 16 * rt + 8 * h
                for i in (0, 2): e(f'v_pk_mul_f32 v[{d+i}:{d+i+1}], v[{d+i}:{d+i+1}], v[{d+4}:{d+5}] op_sel_hi:[1,0]')
            for rt in range(4):
                d = OD + 16 * rt + 8 * h
                for i in range(2): e(f'v_cvt_pk_bf16_f32 v{P+4*rt+2*h+i}, v{d+2*i}, v{d+2*i+1}')
                if h: e(f'buffer_store_dwordx4 v[{P+4*rt}:{P+4*rt+3}], v{L16B if rt&1 else LY}, s[{SWS}:{SWS+3}], s{sY1 if rt>>1 else sY0} offen' + SC[OPT['ysc']])
        omf(0)
        ofin(0)
        pair_wait(e, 48, [f'ds_read_b128 v[{KF+4}:{KF+7}], v7'])
        e('s_waitcnt lgkmcnt(0)')
        omf(1)
        ofin(1)
        ts(e, 6)

def compute_p2(e):
    ts(e, 7)
    e('s_waitcnt lgkmcnt(0)\ns_barrier')
    ts(e, 8)
    tokA = {}
    def loadA(n):
        j, c = unit_ref(n)
        L = [f's_add_u32 s{sT}, s{UC[j]}, {c*2*FS}']
        for rt in range(2):
            for s in range(2):
                a = A0 + 16 * (n % DU) + 8 * rt + 4 * s
                L.append('s_nop 0' if OPT['p2noa'] else f'buffer_load_dwordx4 v[{a}:{a+3}], v{VA+rt}, s[{SWS}:{SWS+3}], s{sT} offen offset:{s*FS}' + SC[OPT['asc']])
        return L
    t0 = e.vtok()
    for n in range(DU):
        for l in loadA(n): e(l)
        tokA[n] = e.vtok()
    e.wait_vm(t0)
    put_flag(e, 2)
    p2_accinit(e)
    tokB = {}
    for q in range(72):
        n, ct = q // 4, q % 4
        qq = q + 11 if q + 11 < 48 else q + 4 if q + 4 >= 48 else None
        free = q in (15, 27)
        bar = free or q in (7, 23, 44, 56)
        w = []
        if ct == 0: w.append(f'vmcnt({e.vm - tokA[n]})')
        if free: w.append('lgkmcnt(8)')
        elif q >= 48:
            if q % 2 == 0: w.append(f'lgkmcnt({e.lg - tokB[q + 1]})')
        elif ct == 0 and q >= 12: w.append(f'lgkmcnt({min(12, e.lg - tokB[q + 3])})')
        if w: e('s_waitcnt ' + ' '.join(w))
        if bar: e('s_barrier')
        ex = []
        if qq is not None and 12 <= qq < 72:
            c2 = qq % 4
            if qq % 12 < 4:
                r2 = qq // 12
                ex.append(f'v_add_u32 v{AB+c2}, {(RSLOT[r2%3]-RSLOT[(r2-1)%3]) & 0xffffffff}, v{AB+c2}')
            ex += readB(qq)
            tokB[qq] = e.lg + 4
        la = loadA(n + DU) if (ct == 3 and n + DU < 18) else []
        k = 0
        for i in range(4):
            rt, s = i >> 1, i & 1
            d = ACC + 16 * rt + 4 * ct; a = A0 + 16 * (n % DU) + 8 * rt + 4 * s; b = BR + 8 * (q % 12) + 4 * s
            c = '0' if (n == 0 and s == 0 and rt == 1) else f'v[{d}:{d+3}]'
            e('s_nop 0' if OPT['p2nom'] else f'v_mfma_f32_16x16x32_bf16 v[{d}:{d+3}], v[{b}:{b+3}], v[{a}:{a+3}], {c}')
            nx = -(-(len(ex) - k) // (4 - i))
            for l in ex[k:k + nx]: e(l)
            k += nx
            if la:
                if i == 0: e(la[0])
                e(la[1 + i])
        if la: tokA[n + DU] = e.vtok()
        if q == 64: e(f's_lshl_b32 s{sT+1}, s{sW}, 12\ns_add_u32 s{sT+1}, s{sT+1}, {SCR}')
        if q == 65: e(f'v_add_u32 v2, s{sT+1}, v{L16}')
        if q == 66: e('v_xor_b32 v3, 0x2000, v2')
        if q >= 70: e(f'ds_write_b128 v2, v[{ACC+16+4*(q-70)}:{ACC+19+4*(q-70)}] offset:{(q-70)*1024}')
    ts(e, 9)
    for q in range(2, 4): e(f'ds_write_b128 v2, v[{ACC+16+4*q}:{ACC+19+4*q}] offset:{q*1024}')
    e('s_waitcnt lgkmcnt(0)\ns_barrier')
    for q in range(4): e(f'ds_read_b128 v[{48+4*q}:{51+4*q}], v3 offset:{q*1024}')
    for q in range(4):
        e(f's_waitcnt lgkmcnt({3-q})')
        for i in (4 * q, 4 * q + 2):
            e(f'v_pk_add_f32 v[{ACC+i}:{ACC+i+1}], v[{ACC+i}:{ACC+i+1}], v[{48+i}:{49+i}]')
            e(f'v_cvt_pk_bf16_f32 v{64+i//2}, v{ACC+i}, v{ACC+i+1}')
        if q & 1:
            h = q >> 1
            for i in range(2): e(f'v_permlane16_swap_b32 v{64+4*h+i}, v{64+4*h+2+i}')
            e(f'buffer_store_dwordx4 v[{64+4*h}:{67+4*h}], v{VO}, s[{SOUT}:{SOUT+3}], s{sO} offen offset:{h*64}' + (' sc1' if OPT['osc'] == 1 else ' nt' if OPT['osc'] == 2 else ''))
    if DIAG: e('s_waitcnt vmcnt(0)')
    ts(e, 10)
    if OPT['cnt']: e(f's_add_u32 s{sTS+2}, s{sTS}, s32\ns_add_u32 s{sTS+4}, s{sTS}, s33')
    ts_dump(e, 11, 4)
    e('s_endpgm')

def main():
    e = Emit()
    e('s_load_dwordx16 s[16:31], s[0:1], 0\ns_load_dwordx4 s[32:35], s[0:1], 64')
    e('s_cmp_ge_u32 s2, 256\ns_cbranch_scc1 L_end')
    if DIAG: e(f'{TSI} s[{sTS}:{sTS+1}]')
    e(f'v_readfirstlane_b32 s{sW}, v0\nv_and_b32 v0, 63, v0')
    if OPT['p1map']:
        e(f's_lshr_b32 s{sLI}, s2, 3\ns_and_b32 s{sKC}, s2, 7\ns_lshl_b32 s{sRB}, s{sKC}, 1\ns_lshr_b32 s{sT}, s2, 7\ns_add_u32 s{sRB}, s{sRB}, s{sT}')
        e(f's_bfe_u32 s{sG}, s2, 0x20005\ns_lshl_b32 s{sG}, s{sG}, 1\ns_and_b32 s{sT+1}, s{sLI}, 1\ns_add_u32 s{sG}, s{sG}, s{sT+1}')
    else:
        e(f's_lshr_b32 s{sLI}, s2, 3\ns_bfe_u32 s{sRB}, s2, 0x10002\ns_lshl_b32 s{sRB}, s{sRB}, 3\ns_lshr_b32 s{sT}, s2, 5\ns_add_u32 s{sRB}, s{sRB}, s{sT}')
        e(f's_and_b32 s{sG}, s2, 3\ns_lshl_b32 s{sG}, s{sG}, 1\ns_and_b32 s{sT+1}, s{sLI}, 1\ns_add_u32 s{sG}, s{sG}, s{sT+1}')
        e(f's_add_u32 s{sT}, s{sT}, s2\ns_and_b32 s{sT}, s{sT}, 3\ns_lshl_b32 s{sT}, s{sT}, 1')
        e(f's_lshr_b32 s{sT+1}, s2, 2\ns_add_u32 s{sT+1}, s{sT+1}, {0 if OPT["kap"] else "s%d" % sLI}\ns_and_b32 s{sT+1}, s{sT+1}, 1\ns_add_u32 s{sKC}, s{sT}, s{sT+1}')
    if OPT['p2map']:
        e(f's_and_b32 s{sRB2}, s2, 6\ns_lshl_b32 s{sRB2}, s{sRB2}, 2\ns_lshr_b32 s{sT}, s2, 5\ns_add_u32 s{sRB2}, s{sRB2}, s{sT}')
        e(f's_and_b32 s{sCB}, s2, 1\ns_lshl_b32 s{sCB}, s{sCB}, 2\ns_and_b32 s{sT}, s{sLI}, 3\ns_add_u32 s{sCB}, s{sCB}, s{sT}')
    else:
        e(f's_and_b32 s{sRB2}, s2, 7\ns_lshl_b32 s{sRB2}, s{sRB2}, 2\ns_lshr_b32 s{sT}, s2, 6\ns_add_u32 s{sRB2}, s{sRB2}, s{sT}\ns_and_b32 s{sCB}, s{sLI}, 7')
    e(f's_lshr_b32 s{sW}, s{sW}, 6\ns_bfe_u32 s{sF}, s2, 0x10004\ns_lshl_b32 s{sSY}, s{sF}, 11\ns_add_u32 s{sSY}, s{sSY}, {L_SYA}')
    e(f's_cmp_lt_u32 s{sW}, 4\ns_cbranch_scc1 L_helper')
    compute_early(e)
    e('L_helper:')
    HELP[0] = True
    helper(e)
    HELP[0] = False
    e('L_compute:')
    compute_common(e)
    e(f's_cmp_eq_u32 s{sF}, 0\ns_cbranch_scc1 L_compute_A')
    compute_p1(e, 1)
    e('s_branch L_p2')
    e('L_compute_A:')
    compute_p1(e, 0)
    e('L_p2:')
    compute_p2(e)
    e('L_end:\ns_endpgm\nL_code_end:')
    lines, n = hazard_pass_fast(e.lines)
    hdr = open('cdna_kernels/%s.s.ref' % NAME).read().split('; Override launch')[0]
    out = hdr + f'; @launch grid=(256,1,1) block=(512,1,1) lds={LDS_BYTES}\n'
    out += f'.amdgcn_target "amdgcn-amd-amdhsa--gfx950"\n.text\n.globl {NAME}_kernel\n.p2align 8\n.type {NAME}_kernel,@function\n{NAME}_kernel:\n'
    out += '\n'.join(lines) + '\n'
    out += f'''.section .rodata,"a"
.p2align 6
.amdhsa_kernel {NAME}_kernel
  .amdhsa_next_free_vgpr 256
  .amdhsa_next_free_sgpr 102
  .amdhsa_accum_offset 256
  .amdhsa_group_segment_fixed_size 0
  .amdhsa_kernarg_size 80
  .amdhsa_user_sgpr_count 2
  .amdhsa_user_sgpr_kernarg_segment_ptr 1
  .amdhsa_system_sgpr_workgroup_id_x 1
  .amdhsa_float_denorm_mode_32 3
.end_amdhsa_kernel
'''
    open(sys.argv[1], 'w').write(out)
    print('wrote', sys.argv[1], len(lines), 'lines,', n, 'hazard pads')

main()
```

```python
import re

TRANS = ('v_exp_f32', 'v_log_f32', 'v_rcp_f32', 'v_rsq_f32', 'v_sqrt_f32', 'v_sin_f32', 'v_cos_f32', 'v_rcp_iflag_f32')

def regs_of(tok):
    tok = tok.strip()
    tok = tok.lstrip('-')
    m = re.fullmatch(r'abs\((.*)\)', tok) or re.fullmatch(r'\|(.*)\|', tok)
    if m: tok = m.group(1)
    m = re.fullmatch(r'([vsa])(\d+)', tok)
    if m: return [(m.group(1), int(m.group(2)))]
    m = re.fullmatch(r'([vsa])\[(\d+):(\d+)\]', tok)
    if m: return [(m.group(1), i) for i in range(int(m.group(2)), int(m.group(3)) + 1)]
    if tok == 'vcc': return [('s', 106), ('s', 107)]
    if tok == 'vcc_lo': return [('s', 106)]
    if tok == 'vcc_hi': return [('s', 107)]
    if tok == 'exec_lo': return [('s', 126)]
    if tok == 'exec_hi': return [('s', 127)]
    if tok == 'exec': return [('s', 126), ('s', 127)]
    if tok == 'm0': return [('s', 124)]
    return []

class Ins:
    def __init__(self, text):
        self.text = text
        t = text.split(';')[0].strip()
        self.label = None
        self.op = None
        self.w = set(); self.r = set()
        self.srcc = set(); self.srcab = set(); self.data = set()
        if t.endswith(':'):
            self.label = t[:-1]; return
        if not t or t.startswith('.'):
            return
        parts = t.split(None, 1)
        self.op = op = parts[0]
        rest = parts[1] if len(parts) > 1 else ''
        ops = []; cur = ''; d = 0
        for ch in rest:
            if ch == '[': d += 1
            if ch == ']': d -= 1
            if ch == ',' and d == 0: ops.append(cur); cur = ''
            else: cur += ch
        if cur.strip(): ops.append(cur)
        mods = ''
        if ops:
            last = ops[-1].strip().split(None, 1)
            ops[-1] = last[0]
            mods = last[1] if len(last) > 1 else ''
        self.ops = ops; self.mods = mods
        R = [regs_of(o) for o in ops]
        base = re.sub(r'_(e32|e64|dpp|sdwa)$', '', op)
        self.base = base
        self.is_mfma = op.startswith('v_mfma')
        self.is_valu = op.startswith('v_') and not self.is_mfma
        self.is_trans = base in TRANS
        self.is_dpp = op.endswith('_dpp') or 'row_' in mods or 'quad_perm' in mods
        self.is_vmem = op.startswith(('buffer_', 'global_'))
        self.is_ds = op.startswith('ds_')
        self.is_salu = op.startswith('s_')
        self.is_ldsdma = self.is_vmem and (' lds' in ' ' + mods or '_lds_' in op)
        self.is_perm = 'permlane' in op
        self.is_branch = op.startswith(('s_branch', 's_cbranch'))
        self.target = ops[0].strip() if self.is_branch else None
        if self.is_mfma:
            self.w |= set(R[0]); self.srcab = set(R[1]) | set(R[2]); self.srcc = set(R[3]); self.r = self.srcab | self.srcc
            self.passes = 8 if '32x32x16' in op else 4 if ('16x16x32' in op or '16x16x16' in op) else None
            assert self.passes
        elif self.is_valu:
            if self.is_perm:
                self.w |= set(R[0]) | set(R[1]); self.r |= set(R[0]) | set(R[1])
            elif base in ('v_add_co_u32', 'v_sub_co_u32', 'v_addc_co_u32'):
                self.w |= set(R[0]) | set(R[1])
                for x in R[2:]: self.r |= set(x)
            else:
                self.w |= set(R[0])
                for x in R[1:]: self.r |= set(x)
                if base in ('v_fmac_f32', 'v_dot2c_f32_bf16', 'v_writelane_b32') or self.is_dpp: self.r |= set(R[0])
                if base.startswith('v_cmpx'): self.w |= {('s', 126), ('s', 127)}
        elif self.is_ds:
            if op.startswith(('ds_read', 'ds_bpermute', 'ds_swizzle', 'ds_permute')):
                self.w |= set(R[0])
                for x in R[1:]: self.r |= set(x)
            else:
                for x in R: self.r |= set(x)
        elif self.is_vmem:
            if op in ('buffer_wbl2', 'buffer_inv'):
                pass
            elif self.is_ldsdma:
                for x in R: self.r |= set(x)
                self.r.add(('s', 124))
            elif '_load_' in op:
                self.w |= set(R[0])
                for x in R[1:]: self.r |= set(x)
                if 'd16' in op: self.r |= set(R[0])
            else:
                for x in R: self.r |= set(x)
                self.data = set(R[0]) if op.startswith('buffer_') else set(R[1])
                if not op.endswith(('x3', 'x4')): self.data = set()
                if 'atomic' in op and 'sc0' in mods: self.w |= set(R[0])
        elif self.is_salu:
            if op.startswith(('s_cmp', 's_waitcnt', 's_nop', 's_barrier', 's_branch', 's_cbranch', 's_endpgm', 's_setprio', 's_sleep', 's_bitcmp', 's_atomic')):
                for x in R: self.r |= set(x)
            else:
                if R: self.w |= set(R[0])
                for x in R[1:]: self.r |= set(x)
                if 'saveexec' in op: self.w |= {('s', 126), ('s', 127)}
        else:
            raise ValueError('unknown instruction: ' + text)

    def states(self):
        if self.op is None: return 0
        if self.op == 's_nop': return int(self.ops[0], 0) + 1
        return 1

def need(p, c):
    n = 0
    vw = {x for x in p.w if x[0] != 's'}
    sw = {x for x in p.w if x[0] == 's'}
    if p.is_valu:
        if c.is_mfma and vw & c.r: n = max(n, 2)
        if c.is_valu and c.is_dpp and vw & c.r: n = max(n, 2)
        if c.is_valu and c.is_perm and vw & c.r: n = max(n, 2)
        if c.is_valu and c.base in ('v_readfirstlane_b32', 'v_readlane_b32') and vw & c.r: n = max(n, 1)
        if p.is_trans and (c.is_valu or c.is_mfma or c.is_vmem or c.is_ds) and vw & c.r: n = max(n, 1)
        if sw:
            if c.is_vmem and sw & c.r: n = max(n, 5)
            if (c.is_valu) and sw & c.r: n = max(n, 4 if c.base in ('v_readlane_b32', 'v_writelane_b32') else 2)
            if c.is_valu and c.base == 'v_cndmask_b32' and len(c.ops) == 4 and sw & set(regs_of(c.ops[3])): n = max(n, 2)
            if c.is_salu and sw & c.r: n = max(n, 1)
            if ('s', 126) in sw and (c.is_mfma or c.is_valu): n = max(n, 5)
    if p.is_mfma:
        big = {4: 8, 8: 12}[p.passes]
        if c.is_mfma:
            if p.w & c.srcab: n = max(n, big)
            if p.w & c.srcc and not (p.w == c.srcc and p.passes == c.passes): n = max(n, {4: 6, 8: 10}[p.passes])
            if p.w & c.w and not (p.w == c.srcc and p.passes == c.passes): n = max(n, big)
        elif c.is_valu or c.is_vmem or c.is_ds:
            if p.w & (c.r | c.w): n = max(n, big)
            if p.srcc & c.w: n = max(n, {4: 3, 8: 7}[p.passes])
    if p.is_vmem and p.data and (c.is_valu or c.is_mfma) and p.data & c.w: n = max(n, 2)
    if p.is_vmem and p.data and (c.is_vmem or c.is_ds) and p.data & c.w: n = max(n, 1)
    if p.is_salu and ('s', 124) in p.w and c.is_vmem and c.is_ldsdma: n = max(n, 1)
    return n

MAXD = 12
def hazard_pass(lines):
    total = 0
    while True:
        ins = [Ins(l) for l in lines]
        labels = {i.label: k for k, i in enumerate(ins) if i.label}
        preds = {}
        for k, i in enumerate(ins):
            if i.op and i.is_branch: preds.setdefault(labels[i.target], []).append(k)
        def required(k):
            c = ins[k]; worst = 0
            stack = [(k - 1, 0)]; seen = set()
            while stack:
                j, d = stack.pop()
                while j >= 0 and d < MAXD:
                    if (j, d) in seen: break
                    seen.add((j, d))
                    p = ins[j]
                    if p.label:
                        for b in preds.get(j, []): stack.append((b, d))
                        q = j - 1
                        while q >= 0 and ins[q].op is None and not ins[q].label: q -= 1
                        if q >= 0 and ins[q].op in ('s_branch', 's_endpgm'): break
                        j -= 1; continue
                    if p.op is None: j -= 1; continue
                    worst = max(worst, need(p, c) - d)
                    d += p.states(); j -= 1
            return worst
        fix = None
        out = []
        changed = False
        for k, i in enumerate(ins):
            if i.op and not changed:
                r = required(k)
                if r > 0:
                    out.append('    s_nop %d    ; hazard pad' % (r - 1)); total += 1
                    changed = True; first = k
            out.append(lines[k])
        lines = out
        if not changed: return lines, total

def hazard_pass_fast(lines):
    ins = []
    out = []
    n = 0
    for l in lines:
        c = Ins(l)
        if c.op:
            d = 0; worst = 0
            for p in reversed(ins):
                if d >= MAXD: break
                if p.op is None: continue
                if p.op in ('s_branch', 's_endpgm'): break
                worst = max(worst, need(p, c) - d)
                d += p.states()
            if worst > 0:
                t = '    s_nop %d    ; hazard pad' % (worst - 1)
                out.append(t); ins.append(Ins(t)); n += 1
        out.append(l); ins.append(c)
    out, m = hazard_pass(out)
    return out, n + m

class Emit:
    def __init__(self):
        self.lines = []
        self.vm = 0
        self.lg = 0
    def __call__(self, s):
        for l in s.split('\n'):
            l = l.strip()
            if not l: continue
            if l.endswith(':'): self.lines.append(l); continue
            self.lines.append('    ' + l)
            op = l.split()[0]
            if op.startswith(('buffer_', 'global_')): self.vm += 1
            if op.startswith('ds_'): self.lg += 1
        return self
    def c(self, s): self.lines.append('    ; ' + s)
    def vtok(self): return self.vm
    def ltok(self): return self.lg
    def wait_vm(self, tok):
        n = self.vm - tok
        assert 0 <= n <= 63, n
        self('s_waitcnt vmcnt(%d)' % n)
    def wait_lg(self, tok):
        n = self.lg - tok
        assert 0 <= n, n
        self('s_waitcnt lgkmcnt(%d)' % min(n, 15))

def vr(a, n=1):
    return 'v%d' % a if n == 1 else 'v[%d:%d]' % (a, a + n - 1)
def sr(a, n=1):
    return 's%d' % a if n == 1 else 's[%d:%d]' % (a, a + n - 1)

import subprocess, tempfile, os
def sizes_of(lines, name):
    src = '.amdgcn_target "amdgcn-amd-amdhsa--gfx950"\n.text\n.p2align 8\n%s:\n' % name + '\n'.join(lines) + '\n'
    with tempfile.TemporaryDirectory() as d:
        open(d + '/a.s', 'w').write(src)
        subprocess.run(['clang', '-x', 'assembler', '-target', 'amdgcn-amd-amdhsa', '-mcpu=gfx950', '-c', d + '/a.s', '-o', d + '/a.o'], check=True)
        out = subprocess.run(['llvm-objdump', '-d', '--mcpu=gfx950', d + '/a.o'], capture_output=True, text=True, check=True).stdout
    sz = [4 * len(m.group(1).split()) for m in re.finditer(r'// [0-9A-F]{12}: ((?:[0-9A-F]{8} ?)+)', out)]
    res = []; k = 0
    for l in lines:
        if Ins(l).op: res.append(sz[k]); k += 1
        else: res.append(0)
    assert k == len(sz), (k, len(sz))
    return res

WIDEN = ('v_mov_b32', 'v_add_u32', 'v_xor_b32', 'v_and_b32', 'v_or_b32', 'v_lshlrev_b32', 'v_lshrrev_b32', 'v_add_f32', 'v_mul_f32', 'v_max_f32',
         'v_exp_f32', 'v_rcp_f32', 'v_rsq_f32', 'v_min_u32', 'v_sub_f32')
def align_pass(lines, name, minrun=3, mfma=0):
    sz = sizes_of(lines, name)
    out = []; osz = []; addr = 0; nw = npad = 0
    n = len(lines)
    for k in range(n):
        if sz[k] == 8 and addr % 8 == 4 and not (k and osz and [s for s in osz if s][-1:] == [8]):
            run = 0; hasm = False; j = k
            while j < n and sz[j] in (0, 8):
                if sz[j]: run += 1; hasm |= 'v_mfma' in lines[j]
                j += 1
            if run >= minrun:
                j = len(out) - 1; cand = None
                while j >= 0 and osz[j] in (0, 4):
                    if osz[j] == 4 and out[j].split()[0] in WIDEN: cand = j
                    j -= 1
                if cand is not None:
                    p = out[cand].split(None, 1)
                    out[cand] = '    ' + p[0] + '_e64 ' + p[1]; osz[cand] = 8; addr += 4; nw += 1
                elif mfma or not hasm:
                    out.append('    s_nop 0'); osz.append(4); addr += 4; npad += 1
        out.append(lines[k]); osz.append(sz[k]); addr += sz[k]
    return out, nw, npad
```

```python
import sys, struct
from asmlib import *

NAME = 'parallel_sum__linear_attn_block__dense_activation_mish__prompt'
OPT = dict(diag=0, cyc=0, kts2=0, wg=0, ia=0, ib=0,
           pf=0, wpf=1, t3=1, t3c=3, q3=1, nb=0, b2b=5, sp=0, sp0=4, spn=4, thr=8, cpf=1, ld=0, rotp=0, tsm=0xffff, p2ts=0, nors=0, ecut=0, kap=1, hole=0, fw=0, fr=0, fl=0, apoll=1, azp=0, cnt=0, nozp=1, w1=4, w2=2, w3=11, zdel=0, p1map=0, asc=1, fsc=1, early=1, p2map=0, burst=3, bsp=6, alldma=0, ysc=1, noepi=0, hp0=0, hp1=0, hp2=0, zslp=4, seq=0, l2pf=0, slp=0, xpos=387, xpos1=560, lpos=600, a0=2, a1=4, da=6, x2=2, cbx=3, b2a=6, r6=0, r7=2, apos=686, l1pos=687, al=1, alr=3, ls=14, ae=1, l1p=0, olp=0, fg=256, eord=0, warm=0, ly=6, lo=18, pl=6, l1=0, osc=2,
           nomfma=0, nob2=0, nost=0, p2noa=0, p2nom=0, p2now=0)
assert not any(a == 'burst=1' for a in sys.argv)
assert not any(a == 'ae=0' for a in sys.argv)
for a in sys.argv[2:]:
    k, v = a.split('='); assert k in OPT, k; OPT[k] = int(v)
DIAG = OPT['diag']

WS_RS = 0x1000
WS_CS = 0x30000
WS_KV = 0x50000
WS_TS = 0xE0000
WS_YF = 0x100000
WS_Y = 0x200000
FS = 2048 if OPT['hole'] else 1024
YRT = 72 * FS
WS_SIZE = WS_Y + 128 * YRT
SLOT = 45056
L_W = 16384; L_S = 40960
SCR = 147456
L_R = SCR
L_CS = SCR + 1024
L_BT = SCR + 2048
L_KX = SCR + 4096
L_KF = SCR + 2048
L_KF = SCR + 12288
L_SY = 3 * SLOT + 0
LDS_BYTES = 163840
GS = (14 * 8192, 0, 10 * 8192, 4 * 8192)
L_SYA = SCR + 2048; L_SYF = SCR + 4096

sW, sRB, sG, sF, sKC, sRB2, sCB, sLI = 3, 4, 5, 6, 7, 8, 9, 10
pX, pWQKV, pWO, pW1, pB1, pW2, pOUT, pDBG, pWS = 16, 18, 20, 24, 26, 28, 30, 32, 34
SX, SWs, SW2, SWO, SWS, SOUT, SB1 = 36, 40, 44, 48, 52, 56, 60
sSY = 64
sNON = 68
sT = 70
sSPIN = 79
sNN = 76
sTS = 80

KTS = (16, 18, 20, 24, 26, 28, 30, 32, 34) if OPT['kts2'] != 1 else (32, 34, 36, 38, 40, 42, 12, 14, 10)
SC = {0: '', 1: ' sc1', 2: ' nt', 3: ' sc0'}
def fl(x): return '0x%08x' % struct.unpack('<I', struct.pack('<f', x))[0]
LOG2E = 1.4426950408889634

def srd(e, d, p, n):
    e(f's_mov_b32 s{d}, s{p}\ns_mov_b32 s{d+1}, s{p+1}\ns_mov_b32 s{d+2}, {n}\ns_mov_b32 s{d+3}, 0x20000')

TSI = 's_memtime' if OPT['cyc'] else 's_memrealtime'
def ts(e, k, st=0, p2=0):
    if not HELP[0] and k in (1, 2, 5, 6, 7) and p2 != OPT['p2ts']: return
    if OPT['kts2'] == 3 and 2 <= k <= 5 and not st and HELP[0]: return
    if st and OPT['kts2'] != 3: return
    if not HELP[0] and not (OPT['tsm'] >> k) & 1: return
    if DIAG: e(f'{TSI} s[{sTS+2*k}:{sTS+2*k+1}]' + ('\ns_waitcnt lgkmcnt(0)' if k == 10 or (HELP[0] and k == 6) else ''))

HELP = [False]
_lab = [0]
def lab(p):
    _lab[0] += 1
    return f'L_{p}_{_lab[0]}'

def ts_dump(e, nst, wave_off):
    if not DIAG: return
    if DIAG == 3:
        if wave_off == 0: return
        Ls = lab('dd'); Lw = lab('dw')
        e(f's_cmp_lg_u32 s{sW}, 0\ns_cbranch_scc1 {Ls}\ns_cmp_lg_u32 s2, {OPT["wg"]}\ns_cbranch_scc1 {Ls}')
        e(f's_sub_u32 s{sT}, s{sTS+2*OPT["ib"]}, s{sTS+2*OPT["ia"]}\ns_min_u32 s{sT}, s{sT}, 10000\ns_mul_i32 s{sT}, s{sT}, 20')
        e(f'{Lw}:')
        e(f's_memrealtime s[72:73]\ns_waitcnt lgkmcnt(0)\ns_sub_u32 s72, s72, s{sTS+2*(nst-1)}\ns_cmp_lt_u32 s72, s{sT}\ns_cbranch_scc1 {Lw}')
        e(f'{Ls}:')
        return
    e('v_mov_b32 v1, 0')
    if wave_off == 0:
        for c in range(9): e(f'v_writelane_b32 v1, s{KTS[c]}, {7+c}')
    for k in range(nst): e(f'v_writelane_b32 v1, s{sTS+2*k}, {k}')
    e(f's_lshl_b32 s{sT}, s2, 3\ns_add_u32 s{sT}, s{sT}, s{sW}\ns_add_u32 s{sT}, s{sT}, {wave_off}\ns_lshl_b32 s{sT}, s{sT}, 6\ns_add_u32 s{sT}, s{sT}, {WS_TS}')
    e('v_lshlrev_b32 v2, 2, v0\ns_mov_b64 exec, 0xffff')
    e(f'buffer_store_dword v1, v2, s[{SWS}:{SWS+3}], s{sT} offen\ns_mov_b64 exec, -1')

def spin_init(e, n=200000): e(f's_mov_b32 s{sSPIN}, {n}')
def spin_tail(e, L, D, slp=None):
    slp = OPT['slp'] if slp is None else slp
    e(f's_sub_u32 s{sSPIN}, s{sSPIN}, 1\ns_cmp_eq_u32 s{sSPIN}, 0\ns_cbranch_scc1 {D}')
    if slp: e(f's_sleep {slp}')
    e(f's_branch {L}')

PF = 40
sFP = 66
FSTR = 128 if OPT['fl'] else 4
FG = OPT['fg']
FPH = max(128, 4 * FG)
def poll_look(phase, PF): return f's_load_dwordx16 s[{PF}:{PF+15}], s[{sFP}:{sFP+1}], {phase*128} glc'
def poll(e, phase, PF, issued=False):
    L, D, M = lab('poll'), lab('pdone'), lab('pmid')
    spin_init(e)
    if issued: e(f's_branch {M}')
    e(f'{L}:')
    e(poll_look(phase, PF))
    if issued: e(f'{M}:')
    e('s_waitcnt lgkmcnt(0)')
    for i in range(8): e(f's_xor_b64 s[{PF+2*i}:{PF+2*i+1}], s[{PF+2*i}:{PF+2*i+1}], s[{sNN}:{sNN+1}]')
    for st in (2, 4, 8):
        for i in range(0, 16, 2 * st): e(f's_or_b64 s[{PF+i}:{PF+i+1}], s[{PF+i}:{PF+i+1}], s[{PF+i+st}:{PF+i+st+1}]')
    e(f's_cbranch_scc0 {D}')
    spin_tail(e, L, D)
    e(f'{D}:')

FV = 12
def put_flag(e, phase):
    if OPT['fw'] == 0: e(f's_atomic_swap s{sNON}, s[{sFP}:{sFP+1}], {phase*FPH}')
    elif OPT['fl']: e(f'v_lshlrev_b32 v2, 2, v0\nv_add_u32 v2, {phase*FPH}, v2\ns_mov_b32 exec_hi, 0\nglobal_store_dword v2, v{FV}, s[{sFP}:{sFP+1}] sc1\ns_mov_b64 exec, -1')
    else: e(f'v_mov_b32 v2, {phase*FPH}\ns_mov_b64 exec, 1\nglobal_store_dword v2, v{FV}, s[{sFP}:{sFP+1}] sc1\ns_mov_b64 exec, -1')

UN = (0, 4, 1, 5, 3, 2, 6) if OPT['eord'] else (0, 4, 1, 5, 2, 6, 3)
def b2_src(n, w): return (SW2, (7 * w + UN[n]) * 65536) if n < 7 else (SWO, (2 * w + n - 7) * 65536)

def helper(e):
    vX, vWo, vS, vB, vL16, vBuf = 2, 6, 8, 9, 11, 96
    sXB, sWB, sHX, sHW, sHS = 11, 12, 13, 14, 15
    sUST, sSD, sCK, sL, sB2, sK0, sCSB, sRSB = 23, 76, 77, 78, 60, 61, 62, 63
    e('v_lshrrev_b32 v40, 3, v0\nv_and_b32 v41, 7, v0\nv_lshrrev_b32 v42, 4, v0')
    e(f'v_xor_b32 v43, v41, v42\nv_lshlrev_b32 v43, 4, v43\nv_lshl_add_u32 v{vX}, v40, 10, v43')
    e(f'v_xor_b32 v{vX+1}, 64, v{vX}\nv_add_u32 v{vX+1}, {8192-1024}, v{vX+1}')
    e(f'v_add_u32 v{vX+2}, {2*(8192-1024)}, v{vX}\nv_add_u32 v{vX+3}, {2*(8192-1024)}, v{vX+1}')
    e(f's_lshl_b32 s{sHX}, s{sW}, 12\ns_lshl_b32 s{sXB}, s{sRB}, 17\ns_lshl_b32 s{sT}, s{sW}, 15\ns_add_u32 s{sXB}, s{sXB}, s{sT}')
    e(f's_lshl_b32 s{sT+1}, s{sKC}, 7\ns_add_u32 s{sT+1}, s{sT+1}, s{sXB}\ns_mov_b32 m0, s{sHX}')
    e(f's_mov_b32 s{SX+2}, {2048*1024}\ns_mov_b32 s{SX+3}, 0x20000\ns_mov_b32 s{SWs+3}, 0x20000')
    e(f's_lshr_b32 s{sT}, s{sG}, 1\ns_mul_i32 s{sT}, s{sT}, 896\ns_and_b32 s{sT+2}, s{sG}, 1\ns_lshl_b32 s{sT+3}, s{sT+2}, 9\ns_add_u32 s{sT}, s{sT}, s{sT+3}')
    e(f's_mul_i32 s{sSD}, s{sT+2}, -448\ns_add_u32 s{sSD}, s{sSD}, 384\ns_lshl_b32 s{sT+2}, s{sG}, 7')
    e(f's_lshl_b32 s{sT+3}, s{sF}, 9\ns_add_u32 s{sT+3}, s{sT+3}, 3072')
    e(f's_lshl_b32 s{sCK}, s{sT+3}, 6\ns_lshl_b32 s{SWs+2}, s{sT+3}, 9\ns_mul_i32 s{sWB}, s{sT+3}, s{sW}\ns_lshl_b32 s{sWB}, s{sWB}, 4')
    e('v_and_b32 v43, 1, v42\nv_lshlrev_b32 v43, 1, v43\nv_xor_b32 v43, v41, v43\nv_lshlrev_b32 v43, 4, v43')
    e(f'v_mad_u32_u24 v{vWo}, v40, s{sT+3}, v43\ns_lshl_b32 s{sT+4}, s{sT+3}, 3\ns_sub_u32 s{sT+4}, s{sT+4}, 1024')
    e(f'v_xor_b32 v{vWo+1}, 64, v{vWo}\nv_add_u32 v{vWo+1}, s{sT+4}, v{vWo+1}')
    e('v_lshrrev_b32 v44, 2, v0\nv_and_b32 v45, 3, v0\nv_and_b32 v46, 2, v42\nv_xor_b32 v45, v45, v46\nv_lshlrev_b32 v45, 4, v45')
    e(f'v_mad_u32_u24 v{vS}, v44, s{sT+3}, v45')
    e(f's_lshl_b32 s{sHW}, s{sW}, 11\ns_lshl_b32 s{sHS}, s{sW}, 10\ns_add_u32 s{sHS}, s{sHS}, {L_S}')
    e(f's_cmp_lg_u32 s{sF}, 0\ns_cselect_b32 s{sT}, s{sT}, s{sT+2}\ns_add_u32 s{sWB}, s{sWB}, s{sT}\ns_mov_b32 s{sL}, 0\ns_mov_b32 s{sK0}, s{sKC}')
    e('s_waitcnt lgkmcnt(0)')
    ts(e, 2, 1)
    e(f's_mov_b32 s{SX}, s{pX}\ns_mov_b32 s{SX+1}, s{pX+1}')

    def chunk_groups(first=False):
        g = []
        pre = [] if first else [f's_lshl_b32 s{sT+1}, s{sKC}, 7', f's_add_u32 m0, s{sL}, s{sHX}', f's_add_u32 s{sT+1}, s{sT+1}, s{sXB}']
        for i in range(4):
            g.append((pre if i == 0 else []) + [f'buffer_load_dwordx4 v{vX+i}, s[{SX}:{SX+3}], s{sT+1} offen offset:{i*1024} lds'])
        if first:
            g.append([f's_cmp_lg_u32 s{sF}, 0', f's_cselect_b32 s{SWs}, s{pW1}, s{pWQKV}', f's_cselect_b32 s{SWs+1}, s{pW1+1}, s{pWQKV+1}',
                      f's_movk_i32 s{sUST}, 1024', f's_cselect_b32 s{sUST}, 128, s{sUST}'])
        for u in range(3):
            if u == 0: pre = [f's_add_u32 s{sT+4}, s{sL}, s{sHW}', f's_mul_i32 s{sT+2}, s{sKC}, s{sCK}', f's_add_u32 m0, s{sT+4}, {L_W}', f's_add_u32 s{sT+2}, s{sT+2}, s{sWB}']
            else: pre = [f's_add_u32 m0, s{sT+4}, {L_W+u*8192}', f's_add_u32 s{sT+3}, s{sT+2 if u == 1 else sT+3}, s{sUST}']
            so = sT + 2 if u == 0 else sT + 3
            for i in range(2):
                g.append((pre if i == 0 else []) + [f'buffer_load_dwordx4 v{vWo+i}, s[{SWs}:{SWs+3}], s{so} offen offset:{i*1024} lds'])
        Ls = lab('nostrip')
        g.append([f's_cmp_eq_u32 s{sF}, 0', f's_cbranch_scc1 {Ls}', f's_add_u32 m0, s{sL}, s{sHS}', f's_add_u32 s{sT+3}, s{sT+2}, s{sSD}',
                  f'buffer_load_dwordx4 v{vS}, s[{SWs}:{SWs+3}], s{sT+3} offen lds', f'{Ls}:',
                  f's_add_u32 s{sKC}, s{sKC}, 1', f's_and_b32 s{sKC}, s{sKC}, 7', f's_add_u32 s{sL}, s{sL}, {SLOT}',
                  f's_cmp_eq_u32 s{sL}, {3*SLOT}', f's_cselect_b32 s{sL}, 0, s{sL}'])
        return g

    def b2_groups(pos):
        n, w = pos
        S, off = b2_src(n, w)
        g = []
        for i in range(2):
            pre = [f's_add_u32 s{sT+4}, s{sB2}, {off}'] if i == 0 else []
            if n < 4:
                if i == 0: pre = [f's_add_u32 m0, s{sHW}, {GS[n]+w*8192}'] + pre
                g.append(pre + [f'buffer_load_dwordx4 v{vB+i}, s[{S}:{S+3}], s{sT+4} offen offset:{i*1024} lds'])
            else:
                r = vBuf + (((n - 4) * 4 + w) * 2 + i) * 4
                g.append(pre + [f'buffer_load_dwordx4 v[{r}:{r+3}], v{vB+i}, s[{S}:{S+3}], s{sT+4} offen offset:{i*1024}'])
        if OPT['nob2']: return []
        return g

    def issue(groups):
        for g in groups:
            for l in g:
                e(l)
                if l.startswith(f'buffer_load_dwordx4 v{vS},'): e.vm -= 1
    tok = {}
    for c in ((0,) if OPT['early'] else (0, 1)):
        issue(chunk_groups(c == 0)); tok[c] = e.vtok()
    ts(e, 3, 1)
    srd(e, SW2, pW2, 1792 * 1024); srd(e, SWO, pWO, 512 * 1024); srd(e, SWS, pWS, WS_SIZE)
    e(f'v_lshlrev_b32 v43, 1, v42\nv_xor_b32 v43, v41, v43\nv_lshlrev_b32 v43, 4, v43')
    e(f'v_lshl_add_u32 v{vB}, v40, 10, v43\nv_add_u32 v{vB+1}, {8192-1024}, v{vB}')
    e(f's_and_b32 s{sT}, s{sRB2}, 1\ns_xor_b32 s{sT}, s{sT}, s{sW}\ns_lshl_b32 s{sB2}, s{sT}, 14\ns_lshl_b32 s{sT}, s{sCB}, 7\ns_add_u32 s{sB2}, s{sB2}, s{sT}')
    e(f'v_lshlrev_b32 v{vL16}, 4, v0')
    vN, vT, vTG, vRG, vRW, vSY = 12, 13, 14, 15, 16, 17
    e(f's_lshl_b32 s{sT}, s{sW}, 8\nv_lshl_add_u32 v{vN}, v0, 2, s{sT}\nv_add_u32 v{vT}, {L_CS}, v{vN}')
    e(f's_lshl_b32 s{sCSB}, s{sF}, 3\ns_add_u32 s{sCSB}, s{sCSB}, s{sG}\ns_lshl_b32 s{sCSB}, s{sCSB}, 13\ns_add_u32 s{sCSB}, s{sCSB}, {WS_CS}')
    e(f'v_bfe_u32 v44, v0, 1, 4\nv_and_b32 v45, 1, v0\nv_lshlrev_b32 v45, 4, v45\nv_lshl_add_u32 v{vRG}, v44, 7, v45')
    e(f's_lshl_b32 s{sRSB}, s{sRB}, 13\ns_add_u32 s{sRSB}, s{sRSB}, s{sHW}\ns_add_u32 s{sRSB}, s{sRSB}, {WS_RS}')
    e(f'v_and_b32 v44, 31, v0\ns_lshl_b32 s{sT}, s{sW}, 7\ns_add_u32 s{sT}, s{sT}, {L_R}\nv_lshl_add_u32 v{vRW}, v44, 2, s{sT}')
    e(f'v_mov_b32 v{vSY}, s{sSY}\nv_and_b32 v45, 3, v0\nv_lshlrev_b32 v45, 3, v45')
    def cpf():
        if not OPT['cpf']: return
        Lq = lab('pc')
        e(f's_getpc_b64 s[{sT}:{sT+1}]')
        e(f'{Lq}:')
        e(f's_lshl_b32 s{sT+2}, s{sLI}, 2\ns_add_u32 s{sT+2}, s{sT+2}, s{sW}\ns_mul_i32 s{sT+2}, s{sT+2}, 192\ns_min_u32 s{sT+2}, s{sT+2}, L_code_end-{Lq}-132')
        e(f's_add_u32 s{sT}, s{sT}, s{sT+2}\ns_addc_u32 s{sT+1}, s{sT+1}, 0')
        for k in range(3): e(f's_load_dword s65, s[{sT}:{sT+1}], {k*64}')
    if OPT['l2pf']:
        e(f's_lshl_b32 s{sT}, s{sLI}, 2\ns_add_u32 s{sT}, s{sT}, s{sW}\ns_mul_i32 s{sT+1}, s{sT}, 14\nv_min_u32 v50, 13, v0\nv_add_u32 v50, s{sT+1}, v50')
        e(f'v_lshrrev_b32 v51, 2, v50\nv_and_b32 v50, 3, v50\nv_lshlrev_b32 v50, 7, v50\nv_lshl_add_u32 v50, v51, 10, v50')
        e(f'v_and_b32 v51, 3, v0\nv_lshlrev_b32 v51, 7, v51\ns_lshl_b32 s{sT}, s{sT}, 10\nv_add_u32 v51, s{sT}, v51')
    def l2pf(k):
        if not OPT['l2pf']: return
        e(f's_lshr_b32 s{sT}, s2, 1\ns_add_u32 s{sT}, s{sT}, {k}\ns_and_b32 s{sT}, s{sT}, 3\ns_and_b32 s{sT+1}, s2, 1\ns_lshl_b32 s{sT+1}, s{sT+1}, 9')
        e(f's_mul_i32 s{sT+2}, s{sT}, {448*1024}\ns_add_u32 s{sT+2}, s{sT+2}, s{sT+1}\ns_lshl_b32 s{sT}, s{sT}, 17\ns_add_u32 s{sT}, s{sT}, s{sT+1}')
        e(f'buffer_load_dword v56, v50, s[{SW2}:{SW2+3}], s{sT+2} offen\nbuffer_load_dword v56, v51, s[{SWO}:{SWO+3}], s{sT} offen')
    def kts(c, two=0):
        if DIAG == 1 and two == OPT['kts2']: e(f'{TSI} s[{KTS[c]}:{KTS[c]+1}]' + '')
    dq = [(0, 0), (0, 1), (0, 2), (0, 3), (2, 1), (2, 2), (1, 0), (1, 1), (1, 2), (1, 3), (2, 3), (3, 0), (2, 0), (3, 1), (3, 2), (3, 3)]
    rq = [(n, w) for n in range(4, 9) for w in range(4)]
    assert OPT['b2a'] <= 6 and OPT['b2a'] + OPT['b2b'] <= 12
    def take(q, n):
        g = []
        for _ in range(min(n, len(q))): g += b2_groups(q.pop(0))
        return g
    def gather_loads():
        for k in range(8): e(f'buffer_load_dword v{20+k}, v{vN}, s[{SWS}:{SWS+3}], s{sCSB if k < 4 else sT+5} offen offset:{(k&3)*1024} sc1')
        e(f'buffer_load_dwordx4 v[28:31], v{vRG}, s[{SWS}:{SWS+3}], s{sRSB} offen sc1')
    ts(e, 4, 1)
    if OPT['kts2'] == 3 and OPT['cnt']:
        e('s_waitcnt vmcnt(0)'); ts(e, 5, 1)
    if OPT['early']:
        issue(chunk_groups()); tok[1] = e.vtok()
    ts(e, 1)
    if OPT['hp0']: e(f's_setprio {OPT["hp0"]}')
    for c in range(8):
        e.wait_vm(tok[c])
        if c == 7: kts(3, 2)
        e('s_barrier')
        kts(c)
        if c == 6: kts(0, 2)
        if c == 7: kts(4, 2)
        if c == 0:
            e(f'ds_read_b64 v[18:19], v{vSY}')
            if OPT['wpf']:
                e(f's_lshl_b32 s{sT}, s2, 2\ns_add_u32 s{sT}, s{sT}, s{sW}\ns_mul_i32 s{sT+1}, s{sT}, 1792\ns_lshl_b32 s{sT}, s{sT}, 9')
                e(f'buffer_load_dwordx4 v[56:59], v{vL16}, s[{SW2}:{SW2+3}], s{sT+1} offen')
                e(f'buffer_load_dwordx4 v[56:59], v{vL16}, s[{SW2}:{SW2+3}], s{sT+1} offen offset:768')
                e(f'v_min_u32 v55, 496, v{vL16}\nbuffer_load_dwordx4 v[56:59], v55, s[{SWO}:{SWO+3}], s{sT} offen')
        if OPT['t3'] and c == OPT['t3c']:
            e(f's_lshl_b32 s{sT}, s{sLI}, 2\ns_add_u32 s{sT}, s{sT}, s{sW}\ns_mul_i32 s{sT+1}, s{sT}, {14*1024}\ns_lshl_b32 s{sT}, s{sT}, 12')
            e(f'v_min_u32 v55, 13, v0\nv_lshlrev_b32 v55, 10, v55\nbuffer_load_dword v56, v55, s[{SW2}:{SW2+3}], s{sT+1} offen offset:384')
            e(f'v_min_u32 v55, 0xc00, v55\nbuffer_load_dword v56, v55, s[{SWO}:{SWO+3}], s{sT} offen offset:384')
        if c == 1: e(f'ds_read_b32 v20, v{vT}')
        if c == 6:
            e(f's_add_u32 s{sT+5}, s{sCSB}, 4096')
            gather_loads(); tg = e.vtok()
        if c == 7:
            L, Dn = lab('xchk'), lab('xdone')
            spin_init(e)
            e.wait_vm(tg)
            e(f'{L}:')
            for i in range(8): e(f'v_xor_b32 v{20+i}, v{vTG}, v{20+i}')
            e('v_or3_b32 v32, v20, v21, v22\nv_or3_b32 v32, v32, v23, v24\nv_or3_b32 v32, v32, v25, v26\nv_or_b32 v32, v32, v27\nv_and_b32 v32, 0xff, v32')
            e(f'v_xor_b32 v30, v18, v30\nv_xor_b32 v31, v19, v31\nv_or3_b32 v32, v32, v30, v31\nv_cmp_ne_u32 vcc, 0, v32')
            e(f's_cmp_eq_u64 vcc, 0\ns_cbranch_scc1 {Dn}')
            e(f's_sub_u32 s{sSPIN}, s{sSPIN}, 1\ns_cmp_eq_u32 s{sSPIN}, 0\ns_cbranch_scc1 {Dn}\ns_sleep 2')
            vm0 = e.vm
            gather_loads(); e.vm = vm0
            e(f's_waitcnt vmcnt(0)\ns_branch {L}')
            e(f'{Dn}:')
            e(f'ds_write_b32 v{vRW}, v28\nds_write_b32 v{vRW}, v29 offset:512')
            kts(2, 2)
            for a, b in ((20, 21), (22, 23), (24, 25), (26, 27), (20, 22), (24, 26), (20, 24)): e(f'v_add_f32 v{a}, v{a}, v{b}')
            e(f'ds_write_b32 v{vT}, v20')
        if c + 2 <= 7:
            if c == 0: l2pf(0)
            issue(chunk_groups()); tok[c + 2] = e.vtok()
            if c in (2, 3, 4): l2pf(c - 1)
            if c >= 2: issue(take(rq, OPT['nb']))
        elif c == 6:
            issue(take(dq, OPT['b2a'])); issue(take(rq, OPT['r6'])); kts(1, 2)
        else:
            issue(take(dq, OPT['b2b'])); issue(take(rq, OPT['r7'])); kts(5, 2)
        if c == 0:
            e(f's_waitcnt lgkmcnt(0)\nv_readfirstlane_b32 s{sNON}, v18\nv_readfirstlane_b32 s{sNON+1}, v19\nv_bfe_u32 v{vTG}, v18, v45, 8')
        if c == 1:
            e(f's_lshl_b32 s{sT}, s{sK0}, 10\ns_add_u32 s{sT}, s{sT}, s{sCSB}\ns_movk_i32 s{sT+1}, 0xff\ns_waitcnt lgkmcnt(0)')
            e(f'v_add_u32 v20, 0x80, v20\nv_bfi_b32 v20, s{sT+1}, v{vTG}, v20')
            e(f'buffer_store_dword v20, v{vN}, s[{SWS}:{SWS+3}], s{sT} offen sc1')
        if c == 4: cpf()
    kts(6, 2)
    e('s_waitcnt lgkmcnt(0)')
    kts(7, 2)
    e('s_barrier')
    kts(8); kts(8, 2)
    ts(e, 2)
    e(f's_setprio {OPT["hp1"]}')
    def w0(fn):
        Lo = lab('w0'); vm0 = e.vm
        e(f's_cmp_lg_u32 s{sW}, 0\ns_cbranch_scc1 {Lo}')
        fn(Lo)
        e(f'{Lo}:'); e.vm = vm0
    e(f's_lshl_b32 s{sT}, s{sW}, 2\nv_add_u32 v{vSY}, s{sT}, v{vSY}\nv_mov_b32 v24, -1')
    nD = 2 * len(dq); tD = e.vtok()
    allg = take(dq, 16) + take(rq, 20)
    PF = 16 if not (DIAG == 1 and OPT['kts2'] != 1) else 36
    landed = False
    for k, g in enumerate(allg + [[]]):
        if not landed and (k == nD + 12 or not g):
            e.wait_vm(tD); e(f'ds_write_b32 v{vSY}, v24 offset:16'); landed = True
        for l in g: e(l)
        if k + 1 == nD: tD = e.vtok()
        if OPT['thr']: e(f's_waitcnt vmcnt({OPT["thr"]})')
        elif k % 16 == 15: e('s_waitcnt vmcnt(40)')
    ts(e, 3)
    e(f's_setprio {OPT["hp2"]}')
    e(f'v_add_u32 v{vL16}, s{sHW}, v{vL16}')
    for r in range(4): e(f'v_add_u32 v{20+r}, {GS[r]}, v{vL16}')
    def refill(n, k0=0, k1=8):
        for k in range(k0, k1):
            if OPT['p2now']: continue
            b = vBuf + ((n - 4) * 8 + k) * 4
            e(f'ds_write_b128 v{20+n%4}, v[{b}:{b+3}] offset:{(k//2)*8192+(k&1)*1024}')
    L, Dn = lab('free'), lab('freed')
    e(f'v_mov_b32 v2, s{sSY}')
    spin_init(e, 2000000)
    kts(0, 1)
    e(f'{L}:')
    e('ds_read_b128 v[24:27], v2 offset:64\ns_waitcnt lgkmcnt(0)\nv_and_b32 v24, v24, v25\nv_and_b32 v26, v26, v27\nv_and_b32 v24, v24, v26')
    e(f'v_readfirstlane_b32 s{sT}, v24\ns_cmp_lg_u32 s{sT}, 0\ns_cbranch_scc1 {Dn}')
    spin_tail(e, L, Dn, 1)
    e(f'{Dn}:')
    kts(1, 1)
    for n in (4, 5, 6):
        e(f's_waitcnt vmcnt({8*(8-n)})')
        refill(n)
    e('s_waitcnt vmcnt(0) lgkmcnt(0)')
    kts(2, 1)
    e('s_barrier')
    kts(3, 1)
    refill(7, 0, OPT['w1'])
    kts(4, 1)
    e('s_barrier')
    kts(5, 1)
    refill(7, OPT['w1'], 8)
    refill(8)
    e('s_waitcnt lgkmcnt(0)')
    kts(6, 1)
    ts(e, 5)
    e('s_barrier')
    kts(7, 1); kts(8, 1)
    ts(e, 6)
    ts_dump(e, 7, 0)
    e('s_endpgm')

ACC = 16
XF = 128; WR = 160; CS = 192; SEL = 208; AX = 212; AW = 216; AS = 220; CSW = 224; L16 = 225; L16B = 226; G4 = 227; N16 = 228; SYV = 229
sRH, sCH = 11, 12
sC0, sCS_ = 65, 78
LY = 14
A0 = 80; BR = 128; AB = 244; VA = 248; VO = 1; XR = 40
sXP, sNC, sXF = 40, 42, 44
sAU, sAO, sO, sV0, sV1, sTR, sTC, sKV, sKR = 16, 17, 18, 19, 20, 21, 24, 25, 26
sEP = 19
TG = 28

def compute_early(e):
    e(f's_sub_u32 s{sW}, s{sW}, 4\ns_setprio 1\ns_and_b32 s{sRH}, s{sW}, 1\ns_lshr_b32 s{sCH}, s{sW}, 1')
    e(f'v_lshlrev_b32 v{L16}, 4, v0\nv_and_b32 v{N16}, 15, v0')
    e(f's_lshl_b32 s{sT}, s{sF}, 3\ns_add_u32 s{sT}, s{sT}, s{sG}\ns_lshl_b32 s{sT}, s{sT}, 2\ns_add_u32 s{sT}, s{sT}, s{sW}')
    e(f's_lshl_b32 s{sT+1}, s{sRB}, 6\ns_add_u32 s13, s{sT}, s{sT+1}\ns_lshl_b32 s{sT+1}, s13, 11')
    e(f's_mov_b32 s{SX+2}, {2048*1024}\ns_mov_b32 s{SX+3}, 0x20000\ns_mov_b32 s{SB1+2}, {1792*2}\ns_mov_b32 s{SB1+3}, 0x20000')
    e(f's_lshr_b32 s{sT}, s{sG}, 1\ns_mul_i32 s{sT}, s{sT}, 448\ns_and_b32 s{sT+2}, s{sG}, 1')
    e(f's_lshl_b32 s{sC0}, s{sT+2}, 8\ns_add_u32 s{sC0}, s{sC0}, s{sT}\ns_lshl_b32 s{sT+3}, s{sCH}, 5\ns_add_u32 s{sC0}, s{sC0}, s{sT+3}')
    e(f's_lshl_b32 s{sCS_}, s{sT+2}, 5\ns_add_u32 s{sCS_}, s{sCS_}, s{sT}\ns_add_u32 s{sCS_}, s{sCS_}, 192')
    e(f'v_bfe_u32 v5, v0, 4, 1\nv_xor_b32 v5, s{sRH}, v5\nv_lshl_add_u32 v2, v5, 4, v{N16}\nv_lshrrev_b32 v3, 5, v0')
    e(f'v_lshl_add_u32 v4, v3, 6, v2\nv_add_lshl_u32 v4, v4, s{sC0}, 1')
    e(f's_sub_u32 s{sT}, s{sCS_}, s{sC0}\ns_sub_u32 s{sT}, s{sT}, 128\nv_mul_lo_u32 v6, v3, s{sT}\nv_add3_u32 v6, v6, v2, s{sC0}\nv_add_u32 v6, 128, v6\nv_lshlrev_b32 v6, 1, v6')
    e('s_waitcnt lgkmcnt(0)')
    e(f's_mov_b32 s{SX}, s{pX}\ns_mov_b32 s{SX+1}, s{pX+1}')
    if OPT['nors']: e(f's_mov_b32 s{sT+1}, 0x7ff00000')
    for k in range(2): e(f'buffer_load_dwordx4 v[{XF+4*k}:{XF+4*k+3}], v{L16}, s[{SX}:{SX+3}], s{sT+1} offen offset:{k*1024}')
    e(f's_load_dwordx2 s[{sNON}:{sNON+1}], s[{pWS}:{pWS+1}], 0')
    e(f's_mov_b32 s{SB1}, s{pB1}\ns_mov_b32 s{SB1+1}, s{pB1+1}')
    e(f'buffer_load_ushort v8, v4, s[{SB1}:{SB1+3}], 0 offen\nbuffer_load_ushort v9, v6, s[{SB1}:{SB1+3}], 0 offen')
    e('s_branch L_compute')

def compute_common(e):
    srd(e, SWs, pWQKV, 512 * 3072)
    Lp = lab('pf_skip'); Lq = lab('pc'); Lr = lab('pf_done')
    e(f's_cmp_lg_u32 s{sW}, 1\ns_cbranch_scc1 {Lp}')
    e(f's_getpc_b64 s[{sT+2}:{sT+3}]')
    e(f'{Lq}:')
    e(f's_sub_u32 s{sT+2}, s{sT+2}, {Lq}-{NAME}_kernel\ns_subb_u32 s{sT+3}, s{sT+3}, 0')
    e(f's_lshl_b32 s{sT+4}, s{sLI}, 10\nv_add_u32 v2, s{sT+4}, v{L16}\nv_min_u32 v2, ' + (f'L_code_end-{NAME}_kernel-16' if OPT['pf'] else '0') + ', v2')
    e(f'global_load_dwordx4 v[252:255], v2, s[{sT+2}:{sT+3}]\ns_branch {Lr}')
    e(f'{Lp}:')
    e(f's_and_b32 s{sT}, s2, 3\ns_xor_b32 s{sT}, s{sT}, 1\ns_or_b32 s{sT}, s{sT}, s{sW}\ns_mul_i32 s{sT+1}, s{sLI}, {48*1024}')
    if OPT['p1map']: e(f's_mov_b32 s{sT}, s{sW}')
    e(f's_cmp_eq_u32 s{sT}, {0 if OPT["q3"] else 99}\ns_cselect_b32 s{sT+1}, s{sT+1}, 0x7ff00000\nv_min_u32 v2, 47, v0\nv_lshlrev_b32 v2, 10, v2')
    e(f'buffer_load_dword v252, v2, s[{SWs}:{SWs+3}], s{sT+1} offen offset:384')
    e(f'{Lr}:')
    if OPT['hole']: e(f'v_add_u32 v2, 8, v0\nv_and_b32 v2, 64, v2\nv_lshl_add_u32 v2, v2, 1, v{L16}\nv_add_u32 v{LY}, 512, v2')
    else: e(f'v_mov_b32 v{LY}, v{L16}')
    e(f'v_lshrrev_b32 v{G4}, 4, v0\nv_add_u32 v{L16B}, {YRT}, v{LY}')
    srd(e, SWS, pWS, WS_SIZE); srd(e, SOUT, pOUT, 2048 * 1024)
    e(f's_lshl_b32 s{sT}, s{sCH}, 2\nv_bfe_u32 v2, v0, 1, 3\nv_xor_b32 v2, v{G4}, v2\nv_xor_b32 v2, s{sT}, v2')
    e(f's_lshl_b32 s{sT}, s{sRH}, 13\ns_lshl_b32 s{sT+1}, s{sCH}, 12\ns_add_u32 s{sT}, s{sT}, s{sT+1}')
    e(f'v_lshlrev_b32 v3, 7, v{N16}\nv_add_u32 v3, s{sT}, v3\nv_lshl_add_u32 v{AX}, v2, 4, v3')
    e(f'v_xor_b32 v{AX+1}, 0x1000, v{AX}\nv_xor_b32 v{AX+2}, 64, v{AX}\nv_xor_b32 v{AX+3}, 64, v{AX+1}')
    e(f'v_bfe_u32 v2, v0, 2, 2\nv_lshl_add_u32 v2, v{G4}, 3, v2\ns_lshl_b32 s{sT}, s{sCH}, 5\nv_add_u32 v2, s{sT}, v2')
    e('v_and_b32 v4, 3, v0\nv_cmp_eq_u32 vcc, 0, v4\nv_lshlrev_b32 v4, 3, v4\nv_bfe_u32 v7, v0, 3, 2')
    e(f'v_xor_b32 v7, s{sW}, v7\nv_lshl_add_u32 v7, v7, 5, v4\nv_lshl_add_u32 v7, v2, 7, v7\nv_add_u32 v{AW}, {L_W}, v7')
    e(f'v_xor_b32 v{AW+1}, 32, v{AW}\nv_xor_b32 v{AW+2}, 0x1000, v{AW}\nv_xor_b32 v{AW+3}, 0x1000, v{AW+1}')
    e(f'v_lshl_add_u32 v6, v5, 5, v4\nv_lshl_add_u32 v6, v2, 6, v6\nv_add_u32 v{AS}, {L_S}, v6')
    e(f'v_xor_b32 v{AS+1}, 32, v{AS}\nv_xor_b32 v{AS+2}, 0x800, v{AS}\nv_xor_b32 v{AS+3}, 0x800, v{AS+1}')
    e('v_mov_b32 v3, 0x3f803f80')
    e(f's_lshl_b32 s{sT}, s{sCH}, 9\ns_lshl_b32 s{sT+1}, s{sRH}, 6\ns_add_u32 s{sT}, s{sT}, s{sT+1}\ns_add_u32 s{sT}, s{sT}, {L_CS}')
    e(f'v_cndmask_b32 v{SEL}, 0, v3, vcc\nv_lshl_add_u32 v{CSW}, v{N16}, 2, s{sT}')
    for i in range(1, 4): e(f'v_mov_b32 v{SEL+i}, v{SEL}')
    e(f's_lshl_b32 s{sT}, s{sRB}, 1\ns_add_u32 s{sT}, s{sT}, s{sRH}\ns_mul_i32 s{sT+2}, s{sT}, {8*FPH//FSTR}\ns_lshl_b32 s{sT}, s{sT}, 1\ns_add_u32 s{sT}, s{sT}, s{sCH}')
    e(f's_xor_b32 s{sT+1}, s{sT}, 1\ns_mul_i32 s76, s{sT}, {2*YRT}\ns_mul_i32 s77, s{sT+1}, {2*YRT}')
    e(f's_lshr_b32 s{sT}, s{sG}, 1\ns_mul_i32 s{sT}, s{sT}, {FG//4-4}\ns_add_u32 s{sT+2}, s{sT+2}, s{sT}')
    e(f's_lshl_b32 s{sT}, s{sG}, 1\ns_add_u32 s{sT+2}, s{sT+2}, s{sT}\ns_add_u32 s{sT+2}, s{sT+2}, s{sCH}\ns_mul_i32 s{sT+2}, s{sT+2}, {FSTR}\ns_add_u32 s{sT+2}, s{sT+2}, {WS_YF}')
    e(f's_xor_b32 s{sT}, s{sF}, 1\ns_mul_i32 s{sT}, s{sT}, {FPH}\ns_add_u32 s{sT+2}, s{sT+2}, s{sT}')
    e(f's_add_u32 s{sFP}, s{pWS}, s{sT+2}\ns_addc_u32 s{sFP+1}, s{pWS+1}, 0')
    if OPT['warm']:
        e('s_mov_b32 s48, 0')
        for ph in range(3): e(f's_atomic_add s48, s[{sFP}:{sFP+1}], {ph*FPH}')
    e(f's_mov_b32 s14, 0\ns_mov_b32 s15, 0\ns_mov_b32 s22, {-2*SLOT}')
    e('s_waitcnt lgkmcnt(0)')
    e(f's_mul_i32 s{sT+4}, s{sNON}, 0x4c957f2d\ns_mul_hi_u32 s{sT+5}, s{sNON}, 0x4c957f2d')
    e(f's_mul_i32 s{sT}, s{sNON+1}, 0x4c957f2d\ns_add_u32 s{sT+5}, s{sT+5}, s{sT}')
    e(f's_mul_i32 s{sT}, s{sNON}, 0x5851f42d\ns_add_u32 s{sT+5}, s{sT+5}, s{sT}')
    e(f's_add_u32 s{sNON}, s{sT+4}, 0xf767814f\ns_addc_u32 s{sNON+1}, s{sT+5}, 0x14057b7e')
    e(f'v_mov_b32 v{FV}, s{sNON}\nv_mov_b32 v{FV+1}, s{sNON+1}\nv_mov_b32 v2, s{sSY}\ns_lshl_b32 s{sT}, s{sW}, 2\nv_add_u32 v{SYV}, s{sT}, v2\nv_mov_b32 v3, 0')
    e(f'ds_write_b64 v2, v[{FV}:{FV+1}]\nds_write_b32 v{SYV}, v3 offset:16\nds_write_b32 v{SYV}, v3 offset:32\nds_write_b32 v{SYV}, v3 offset:48\nds_write_b32 v{SYV}, v3 offset:64')
    e(f's_lshl_b32 s{sT}, s{sRB2}, 2\ns_add_u32 s{sT+1}, s{sT}, s{sW}\ns_lshl_b32 s{sT+1}, s{sT+1}, 14\ns_lshl_b32 s{sT+2}, s{sCB}, 7\ns_add_u32 s{sO}, s{sT+1}, s{sT+2}')
    e(f'v_bfe_u32 v2, v0, 4, 1\nv_lshrrev_b32 v3, 5, v0\nv_lshlrev_b32 v3, 4, v3\nv_lshl_add_u32 v3, v2, 5, v3\nv_lshl_add_u32 v{VO}, v{N16}, 10, v3')
    e(f's_mul_i32 s{sT}, s{sT}, {YRT}\ns_add_u32 s{sT}, s{sT}, {WS_Y}')
    e(f's_mul_i32 s{sT+1}, s{sW}, {7*2*FS}\ns_add_u32 s{sAU}, s{sT}, s{sT+1}\ns_mul_i32 s{sT+1}, s{sW}, {2*2*FS}\ns_add_u32 s{sAO}, s{sT}, s{sT+1}\ns_add_u32 s{sAO}, s{sAO}, {28*2*FS}')
    e(f's_mul_i32 s{sT}, s{sRB2}, {8*FPH}\ns_mul_i32 s{sT+1}, s{sW}, {FG}\ns_add_u32 s{sT}, s{sT}, s{sT+1}\ns_add_u32 s{sT}, s{sT}, {WS_YF}')
    e(f's_add_u32 s{sXP}, s{pWS}, s{sT}\ns_addc_u32 s{sXP+1}, s{pWS+1}, 0\ns_mov_b32 s{sNC}, s{sNON}\ns_mov_b32 s{sNC+1}, s{sNON}')
    e('v_lshrrev_b32 v2, 2, v0\nv_bfe_u32 v3, v0, 3, 2\nv_and_b32 v4, 3, v0\nv_lshlrev_b32 v4, 3, v4\nv_lshl_add_u32 v4, v3, 5, v4\nv_lshl_add_u32 v4, v2, 7, v4')
    e(f's_lshl_b32 s{sT+1}, s{sW}, 13\nv_add_u32 v15, s{sT+1}, v4\ns_or_b32 s{sEP}, s2, s{sW}')
    e(f's_lshl_b32 s{sTR}, s{sRH}, 8\ns_lshl_b32 s{sT+1}, s{sCH}, 7\ns_add_u32 s{sTR}, s{sTR}, s{sT+1}\ns_add_u32 s{sTR}, s{sTR}, {L_R}')
    e(f's_lshl_b32 s{sTC}, s{sCH}, 9\ns_lshl_b32 s{sT+2}, s{sRH}, 6\ns_add_u32 s{sTC}, s{sTC}, s{sT+2}\ns_add_u32 s{sTC}, s{sTC}, {L_CS}')
    e(f's_mov_b32 s{sT}, 0xffff0000\ns_waitcnt vmcnt(3)')
    S = 136; R = FV - 2
    for k in range(2):
        for d in range(4):
            w = XF + 4 * k + d
            e(f'v_lshlrev_b32 v2, 16, v{w}\nv_and_b32 v3, s{sT}, v{w}')
            if d == 0: e(f'v_add_f32 v{S+2*k}, v2, v3\nv_mul_f32 v{S+2*k+1}, v2, v2')
            else: e(f'v_add_f32 v{S+2*k}, v{S+2*k}, v2\nv_fmac_f32 v{S+2*k+1}, v2, v2\nv_add_f32 v{S+2*k}, v{S+2*k}, v3')
            e(f'v_fmac_f32 v{S+2*k+1}, v3, v3')
    for i in range(2): e(f'v_permlane32_swap_b32 v{S+i}, v{S+2+i}')
    for i in range(2): e(f'v_add_f32 v{S+i}, v{S+i}, v{S+2+i}')
    for i in range(2): e(f'v_mov_b32 v{S+2+i}, v{S+i}')
    for i in range(2): e(f'v_permlane16_swap_b32 v{S+2+i}, v{S+i}')
    for i in range(2): e(f'v_add_f32 v{S+i}, v{S+i}, v{S+2+i}')
    for ror in (1, 2, 4, 8):
        for i in range(2): e(f'v_add_f32_dpp v{S+i}, v{S+i}, v{S+i} row_ror:{ror} row_mask:0xf bank_mask:0xf')
    e(f's_lshl_b32 s{sT}, s13, 7\ns_add_u32 s{sT}, s{sT}, {WS_RS}')
    e(f'v_mul_f32 v2, {fl(-1/512)}, v{S}\nv_mul_f32 v3, {fl(1/512)}, v{S+1}\nv_fma_f32 v3, -v2, v2, v3\nv_max_f32 v3, 0, v3\nv_add_f32 v3, {fl(1e-5)}, v3')
    e(f'v_rsq_f32 v3, v3\nv_lshrrev_b32 v4, 5, v0\nv_lshlrev_b32 v4, 4, v4\nv_lshl_add_u32 v4, v{N16}, 5, v4\nv_mul_f32 v{R}, {fl(LOG2E)}, v3\nv_mul_f32 v{R+1}, v{R}, v2')
    e(f's_mov_b32 exec_lo, 0xf\ns_mov_b32 exec_hi, 0xf\nbuffer_store_dwordx4 v[{R}:{R+3}], v4, s[{SWS}:{SWS+3}], s{sT} offen sc1\ns_mov_b64 exec, -1')

def acc_main(u, rt, jj): return ACC + ((u * 4 + rt) * 2 + jj) * 4
def acc_strip(rt, jj): return ACC + 96 + (rt * 2 + jj) * 4

AB2 = 252
def readB(n):
    b = BR + 32 * (n % 3); hi = GS[n % 4] >= 65536
    return [f'ds_read_b64_tr_b16 v[{b+8*ct+4*s+2*j}:{b+8*ct+4*s+2*j+1}], v{(AB2 if hi else AB)+ct} offset:{GS[n%4]-(GS[2] if hi else 0)+s*4096+j*2048}'
            for ct in range(4) for s in range(2) for j in range(2)]
STEPS = [(n, j) for n in range(7) for j in range(4)] + [(n, j) for j in range(4) for n in (7, 8)]
DA = OPT['da']
ABUF = [80, 88, 96, 104, 112, 120, 232][:DA]
A1 = OPT['a1']
GATE = lambda u: 2 if 8 <= u < 16 else 10 if 16 <= u < 24 else (18 if OPT['x2'] else 10) if 24 <= u < 28 else 22 if u >= 28 else 0
ISSUE = {}
_u = A1
for _t in range(36):
    ISSUE[_t] = []
    while _u < 36 and _u - DA <= _t and GATE(_u) <= _t and len(ISSUE[_t]) < 2: ISSUE[_t].append(_u); _u += 1
assert all(t <= u - 3 for t in ISSUE for u in ISSUE[t])
def loadA(t):
    n, j = STEPS[t]
    L = []
    if n < 7 and j == 0: L.append(f's_add_u32 s{sT}, s{sAU}, {UN[n]*2*FS}')
    for s in range(2):
        a = ABUF[t % DA] + 4 * s
        so, off = (sT, s * FS) if n < 7 else (sAO, ((n - 7) * 2 + s) * FS)
        L.append('s_nop 0' if OPT['p2noa'] else f'buffer_load_dwordx4 v[{a}:{a+3}], v{VA+j}, s[{SWS}:{SWS+3}], s{so} offen offset:{off}' + SC[OPT['asc']])
    return L

def p2_resid(e):
    for h in range(2): e(f'buffer_load_dwordx4 v[{XR+4*h}:{XR+4*h+3}], v{VO}, s[{SX}:{SX+3}], s{sO} offen offset:{h*64}')
def look(phase): return f's_load_dwordx4 s[{sXF}:{sXF+3}], s[{sXP}:{sXP+1}], {phase*FPH} glc'
COLD = []
def check(e, phase, pre='', lg=True):
    L, D, M = lab('chk'), lab('chkd'), lab('chkm')
    e(f's_waitcnt {pre}' + ('lgkmcnt(0)' if lg else ''))
    cmp = [f's_xor_b64 s[{sXF}:{sXF+1}], s[{sXF}:{sXF+1}], s[{sNC}:{sNC+1}]', f's_xor_b64 s[{sXF+2}:{sXF+3}], s[{sXF+2}:{sXF+3}], s[{sNC}:{sNC+1}]',
           f's_or_b64 s[{sXF}:{sXF+1}], s[{sXF}:{sXF+1}], s[{sXF+2}:{sXF+3}]']
    for l in cmp: e(l)
    e(f's_cbranch_scc1 {M}')
    e(f'{D}:')
    c = Emit()
    c(f'{M}:'); spin_init(c); c(f'{L}:'); c(look(phase)); c('s_waitcnt lgkmcnt(0)')
    for l in cmp: c(l)
    c(f's_cbranch_scc0 {D}')
    spin_tail(c, L, D)
    COLD.extend(c.lines)
def p2_va(e):
    for j in range(4):
        e(f's_add_u32 s{sT+5}, s{sW}, {1+j}\ns_and_b32 s{sT+5}, s{sT+5}, 3\ns_mul_i32 s{sT+5}, s{sT+5}, {YRT}\nv_add_u32 v{VA+j}, s{sT+5}, v{LY}')
def p2_start(e, t0, t1):
    for t in range(t0, t1):
        for l in loadA(t): e(l)
def land_look(r): return f'v_mov_b32 v2, s{sSY}\nds_read_b128 v[{r}:{r+3}], v2 offset:16'
def land_check(e, r):
    L, D, M = lab('land'), lab('landd'), lab('landm')
    cmp = f'v_and_b32 v{r}, v{r}, v{r+1}\nv_and_b32 v{r+2}, v{r+2}, v{r+3}\nv_and_b32 v{r}, v{r}, v{r+2}\nv_readfirstlane_b32 s{sT+5}, v{r}\ns_cmp_eq_u32 s{sT+5}, 0'
    e(cmp + f'\ns_cbranch_scc1 {M}')
    e(f'{D}:')
    c = Emit()
    c(f'{M}:'); spin_init(c, 2000000); c(f'{L}:'); c(land_look(r)); c('s_waitcnt lgkmcnt(0)'); c(cmp); c(f's_cbranch_scc0 {D}')
    spin_tail(c, L, D, 1)
    COLD.extend(c.lines)
def p2_preread(e):
    for ct in range(4): e(f'v_xor_b32 v{AB+ct}, {32*ct}, v15\nv_add_u32 v{AB2+ct}, {GS[2]}, v{AB+ct}')
    for n in range(3):
        for l in readB(n): e(l)
    e(f'v_mov_b32 v2, -1\nds_write_b32 v{SYV}, v2 offset:64')

def p2_accinit(e):
    e('s_mov_b32 s22, 0xffff0000')
    for h in range(2):
        for i in range(2): e(f'v_permlane16_swap_b32 v{XR+4*h+i}, v{XR+4*h+2+i}')
    for i in range(8): e(f'v_lshlrev_b32 v{ACC+48+2*i}, 16, v{XR+i}\nv_and_b32 v{ACC+48+2*i+1}, s22, v{XR+i}')

def pair_wait(e, off, reads):
    L, Dn = lab('pair'), lab('paird')
    spin_init(e, 2000000)
    e(f'{L}:')
    e(f'ds_read_b32 v3, v9 offset:{off}')
    for l in reads: e(l)
    e(f's_waitcnt lgkmcnt({len(reads)})\nv_readfirstlane_b32 s{sT+5}, v3\ns_cmp_lg_u32 s{sT+5}, 0\ns_cbranch_scc1 {Dn}')
    spin_tail(e, L, Dn, 0)
    e(f'{Dn}:')

def compute_p1(e, F):
    sDL, sCNT, sSL, sY0, sY1, sYS = 13, 14, 15, 76, 77, 78
    if F:
        e(f's_mul_i32 s{sT+3}, s{sCS_}, {FS//32}\ns_add_u32 s{sYS}, s{sY0}, s{sT+3}\ns_add_u32 s{sYS}, s{sYS}, {WS_Y}')
        e(f's_mul_i32 s{sT+2}, s{sC0}, {FS//32}\ns_add_u32 s{sT+2}, s{sT+2}, {WS_Y}')
        e(f's_lshl_b32 s{sT}, s{sW}, 9\ns_add_u32 s{sT}, s{sT}, {L_BT}\nv_lshl_add_u32 v2, v0, 2, s{sT}')
        e('s_waitcnt vmcnt(2)')
        e(f'v_lshlrev_b32 v8, 16, v8\nv_lshlrev_b32 v9, 16, v9\nv_mul_f32 v8, {fl(LOG2E)}, v8\nv_mul_f32 v9, {fl(LOG2E)}, v9')
        e('ds_write_b32 v2, v8\nds_write_b32 v2, v9 offset:256')
    else:
        e(f's_lshl_b32 s{sT}, s{sG}, 2\ns_add_u32 s{sT}, s{sT}, s{sW}\ns_mul_i32 s{sKV}, s{sT}, {16*1152}\ns_add_u32 s{sKV}, s{sKV}, {WS_KV}')
        e(f's_mul_i32 s{sKR}, s{sRB}, 1152\ns_add_u32 s{sKR}, s{sKR}, s{sKV}')
        for i in range(4): e(f's_lshr_b64 s[{sT}:{sT+1}], s[{sNON}:{sNON+1}], {12*i}\ns_and_b32 s{TG+i}, s{sT}, 0xfff')
        e(f's_lshl_b32 s{sT+2}, s{sG}, 1\ns_add_u32 s{sT+2}, s{sT+2}, s{sCH}\ns_mul_i32 s{sT+2}, s{sT+2}, {FS}\ns_add_u32 s{sT+2}, s{sT+2}, {WS_Y+56*FS}')
    e(f's_add_u32 s{sY0}, s{sY0}, s{sT+2}\ns_add_u32 s{sY1}, s{sY1}, s{sT+2}\ns_waitcnt lgkmcnt(0)')

    seq = [(0, 0), (1, 0), (2, 0), (3, 0), (3, 1), (0, 1), (1, 1), (2, 1)] if F else [(0, 0), (1, 0), (2, 0), (0, 1), (1, 1), (2, 1)]
    NP = len(seq); RING = 4 if F else 3
    def wreads(p):
        u, jj = seq[p]; b = WR + 8 * (p % RING)
        if u < 3: return [f'ds_read_b64_tr_b16 v[{b+4*s+2*j}:{b+4*s+2*j+1}], v{AW+2*s+jj} offset:{u*8192+j*512}' for s in range(2) for j in range(2)]
        return [f'ds_read_b64_tr_b16 v[{b+4*s+2*j}:{b+4*s+2*j+1}], v{AS+2*s+jj} offset:{j*256}' for s in range(2) for j in range(2)]
    def xreads(rt):
        return [f'ds_read_b128 v[{XF+8*rt+4*s}:{XF+8*rt+4*s+3}], v{AX+2*s+(rt>>1)} offset:{(rt&1)*2048}' for s in range(2)]
    def mfma(d, a, b, z): return f'v_mfma_f32_16x16x32_bf16 v[{d}:{d+3}], v[{a}:{a+3}], v[{b}:{b+3}], ' + ('0' if z else f'v[{d}:{d+3}]')
    def mfmas(p, first):
        u, jj = seq[p]; b = WR + 8 * (p % RING)
        m = []
        for rt in range(4 if u < 3 else 2):
            d = acc_main(u, rt, jj) if u < 3 else acc_strip(rt, jj)
            for s in range(2):
                w, x = b + 4 * s, XF + 8 * rt + 4 * s; z = first and s == 0
                m.append((rt, mfma(d, w, x, z) if (F or u == 0) else mfma(d, x, w, z)))
        if jj == 0 and first:
            m = [(None, mfma(CS + 4 * u, SEL, b + 4 * s, s == 0)) for s in range(2 if u < 3 else 1)] + m
        if OPT['nomfma']: m = [(rt, 's_nop 0') for rt, _ in m]
        return m
    ts(e, 1)
    e('s_barrier')
    ts(e, 2)
    tokW = {}; tokX = {}
    for l in wreads(0): e(l)
    tokW[0] = e.ltok()
    w1 = wreads(1)
    for rt in range(4):
        e(w1[rt])
        if rt == 3: tokW[1] = e.ltok()
        for l in xreads(rt): e(l)
        tokX[rt] = e.ltok()
    LK = lab('kloop')
    for first in (True, False):
        if not first: e(f'{LK}:')
        for p in range(NP):
            m = mfmas(p, first)
            ex = list(wreads((p + 2) % NP))
            nW = len(ex)
            if first and 1 <= p <= (4 if F else 3):
                ex = [f'ds_write_b32 v{CSW}, v{CS+4*(p-1)} offset:{(p-1)*128}'] + ex; nW += 1
            if p == 0: ex += [f's_add_u32 s{sSL}, s{sSL}, 1', f's_cmp_eq_u32 s{sSL}, 3', f's_cselect_b32 s{sDL}, s22, {SLOT}', f's_cselect_b32 s{sSL}, 0, s{sSL}']
            if p == 1: ex += [f'v_add_u32 v{a}, s{sDL}, v{a}' for a in (AW, AW + 2, AX, AX + 1)]
            if p == 2: ex += [f'v_add_u32 v{a}, s{sDL}, v{a}' for a in (AX + 2, AX + 3)]
            if p == NP - 3 and F: ex += [f'v_add_u32 v{a}, s{sDL}, v{a}' for a in (AS, AS + 1, AS + 2, AS + 3)]
            if p == NP - 2:
                ex += [f'v_add_u32 v{a}, s{sDL}, v{a}' for a in (AW + 1, AW + 3)]
                ex += [f's_add_u32 s{sCNT}, s{sCNT}, 1', f's_cmp_lt_u32 s{sCNT}, 8']
                e('s_waitcnt lgkmcnt(0)\ns_barrier')
            elif p != NP - 1:
                e.wait_lg(tokW[p])
            seen = set()
            k = 0
            for i, (rt, x) in enumerate(m):
                if p == 0 and rt is not None and rt not in seen:
                    e.wait_lg(tokX[rt]); seen.add(rt)
                e(x)
                if p == NP - 1:
                    if i % 2 == 0:
                        e(ex[i // 2])
                        if i == 6: tokW[1] = e.ltok()
                    else:
                        for l in xreads(i // 2): e(l)
                        tokX[i // 2] = e.ltok()
                else:
                    n = -(-(len(ex) - k) // (len(m) - i))
                    for l in ex[k:k + n]:
                        e(l); k += 1
                        if k == nW: tokW[(p + 2) % NP] = e.ltok()
    e(f's_cbranch_scc1 {LK}')
    ts(e, 3)
    e('s_waitcnt vmcnt(0)')
    e(f'v_lshl_add_u32 v2, v{N16}, 2, s{sTR}\nv_xor_b32 v3, 128, v2')
    e(f'v_lshl_add_u32 v4, v{G4}, 4, s{sTC}\nv_xor_b32 v5, 64, v4')
    H = 192
    if F:
        CSV = 128; BV = 160; RL = 240; NL = 244; KK = 232; U = 208
        e(f's_lshl_b32 s{sT+2}, s{sW}, 9\ns_add_u32 s{sT+2}, s{sT+2}, {L_BT}\nv_lshl_add_u32 v6, v{G4}, 4, s{sT+2}')
        tk = {}
        for u in range(4):
            for jj in range(2):
                t = 2 * u + jj
                e(f'ds_read_b128 v[{CSV+4*t}:{CSV+4*t+3}], v{4+jj} offset:{u*128}\nds_read_b128 v[{BV+4*t}:{BV+4*t+3}], v6 offset:{t*64}')
            if u == 0:
                for nm, o in ((NL, 512), (RL, 0)):
                    for rt in range(4): e(f'ds_read_b32 v{nm+rt}, v{2+(rt>>1)} offset:{(rt&1)*64+o}')
                e('v_xor_b32 v7, 0x200, v4\nv_xor_b32 v8, 0x200, v5')
            tk[u] = e.ltok()
        e('ds_read_b128 v[252:255], v8 offset:384\nds_read_b128 v[8:11], v7 offset:384')
        e(f'v_mov_b32 v{KK}, {fl(-2/LOG2E)}\nv_mov_b32 v{KK+1}, {fl(1/LOG2E)}')
        for u in (1, 2): e(f's_add_u32 s{sT+2*u-2}, s{sY0}, {2*u*FS}\ns_add_u32 s{sT+2*u-1}, s{sY1}, {2*u*FS}')
        held = []; pend = []; gi = -1
        for u in ((0, 1, 3, 2) if OPT['eord'] else (0, 1, 2, 3)):
            if u == 0: e.wait_lg(tk[0])
            if u == 1:
                e('s_waitcnt lgkmcnt(0)')
                for i in (0, 2):
                    e(f'v_pk_add_f32 v[{CSV+24+i}:{CSV+25+i}], v[{CSV+24+i}:{CSV+25+i}], v[{8+i}:{9+i}]')
                    e(f'v_pk_add_f32 v[{CSV+28+i}:{CSV+29+i}], v[{CSV+28+i}:{CSV+29+i}], v[{252+i}:{253+i}]')
            for p in range(2 if u < 3 else 1):
                a = acc_main(u, 2 * p, 0) if u < 3 else acc_strip(0, 0)
                L = []
                for i in range(0, 16, 2):
                    o = i >> 3; c = 8 * u + (i & 7)
                    L.append(f'v_pk_fma_f32 v[{H+i}:{H+i+1}], v[{CSV+c}:{CSV+c+1}], v[{NL+2*p}:{NL+2*p+1}], v[{BV+c}:{BV+c+1}] op_sel:[0,{o},0] op_sel_hi:[1,{o},1]')
                for i in range(0, 16, 2):
                    o = i >> 3
                    L.append(f'v_pk_fma_f32 v[{H+i}:{H+i+1}], v[{a+i}:{a+i+1}], v[{RL+2*p}:{RL+2*p+1}], v[{H+i}:{H+i+1}] op_sel:[0,{o},0] op_sel_hi:[1,{o},1]')
                for i in range(16): L.append(f'v_exp_f32 v{U+i}, v{H+i}')
                for i in range(0, 16, 2): L.append(f'v_pk_add_f32 v[{U+i}:{U+i+1}], v[{U+i}:{U+i+1}], 1.0 op_sel_hi:[1,0]')
                for i in range(0, 16, 2): L.append(f'v_pk_fma_f32 v[{U+i}:{U+i+1}], v[{U+i}:{U+i+1}], v[{U+i}:{U+i+1}], 1.0 op_sel_hi:[1,1,0]')
                for i in range(16): L.append(f'v_rcp_f32 v{U+i}, v{U+i}' if i >= OPT['ecut'] else 's_setprio 1')
                for i in range(0, 16, 2): L.append(f'v_pk_fma_f32 v[{U+i}:{U+i+1}], v[{U+i}:{U+i+1}], v[{KK}:{KK+1}], v[{KK}:{KK+1}] op_sel:[0,0,1] op_sel_hi:[1,0,1]')
                for i in range(0, 16, 2): L.append(f'v_pk_mul_f32 v[{U+i}:{U+i+1}], v[{U+i}:{U+i+1}], v[{H+i}:{H+i+1}]')
                for i in range(8): L.append(f'v_cvt_pk_bf16_f32 v{a+i}, v{U+2*i}, v{U+2*i+1}')
                if OPT['noepi']: L = ['s_sleep 8'] + ['s_nop 0'] * 1
                gi += 1
                for i, l in enumerate(L):
                    if gi * 100 + i == OPT['xpos']:
                        ts(e, 5); ts(e, 1, 0, 2); e.wait_vm(tX0); put_flag(e, 0); ts(e, 2, 0, 2); p2_resid(e); p2_va(e); ts(e, 6)
                    if gi * 100 + i == OPT['xpos1']:
                        ts(e, 5, 0, 2); e.wait_vm(tX); put_flag(e, 1); ts(e, 6, 0, 2)
                    if gi * 100 + i == OPT['lpos']: e(look(0)); e(land_look(4))
                    if gi * 100 + i == OPT['apos']:
                        ts(e, 7, 0, 2); check(e, 0); ts(e, 1, 0, 1); p2_start(e, 0, A1); land_check(e, 4)
                    if gi * 100 + i == OPT['l1pos']: e(look(1))
                    if pend and i % OPT['bsp'] == 0:
                        e(pend.pop(0))
                        if not pend: tX = e.vtok()
                    e(l)
                so, off = ((sY1 if p else sY0) if u == 0 else sT + 2 * u - 2 + p if u < 3 else sYS), 0
                for k in range(0 if OPT['nost'] else 2):
                    held.append(f'buffer_store_dwordx4 v[{a+4*k}:{a+4*k+3}], v{L16B if k else LY}, s[{SWS}:{SWS+3}], s{so} offen offset:{off}' + SC[OPT['ysc']])
                if OPT['burst'] == 0 or gi in {2: (1, 3, 6), 3: (1, 3, 5, 6), 4: (1, 4, 6), 5: (1, 3, 4, 6), 6: (1, 3, 4, 5, 6)}[OPT['burst']]:
                    if gi == 6: assert len(held) == 2 or OPT['nost']
                    for l in held: e(l)
                    held = []
                if gi == (4 if OPT['eord'] else 3): assert not held; tX = e.vtok()
                if gi == 1: tX0 = e.vtok()
                if gi == 5: tX2 = e.vtok()
        ts(e, 4)
        if OPT['ae']:
            p2_preread(e)
            if OPT['x2'] == 1: e.wait_vm(tX2); put_flag(e, 4); e('s_waitcnt lgkmcnt(1)')
            elif OPT['x2'] == 2: e(f's_waitcnt vmcnt({e.vm - tX2}) lgkmcnt(0)'); put_flag(e, 4)
            else: e('s_waitcnt lgkmcnt(0)')
        else:
            if OPT['xpos1'] == 700: e.wait_vm(tX); put_flag(e, 1)
            a0 = OPT['a0']
            check(e, 0); ts(e, 1, 0, 1)
            if OPT['l1p'] == 0: e(look(1))
            p2_start(e, 0, a0)
            p2_preread(e)
            if OPT['x2'] == 1:
                assert OPT['burst'] in (0, 3)
                e(f's_waitcnt vmcnt({e.vm - tX2}) lgkmcnt(0)'); put_flag(e, 4)
            p2_start(e, a0, A1)
    else:
        RV = 128; NVV = 144; CK = 160; CSQ = 164; RL = 172; NL = 176; EP = 230; ONE = 180; PK = 232; PV = 248; D1 = 240; D0 = 184; PQ = 48; U = 112
        e(f'v_lshl_add_u32 v6, v{G4}, 4, s{sTR}\nv_xor_b32 v7, 128, v6\nv_xor_b32 v8, 64, v{CSW}')
        for jj in range(2):
            e(f'ds_read_b32 v{CK+jj}, v{CSW if jj == 0 else 8} offset:128\nds_read_b32 v{CK+2+jj}, v{CSW if jj == 0 else 8} offset:256')
        for rt in range(4): e(f'ds_read_b128 v[{NVV+4*rt}:{NVV+4*rt+3}], v{6+(rt>>1)} offset:{(rt&1)*64+512}')
        tN = e.ltok()
        for rt in range(4): e(f'ds_read_b128 v[{RV+4*rt}:{RV+4*rt+3}], v{6+(rt>>1)} offset:{(rt&1)*64}')
        tR = e.ltok()
        for jj in range(2): e(f'ds_read_b128 v[{CSQ+4*jj}:{CSQ+4*jj+3}], v{4+jj}')
        for rt in range(4):
            e(f'ds_read_b32 v{RL+rt}, v{2+(rt>>1)} offset:{(rt&1)*64}\nds_read_b32 v{NL+rt}, v{2+(rt>>1)} offset:{(rt&1)*64+512}')
        e(f'v_mov_b32 v{EP}, {fl(1e-6*LOG2E)}\nv_mov_b32 v{EP+1}, {fl(1/LOG2E)}')
        def phi_tail(dst, mid=None):
            for i in range(16): e(f'v_exp_f32_e64 v{U+i}, v{H+i} clamp')
            if mid: mid()
            for i in range(16): e(f'v_max_f32 v{H+i}, v{EP}, v{H+i}')
            for i in range(0, 16, 2): e(f'v_pk_fma_f32 v[{H+i}:{H+i+1}], v[{H+i}:{H+i+1}], v[{EP}:{EP+1}], v[{U+i}:{U+i+1}] op_sel:[0,1,0] op_sel_hi:[1,1,1]')
            for i in range(0, 16, 2): e(f'v_cvt_pk_bf16_f32 v{dst(i)}, v{H+i}, v{H+i+1}')
        def send():
            e(f'ds_write_b128 v6, v[{D1}:{D1+3}]\nds_write_b128 v6, v[{D1+4}:{D1+7}] offset:1024\nds_write_b32 v{SYV}, v{ONE} offset:32')
        for h in (1, 0):
            ak = lambda i: acc_main(1, i >> 2, h) + (i & 3); av = lambda i: acc_main(2, i >> 2, h) + (i & 3)
            if h: e.wait_lg(tN)
            for i in range(0, 16, 2): e(f'v_pk_fma_f32 v[{H+i}:{H+i+1}], v[{NVV+i}:{NVV+i+1}], v[{CK}:{CK+1}], v[{EP}:{EP+1}] op_sel:[0,{h},0] op_sel_hi:[1,{h},0]')
            if h: e.wait_lg(tR)
            for i in range(0, 16, 2): e(f'v_pk_fma_f32 v[{H+i}:{H+i+1}], v[{ak(i)}:{ak(i)+1}], v[{RV+i}:{RV+i+1}], v[{H+i}:{H+i+1}]')
            if not h: send()
            phi_tail(lambda i: PK + (i >> 1))
            for i in range(0, 16, 2): e(f'v_pk_mul_f32 v[{H+i}:{H+i+1}], v[{NVV+i}:{NVV+i+1}], v[{CK+2}:{CK+3}] op_sel:[0,{h}] op_sel_hi:[1,{h}]')
            for i in range(0, 16, 2): e(f'v_pk_fma_f32 v[{H+i}:{H+i+1}], v[{av(i)}:{av(i)+1}], v[{RV+i}:{RV+i+1}], v[{H+i}:{H+i+1}]')
            if h:
                for i in range(4): e(f'v_mov_b32 v{ONE+i}, 0x3f803f80')
            for i in range(0, 16, 2): e(f'v_cvt_pk_bf16_f32 v{PV+(i>>1)}, v{H+i}, v{H+i+1}')
            d = D1 if h else D0
            for p in range(2): e(mfma(d + 4, PK + 4 * p, ONE, p == 0))
            for p in range(2): e(mfma(d, PK + 4 * p, PV + 4 * p, p == 0))
            if h:
                e(f's_lshl_b32 s{sT}, s{sW}, 11\ns_add_u32 s{sT}, s{sT}, {L_KX}\nv_add_u32 v6, s{sT}, v{L16}\nv_xor_b32 v7, 0x800, v6')
                e(f'v_lshlrev_b32 v9, 4, v{G4}\nv_lshl_add_u32 v8, v{N16}, 6, v9\nv_cmp_gt_u32 vcc, 2, v{N16}\nv_mov_b32 v10, 0x7ff00000')
                e(f'v_mul_u32_u24 v11, 1152, v{N16}\nv_add_u32 v11, v11, v9\nv_cndmask_b32 v8, v10, v8, vcc\nv_mov_b32 v10, 0xfff\nv_xor_b32 v9, 4, v{SYV}')
        pair_wait(e, 32, [f'ds_read_b128 v[{U}:{U+3}], v7', f'ds_read_b128 v[{U+4}:{U+7}], v7 offset:1024'])
        for k in range(2):
            e(f's_waitcnt lgkmcnt({1-k})')
            for i in range(4 * k, 4 * k + 4): e(f'v_add_f32 v{D0+i}, v{U+i}, v{D0+i}')
            for i in range(4 * k, 4 * k + 4): e(f'v_add_u32 v{D0+i}, 0x800, v{D0+i}')
            for i in range(4 * k, 4 * k + 4): e(f'v_bfi_b32 v{D0+i}, v10, s{TG+(i&3)}, v{D0+i}')
            if k == 0: e(f'buffer_store_dwordx4 v[{D0}:{D0+3}], v{L16}, s[{SWS}:{SWS+3}], s{sKR} offen sc1')
            else: e(f'buffer_store_dwordx4 v[{D0+4}:{D0+7}], v8, s[{SWS}:{SWS+3}], s{sKR} offen offset:1024 sc1')
        ts(e, 4)
        for p in range(2):
            a = acc_main(0, 2 * p, 0)
            for i in range(0, 16, 2):
                o = i >> 3; c = i & 7
                e(f'v_pk_fma_f32 v[{H+i}:{H+i+1}], v[{CSQ+c}:{CSQ+c+1}], v[{NL+2*p}:{NL+2*p+1}], v[{EP}:{EP+1}] op_sel:[0,{o},0] op_sel_hi:[1,{o},0]')
            for i in range(0, 16, 2):
                o = i >> 3
                e(f'v_pk_fma_f32 v[{H+i}:{H+i+1}], v[{a+i}:{a+i+1}], v[{RL+2*p}:{RL+2*p+1}], v[{H+i}:{H+i+1}] op_sel:[0,{o},0] op_sel_hi:[1,{o},1]')
            phi_tail(lambda i: PQ + 8 * p + (i >> 1))
        Z = 232; G = 64; KF = 236
        zload = f'buffer_load_dwordx4 v[{Z}:{Z+3}], v11, s[{SWS}:{SWS+3}], s{sKV} offen offset:1024 sc1'
        p2_resid(e)
        p2_va(e)
        e(land_look(AB) + '\ns_waitcnt lgkmcnt(0)')
        land_check(e, AB)
        p2_preread(e)
        e(f's_lshl_b32 s{sT}, s{sW}, 10\ns_add_u32 s{sT}, s{sT}, {L_KF}\nv_add_u32 v6, s{sT}, v{L16}\nv_xor_b32 v7, 0x400, v6')
        L, Dn, Fin = lab('zpoll'), lab('zdone'), lab('gdone')
        spin_init(e)
        if OPT['cnt']: e('s_mov_b32 s32, 0\ns_mov_b32 s33, 0')
        if OPT['zdel']: e(f's_sleep {OPT["zdel"]}')
        e(f'{L}:')
        if OPT['cnt']: e('s_add_u32 s32, s32, 100')
        if OPT['nozp']:
            ts(e, 5)
        elif OPT['azp']:
            e(f'v_mov_b32 v3, 0\ns_mov_b64 exec, 0xffff\nbuffer_atomic_or v3, v11, s[{SWS}:{SWS+3}], s{sKV} offen offset:1024 sc0 sc1\ns_mov_b64 exec, -1\ns_waitcnt vmcnt(0)')
            e(f'v_xor_b32 v3, s{TG}, v3\nv_and_b32 v3, v10, v3\nv_cmp_ne_u32 vcc, 0, v3')
            e(f's_and_b32 s{sT}, 0xffff, vcc_lo\ns_cbranch_scc0 {Dn}')
            spin_tail(e, L, Fin, OPT['zslp'])
            e(f'{Dn}:')
            ts(e, 5)
            e(zload)
        else:
            e(zload + '\ns_waitcnt vmcnt(0)')
            for i in range(4): e(f'v_xor_b32 v{Z+i}, s{TG+i}, v{Z+i}')
            e(f'v_or3_b32 v3, v{Z}, v{Z+1}, v{Z+2}\nv_or_b32 v3, v3, v{Z+3}\nv_and_b32 v3, v10, v3\nv_cmp_ne_u32 vcc, 0, v3')
            e(f's_cmp_eq_u64 vcc, 0\ns_cbranch_scc1 {Dn}')
            spin_tail(e, L, Fin, OPT['zslp'])
            e(f'{Dn}:')
            ts(e, 5)
        if OPT['cnt']: e('s_add_u32 s33, s33, 100')
        for r in range(16):
            if r % 4 == 0: e(f's_add_u32 s{sT+1}, s{sKV}, {r*1152}')
            e(f'buffer_load_dwordx4 v[{G+4*r}:{G+4*r+3}], v{L16}, s[{SWS}:{SWS+3}], s{sT+1} offen offset:{(r&3)*1152} sc1')
        def zsum():
            for ror in (1, 2, 4, 8):
                for i in range(4): e(f'v_add_f32_dpp v{Z+i}, v{Z+i}, v{Z+i} row_ror:{ror} row_mask:0xf bank_mask:0xf')
            e(f'v_cvt_pk_bf16_f32 v{KF+2}, v{Z}, v{Z+1}\nv_cvt_pk_bf16_f32 v{KF+3}, v{Z+2}, v{Z+3}')
        nz = 0
        if OPT['nozp']:
            e(zload + '\nv_mov_b32 v3, 0'); nz = 1
        elif OPT['azp']:
            e('s_waitcnt vmcnt(16)')
            for i in range(4): e(f'v_xor_b32 v{Z+i}, s{TG+i}, v{Z+i}')
            e(f'v_or3_b32 v3, v{Z}, v{Z+1}, v{Z+2}\nv_or_b32 v3, v3, v{Z+3}')
            zsum()
        else:
            e('v_mov_b32 v3, 0'); zsum()
        for r in range(16):
            b = G + 4 * r
            e(f's_waitcnt vmcnt({15-r+nz})')
            if r == 8: e(look(0))
            for i in range(4): e(f'v_xor_b32 v{b+i}, s{TG+i}, v{b+i}')
            e(f'v_or3_b32 v3, v3, v{b}, v{b+1}\nv_or3_b32 v3, v3, v{b+2}, v{b+3}')
            if r:
                for i in (0, 2): e(f'v_pk_add_f32 v[{G+i}:{G+i+1}], v[{G+i}:{G+i+1}], v[{b+i}:{b+i+1}]')
        if nz:
            e('s_waitcnt vmcnt(0)')
            for i in range(4): e(f'v_xor_b32 v{Z+i}, s{TG+i}, v{Z+i}')
            e(f'v_or3_b32 v3, v3, v{Z}, v{Z+1}\nv_or3_b32 v3, v3, v{Z+2}, v{Z+3}')
            zsum()
        e(f'v_and_b32 v3, v10, v3\nv_cmp_ne_u32 vcc, 0, v3\ns_cmp_eq_u64 vcc, 0\ns_cbranch_scc1 {Fin}')
        spin_tail(e, L, Fin, 1)
        e(f'{Fin}:')
        e(f'v_cvt_pk_bf16_f32 v{KF}, v{G}, v{G+1}\nv_cvt_pk_bf16_f32 v{KF+1}, v{G+2}, v{G+3}\nv_mov_b32 v2, -1')
        e(f'ds_write_b128 v6, v[{KF}:{KF+3}]\nds_write_b32 v{SYV}, v2 offset:48')
        ODR = (16, 24, 64, 72); P = 48
        if OPT['ae']: check(e, 0); ts(e, 1, 0, 1); p2_start(e, 0, A1)
        def omf(h):
            for rt in range(4):
                d = ODR[rt]; q = PQ + 4 * rt + 2 * h
                e(f'v_mfma_f32_16x16x16_bf16 v[{d+4}:{d+7}], v[{KF+4*h+2}:{KF+4*h+3}], v[{q}:{q+1}], 0')
                e(f'v_mfma_f32_16x16x16_bf16 v[{d}:{d+3}], v[{KF+4*h}:{KF+4*h+1}], v[{q}:{q+1}], 0')
        def ofin(h):
            for rt in range(4):
                d = ODR[rt]
                e(f'v_fmamk_f32 v{d+4}, v{d+4}, {fl(LOG2E)}, v{EP}')
            for rt in range(4): e(f'v_rcp_f32 v{ODR[rt]+4}, v{ODR[rt]+4}')
            for rt in range(4):
                d = ODR[rt]
                for i in (0, 2): e(f'v_pk_mul_f32 v[{d+i}:{d+i+1}], v[{d+i}:{d+i+1}], v[{d+4}:{d+5}] op_sel_hi:[1,0]')
            for rt in range(4):
                d = ODR[rt]
                for i in range(2): e(f'v_cvt_pk_bf16_f32 v{P+4*rt+2*h+i}, v{d+2*i}, v{d+2*i+1}')
                if h: e(f'buffer_store_dwordx4 v[{P+4*rt}:{P+4*rt+3}], v{L16B if rt&1 else LY}, s[{SWS}:{SWS+3}], s{sY1 if rt>>1 else sY0} offen' + SC[OPT['ysc']])
        omf(0)
        ofin(0)
        pair_wait(e, 48, [f'ds_read_b128 v[{KF+4}:{KF+7}], v7'])
        e('s_waitcnt lgkmcnt(0)')
        if OPT['ae']: e(look(1))
        omf(1)
        ofin(1)
        if OPT['ae'] and OPT['x2'] == 2: e('s_waitcnt lgkmcnt(0)')
        ts(e, 6)
        if not OPT['ae']:
            check(e, 0)
            ts(e, 1, 0, 1)
            e(look(1))
            p2_start(e, 0, A1)
            e('s_waitcnt lgkmcnt(0)')

def compute_p2(e):
    ts(e, 7)
    nA = 0 if OPT['p2noa'] else 2
    e.vm = A1 * nA + (2 if OPT['ae'] else 0)
    tokA = {t: (t + 1) * nA for t in range(A1)}
    ts(e, 2, 0, 1)
    c = Emit(); p2_accinit(c); ainit = [l.strip() for l in c.lines]
    RD = {}
    for n, (t0, k) in ({3: (4, 4), 4: (10, 8), 5: (14, 4), 6: (18, 8), 7: (22, 8), 8: (24, 6)} if OPT['eord'] else {3: (4, 4), 4: (10, 8), 5: (12, 4), 6: (18, 8) if OPT['x2'] else (16, 4), 7: (22, 8), 8: (24, 6)}).items():
        r = readB(n)
        for i in range(0, 16, k): RD[t0 + i // k] = (n, r[i:i + k])
    tokB = {}
    RED = (0, 16384, SCR)
    for t in range(36):
        n, j = STEPS[t]
        w = f'vmcnt({e.vm - tokA[t]}) '
        tY, tF = (14, 14) if OPT['eord'] else (10, 13)
        CH = {2: 1, 10: 4, 18: 2, 22: 3} if OPT['x2'] else {2: 1, tY: 2, 22: 3}
        if t in CH:
            check(e, CH[t], w, t != 2 or (OPT['ae'] and OPT['x2'] != 2))
            if t == 22:
                Le, Lb = lab('epoch'), lab('epochd')
                e(f's_cmp_eq_u32 s{sEP}, 0\ns_cbranch_scc1 {Le}\n{Lb}:')
                COLD.extend([f'{Le}:', '    s_mov_b64 exec, 1', f'    buffer_store_dwordx2 v[{FV}:{FV+1}], off, s[{SWS}:{SWS+3}], 0 sc1', '    s_mov_b64 exec, -1', f'    s_branch {Lb}'])
        elif t == tF: e(f's_waitcnt {w}lgkmcnt({e.lg - tokB[4]})')
        elif t == 10: e(f's_waitcnt {w}lgkmcnt(0)')
        elif j == 0 and n >= 3: e(f's_waitcnt {w}lgkmcnt({min(15, e.lg - tokB[n])})')
        elif t == 0:
            e(f's_waitcnt {w}' + ('' if OPT['x2'] or OPT['ae'] else 'lgkmcnt(0)'))
            if not OPT['ae']: put_flag(e, 2)
            for l in ainit[:5]: e(l)
        else: e(f's_waitcnt {w}')
        if OPT['ae'] and t == A1: put_flag(e, 2)
        if t == 0: ts(e, 8)
        if t == 2: ts(e, 6, 0, 1)
        if t == 10: ts(e, 7, 0, 1)
        if t in (10, tF, 22): e('s_barrier')
        ex = list(RD[t][1]) if t in RD else []
        if t in RD: tokB[RD[t][0]] = e.lg + len(ex)
        if t == OPT['ly']: ex.append(look(4 if OPT['x2'] else 2))
        if t == OPT['ls'] and OPT['x2']: ex.append(look(2))
        if t == OPT['lo']: ex.append(look(3))
        if t == 27:
            for jj in range(3): ex += [f's_add_u32 s{sT+1}, s{sW}, {1+jj}', f's_and_b32 s{sT+1}, s{sT+1}, 3', f's_lshl_b32 s{sT+1}, s{sT+1}, 12', f'v_add_u32 v{2+jj}, s{sT+1}, v{L16}']
        if t == 28: ex += [f'v_add_u32 v4, {SCR}, v4', f's_lshl_b32 s{sT+1}, s{sW}, 12', f'v_add_u32 v5, s{sT+1}, v{L16}', f'v_add_u32 v6, {SCR}, v5']
        if t >= 30:
            jj = (t - 30) // 2
            ex += ['s_nop 0'] * 2 * (1 - t % 2) + [f'ds_write_b128 v{2+jj}, v[{ACC+16*jj+4*q}:{ACC+16*jj+4*q+3}] offset:{(RED[jj] if jj < 2 else 0)+q*1024}' for q in ((0, 1) if t % 2 == 0 else (2, 3))]
        la = []
        for u in ISSUE[t]:
            L = loadA(u)
            if u - DA == t:
                if len(L) == 3: ex.append(L.pop(0))
                la = L
            else:
                ex += L + [('tok', u)]
        if t == 0: ex = ainit[5:] + ex
        k = 0
        for i in range(8):
            ct, s = i >> 1, i & 1
            d = ACC + 16 * j + 4 * ct; a = ABUF[t % DA] + 4 * s; b = BR + 32 * (n % 3) + 8 * ct + 4 * s
            c = '0' if (n == 0 and s == 0 and j < 3) else f'v[{d}:{d+3}]'
            e('s_nop 0' if OPT['p2nom'] else f'v_mfma_f32_16x16x32_bf16 v[{d}:{d+3}], v[{b}:{b+3}], v[{a}:{a+3}], {c}')
            lim = 6 if la else 8
            if i < lim:
                nx = -(-(len(ex) - k) // (lim - i))
                for l in ex[k:k + nx]:
                    if isinstance(l, tuple): tokA[l[1]] = e.vtok()
                    else: e(l)
                k += nx
            else: e(la[i - 6])
        if la: tokA[t + DA] = e.vtok()
    ts(e, 9)
    e('s_waitcnt lgkmcnt(0)\ns_barrier')
    OW = ACC + 48; RB = 128
    for q in range(4):
        for jj in range(3): e(f'ds_read_b128 v[{RB+12*q+4*jj}:{RB+12*q+4*jj+3}], v{5 if jj < 2 else 6} offset:{(RED[jj] if jj < 2 else 0)+q*1024}')
    for q in range(4):
        e(f's_waitcnt lgkmcnt({9-3*q})')
        for i in (0, 2):
            r = RB + 12 * q + i; o = OW + 4 * q + i
            e(f'v_pk_add_f32 v[{o}:{o+1}], v[{o}:{o+1}], v[{r}:{r+1}]\nv_pk_add_f32 v[{r+4}:{r+5}], v[{r+4}:{r+5}], v[{r+8}:{r+9}]')
        for i in (0, 2):
            r = RB + 12 * q + i; o = OW + 4 * q + i
            e(f'v_pk_add_f32 v[{o}:{o+1}], v[{o}:{o+1}], v[{r+4}:{r+5}]')
        for i in (0, 2): e(f'v_cvt_pk_bf16_f32 v{80+2*q+i//2}, v{OW+4*q+i}, v{OW+4*q+i+1}')
        if q & 1:
            h = q >> 1
            for i in range(2): e(f'v_permlane16_swap_b32 v{80+4*h+i}, v{80+4*h+2+i}')
            e(f'buffer_store_dwordx4 v[{80+4*h}:{83+4*h}], v{VO}, s[{SOUT}:{SOUT+3}], s{sO} offen offset:{h*64}' + SC[OPT['osc']])
    if DIAG: e('s_waitcnt vmcnt(0)')
    ts(e, 10)
    if OPT['cnt']: e(f's_add_u32 s{sTS+2}, s{sTS}, s32\ns_add_u32 s{sTS+4}, s{sTS}, s33')
    ts_dump(e, 11, 4)
    e('s_endpgm')

def main():
    e = Emit()
    e('s_load_dwordx16 s[16:31], s[0:1], 0\ns_load_dwordx4 s[32:35], s[0:1], 64')
    e('s_cmp_ge_u32 s2, 256\ns_cbranch_scc1 L_end')
    if DIAG: e(f'{TSI} s[{sTS}:{sTS+1}]')
    e(f'v_readfirstlane_b32 s{sW}, v0\nv_and_b32 v0, 63, v0')
    if OPT['p1map']:
        e(f's_lshr_b32 s{sLI}, s2, 3\ns_and_b32 s{sKC}, s2, 7\ns_lshl_b32 s{sRB}, s{sKC}, 1\ns_lshr_b32 s{sT}, s2, 7\ns_add_u32 s{sRB}, s{sRB}, s{sT}')
        e(f's_bfe_u32 s{sG}, s2, 0x20005\ns_lshl_b32 s{sG}, s{sG}, 1\ns_and_b32 s{sT+1}, s{sLI}, 1\ns_add_u32 s{sG}, s{sG}, s{sT+1}')
    else:
        e(f's_lshr_b32 s{sLI}, s2, 3\ns_bfe_u32 s{sRB}, s2, 0x10002\ns_lshl_b32 s{sRB}, s{sRB}, 3\ns_lshr_b32 s{sT}, s2, 5\ns_add_u32 s{sRB}, s{sRB}, s{sT}')
        e(f's_and_b32 s{sG}, s2, 3\ns_lshl_b32 s{sG}, s{sG}, 1\ns_and_b32 s{sT+1}, s{sLI}, 1\ns_add_u32 s{sG}, s{sG}, s{sT+1}')
        e(f's_add_u32 s{sT}, s{sT}, s2\ns_and_b32 s{sT}, s{sT}, 3\ns_lshl_b32 s{sT}, s{sT}, 1')
        e(f's_lshr_b32 s{sT+1}, s2, 2\ns_add_u32 s{sT+1}, s{sT+1}, {0 if OPT["kap"] else "s%d" % sLI}\ns_and_b32 s{sT+1}, s{sT+1}, 1\ns_add_u32 s{sKC}, s{sT}, s{sT+1}')
    if OPT['p2map']:
        e(f's_and_b32 s{sRB2}, s2, 6\ns_lshl_b32 s{sRB2}, s{sRB2}, 2\ns_lshr_b32 s{sT}, s2, 5\ns_add_u32 s{sRB2}, s{sRB2}, s{sT}')
        e(f's_and_b32 s{sCB}, s2, 1\ns_lshl_b32 s{sCB}, s{sCB}, 2\ns_and_b32 s{sT}, s{sLI}, 3\ns_add_u32 s{sCB}, s{sCB}, s{sT}')
    else:
        e(f's_and_b32 s{sRB2}, s2, 7\ns_lshl_b32 s{sRB2}, s{sRB2}, 2\ns_lshr_b32 s{sT}, s2, 6\ns_add_u32 s{sRB2}, s{sRB2}, s{sT}\ns_and_b32 s{sCB}, s{sLI}, 7\ns_xor_b32 s{sCB}, s{sCB}, {OPT["cbx"]}')
    e(f's_lshr_b32 s{sW}, s{sW}, 6\ns_bfe_u32 s{sF}, s2, 0x10004\ns_lshl_b32 s{sSY}, s{sF}, 11\ns_add_u32 s{sSY}, s{sSY}, {L_SYA}')
    e(f's_cmp_lt_u32 s{sW}, 4\ns_cbranch_scc1 L_helper')
    compute_early(e)
    e('L_helper:')
    HELP[0] = True
    helper(e)
    HELP[0] = False
    e('L_compute:')
    compute_common(e)
    e(f's_cmp_eq_u32 s{sF}, 0\ns_cbranch_scc1 L_compute_A')
    compute_p1(e, 1)
    e('s_branch L_p2')
    e('L_compute_A:')
    compute_p1(e, 0)
    e('L_p2:')
    compute_p2(e)
    e.lines += COLD
    e('L_end:\ns_endpgm\nL_code_end:')
    lines, n = hazard_pass_fast(e.lines)
    if OPT['al']:
        lines, nw, npad = align_pass(lines, NAME + '_kernel', OPT['alr'], OPT['al'] - 1)
        print('aligned: widened', nw, 'padded', npad)
    hdr = open('cdna_kernels/%s.s.ref' % NAME).read().split('; Override launch')[0]
    out = hdr + f'; @launch grid=(256,1,1) block=(512,1,1) lds={LDS_BYTES}\n'
    out += f'.amdgcn_target "amdgcn-amd-amdhsa--gfx950"\n.text\n.globl {NAME}_kernel\n.p2align 8\n.type {NAME}_kernel,@function\n{NAME}_kernel:\n'
    out += '\n'.join(lines) + '\n'
    out += f'''.section .rodata,"a"
.p2align 6
.amdhsa_kernel {NAME}_kernel
  .amdhsa_next_free_vgpr 256
  .amdhsa_next_free_sgpr 102
  .amdhsa_accum_offset 256
  .amdhsa_group_segment_fixed_size 0
  .amdhsa_kernarg_size 80
  .amdhsa_user_sgpr_count 2
  .amdhsa_user_sgpr_kernarg_segment_ptr 1
  .amdhsa_system_sgpr_workgroup_id_x 1
  .amdhsa_float_denorm_mode_32 3
.end_amdhsa_kernel
'''
    open(sys.argv[1], 'w').write(out)
    print('wrote', sys.argv[1], len(lines), 'lines,', n, 'hazard pads')

main()
```

```python
import sys, struct
from asmlib import *

NAME = 'parallel_sum__linear_attn_block__dense_activation_mish__prompt'
OPT = dict(diag=0, cyc=0, kts=0, p2ts=0, pert=0, al=1,
           pre1=6, wpc=2, s0=3, sn=12, b2a=6, b2b=5, r7=0, thr=8, w1=4, hp=0, hpk=0, hl=0,
           xpos=387, xpos1=560, lpos=562, a0=2, a1=4, ly=5, ls=13, lo=16,
           nob2=0, p2noa=0, ecut=0)
for a in sys.argv[2:]:
    k, v = a.split('='); assert k in OPT, k; OPT[k] = int(v)
DIAG = OPT['diag']

WS_RS = 0x1000
WS_CS = 0x30000
WS_KV = 0x50000
WS_TS = 0xE0000
WS_YF = 0x100000
FG = 256; FPH = 4 * FG
WS_Y = 0x200000
YRT = 72 * 1024
WS_SIZE = WS_Y + 128 * YRT
SLOT = 45056
L_W = 16384; L_S = 40960
GS = (14 * 8192, 0, 10 * 8192, 4 * 8192)
SCR = 147456
L_R = SCR
L_CS = SCR + 1024
L_BT = SCR + 2048
L_KX = SCR + 4096
L_KF = SCR + 12288
L_SY = SCR + 2048
LDS_BYTES = 163840

sW, sRB, sG, sF, sKC, sRB2, sCB, sLI = 3, 4, 5, 6, 7, 8, 9, 10
pX, pWQKV, pWO, pW1, pB1, pW2, pOUT, pWS = 16, 18, 20, 24, 26, 28, 30, 34
SX, SWs, SW2, SWO, SWS, SOUT, SB1 = 36, 40, 44, 48, 52, 56, 60
sSY, sNON, sT, sSPIN, sTS = 64, 68, 70, 79, 80

def fl(x): return '0x%08x' % struct.unpack('<I', struct.pack('<f', x))[0]
LOG2E = 1.4426950408889634
def srd(e, d, p, n): e(f's_mov_b32 s{d}, s{p}\ns_mov_b32 s{d+1}, s{p+1}\ns_mov_b32 s{d+2}, {n}\ns_mov_b32 s{d+3}, 0x20000')
_lab = [0]
def lab(p):
    _lab[0] += 1
    return f'L_{p}_{_lab[0]}'
COLD = []

TSI = 's_memtime' if OPT['cyc'] else 's_memrealtime'
KTS = (16, 18, 20, 24, 26, 28, 30, 32, 34)
def ts(e, k, p2=None):
    if DIAG and (p2 is None or p2 == OPT['p2ts']): e(f'{TSI} s[{sTS+2*k}:{sTS+2*k+1}]')
def ts_dump(e, nst, wave_off):
    if not DIAG: return
    e('s_waitcnt lgkmcnt(0)\nv_mov_b32 v1, 0')
    if wave_off == 0:
        for c in range(9): e(f'v_writelane_b32 v1, s{KTS[c]}, {7+c}')
    for k in range(nst): e(f'v_writelane_b32 v1, s{sTS+2*k}, {k}')
    e(f's_lshl_b32 s{sT}, s2, 3\ns_add_u32 s{sT}, s{sT}, s{sW}\ns_add_u32 s{sT}, s{sT}, {wave_off}\ns_lshl_b32 s{sT}, s{sT}, 6\ns_add_u32 s{sT}, s{sT}, {WS_TS}')
    e(f'v_lshlrev_b32 v2, 2, v0\ns_mov_b64 exec, 0xffff\nbuffer_store_dword v1, v2, s[{SWS}:{SWS+3}], s{sT} offen\ns_mov_b64 exec, -1')
_pn = [0]
def pert(e):
    if not OPT['pert']: return
    _pn[0] += 1
    L = lab('pert'); m = (0x9e3779b1 * (OPT['pert'] * 131 + _pn[0])) & 0xffffffff | 1
    e(f's_lshl_b32 s100, s2, 3\ns_add_u32 s100, s100, s{sW}\ns_add_u32 s100, s100, {_pn[0]*77}\ns_mul_i32 s100, s100, {m}\ns_lshr_b32 s100, s100, 28')
    e(f's_cmp_lt_u32 s100, 11\ns_cbranch_scc1 {L}\ns_sleep {20 + 25 * (_pn[0] % 4)}\n{L}:')

def spin_init(e, n=200000): e(f's_mov_b32 s{sSPIN}, {n}')
def spin_tail(e, L, D, slp=0):
    e(f's_sub_u32 s{sSPIN}, s{sSPIN}, 1\ns_cmp_eq_u32 s{sSPIN}, 0\ns_cbranch_scc1 {D}')
    if slp: e(f's_sleep {slp}')
    e(f's_branch {L}')

UN = (0, 4, 1, 5, 2, 6, 3)

def helper(e):
    vX, vWo, vS, vB, vL16, vN, vT, vTG, vRG, vRW, vSY, vBuf = 2, 6, 8, 9, 11, 12, 13, 14, 15, 16, 17, 96
    sXB, sWB, sHX, sHW, sHS = 11, 12, 13, 14, 15
    sRSP, sUST, sB2, sK0, sCSB, sRSB, sSD, sCK, sL = 22, 23, 60, 61, 62, 63, 76, 77, 78
    e('v_lshrrev_b32 v40, 3, v0\nv_and_b32 v41, 7, v0\nv_lshrrev_b32 v42, 4, v0')
    e(f'v_xor_b32 v43, v41, v42\nv_lshlrev_b32 v43, 4, v43\nv_lshl_add_u32 v{vX}, v40, 10, v43')
    e(f'v_xor_b32 v{vX+1}, 64, v{vX}\nv_add_u32 v{vX+1}, {8192-1024}, v{vX+1}')
    e(f'v_add_u32 v{vX+2}, {2*(8192-1024)}, v{vX}\nv_add_u32 v{vX+3}, {2*(8192-1024)}, v{vX+1}')
    e(f's_lshl_b32 s{sHX}, s{sW}, 12\ns_lshl_b32 s{sXB}, s{sRB}, 17\ns_lshl_b32 s{sT}, s{sW}, 15\ns_add_u32 s{sXB}, s{sXB}, s{sT}')
    e(f's_lshl_b32 s{sT+1}, s{sKC}, 7\ns_add_u32 s{sT+1}, s{sT+1}, s{sXB}\ns_mov_b32 m0, s{sHX}')
    e(f's_mov_b32 s{SX+2}, {2048*1024}\ns_mov_b32 s{SX+3}, 0x20000\ns_mov_b32 s{SWs+3}, 0x20000')
    e(f's_lshr_b32 s{sT}, s{sG}, 1\ns_mul_i32 s{sT}, s{sT}, 896\ns_and_b32 s{sT+2}, s{sG}, 1\ns_lshl_b32 s{sT+3}, s{sT+2}, 9\ns_add_u32 s{sT}, s{sT}, s{sT+3}')
    e(f's_mul_i32 s{sSD}, s{sT+2}, -448\ns_add_u32 s{sSD}, s{sSD}, 384\ns_lshl_b32 s{sT+2}, s{sG}, 7')
    e(f's_lshl_b32 s{sT+3}, s{sF}, 9\ns_add_u32 s{sT+3}, s{sT+3}, 3072')
    e(f's_lshl_b32 s{sCK}, s{sT+3}, 6\ns_lshl_b32 s{SWs+2}, s{sT+3}, 9\ns_mul_i32 s{sWB}, s{sT+3}, s{sW}\ns_lshl_b32 s{sWB}, s{sWB}, 4')
    e('v_and_b32 v43, 1, v42\nv_lshlrev_b32 v43, 1, v43\nv_xor_b32 v43, v41, v43\nv_lshlrev_b32 v43, 4, v43')
    e(f'v_mad_u32_u24 v{vWo}, v40, s{sT+3}, v43\ns_lshl_b32 s{sT+4}, s{sT+3}, 3\ns_sub_u32 s{sT+4}, s{sT+4}, 1024')
    e(f'v_xor_b32 v{vWo+1}, 64, v{vWo}\nv_add_u32 v{vWo+1}, s{sT+4}, v{vWo+1}')
    e('v_lshrrev_b32 v44, 2, v0\nv_and_b32 v45, 3, v0\nv_and_b32 v46, 2, v42\nv_xor_b32 v45, v45, v46\nv_lshlrev_b32 v45, 4, v45')
    e(f'v_mad_u32_u24 v{vS}, v44, s{sT+3}, v45')
    e(f's_lshl_b32 s{sHW}, s{sW}, 11\ns_lshl_b32 s{sHS}, s{sW}, 10\ns_add_u32 s{sHS}, s{sHS}, {L_S}')
    e(f's_cmp_lg_u32 s{sF}, 0\ns_cselect_b32 s{sT}, s{sT}, s{sT+2}\ns_add_u32 s{sWB}, s{sWB}, s{sT}\ns_mov_b32 s{sL}, 0\ns_mov_b32 s{sK0}, s{sKC}')
    e('s_waitcnt lgkmcnt(0)')
    e(f's_mov_b32 s{SX}, s{pX}\ns_mov_b32 s{SX+1}, s{pX+1}')

    def chunk_groups(first=False):
        g = []
        pre = [] if first else [f's_lshl_b32 s{sT+1}, s{sKC}, 7', f's_add_u32 m0, s{sL}, s{sHX}', f's_add_u32 s{sT+1}, s{sT+1}, s{sXB}']
        for i in range(4):
            g.append((pre if i == 0 else []) + [f'buffer_load_dwordx4 v{vX+i}, s[{SX}:{SX+3}], s{sT+1} offen offset:{i*1024} lds'])
        if first:
            g.append([f's_cmp_lg_u32 s{sF}, 0', f's_cselect_b32 s{SWs}, s{pW1}, s{pWQKV}', f's_cselect_b32 s{SWs+1}, s{pW1+1}, s{pWQKV+1}',
                      f's_movk_i32 s{sUST}, 1024', f's_cselect_b32 s{sUST}, 128, s{sUST}'])
        for u in range(3):
            if u == 0: pre = [f's_add_u32 s{sT+4}, s{sL}, s{sHW}', f's_mul_i32 s{sT+2}, s{sKC}, s{sCK}', f's_add_u32 m0, s{sT+4}, {L_W}', f's_add_u32 s{sT+2}, s{sT+2}, s{sWB}']
            else: pre = [f's_add_u32 m0, s{sT+4}, {L_W+u*8192}', f's_add_u32 s{sT+3}, s{sT+2 if u == 1 else sT+3}, s{sUST}']
            so = sT + 2 if u == 0 else sT + 3
            for i in range(2):
                g.append((pre if i == 0 else []) + [f'buffer_load_dwordx4 v{vWo+i}, s[{SWs}:{SWs+3}], s{so} offen offset:{i*1024} lds'])
        Ls = lab('nostrip')
        g.append([f's_cmp_eq_u32 s{sF}, 0', f's_cbranch_scc1 {Ls}', f's_add_u32 m0, s{sL}, s{sHS}', f's_add_u32 s{sT+3}, s{sT+2}, s{sSD}',
                  f'buffer_load_dwordx4 v{vS}, s[{SWs}:{SWs+3}], s{sT+3} offen lds', f'{Ls}:',
                  f's_add_u32 s{sKC}, s{sKC}, 1', f's_and_b32 s{sKC}, s{sKC}, 7', f's_add_u32 s{sL}, s{sL}, {SLOT}',
                  f's_cmp_eq_u32 s{sL}, {3*SLOT}', f's_cselect_b32 s{sL}, 0, s{sL}'])
        return g
    def b2_groups(n, w):
        S, off = (SW2, (7 * w + UN[n]) * 65536) if n < 7 else (SWO, (2 * w + n - 7) * 65536)
        g = []
        for i in range(2):
            pre = [f's_add_u32 s{sT+4}, s{sB2}, {off}'] if i == 0 else []
            if n < 4:
                if i == 0: pre = [f's_add_u32 m0, s{sHW}, {GS[n]+w*8192}'] + pre
                g.append(pre + [f'buffer_load_dwordx4 v{vB+i}, s[{S}:{S+3}], s{sT+4} offen offset:{i*1024} lds'])
            else:
                r = vBuf + (((n - 4) * 4 + w) * 2 + i) * 4
                g.append(pre + [f'buffer_load_dwordx4 v[{r}:{r+3}], v{vB+i}, s[{S}:{S+3}], s{sT+4} offen offset:{i*1024}'])
        return [] if OPT['nob2'] else g
    def issue(groups):
        for g in groups:
            for l in g:
                e(l)
                if l.startswith(f'buffer_load_dwordx4 v{vS},'): e.vm -= 1
    def take(q, n):
        g = []
        for _ in range(min(n, len(q))): g += b2_groups(*q.pop(0))
        return g
    def kts(c, k=0):
        if DIAG and k == OPT['kts']: e(f'{TSI} s[{KTS[c]}:{KTS[c]+1}]')
    tok = {}
    issue(chunk_groups(True)); tok[0] = e.vtok()
    ids2(e)
    srd(e, SW2, pW2, 1792 * 1024); srd(e, SWO, pWO, 512 * 1024); srd(e, SWS, pWS, WS_SIZE)
    e('v_lshlrev_b32 v43, 1, v42\nv_xor_b32 v43, v41, v43\nv_lshlrev_b32 v43, 4, v43')
    e(f'v_lshl_add_u32 v{vB}, v40, 10, v43\nv_add_u32 v{vB+1}, {8192-1024}, v{vB}\nv_lshlrev_b32 v{vL16}, 4, v0')
    e(f's_and_b32 s{sT}, s{sRB2}, 1\ns_xor_b32 s{sT}, s{sT}, s{sW}\ns_lshl_b32 s{sB2}, s{sT}, 14\ns_lshl_b32 s{sT}, s{sCB}, 7\ns_add_u32 s{sB2}, s{sB2}, s{sT}')
    e(f's_lshl_b32 s{sT}, s{sW}, 8\nv_lshl_add_u32 v{vN}, v0, 2, s{sT}\nv_add_u32 v{vT}, {L_CS}, v{vN}')
    e(f's_lshl_b32 s{sT}, s{sF}, 3\ns_add_u32 s{sT}, s{sT}, s{sG}\ns_lshl_b32 s{sCSB}, s{sT}, 13\ns_add_u32 s{sCSB}, s{sCSB}, {WS_CS}')
    e(f's_lshl_b32 s{sRSB}, s{sRB}, 11\ns_add_u32 s{sRSB}, s{sRSB}, {WS_RS}\ns_lshl_b32 s{sT}, s{sT}, 7\ns_add_u32 s{sRSP}, s{sRSB}, s{sT}')
    e(f's_lshl_b32 s{sT}, s{sW}, 9\ns_add_u32 s{sRSB}, s{sRSB}, s{sT}\ns_cmp_eq_u32 s{sW}, 0\ns_cselect_b32 s{sRSP}, s{sRSP}, 0x7ff00000')
    e(f'v_and_b32 v{vRG}, 0x1f0, v{vL16}\nv_and_b32 v46, 0x70, v{vL16}\nv_add_u32 v47, s{sSY}, v46')
    e(f'v_and_b32 v44, 31, v0\ns_lshl_b32 s{sT}, s{sW}, 7\ns_add_u32 s{sT}, s{sT}, {L_R}\nv_lshl_add_u32 v{vRW}, v44, 2, s{sT}')
    e(f'v_mov_b32 v{vSY}, s{sSY}\nv_and_b32 v45, 3, v0\nv_lshlrev_b32 v45, 3, v45')
    e(f's_lshl_b32 s{sT}, s{sLI}, 2\ns_add_u32 s{sT}, s{sT}, s{sW}\ns_mul_i32 s{sT+1}, s{sT}, {14*1024}\ns_lshl_b32 s{sT}, s{sT}, 12')
    e(f's_add_u32 s56, s{pW2}, s{sT+1}\ns_addc_u32 s57, s{pW2+1}, 0\ns_add_u32 s58, s{pWO}, s{sT}\ns_addc_u32 s59, s{pWO+1}, 0')
    sq = [f's_load_dword s65, s[56:57], {(k>>1)*1024+384+(k&1)*64}' for k in range(28)] + [f's_load_dword s65, s[58:59], {(k>>1)*1024+384+(k&1)*64}' for k in range(8)]
    dq = [(0, 0), (0, 1), (0, 2), (0, 3), (2, 1), (2, 2), (1, 0), (1, 1), (1, 2), (1, 3), (2, 3), (3, 0), (2, 0), (3, 1), (3, 2), (3, 3)]
    rq = [(n, w) for n in range(4, 9) for w in range(4)]
    assert OPT['b2a'] <= 6 and OPT['b2a'] + OPT['b2b'] <= 12
    def gather_loads(x):
        for k in range(8): x(f'buffer_load_dword v{20+k}, v{vN}, s[{SWS}:{SWS+3}], s{sCSB if k < 4 else sT+5} offen offset:{(k&3)*1024} sc1')
        x(f'buffer_load_dwordx4 v[28:31], v{vRG}, s[{SWS}:{SWS+3}], s{sRSB} offen sc1')
    g1 = chunk_groups()
    issue(g1[:OPT['pre1']])
    ts(e, 1)
    for c in range(8):
        pert(e)
        e.wait_vm(tok[c])
        e('s_barrier')
        kts(c)
        if c == 0:
            issue(g1[OPT['pre1']:]); tok[1] = e.vtok()
            e(f'ds_read_b64 v[18:19], v{vSY}')
        if c == 1: e(f'ds_read_b32 v20, v{vT}\nds_read_b128 v[24:27], v47 offset:128')
        if c == OPT['wpc']:
            e(f's_lshl_b32 s{sT}, s2, 2\ns_add_u32 s{sT}, s{sT}, s{sW}\ns_mul_i32 s{sT+1}, s{sT}, 1792\ns_lshl_b32 s{sT}, s{sT}, 9')
            e(f'v_min_u32 v55, 13, v0\nv_lshlrev_b32 v55, 7, v55\nbuffer_load_dword v56, v55, s[{SW2}:{SW2+3}], s{sT+1} offen')
            e(f'v_min_u32 v55, 0x180, v55\nbuffer_load_dword v56, v55, s[{SWO}:{SWO+3}], s{sT} offen')
        if c == 6:
            e(f's_add_u32 s{sT+5}, s{sCSB}, 4096')
            gather_loads(e); tg = e.vtok()
        if c == 7:
            L, M, Dn = lab('xchk'), lab('xretry'), lab('xdone')
            spin_init(e)
            e.wait_vm(tg)
            e(f'{L}:')
            for i in range(8): e(f'v_xor_b32 v{20+i}, v{vTG}, v{20+i}')
            e('v_or3_b32 v32, v20, v21, v22\nv_or3_b32 v32, v32, v23, v24\nv_or3_b32 v32, v32, v25, v26\nv_or_b32 v32, v32, v27\nv_and_b32 v32, 0xff, v32')
            e('v_and_b32 v33, 1, v18\nv_xor_b32 v28, v33, v28\nv_xor_b32 v29, v33, v29\nv_or_b32 v33, v28, v29\nv_and_or_b32 v32, v33, 1, v32')
            e('v_xor_b32 v30, v18, v30\nv_xor_b32 v31, v19, v31\nv_or3_b32 v32, v32, v30, v31\nv_cmp_ne_u32 vcc, 0, v32')
            e(f's_cmp_lg_u64 vcc, 0\ns_cbranch_scc1 {M}\n{Dn}:')
            x = Emit()
            x(f'{M}:\ns_sub_u32 s{sSPIN}, s{sSPIN}, 1\ns_cmp_eq_u32 s{sSPIN}, 0\ns_cbranch_scc1 {Dn}\ns_sleep 2')
            gather_loads(x); x(f's_waitcnt vmcnt(0)\ns_branch {L}')
            COLD.extend(x.lines)
            e(f'ds_write_b32 v{vRW}, v28\nds_write_b32 v{vRW}, v29 offset:512')
            for a, b in ((20, 21), (22, 23), (24, 25), (26, 27), (20, 22), (24, 26), (20, 24)): e(f'v_add_f32 v{a}, v{a}, v{b}')
            e(f'ds_write_b32 v{vT}, v20')
        if c + 2 <= 7: issue(chunk_groups()); tok[c + 2] = e.vtok()
        elif c == 6: issue(take(dq, OPT['b2a']))
        else: issue(take(dq, OPT['b2b'])); issue(take(rq, OPT['r7']))
        if c == 0:
            e(f's_waitcnt lgkmcnt(0)\nv_bfe_u32 v{vTG}, v18, v45, 8\nv_bfi_b32 v{vTG}, 1, v18, v{vTG}')
        if c == 1:
            e(f's_lshl_b32 s{sT}, s{sK0}, 10\ns_add_u32 s{sT}, s{sT}, s{sCSB}\ns_movk_i32 s{sT+1}, 0xff\ns_waitcnt lgkmcnt(0)')
            e(f'v_add_u32 v20, 0x80, v20\nv_bfi_b32 v20, s{sT+1}, v{vTG}, v20')
            e(f'buffer_store_dword v20, v{vN}, s[{SWS}:{SWS+3}], s{sT} offen sc1')
            e(f's_mov_b64 exec, 0xff\nbuffer_store_dwordx4 v[24:27], v46, s[{SWS}:{SWS+3}], s{sRSP} offen sc1\ns_mov_b64 exec, -1')
        for _ in range(min(OPT['sn'], len(sq)) if c >= OPT['s0'] else 0): e(sq.pop(0))
    e('s_waitcnt lgkmcnt(0)\ns_barrier')
    kts(8)
    ts(e, 2)
    e(f's_lshl_b32 s{sT}, s{sW}, 2\nv_add_u32 v25, s{sT}, v{vSY}\nv_mov_b32 v24, -1')
    pert(e)
    nD = 2 * len(dq); tD = e.vtok(); landed = False
    allg = take(dq, 16) + take(rq, 20)
    lastg = allg[len(allg) - OPT['hl']:]; allg = allg[:len(allg) - OPT['hl']]
    for k, g in enumerate(allg + [[]]):
        if OPT['hp'] and k == OPT['hpk']: e(f's_setprio {OPT["hp"]}')
        if not landed and (k == nD + 12 or not g):
            e.wait_vm(tD); e('ds_write_b32 v25, v24 offset:16'); landed = True
        for l in g: e(l)
        if k + 1 == nD: tD = e.vtok()
        if g: e(f's_waitcnt vmcnt({OPT["thr"]})')
    ts(e, 3)
    if OPT['hp']: e('s_setprio 0')
    e(f'v_add_u32 v{vL16}, s{sHW}, v{vL16}')
    for r in range(4): e(f'v_add_u32 v{20+r}, {GS[r]}, v{vL16}')
    def refill(n, k0=0, k1=8):
        for k in range(k0, k1):
            b = vBuf + ((n - 4) * 8 + k) * 4
            e(f'ds_write_b128 v{20+n%4}, v[{b}:{b+3}] offset:{(k//2)*8192+(k&1)*1024}')
    L, Dn = lab('free'), lab('freed')
    spin_init(e, 2000000)
    kts(0, 1)
    e(f'{L}:')
    e(f'ds_read_b128 v[24:27], v{vSY} offset:64\ns_waitcnt lgkmcnt(0)\nv_and_b32 v24, v24, v25\nv_and_b32 v26, v26, v27\nv_and_b32 v24, v24, v26')
    e(f'v_readfirstlane_b32 s{sT}, v24\ns_cmp_lg_u32 s{sT}, 0\ns_cbranch_scc1 {Dn}')
    spin_tail(e, L, Dn, 1)
    e(f'{Dn}:')
    kts(1, 1)
    pert(e)
    assert OPT['thr'] <= 16 - OPT['hl'] and OPT['hl'] <= 8
    for n in (4, 5, 6): refill(n)
    if lastg:
        e('s_setprio 2'); issue(lastg); e('s_setprio 0')
    e(f's_waitcnt vmcnt({len(lastg)}) lgkmcnt(0)')
    kts(2, 1)
    e('s_barrier')
    kts(3, 1)
    refill(7, 0, OPT['w1'])
    e('s_barrier')
    kts(5, 1)
    pert(e)
    refill(7, OPT['w1'], 8)
    if lastg: e('s_waitcnt vmcnt(0)')
    refill(8)
    e('s_waitcnt lgkmcnt(0)')
    ts(e, 5)
    e('s_barrier')
    ts(e, 6)
    ts_dump(e, 7, 0)
    e('s_endpgm')

ACC = 16; XF = 128; WR = 160; CS = 192; SEL = 208; AX = 212; AW = 216; AS = 220
CSW, L16, L16B, G4, N16, SYV = 224, 225, 226, 227, 228, 229
VO, FV, VBA = 1, 12, 15
BR = 128; AB = 244; VA = 248; AB2 = 252; XR = 40
sRH, sCH, sDL, sCNT, sSL = 11, 12, 13, 14, 15
sAU, sAO, sO, sEP, sKV, sKR, TG = 16, 17, 18, 19, 25, 26, 28
sXP, sNC, sC0, sFP, sY0, sY1, sYS = 40, 42, 65, 66, 76, 77, 78

def compute_early(e):
    e(f's_sub_u32 s{sW}, s{sW}, 4\ns_setprio 1\ns_and_b32 s{sRH}, s{sW}, 1\ns_lshr_b32 s{sCH}, s{sW}, 1')
    Lq = lab('pc')
    e(f's_getpc_b64 s[44:45]\n{Lq}:')
    e(f's_lshl_b32 s{sT}, s{sLI}, 2\ns_add_u32 s{sT}, s{sT}, s{sW}\ns_lshl_b32 s{sT}, s{sT}, 8\ns_min_u32 s{sT}, s{sT}, L_code_end-{Lq}-196')
    e(f's_add_u32 s44, s44, s{sT}\ns_addc_u32 s45, s45, 0')
    e(f'v_lshlrev_b32 v{L16}, 4, v0\nv_and_b32 v{N16}, 15, v0')
    e(f's_lshl_b32 s{sT}, s{sF}, 3\ns_add_u32 s{sT}, s{sT}, s{sG}\ns_lshl_b32 s{sT}, s{sT}, 2\ns_add_u32 s{sT}, s{sT}, s{sW}')
    e(f's_lshl_b32 s{sT+1}, s{sRB}, 6\ns_add_u32 s{sT+1}, s{sT}, s{sT+1}\ns_lshl_b32 s{sT+1}, s{sT+1}, 11')
    e(f's_mov_b32 s{SX+2}, {2048*1024}\ns_mov_b32 s{SX+3}, 0x20000\ns_mov_b32 s{SB1+2}, {1792*2}\ns_mov_b32 s{SB1+3}, 0x20000')
    e(f's_lshr_b32 s{sT}, s{sG}, 1\ns_mul_i32 s{sT}, s{sT}, 448\ns_and_b32 s{sT+2}, s{sG}, 1')
    e(f's_lshl_b32 s{sC0}, s{sT+2}, 8\ns_add_u32 s{sC0}, s{sC0}, s{sT}\ns_lshl_b32 s{sT+3}, s{sCH}, 5\ns_add_u32 s{sC0}, s{sC0}, s{sT+3}')
    e(f's_lshl_b32 s{sYS}, s{sT+2}, 5\ns_add_u32 s{sYS}, s{sYS}, s{sT}\ns_add_u32 s{sYS}, s{sYS}, 192')
    e(f'v_bfe_u32 v5, v0, 4, 1\nv_xor_b32 v5, s{sRH}, v5\nv_lshl_add_u32 v2, v5, 4, v{N16}\nv_lshrrev_b32 v3, 5, v0')
    e(f'v_lshl_add_u32 v4, v3, 6, v2\nv_add_lshl_u32 v4, v4, s{sC0}, 1')
    e(f's_sub_u32 s{sT}, s{sYS}, s{sC0}\ns_sub_u32 s{sT}, s{sT}, 128\nv_mul_lo_u32 v6, v3, s{sT}\nv_add3_u32 v6, v6, v2, s{sC0}\nv_add_u32 v6, 128, v6\nv_lshlrev_b32 v6, 1, v6')
    e('s_waitcnt lgkmcnt(0)')
    e(f's_mov_b32 s{SX}, s{pX}\ns_mov_b32 s{SX+1}, s{pX+1}')
    for k in range(2): e(f'buffer_load_dwordx4 v[{XF+4*k}:{XF+4*k+3}], v{L16}, s[{SX}:{SX+3}], s{sT+1} offen offset:{k*1024}')
    e(f's_load_dwordx2 s[{sNON}:{sNON+1}], s[{pWS}:{pWS+1}], 0')
    e(f's_mov_b32 s{SB1}, s{pB1}\ns_mov_b32 s{SB1+1}, s{pB1+1}')
    e(f'buffer_load_ushort v8, v4, s[{SB1}:{SB1+3}], 0 offen\nbuffer_load_ushort v9, v6, s[{SB1}:{SB1+3}], 0 offen')
    for k in range(4): e(f's_load_dword s46, s[44:45], {k*64}')
    e('s_branch L_compute')

def acc_main(u, rt, jj): return ACC + ((u * 4 + rt) * 2 + jj) * 4
def acc_strip(rt, jj): return ACC + 96 + (rt * 2 + jj) * 4

def compute_common(e):
    ids2(e)
    e(f'v_lshrrev_b32 v{G4}, 4, v0\nv_add_u32 v{L16B}, {YRT}, v{L16}')
    srd(e, SWS, pWS, WS_SIZE); srd(e, SOUT, pOUT, 2048 * 1024)
    e(f's_lshl_b32 s{sT}, s{sCH}, 2\nv_bfe_u32 v2, v0, 1, 3\nv_xor_b32 v2, v{G4}, v2\nv_xor_b32 v2, s{sT}, v2')
    e(f's_lshl_b32 s{sT}, s{sRH}, 13\ns_lshl_b32 s{sT+1}, s{sCH}, 12\ns_add_u32 s{sT}, s{sT}, s{sT+1}')
    e(f'v_lshlrev_b32 v3, 7, v{N16}\nv_add_u32 v3, s{sT}, v3\nv_lshl_add_u32 v{AX}, v2, 4, v3')
    e(f'v_xor_b32 v{AX+1}, 0x1000, v{AX}\nv_xor_b32 v{AX+2}, 64, v{AX}\nv_xor_b32 v{AX+3}, 64, v{AX+1}')
    e(f'v_bfe_u32 v2, v0, 2, 2\nv_lshl_add_u32 v2, v{G4}, 3, v2\ns_lshl_b32 s{sT}, s{sCH}, 5\nv_add_u32 v2, s{sT}, v2')
    e('v_and_b32 v4, 3, v0\nv_cmp_eq_u32 vcc, 0, v4\nv_lshlrev_b32 v4, 3, v4\nv_bfe_u32 v3, v0, 3, 2')
    e(f'v_xor_b32 v7, s{sW}, v3\nv_lshl_add_u32 v7, v7, 5, v4\nv_lshl_add_u32 v7, v2, 7, v7\nv_add_u32 v{AW}, {L_W}, v7')
    e(f'v_xor_b32 v{AW+1}, 32, v{AW}\nv_xor_b32 v{AW+2}, 0x1000, v{AW}\nv_xor_b32 v{AW+3}, 0x1000, v{AW+1}')
    e(f'v_lshl_add_u32 v6, v5, 5, v4\nv_lshl_add_u32 v6, v2, 6, v6\nv_add_u32 v{AS}, {L_S}, v6')
    e(f'v_xor_b32 v{AS+1}, 32, v{AS}\nv_xor_b32 v{AS+2}, 0x800, v{AS}\nv_xor_b32 v{AS+3}, 0x800, v{AS+1}')
    e(f'v_lshrrev_b32 v2, 2, v0\nv_lshl_add_u32 v4, v3, 5, v4\nv_lshl_add_u32 v4, v2, 7, v4\ns_lshl_b32 s{sT}, s{sW}, 13\nv_add_u32 v{VBA}, s{sT}, v4')
    e(f'v_mov_b32 v3, 0x3f803f80\nv_cndmask_b32 v{SEL}, 0, v3, vcc')
    for i in range(1, 4): e(f'v_mov_b32 v{SEL+i}, v{SEL}')
    e(f's_lshl_b32 s{sT}, s{sRB}, 1\ns_add_u32 s{sT}, s{sT}, s{sRH}\ns_mul_i32 s{sT+2}, s{sT}, {8*FPH}\ns_lshl_b32 s{sT}, s{sT}, 1\ns_add_u32 s{sT}, s{sT}, s{sCH}')
    e(f's_xor_b32 s{sT+1}, s{sT}, 1\ns_mul_i32 s{sY0}, s{sT}, {2*YRT}\ns_mul_i32 s{sY1}, s{sT+1}, {2*YRT}')
    e(f's_lshr_b32 s{sT}, s{sG}, 1\ns_mul_i32 s{sT}, s{sT}, {FG}\ns_add_u32 s{sT+2}, s{sT+2}, s{sT}')
    e(f's_and_b32 s{sT}, s{sG}, 1\ns_lshl_b32 s{sT}, s{sT}, 1\ns_add_u32 s{sT}, s{sT}, s{sCH}\ns_lshl_b32 s{sT}, s{sT}, 2\ns_add_u32 s{sT+2}, s{sT+2}, s{sT}')
    e(f's_xor_b32 s{sT}, s{sF}, 1\ns_mul_i32 s{sT}, s{sT}, {FPH}\ns_add_u32 s{sT+2}, s{sT+2}, s{sT}\ns_add_u32 s{sT+2}, s{sT+2}, {WS_YF}')
    e(f's_add_u32 s{sFP}, s{pWS}, s{sT+2}\ns_addc_u32 s{sFP+1}, s{pWS+1}, 0')
    e(f's_mul_i32 s{sT}, s{sRB2}, {8*FPH}\ns_mul_i32 s{sT+1}, s{sW}, {FG}\ns_add_u32 s{sT}, s{sT}, s{sT+1}\ns_add_u32 s{sT}, s{sT}, {WS_YF}')
    e(f's_add_u32 s{sXP}, s{pWS}, s{sT}\ns_addc_u32 s{sXP+1}, s{pWS+1}, 0')
    e(f's_mov_b32 s{sCNT}, 0\ns_mov_b32 s{sSL}, 0\ns_mov_b32 s22, {-2*SLOT}\ns_mov_b32 s23, 0xffff0000')
    e(f's_lshl_b32 s{sT}, s{sRB2}, 2\ns_add_u32 s{sT+1}, s{sT}, s{sW}\ns_lshl_b32 s{sT+1}, s{sT+1}, 14\ns_lshl_b32 s{sT+2}, s{sCB}, 7\ns_add_u32 s{sO}, s{sT+1}, s{sT+2}')
    e(f'v_bfe_u32 v2, v0, 4, 1\nv_lshrrev_b32 v3, 5, v0\nv_lshlrev_b32 v14, 4, v3\nv_lshl_add_u32 v3, v2, 5, v14\nv_lshl_add_u32 v{VO}, v{N16}, 10, v3')
    e(f's_mul_i32 s{sT}, s{sT}, {YRT}\ns_add_u32 s{sT}, s{sT}, {WS_Y}\ns_or_b32 s{sEP}, s2, s{sW}')
    e(f's_mul_i32 s{sT+1}, s{sW}, {7*2048}\ns_add_u32 s{sAU}, s{sT}, s{sT+1}\ns_lshl_b32 s{sT+1}, s{sW}, 12\ns_add_u32 s{sAO}, s{sT}, s{sT+1}\ns_add_u32 s{sAO}, s{sAO}, {28*2048}')
    for j in range(4): e(f's_add_u32 s{sT}, s{sW}, {1+j}\ns_and_b32 s{sT}, s{sT}, 3\ns_mul_i32 s{sT}, s{sT}, {YRT}\nv_add_u32 v{VA+j}, s{sT}, v{L16}')
    for u in (1, 2):
        for rt in range(4):
            for i in range(4): e(f'v_mov_b32 v{acc_main(u, rt, 1)+i}, 0')
    e('s_waitcnt lgkmcnt(0)')
    e(f's_mul_i32 s{sT+4}, s{sNON}, 0x4c957f2d\ns_mul_hi_u32 s{sT+5}, s{sNON}, 0x4c957f2d')
    e(f's_mul_i32 s{sT}, s{sNON+1}, 0x4c957f2d\ns_add_u32 s{sT+5}, s{sT+5}, s{sT}')
    e(f's_mul_i32 s{sT}, s{sNON}, 0x5851f42d\ns_add_u32 s{sT+5}, s{sT+5}, s{sT}')
    e(f's_add_u32 s{sNON}, s{sT+4}, 0xf767814f\ns_addc_u32 s{sNON+1}, s{sT+5}, 0x14057b7e\ns_mov_b32 s{sNC}, s{sNON}\ns_mov_b32 s{sNC+1}, s{sNON}')
    e(f'v_mov_b32 v{FV}, s{sNON}\nv_mov_b32 v{FV+1}, s{sNON+1}\nv_mov_b32 v2, s{sSY}\ns_lshl_b32 s{sT}, s{sW}, 2\nv_add_u32 v{SYV}, s{sT}, v2\nv_mov_b32 v3, 0')
    e(f'ds_write_b64 v2, v[{FV}:{FV+1}]')
    for o in (16, 32, 48, 64): e(f'ds_write_b32 v{SYV}, v3 offset:{o}')
    e('s_waitcnt vmcnt(2)')
    S = 136; R = FV - 2
    for k in range(2):
        for d in range(4):
            w = XF + 4 * k + d
            e(f'v_lshlrev_b32 v2, 16, v{w}\nv_and_b32 v3, s23, v{w}')
            if d == 0: e(f'v_add_f32 v{S+2*k}, v2, v3\nv_mul_f32 v{S+2*k+1}, v2, v2')
            else: e(f'v_add_f32 v{S+2*k}, v{S+2*k}, v2\nv_fmac_f32 v{S+2*k+1}, v2, v2\nv_add_f32 v{S+2*k}, v{S+2*k}, v3')
            e(f'v_fmac_f32 v{S+2*k+1}, v3, v3')
    for i in range(2): e(f'v_permlane32_swap_b32 v{S+i}, v{S+2+i}')
    for i in range(2): e(f'v_add_f32 v{S+i}, v{S+i}, v{S+2+i}')
    for i in range(2): e(f'v_mov_b32 v{S+2+i}, v{S+i}')
    for i in range(2): e(f'v_permlane16_swap_b32 v{S+2+i}, v{S+i}')
    for i in range(2): e(f'v_add_f32 v{S+i}, v{S+i}, v{S+2+i}')
    for ror in (1, 2, 4, 8):
        for i in range(2): e(f'v_add_f32_dpp v{S+i}, v{S+i}, v{S+i} row_ror:{ror} row_mask:0xf bank_mask:0xf')
    e(f'v_mul_f32 v2, {fl(-1/512)}, v{S}\nv_mul_f32 v3, {fl(1/512)}, v{S+1}\nv_fma_f32 v3, -v2, v2, v3\nv_max_f32 v3, 0, v3\nv_add_f32 v3, {fl(1e-5)}, v3')
    e(f'v_rsq_f32 v3, v3\ns_lshl_b32 s{sT}, s{sW}, 5\ns_add_u32 s{sT}, s{sT}, s{sSY}\nv_add_u32 v4, s{sT}, v14\nv_mul_f32 v{R}, {fl(LOG2E)}, v3\nv_mul_f32 v{R+1}, v{R}, v2')
    e(f'v_bfi_b32 v{R}, 1, v{FV}, v{R}\nv_bfi_b32 v{R+1}, 1, v{FV}, v{R+1}')
    e(f's_mov_b32 exec_lo, 1\ns_mov_b32 exec_hi, 1\nds_write_b128 v4, v[{R}:{R+3}] offset:128\ns_mov_b64 exec, -1')
    e(f's_lshl_b32 s{sT+4}, s{sRH}, 8\ns_lshl_b32 s{sT+1}, s{sCH}, 7\ns_add_u32 s{sT+4}, s{sT+4}, s{sT+1}\ns_add_u32 s{sT+4}, s{sT+4}, {L_R}')
    e(f's_lshl_b32 s{sT}, s{sCH}, 9\ns_lshl_b32 s{sT+1}, s{sRH}, 6\ns_add_u32 s{sT}, s{sT}, s{sT+1}\ns_add_u32 s{sT}, s{sT}, {L_CS}')
    e(f'v_lshl_add_u32 v2, v{N16}, 2, s{sT+4}\nv_xor_b32 v3, 128, v2\nv_lshl_add_u32 v4, v{G4}, 4, s{sT}\nv_xor_b32 v5, 64, v4\nv_lshl_add_u32 v{CSW}, v{N16}, 2, s{sT}')

def readB(n):
    b = BR + 32 * (n % 3); hi = GS[n % 4] >= 65536
    return [f'ds_read_b64_tr_b16 v[{b+8*ct+4*s+2*j}:{b+8*ct+4*s+2*j+1}], v{(AB2 if hi else AB)+ct} offset:{GS[n%4]-(GS[2] if hi else 0)+s*4096+j*2048}'
            for ct in range(4) for s in range(2) for j in range(2)]
STEPS = [(n, j) for n in range(7) for j in range(4)] + [(n, j) for j in range(4) for n in (7, 8)]
DA = 6; A0 = 80; A1 = OPT['a1']
CHK = {2: 1, 10: 4, 18: 2, 22: 3}
GATE = lambda u: 0 if u < 8 else 2 if u < 16 else 10 if u < 24 else 18 if u < 28 else 22
ISSUE = {}; _u = A1
for _t in range(36):
    ISSUE[_t] = []
    while _u < 36 and _u - DA <= _t and GATE(_u) <= _t and len(ISSUE[_t]) < 2: ISSUE[_t].append(_u); _u += 1
assert A1 <= 4 and all(t <= u - 3 for t in ISSUE for u in ISSUE[t])
def loadA(t):
    n, j = STEPS[t]
    L = [f's_add_u32 s{sT}, s{sAU}, {UN[n]*2048}'] if n < 7 and j == 0 else []
    for s in range(2):
        a = A0 + 8 * (t % DA) + 4 * s
        so, off = (sT, s * 1024) if n < 7 else (sAO, ((n - 7) * 2 + s) * 1024)
        L.append('s_nop 0' if OPT['p2noa'] else f'buffer_load_dwordx4 v[{a}:{a+3}], v{VA+j}, s[{SWS}:{SWS+3}], s{so} offen offset:{off} sc1')
    return L
def p2_start(e, t0, t1):
    for t in range(t0, t1):
        for l in loadA(t): e(l)
def p2_resid(e):
    for h in range(2): e(f'buffer_load_dwordx4 v[{XR+4*h}:{XR+4*h+3}], v{VO}, s[{SX}:{SX+3}], s{sO} offen offset:{h*64}')
def put_flag(e, phase): e(f's_atomic_swap s{sNON}, s[{sFP}:{sFP+1}], {phase*FPH}')
QUAD = {0: 44, 1: 60, 4: 44, 2: 60, 3: 44}
def look(phase): return f's_load_dwordx4 s[{QUAD[phase]}:{QUAD[phase]+3}], s[{sXP}:{sXP+1}], {phase*FPH} glc'
def check(phase):
    L, D, M = lab('chk'), lab('chkd'), lab('chkm'); q = QUAD[phase]
    cmp = [f's_xor_b64 s[{q}:{q+1}], s[{q}:{q+1}], s[{sNC}:{sNC+1}]', f's_xor_b64 s[{q+2}:{q+3}], s[{q+2}:{q+3}], s[{sNC}:{sNC+1}]',
           f's_or_b64 s[{q}:{q+1}], s[{q}:{q+1}], s[{q+2}:{q+3}]']
    c = Emit()
    c(f'{M}:'); spin_init(c); c(f'{L}:'); c(look(phase)); c('s_waitcnt lgkmcnt(0)')
    for l in cmp: c(l)
    c(f's_cbranch_scc0 {D}'); spin_tail(c, L, D)
    COLD.extend(c.lines)
    return cmp + [f's_cbranch_scc1 {M}\n{D}:']
def land_look(r): return f'v_mov_b32 v2, s{sSY}\nds_read_b128 v[{r}:{r+3}], v2 offset:16'
def land_check(e, r):
    L, D, M = lab('land'), lab('landd'), lab('landm')
    cmp = f'v_and_b32 v{r}, v{r}, v{r+1}\nv_and_b32 v{r+2}, v{r+2}, v{r+3}\nv_and_b32 v{r}, v{r}, v{r+2}\nv_readfirstlane_b32 s{sT+5}, v{r}\ns_cmp_eq_u32 s{sT+5}, 0'
    e(cmp + f'\ns_cbranch_scc1 {M}\n{D}:')
    c = Emit()
    c(f'{M}:'); spin_init(c, 2000000); c(f'{L}:'); c(land_look(r)); c('s_waitcnt lgkmcnt(0)'); c(cmp); c(f's_cbranch_scc0 {D}')
    spin_tail(c, L, D, 1)
    COLD.extend(c.lines)
def p2_preread(e):
    for ct in range(4): e(f'v_xor_b32 v{AB+ct}, {32*ct}, v{VBA}\nv_add_u32 v{AB2+ct}, {GS[2]}, v{AB+ct}')
    for n in range(3):
        for l in readB(n): e(l)
    e(f'v_mov_b32 v2, -1\nds_write_b32 v{SYV}, v2 offset:64')
def pair_wait(e, off, reads):
    L, M, Dn = lab('pair'), lab('pairm'), lab('paird')
    spin_init(e, 2000000)
    e(f'{L}:\nds_read_b32 v3, v9 offset:{off}')
    for l in reads: e(l)
    e(f's_waitcnt lgkmcnt({len(reads)})\nv_readfirstlane_b32 s{sT+5}, v3\ns_cmp_eq_u32 s{sT+5}, 0\ns_cbranch_scc1 {M}\n{Dn}:')
    c = Emit(); c(f'{M}:'); spin_tail(c, L, Dn); COLD.extend(c.lines)
def mfma(d, a, b, z=False): return f'v_mfma_f32_16x16x32_bf16 v[{d}:{d+3}], v[{a}:{a+3}], v[{b}:{b+3}], ' + ('0' if z else f'v[{d}:{d+3}]')

def compute_p1(e, F):
    H = 192
    if F:
        CSV = 128; BV = 160; KK = 232; RL = 240; NL = 244; U = 208
        e(f's_lshl_b32 s{sYS}, s{sYS}, 5\ns_add_u32 s{sYS}, s{sYS}, s{sY0}\ns_add_u32 s{sYS}, s{sYS}, {WS_Y}')
        e(f's_lshl_b32 s{sT+2}, s{sC0}, 5\ns_add_u32 s{sT+2}, s{sT+2}, {WS_Y}')
        e(f's_lshl_b32 s{sT}, s{sW}, 9\ns_add_u32 s{sT}, s{sT}, {L_BT}\nv_lshl_add_u32 v7, v0, 2, s{sT}\nv_lshl_add_u32 v6, v{G4}, 4, s{sT}')
        e('s_waitcnt vmcnt(0)')
        e(f'v_lshlrev_b32 v8, 16, v8\nv_lshlrev_b32 v9, 16, v9\nv_mul_f32 v8, {fl(LOG2E)}, v8\nv_mul_f32 v9, {fl(LOG2E)}, v9')
        e('ds_write_b32 v7, v8\nds_write_b32 v7, v9 offset:256')
        e(f'v_xor_b32 v7, 0x200, v4\nv_xor_b32 v14, 0x200, v5\nv_mov_b32 v{KK}, {fl(-2/LOG2E)}\nv_mov_b32 v{KK+1}, {fl(1/LOG2E)}')
    else:
        NVV = 128; RV = 144; CK = 160; CSQ = 164; RL = 172; NL = 176; D0 = 184; PV = 208; EP = 230; PK = 232; D1 = 240; ONE = 252; PQ = 48; U = 112
        e(f's_lshl_b32 s{sT}, s{sG}, 2\ns_add_u32 s{sT}, s{sT}, s{sW}\ns_mul_i32 s{sKV}, s{sT}, {16*1152}\ns_add_u32 s{sKV}, s{sKV}, {WS_KV}')
        e(f's_mul_i32 s{sKR}, s{sRB}, 1152\ns_add_u32 s{sKR}, s{sKR}, s{sKV}\ns_and_b32 s{sT+2}, s{sNON}, 1')
        for i in range(4): e(f's_lshr_b64 s[{sT}:{sT+1}], s[{sNON}:{sNON+1}], {12*i}\ns_and_b32 s{TG+i}, s{sT}, 0xffe\ns_or_b32 s{TG+i}, s{TG+i}, s{sT+2}')
        e(f's_lshl_b32 s{sT+2}, s{sG}, 1\ns_add_u32 s{sT+2}, s{sT+2}, s{sCH}\ns_lshl_b32 s{sT+2}, s{sT+2}, 10\ns_add_u32 s{sT+2}, s{sT+2}, {WS_Y+56*1024}')
        e(f'v_lshl_add_u32 v6, v{G4}, 4, s{sT+4}\nv_xor_b32 v7, 128, v6\nv_xor_b32 v14, 64, v{CSW}')
        e(f'v_mov_b32 v{EP}, {fl(1e-6*LOG2E)}\nv_mov_b32 v{EP+1}, {fl(1/LOG2E)}')
        for i in range(4): e(f'v_mov_b32 v{ONE+i}, 0x3f803f80')
        e(f's_waitcnt vmcnt(0)\nv_lshlrev_b32 v9, 4, v{G4}\nv_lshl_add_u32 v8, v{N16}, 6, v9\nv_cmp_gt_u32 vcc, 2, v{N16}\nv_mov_b32 v10, 0x7ff00000')
        e(f'v_mul_u32_u24 v11, 1152, v{N16}\nv_add_u32 v11, v11, v9\nv_cndmask_b32 v8, v10, v8, vcc\nv_mov_b32 v10, 0xfff\nv_xor_b32 v9, 4, v{SYV}')
    e(f's_add_u32 s{sY0}, s{sY0}, s{sT+2}\ns_add_u32 s{sY1}, s{sY1}, s{sT+2}')
    if F:
        for u in (1, 2): e(f's_add_u32 s{sT+2*u-2}, s{sY0}, {u*2048}\ns_add_u32 s{sT+2*u-1}, s{sY1}, {u*2048}')
    e('s_waitcnt lgkmcnt(0)')

    seq = [(0, 0), (1, 0), (2, 0), (3, 0), (3, 1), (0, 1), (1, 1), (2, 1)] if F else [(0, 0), (1, 0), (2, 0), (0, 1), (1, 1), (2, 1)]
    NP = len(seq); RING = 4 if F else 3
    def wreads(p):
        u, jj = seq[p]; b = WR + 8 * (p % RING)
        if u < 3: return [f'ds_read_b64_tr_b16 v[{b+4*s+2*j}:{b+4*s+2*j+1}], v{AW+2*s+jj} offset:{u*8192+j*512}' for s in range(2) for j in range(2)]
        return [f'ds_read_b64_tr_b16 v[{b+4*s+2*j}:{b+4*s+2*j+1}], v{AS+2*s+jj} offset:{j*256}' for s in range(2) for j in range(2)]
    def xreads(rt): return [f'ds_read_b128 v[{XF+8*rt+4*s}:{XF+8*rt+4*s+3}], v{AX+2*s+(rt>>1)} offset:{(rt&1)*2048}' for s in range(2)]
    def mfmas(p, first):
        u, jj = seq[p]; b = WR + 8 * (p % RING)
        m = []
        for rt in range(4 if u < 3 else 2):
            d = acc_main(u, rt, jj) if u < 3 else acc_strip(rt, jj)
            for s in range(2):
                w, x = b + 4 * s, XF + 8 * rt + 4 * s; z = first and s == 0
                m.append((rt, mfma(d, w, x, z) if (F or u == 0) else mfma(d, x, w, z)))
        if jj == 0 and first: m = [(None, mfma(CS + 4 * u, SEL, b + 4 * s, s == 0)) for s in range(2 if u < 3 else 1)] + m
        return m
    tokW = {}; tokX = {}
    def spread(m, ex, p=None):
        seen = set(); k = 0
        for i, (rt, x) in enumerate(m):
            if p == 0 and rt is not None and rt not in seen: e.wait_lg(tokX[rt]); seen.add(rt)
            e(x)
            n = -(-(len(ex) - k) // (len(m) - i))
            for l in ex[k:k + n]:
                e(l[0] if isinstance(l, tuple) else l)
                if isinstance(l, tuple): tokW[l[1]] = e.ltok()
            k += n
    def head(first):
        for p in range(NP - 2):
            ex = wreads(p + 2); ex[-1] = (ex[-1], p + 2)
            if first and 1 <= p <= (4 if F else 3): ex = [f'ds_write_b32 v{CSW}, v{CS+4*(p-1)} offset:{(p-1)*128}'] + ex
            if p == 0: ex += [f's_add_u32 s{sSL}, s{sSL}, 1', f's_cmp_eq_u32 s{sSL}, 3', f's_cselect_b32 s{sDL}, s22, {SLOT}', f's_cselect_b32 s{sSL}, 0, s{sSL}']
            if p == 1: ex += [f'v_add_u32 v{a}, s{sDL}, v{a}' for a in (AW, AW + 2, AX, AX + 1)]
            if p == 2:
                ex += [f'v_add_u32 v{a}, s{sDL}, v{a}' for a in (AX + 2, AX + 3)]
                if not first: ex += [f's_add_u32 s{sCNT}, s{sCNT}, 1', f's_cmp_lt_u32 s{sCNT}, 7']
            if p == NP - 3 and F: ex += [f'v_add_u32 v{a}, s{sDL}, v{a}' for a in (AS, AS + 1, AS + 2, AS + 3)]
            e.wait_lg(tokW[p])
            spread(mfmas(p, first), ex, p)
    def last(even, odd):
        for i, (rt, x) in enumerate(mfmas(NP - 1, False)):
            e(x)
            for l in (odd if i & 1 else even)(i // 2): e(l)
            if i == 6: tokW[1] = e.ltok()
            if i & 1: tokX[i // 2] = e.ltok()
    pert(e)
    ts(e, 1, 0)
    e('s_barrier')
    ts(e, 2, 0)
    for l in wreads(0): e(l)
    tokW[0] = e.ltok()
    for rt in range(4):
        e(wreads(1)[rt])
        if rt == 3: tokW[1] = e.ltok()
        for l in xreads(rt): e(l)
        tokX[rt] = e.ltok()
    head(True)
    LK = lab('kloop')
    e(f'{LK}:\ns_waitcnt lgkmcnt(0)\ns_barrier')
    ex = wreads(0); ex[-1] = (ex[-1], 0)
    spread(mfmas(NP - 2, False), ex + [f'v_add_u32 v{a}, s{sDL}, v{a}' for a in (AW + 1, AW + 3)])
    last(lambda k: [wreads(1)[k]], xreads)
    head(False)
    e(f's_cbranch_scc1 {LK}')
    e('s_waitcnt lgkmcnt(0)\ns_barrier')
    rowt = lambda dst, o: [f'ds_read_b32 v{dst+rt}, v{2+(rt>>1)} offset:{(rt&1)*64+o}' for rt in range(4)]
    if F:
        bvr = lambda t: f'ds_read_b128 v[{BV+4*t}:{BV+4*t+3}], v6 offset:{t*64}'
        spread(mfmas(NP - 2, False), rowt(NL, 512) + rowt(RL, 0) + [bvr(t) for t in range(4)])
        last(lambda k: [['ds_read_b128 v[252:255], v14 offset:384'], ['ds_read_b128 v[8:11], v7 offset:384'], [bvr(4)], [bvr(5)]][k],
             lambda u: [f'ds_read_b128 v[{CSV+8*u+4*jj}:{CSV+8*u+4*jj+3}], v{4+jj} offset:{u*128}' for jj in range(2)])
        e(bvr(6)); e(bvr(7))
        ts(e, 3)
        held = []; gi = -1
        for u in range(4):
            if u == 0: e.wait_lg(tokX[0])
            if u == 1:
                e('s_waitcnt lgkmcnt(0)')
                for i in (0, 2):
                    e(f'v_pk_add_f32 v[{CSV+24+i}:{CSV+25+i}], v[{CSV+24+i}:{CSV+25+i}], v[{8+i}:{9+i}]')
                    e(f'v_pk_add_f32 v[{CSV+28+i}:{CSV+29+i}], v[{CSV+28+i}:{CSV+29+i}], v[{252+i}:{253+i}]')
            for p in range(2 if u < 3 else 1):
                a = acc_main(u, 2 * p, 0) if u < 3 else acc_strip(0, 0)
                L = []
                for i in range(0, 16, 2):
                    o = i >> 3; c = 8 * u + (i & 7)
                    L.append(f'v_pk_fma_f32 v[{H+i}:{H+i+1}], v[{CSV+c}:{CSV+c+1}], v[{NL+2*p}:{NL+2*p+1}], v[{BV+c}:{BV+c+1}] op_sel:[0,{o},0] op_sel_hi:[1,{o},1]')
                for i in range(0, 16, 2):
                    o = i >> 3
                    L.append(f'v_pk_fma_f32 v[{H+i}:{H+i+1}], v[{a+i}:{a+i+1}], v[{RL+2*p}:{RL+2*p+1}], v[{H+i}:{H+i+1}] op_sel:[0,{o},0] op_sel_hi:[1,{o},1]')
                for i in range(16): L.append(f'v_exp_f32 v{U+i}, v{H+i}')
                for i in range(0, 16, 2): L.append(f'v_pk_add_f32 v[{U+i}:{U+i+1}], v[{U+i}:{U+i+1}], 1.0 op_sel_hi:[1,0]')
                for i in range(0, 16, 2): L.append(f'v_pk_fma_f32 v[{U+i}:{U+i+1}], v[{U+i}:{U+i+1}], v[{U+i}:{U+i+1}], 1.0 op_sel_hi:[1,1,0]')
                for i in range(16): L.append(f'v_rcp_f32 v{U+i}, v{U+i}' if i >= OPT['ecut'] else 's_setprio 1')
                for i in range(0, 16, 2): L.append(f'v_pk_fma_f32 v[{U+i}:{U+i+1}], v[{U+i}:{U+i+1}], v[{KK}:{KK+1}], v[{KK}:{KK+1}] op_sel:[0,0,1] op_sel_hi:[1,0,1]')
                for i in range(0, 16, 2): L.append(f'v_pk_mul_f32 v[{U+i}:{U+i+1}], v[{U+i}:{U+i+1}], v[{H+i}:{H+i+1}]')
                for i in range(8): L.append(f'v_cvt_pk_bf16_f32 v{a+i}, v{U+2*i}, v{U+2*i+1}')
                gi += 1
                pert(e)
                for i, l in enumerate(L):
                    at = gi * 100 + i
                    if at == OPT['xpos']: ts(e, 1, 2); e.wait_vm(tX[0]); put_flag(e, 0); ts(e, 2, 2); p2_resid(e); done.add(0)
                    if at == OPT['xpos1'] - 30: e(land_look(4)); done.add(1)
                    if at == OPT['xpos1']:
                        ts(e, 5, 2); e(f's_waitcnt vmcnt({e.vm - tX[1]}) lgkmcnt(0)'); put_flag(e, 1); land_check(e, 4); ts(e, 6, 2); done.add(2)
                    if at == OPT['lpos']: e(look(0)); done.add(3)
                    e(l)
                so = (sY1 if p else sY0) if u == 0 else sT + 2 * u - 2 + p if u < 3 else sYS
                for k in range(2): held.append(f'buffer_store_dwordx4 v[{a+4*k}:{a+4*k+3}], v{L16B if k else L16}, s[{SWS}:{SWS+3}], s{so} offen sc1')
                if gi == 0: tX = {}; done = set()
                if u == 3:
                    assert done == {0, 1, 2, 3}
                    ts(e, 7, 2)
                    if OPT['a0']:
                        e('s_waitcnt lgkmcnt(0)')
                        for l in check(0): e(l)
                        p2_start(e, 0, OPT['a0'])
                    p2_preread(e)
                    e(f's_waitcnt vmcnt({e.vm - tX[2]}) lgkmcnt(0)'); put_flag(e, 4)
                    if not OPT['a0']:
                        for l in check(0): e(l)
                    ts(e, 1, 1)
                    e(look(1)); p2_start(e, OPT['a0'], A1)
                if p == 1 or u == 3:
                    for l in held: e(l)
                    held = []; tX[u] = e.vtok()
        ts(e, 4)
    else:
        spread(mfmas(NP - 2, False), [f'ds_read_b32 v{CK+2*k+jj}, v{14 if jj else CSW} offset:{128+128*k}' for k in range(2) for jj in range(2)])
        last(lambda k: [], lambda k: [f'ds_read_b128 v[{NVV+8*k+4*i}:{NVV+8*k+4*i+3}], v{6+(k&1)} offset:{i*64+(512 if k < 2 else 0)}' for i in range(2)])
        for l in [f'ds_read_b128 v[{CSQ+4*jj}:{CSQ+4*jj+3}], v{4+jj}' for jj in range(2)] + rowt(RL, 0) + rowt(NL, 512): e(l)
        e(f's_lshl_b32 s{sT}, s{sW}, 11\ns_add_u32 s{sT}, s{sT}, {L_KX}\nv_add_u32 v6, s{sT}, v{L16}\nv_xor_b32 v7, 0x800, v6')
        ts(e, 3)
        def phi_tail(dst):
            for i in range(16): e(f'v_exp_f32_e64 v{U+i}, v{H+i} clamp')
            for i in range(16): e(f'v_max_f32 v{H+i}, v{EP}, v{H+i}')
            for i in range(0, 16, 2): e(f'v_pk_fma_f32 v[{H+i}:{H+i+1}], v[{H+i}:{H+i+1}], v[{EP}:{EP+1}], v[{U+i}:{U+i+1}] op_sel:[0,1,0] op_sel_hi:[1,1,1]')
            for i in range(0, 16, 2): e(f'v_cvt_pk_bf16_f32 v{dst+(i>>1)}, v{H+i}, v{H+i+1}')
        for h in (1, 0):
            ak = lambda i: acc_main(1, i >> 2, h) + (i & 3); av = lambda i: acc_main(2, i >> 2, h) + (i & 3)
            if h: e.wait_lg(tokX[1])
            for i in range(0, 16, 2): e(f'v_pk_fma_f32 v[{H+i}:{H+i+1}], v[{NVV+i}:{NVV+i+1}], v[{CK}:{CK+1}], v[{EP}:{EP+1}] op_sel:[0,{h},0] op_sel_hi:[1,{h},0]')
            if h: e.wait_lg(tokX[3])
            for i in range(0, 16, 2): e(f'v_pk_fma_f32 v[{H+i}:{H+i+1}], v[{ak(i)}:{ak(i)+1}], v[{RV+i}:{RV+i+1}], v[{H+i}:{H+i+1}]')
            pert(e)
            if not h: e(f'ds_write_b128 v6, v[{D1}:{D1+3}]\nds_write_b128 v6, v[{D1+4}:{D1+7}] offset:1024\nds_write_b32 v{SYV}, v{ONE} offset:32')
            phi_tail(PK)
            for i in range(0, 16, 2): e(f'v_pk_mul_f32 v[{H+i}:{H+i+1}], v[{NVV+i}:{NVV+i+1}], v[{CK+2}:{CK+3}] op_sel:[0,{h}] op_sel_hi:[1,{h}]')
            for i in range(0, 16, 2): e(f'v_pk_fma_f32 v[{H+i}:{H+i+1}], v[{av(i)}:{av(i)+1}], v[{RV+i}:{RV+i+1}], v[{H+i}:{H+i+1}]')
            for i in range(0, 16, 2): e(f'v_cvt_pk_bf16_f32 v{PV+(i>>1)}, v{H+i}, v{H+i+1}')
            d = D1 if h else D0
            for p in range(2): e(mfma(d + 4, PK + 4 * p, ONE, p == 0))
            for p in range(2): e(mfma(d, PK + 4 * p, PV + 4 * p, p == 0))
        pair_wait(e, 32, [f'ds_read_b128 v[{U}:{U+3}], v7', f'ds_read_b128 v[{U+4}:{U+7}], v7 offset:1024'])
        for k in range(2):
            e(f's_waitcnt lgkmcnt({1-k})')
            for i in range(4 * k, 4 * k + 4): e(f'v_add_f32 v{D0+i}, v{U+i}, v{D0+i}')
            for i in range(4 * k, 4 * k + 4): e(f'v_add_u32 v{D0+i}, 0x800, v{D0+i}')
            for i in range(4 * k, 4 * k + 4): e(f'v_bfi_b32 v{D0+i}, v10, s{TG+(i&3)}, v{D0+i}')
            if k == 0: e(f'buffer_store_dwordx4 v[{D0}:{D0+3}], v{L16}, s[{SWS}:{SWS+3}], s{sKR} offen sc1')
            else: e(f'buffer_store_dwordx4 v[{D0+4}:{D0+7}], v8, s[{SWS}:{SWS+3}], s{sKR} offen offset:1024 sc1')
        ts(e, 4)
        for p in range(2):
            a = acc_main(0, 2 * p, 0)
            if p: e(land_look(AB))
            for i in range(0, 16, 2):
                o = i >> 3; c = i & 7
                e(f'v_pk_fma_f32 v[{H+i}:{H+i+1}], v[{CSQ+c}:{CSQ+c+1}], v[{NL+2*p}:{NL+2*p+1}], v[{EP}:{EP+1}] op_sel:[0,{o},0] op_sel_hi:[1,{o},0]')
            for i in range(0, 16, 2):
                o = i >> 3
                e(f'v_pk_fma_f32 v[{H+i}:{H+i+1}], v[{a+i}:{a+i+1}], v[{RL+2*p}:{RL+2*p+1}], v[{H+i}:{H+i+1}] op_sel:[0,{o},0] op_sel_hi:[1,{o},1]')
            phi_tail(PQ + 8 * p)
        Z = 232; G = 64; KF = 236
        p2_resid(e)
        e('s_waitcnt lgkmcnt(0)')
        land_check(e, AB)
        p2_preread(e)
        e(f's_lshl_b32 s{sT}, s{sW}, 10\ns_add_u32 s{sT}, s{sT}, {L_KF}\nv_add_u32 v6, s{sT}, v{L16}\nv_xor_b32 v7, 0x400, v6')
        L, M, Fin = lab('gather'), lab('gretry'), lab('gdone')
        spin_init(e)
        e(f'{L}:')
        ts(e, 5, 0)
        for r in range(16):
            if r % 4 == 0: e(f's_add_u32 s{sT+1}, s{sKV}, {r*1152}')
            e(f'buffer_load_dwordx4 v[{G+4*r}:{G+4*r+3}], v{L16}, s[{SWS}:{SWS+3}], s{sT+1} offen offset:{(r&3)*1152} sc1')
        e(f'buffer_load_dwordx4 v[{Z}:{Z+3}], v11, s[{SWS}:{SWS+3}], s{sKV} offen offset:1024 sc1\nv_mov_b32 v3, 0')
        for r in range(17):
            b = G + 4 * r if r < 16 else Z
            e(f's_waitcnt vmcnt({16-r})')
            if r == 8: e(look(0))
            for i in range(4): e(f'v_xor_b32 v{b+i}, s{TG+i}, v{b+i}')
            e(f'v_or3_b32 v3, v3, v{b}, v{b+1}\nv_or3_b32 v3, v3, v{b+2}, v{b+3}')
            if 0 < r < 16:
                for i in (0, 2): e(f'v_pk_add_f32 v[{G+i}:{G+i+1}], v[{G+i}:{G+i+1}], v[{b+i}:{b+i+1}]')
        e('v_and_b32 v3, v10, v3\nv_cmp_ne_u32 vcc, 0, v3')
        for ror in (1, 2, 4, 8):
            for i in range(4): e(f'v_add_f32_dpp v{Z+i}, v{Z+i}, v{Z+i} row_ror:{ror} row_mask:0xf bank_mask:0xf')
        e(f's_cmp_lg_u64 vcc, 0\ns_cbranch_scc1 {M}\n{Fin}:')
        c = Emit(); c(f'{M}:\ns_waitcnt lgkmcnt(0)'); spin_tail(c, L, Fin, 1); COLD.extend(c.lines)
        e(f'v_cvt_pk_bf16_f32 v{KF}, v{G}, v{G+1}\nv_cvt_pk_bf16_f32 v{KF+1}, v{G+2}, v{G+3}')
        e(f'v_cvt_pk_bf16_f32 v{KF+2}, v{Z}, v{Z+1}\nv_cvt_pk_bf16_f32 v{KF+3}, v{Z+2}, v{Z+3}')
        e(f'ds_write_b128 v6, v[{KF}:{KF+3}]\nds_write_b32 v{SYV}, v2 offset:48\ns_waitcnt lgkmcnt(0)')
        for l in check(0): e(l)
        ts(e, 1, 1)
        p2_start(e, 0, A1)
        ODR = (16, 24, 64, 72)
        def o_head(h):
            for rt in range(4):
                d = ODR[rt]; q = PQ + 4 * rt + 2 * h
                e(f'v_mfma_f32_16x16x16_bf16 v[{d+4}:{d+7}], v[{KF+4*h+2}:{KF+4*h+3}], v[{q}:{q+1}], 0')
            for rt in range(4):
                d = ODR[rt]; q = PQ + 4 * rt + 2 * h
                e(f'v_mfma_f32_16x16x16_bf16 v[{d}:{d+3}], v[{KF+4*h}:{KF+4*h+1}], v[{q}:{q+1}], 0')
            for d in ODR: e(f'v_fmamk_f32 v{d+4}, v{d+4}, {fl(LOG2E)}, v{EP}')
            for d in ODR: e(f'v_rcp_f32 v{d+4}, v{d+4}')
            for d in ODR:
                for i in (0, 2): e(f'v_pk_mul_f32 v[{d+i}:{d+i+1}], v[{d+i}:{d+i+1}], v[{d+4}:{d+5}] op_sel_hi:[1,0]')
            for rt in range(4):
                for i in range(2): e(f'v_cvt_pk_bf16_f32 v{PQ+4*rt+2*h+i}, v{ODR[rt]+2*i}, v{ODR[rt]+2*i+1}')
                if h: e(f'buffer_store_dwordx4 v[{PQ+4*rt}:{PQ+4*rt+3}], v{L16B if rt&1 else L16}, s[{SWS}:{SWS+3}], s{sY1 if rt>>1 else sY0} offen sc1')
        pert(e)
        o_head(0)
        pair_wait(e, 48, [f'ds_read_b128 v[{KF+4}:{KF+7}], v7'])
        e('s_waitcnt lgkmcnt(0)')
        e(look(1))
        o_head(1)
        ts(e, 6, 0)

def compute_p2(e):
    ts(e, 2, 1)
    nA = 0 if OPT['p2noa'] else 2
    e.vm = A1 * nA + 2
    tokA = {t: (t + 1) * nA for t in range(A1)}
    RD = {}; tokB = {}
    for n, (t0, k) in {3: (4, 4), 4: (10, 8), 5: (12, 4), 6: (18, 8), 7: (22, 8), 8: (24, 6)}.items():
        r = readB(n)
        for i in range(0, 16, k): RD[t0 + i // k] = (n, r[i:i + k])
    RED = (0, 16384, 0)
    OW = ACC + 48
    for t in range(36):
        n, j = STEPS[t]
        if t in (0, 5, 11, 20, 30, 34): pert(e)
        w = f's_waitcnt vmcnt({e.vm - tokA[t]})'
        ex = []
        if t in CHK:
            e(w + ' lgkmcnt(0)'); ex = check(CHK[t])
            if t == 22:
                Le, Lb = lab('epoch'), lab('epochd')
                ex += [f's_cmp_eq_u32 s{sEP}, 0', f's_cbranch_scc1 {Le}\n{Lb}:']
                COLD.extend([f'{Le}:', '    s_mov_b64 exec, 1', f'    buffer_store_dwordx2 v[{FV}:{FV+1}], off, s[{SWS}:{SWS+3}], 0 sc1', '    s_mov_b64 exec, -1', f'    s_branch {Lb}'])
        elif t == 13: e(w + f' lgkmcnt({e.lg - tokB[4]})')
        elif j == 0 and n >= 3: e(w + f' lgkmcnt({min(15, e.lg - tokB[n])})')
        else: e(w)
        if t == 0:
            for h in range(2):
                for i in range(2): e(f'v_permlane16_swap_b32 v{XR+4*h+i}, v{XR+4*h+2+i}')
            for i in range(8): ex += [f'v_lshlrev_b32 v{OW+2*i}, 16, v{XR+i}', f'v_and_b32 v{OW+2*i+1}, s23, v{XR+i}']
            ts(e, 8)
        if t == A1: put_flag(e, 2)
        if t == 2: ts(e, 6, 1)
        if t == 10: ts(e, 7, 1)
        if t in (10, 13, 22): e('s_barrier')
        if t in (4, 10, 16, 22, 28): ts(e, {4: 1, 10: 2, 16: 5, 22: 6, 28: 7}[t], 3)
        if t in RD: ex += RD[t][1]; tokB[RD[t][0]] = e.lg + len(RD[t][1])
        for o, ph in (('ly', 4), ('ls', 2), ('lo', 3)):
            if t == OPT[o]: ex.append(look(ph))
        if t == 27:
            for jj in range(3): ex += [f's_add_u32 s{sT+1}, s{sW}, {1+jj}', f's_and_b32 s{sT+1}, s{sT+1}, 3', f's_lshl_b32 s{sT+1}, s{sT+1}, 12', f'v_add_u32 v{2+jj}, s{sT+1}, v{L16}']
        if t == 28: ex += [f'v_add_u32 v4, {SCR}, v4', f's_lshl_b32 s{sT+1}, s{sW}, 12', f'v_add_u32 v5, s{sT+1}, v{L16}', f'v_add_u32 v6, {SCR}, v5']
        if t >= 30:
            jj = (t - 30) // 2
            ex += ['s_nop 0'] * 2 * (1 - t % 2) + [f'ds_write_b128 v{2+jj}, v[{ACC+16*jj+4*q}:{ACC+16*jj+4*q+3}] offset:{RED[jj]+q*1024}' for q in ((0, 1) if t % 2 == 0 else (2, 3))]
        la = []
        for u in ISSUE[t]:
            L = loadA(u)
            if u - DA == t:
                if len(L) == 3: ex.append(L.pop(0))
                la = L
            else: ex += L + [('tok', u)]
        k = 0
        for i in range(8):
            ct, s = i >> 1, i & 1
            e(mfma(ACC + 16 * j + 4 * ct, BR + 32 * (n % 3) + 8 * ct + 4 * s, A0 + 8 * (t % DA) + 4 * s, n == 0 and s == 0 and j < 3))
            lim = 6 if la else 8
            if i < lim:
                nx = -(-(len(ex) - k) // (lim - i))
                for l in ex[k:k + nx]:
                    if isinstance(l, tuple): tokA[l[1]] = e.vtok()
                    else: e(l)
                k += nx
            else: e(la[i - 6])
        if la: tokA[t + DA] = e.vtok()
    assert 0 <= OPT['ly'] < 10 and 2 < OPT['ls'] < 18 and 10 < OPT['lo'] < 22
    ts(e, 9)
    e('s_waitcnt lgkmcnt(0)\ns_barrier')
    RB = 128
    for q in range(4):
        for jj in range(3): e(f'ds_read_b128 v[{RB+12*q+4*jj}:{RB+12*q+4*jj+3}], v{5 if jj < 2 else 6} offset:{RED[jj]+q*1024}')
    for q in range(4):
        e(f's_waitcnt lgkmcnt({9-3*q})')
        for i in (0, 2):
            r = RB + 12 * q + i; o = OW + 4 * q + i
            e(f'v_pk_add_f32 v[{o}:{o+1}], v[{o}:{o+1}], v[{r}:{r+1}]\nv_pk_add_f32 v[{r+4}:{r+5}], v[{r+4}:{r+5}], v[{r+8}:{r+9}]')
        for i in (0, 2):
            r = RB + 12 * q + i; o = OW + 4 * q + i
            e(f'v_pk_add_f32 v[{o}:{o+1}], v[{o}:{o+1}], v[{r+4}:{r+5}]')
        for i in (0, 2): e(f'v_cvt_pk_bf16_f32 v{80+2*q+i//2}, v{OW+4*q+i}, v{OW+4*q+i+1}')
        if q & 1:
            h = q >> 1
            for i in range(2): e(f'v_permlane16_swap_b32 v{80+4*h+i}, v{80+4*h+2+i}')
            e(f'buffer_store_dwordx4 v[{80+4*h}:{83+4*h}], v{VO}, s[{SOUT}:{SOUT+3}], s{sO} offen offset:{h*64} nt')
    if DIAG: e('s_waitcnt vmcnt(0)')
    ts(e, 10)
    ts_dump(e, 11, 4)
    e('s_endpgm')

def ids2(e):
    e(f's_and_b32 s{sRB2}, s2, 7\ns_lshl_b32 s{sRB2}, s{sRB2}, 2\ns_lshr_b32 s{sT}, s2, 6\ns_add_u32 s{sRB2}, s{sRB2}, s{sT}')
    tabs = []
    for ab in ((0, 1), (2, 4), (5, 6), (0, 4)):
        rest = [c for c in range(8) if c not in (3, 7) + ab]
        tabs.append(sum(c << (4 * i) for i, c in enumerate([3, ab[0], rest[0], rest[1], 7, ab[1], rest[2], rest[3]])))
    e(f's_mov_b32 s{sT+1}, {tabs[0]}')
    for k in (1, 2, 3): e(f's_cmp_eq_u32 s{sT}, {k}\ns_cselect_b32 s{sT+1}, {tabs[k]}, s{sT+1}')
    e(f's_and_b32 s{sCB}, s{sLI}, 7\ns_lshl_b32 s{sCB}, s{sCB}, 2\ns_lshr_b32 s{sCB}, s{sT+1}, s{sCB}\ns_and_b32 s{sCB}, s{sCB}, 7')
    e(f's_lshl_b32 s{sSY}, s{sF}, 11\ns_add_u32 s{sSY}, s{sSY}, {L_SY}')

def main():
    e = Emit()
    e('s_load_dwordx16 s[16:31], s[0:1], 0\ns_load_dwordx2 s[34:35], s[0:1], 72')
    e('s_cmp_ge_u32 s2, 256\ns_cbranch_scc1 L_end')
    ts(e, 0)
    e(f'v_readfirstlane_b32 s{sW}, v0\nv_and_b32 v0, 63, v0')
    e(f's_lshr_b32 s{sLI}, s2, 3\ns_bfe_u32 s{sT+1}, s2, 0x10002\ns_lshl_b32 s{sRB}, s{sT+1}, 3\ns_lshr_b32 s{sT}, s2, 5\ns_add_u32 s{sRB}, s{sRB}, s{sT}')
    e(f's_add_u32 s{sT}, s{sT}, s2\ns_and_b32 s{sT}, s{sT}, 3\ns_lshl_b32 s{sT}, s{sT}, 1\ns_add_u32 s{sKC}, s{sT}, s{sT+1}')
    e(f's_and_b32 s{sG}, s2, 3\ns_lshl_b32 s{sG}, s{sG}, 1\ns_and_b32 s{sT+1}, s{sLI}, 1\ns_add_u32 s{sG}, s{sG}, s{sT+1}')
    e(f's_lshr_b32 s{sW}, s{sW}, 6\ns_bfe_u32 s{sF}, s2, 0x10004')
    e(f's_cmp_lt_u32 s{sW}, 4\ns_cbranch_scc1 L_helper')
    compute_early(e)
    e('L_helper:')
    helper(e)
    e('L_compute:')
    compute_common(e)
    e(f's_cmp_eq_u32 s{sF}, 0\ns_cbranch_scc1 L_compute_A')
    compute_p1(e, 1)
    e('s_branch L_p2')
    e('L_compute_A:')
    compute_p1(e, 0)
    e('L_p2:')
    compute_p2(e)
    e.lines += COLD
    e('L_end:\ns_endpgm\nL_code_end:')
    lines, n = hazard_pass_fast(e.lines)
    if OPT['al']: lines, nw, npad = align_pass(lines, NAME + '_kernel', 3, OPT['al'] - 1)
    lines2, n2 = hazard_pass(lines); assert n2 == 0
    hdr = open('cdna_kernels/%s.s.ref' % NAME).read().split('; Override launch')[0]
    out = hdr + f'; @launch grid=(256,1,1) block=(512,1,1) lds={LDS_BYTES}\n'
    out += ''.join('; ' + l + '\n' for l in __doc__.split('\n')[2:])
    out += f'.amdgcn_target "amdgcn-amd-amdhsa--gfx950"\n.text\n.globl {NAME}_kernel\n.p2align 8\n.type {NAME}_kernel,@function\n{NAME}_kernel:\n'
    out += '\n'.join(lines) + '\n'
    out += f'''.section .rodata,"a"
.p2align 6
.amdhsa_kernel {NAME}_kernel
  .amdhsa_next_free_vgpr 256
  .amdhsa_next_free_sgpr 102
  .amdhsa_accum_offset 256
  .amdhsa_group_segment_fixed_size 0
  .amdhsa_kernarg_size 80
  .amdhsa_user_sgpr_count 2
  .amdhsa_user_sgpr_kernarg_segment_ptr 1
  .amdhsa_system_sgpr_workgroup_id_x 1
  .amdhsa_float_denorm_mode_32 3
.end_amdhsa_kernel
'''
    open(sys.argv[1], 'w').write(out)
    print('wrote', sys.argv[1], len(lines), 'lines,', n, 'hazard pads')

main()
```

```python
import sys, struct
from asmlib import *

NAME = 'parallel_sum__linear_attn_block__dense_activation_mish__prompt'
OPT = dict(diag=0, cyc=0, kts=0, p2ts=0, pert=0, al=1,
           pre1=8, wpc=2, s0=3, sn=12, b2a=6, b2b=6, r7=0, thr=8, w1=4, hp=0, hpk=0, hl=0, ld=0, ldp=2, bp=2, wpa=1, mix=3, tw=0, nb=0, nbc=4, kaf=0, wp2=9, sk=11, skn=0, fr=0, fo=0, swp=0,
           xpos=387, xpos1=560, lpos=562, a0=1, go=1, a1=3, ly=5, ls=13, lo=16,
           nob2=0, p2noa=0, ecut=0)
for a in sys.argv[2:]:
    k, v = a.split('='); assert k in OPT, k; OPT[k] = int(v)
DIAG = OPT['diag']

WS_RS = 0x1000
WS_CS = 0x30000
WS_KV = 0x50000
WS_TS = 0xE0000
WS_YF = 0x100000
FG = 256; FPH = 4 * FG
WS_Y = 0x200000
YRT = 72 * 1024
WS_SIZE = WS_Y + 128 * YRT
SLOT = 45056
L_W = 16384; L_S = 40960
GS = (14 * 8192, 0, 10 * 8192, 4 * 8192)
SCR = 147456
L_R = SCR
L_CS = SCR + 1024
L_BT = SCR + 2048
L_KX = SCR + 4096
L_KF = SCR + 12288
L_SY = SCR + 2048
LDS_BYTES = 163840

sW, sRB, sG, sF, sKC, sRB2, sCB, sLI = 3, 4, 5, 6, 7, 8, 9, 10
pX, pWQKV, pWO, pW1, pB1, pW2, pOUT, pWS = 16, 18, 20, 24, 26, 28, 30, 34
SX, SWs, SW2, SWO, SWS, SOUT, SB1 = 36, 40, 44, 48, 52, 56, 60
sSY, sNON, sT, sSPIN, sTS = 64, 68, 70, 79, 80

def fl(x): return '0x%08x' % struct.unpack('<I', struct.pack('<f', x))[0]
LOG2E = 1.4426950408889634
def srd(e, d, p, n): e(f's_mov_b32 s{d}, s{p}\ns_mov_b32 s{d+1}, s{p+1}\ns_mov_b32 s{d+2}, {n}\ns_mov_b32 s{d+3}, 0x20000')
_lab = [0]
def lab(p):
    _lab[0] += 1
    return f'L_{p}_{_lab[0]}'
COLD = []

TSI = 's_memtime' if OPT['cyc'] else 's_memrealtime'
KTS = (16, 18, 20, 24, 26, 28, 30, 32, 34)
def ts(e, k, p2=None):
    if DIAG and (p2 is None or p2 == OPT['p2ts']): e(f'{TSI} s[{sTS+2*k}:{sTS+2*k+1}]')
def ts_dump(e, nst, wave_off):
    if not DIAG: return
    e('s_waitcnt lgkmcnt(0)\nv_mov_b32 v1, 0')
    if wave_off == 0:
        for c in range(9): e(f'v_writelane_b32 v1, s{KTS[c]}, {7+c}')
    for k in range(nst): e(f'v_writelane_b32 v1, s{sTS+2*k}, {k}')
    if wave_off:
        e(f's_getreg_b32 s{sT}, hwreg(HW_REG_HW_ID)\ns_getreg_b32 s{sT+1}, hwreg(HW_REG_XCC_ID)\nv_writelane_b32 v1, s{sT}, 12\nv_writelane_b32 v1, s{sT+1}, 13\nv_writelane_b32 v1, s{sNON}, 14')
    e(f's_lshl_b32 s{sT}, s2, 3\ns_add_u32 s{sT}, s{sT}, s{sW}\ns_add_u32 s{sT}, s{sT}, {wave_off}\ns_lshl_b32 s{sT}, s{sT}, 6\ns_add_u32 s{sT}, s{sT}, {WS_TS}')
    e(f'v_lshlrev_b32 v2, 2, v0\ns_mov_b64 exec, 0xffff\nbuffer_store_dword v1, v2, s[{SWS}:{SWS+3}], s{sT} offen\ns_mov_b64 exec, -1')
_pn = [0]
def pert(e):
    if not OPT['pert']: return
    _pn[0] += 1
    L = lab('pert'); m = (0x9e3779b1 * (OPT['pert'] * 131 + _pn[0])) & 0xffffffff | 1
    e(f's_lshl_b32 s100, s2, 3\ns_add_u32 s100, s100, s{sW}\ns_add_u32 s100, s100, {_pn[0]*77}\ns_mul_i32 s100, s100, {m}\ns_lshr_b32 s100, s100, 28')
    e(f's_cmp_lt_u32 s100, 11\ns_cbranch_scc1 {L}\ns_sleep {20 + 25 * (_pn[0] % 4)}\n{L}:')

def spin_init(e, n=200000): e(f's_mov_b32 s{sSPIN}, {n}')
def spin_tail(e, L, D, slp=0):
    e(f's_sub_u32 s{sSPIN}, s{sSPIN}, 1\ns_cmp_eq_u32 s{sSPIN}, 0\ns_cbranch_scc1 {D}')
    if slp: e(f's_sleep {slp}')
    e(f's_branch {L}')

UN = (0, 4, 1, 5, 2, 6, 3)

def helper(e):
    vX, vWo, vS, vB, vL16, vN, vT, vTG, vRG, vRW, vSY, vBuf = 2, 6, 8, 9, 11, 12, 13, 14, 15, 16, 17, 96
    sXB, sWB, sHX, sHW, sHS = 11, 12, 13, 14, 15
    sRSP, sUST, sB2, sK0, sCSB, sRSB, sSD, sCK, sL = 22, 23, 60, 61, 62, 63, 76, 77, 78
    e('v_lshrrev_b32 v40, 3, v0\nv_and_b32 v41, 7, v0\nv_lshrrev_b32 v42, 4, v0')
    e(f'v_xor_b32 v43, v41, v42\nv_lshlrev_b32 v43, 4, v43\nv_lshl_add_u32 v{vX}, v40, 10, v43')
    e(f'v_xor_b32 v{vX+1}, 64, v{vX}\nv_add_u32 v{vX+1}, {8192-1024}, v{vX+1}')
    e(f'v_add_u32 v{vX+2}, {2*(8192-1024)}, v{vX}\nv_add_u32 v{vX+3}, {2*(8192-1024)}, v{vX+1}')
    e(f's_lshl_b32 s{sHX}, s{sW}, 12\ns_lshl_b32 s{sXB}, s{sRB}, 17\ns_lshl_b32 s{sT}, s{sW}, 15\ns_add_u32 s{sXB}, s{sXB}, s{sT}')
    e(f's_lshl_b32 s{sT+1}, s{sKC}, 7\ns_add_u32 s{sT+1}, s{sT+1}, s{sXB}\ns_mov_b32 m0, s{sHX}')
    e(f's_mov_b32 s{SX+2}, {2048*1024}\ns_mov_b32 s{SX+3}, 0x20000\ns_mov_b32 s{SWs+3}, 0x20000')
    e(f's_lshr_b32 s{sT}, s{sG}, 1\ns_mul_i32 s{sT}, s{sT}, 896\ns_and_b32 s{sT+2}, s{sG}, 1\ns_lshl_b32 s{sT+3}, s{sT+2}, 9\ns_add_u32 s{sT}, s{sT}, s{sT+3}')
    e(f's_mul_i32 s{sSD}, s{sT+2}, -448\ns_add_u32 s{sSD}, s{sSD}, 384\ns_lshl_b32 s{sT+2}, s{sG}, 7')
    e(f's_lshl_b32 s{sT+3}, s{sF}, 9\ns_add_u32 s{sT+3}, s{sT+3}, 3072')
    e(f's_lshl_b32 s{sCK}, s{sT+3}, 6\ns_lshl_b32 s{SWs+2}, s{sT+3}, 9\ns_mul_i32 s{sWB}, s{sT+3}, s{sW}\ns_lshl_b32 s{sWB}, s{sWB}, 4')
    e('v_and_b32 v43, 1, v42\nv_lshlrev_b32 v43, 1, v43\nv_xor_b32 v43, v41, v43\nv_lshlrev_b32 v43, 4, v43')
    e(f'v_mad_u32_u24 v{vWo}, v40, s{sT+3}, v43\ns_lshl_b32 s{sT+4}, s{sT+3}, 3\ns_sub_u32 s{sT+4}, s{sT+4}, 1024')
    e(f'v_xor_b32 v{vWo+1}, 64, v{vWo}\nv_add_u32 v{vWo+1}, s{sT+4}, v{vWo+1}')
    e('v_lshrrev_b32 v44, 2, v0\nv_and_b32 v45, 3, v0\nv_and_b32 v46, 2, v42\nv_xor_b32 v45, v45, v46\nv_lshlrev_b32 v45, 4, v45')
    e(f'v_mad_u32_u24 v{vS}, v44, s{sT+3}, v45')
    e(f's_lshl_b32 s{sHW}, s{sW}, 11\ns_lshl_b32 s{sHS}, s{sW}, 10\ns_add_u32 s{sHS}, s{sHS}, {L_S}')
    e(f's_cmp_lg_u32 s{sF}, 0\ns_cselect_b32 s{sT}, s{sT}, s{sT+2}\ns_add_u32 s{sWB}, s{sWB}, s{sT}\ns_mov_b32 s{sL}, 0\ns_mov_b32 s{sK0}, s{sKC}')
    e('s_waitcnt lgkmcnt(0)')
    e(f's_mov_b32 s{SX}, s{pX}\ns_mov_b32 s{SX+1}, s{pX+1}')

    def chunk_groups(first=False):
        g = []
        pre = [] if first else [f's_lshl_b32 s{sT+1}, s{sKC}, 7', f's_add_u32 m0, s{sL}, s{sHX}', f's_add_u32 s{sT+1}, s{sT+1}, s{sXB}']
        for i in range(4):
            g.append((pre if i == 0 else []) + [f'buffer_load_dwordx4 v{vX+i}, s[{SX}:{SX+3}], s{sT+1} offen offset:{i*1024} lds'])
        if first:
            g.append([f's_cmp_lg_u32 s{sF}, 0', f's_cselect_b32 s{SWs}, s{pW1}, s{pWQKV}', f's_cselect_b32 s{SWs+1}, s{pW1+1}, s{pWQKV+1}',
                      f's_movk_i32 s{sUST}, 1024', f's_cselect_b32 s{sUST}, 128, s{sUST}'])
        for u in range(3):
            if u == 0: pre = [f's_add_u32 s{sT+4}, s{sL}, s{sHW}', f's_mul_i32 s{sT+2}, s{sKC}, s{sCK}', f's_add_u32 m0, s{sT+4}, {L_W}', f's_add_u32 s{sT+2}, s{sT+2}, s{sWB}']
            else: pre = [f's_add_u32 m0, s{sT+4}, {L_W+u*8192}', f's_add_u32 s{sT+3}, s{sT+2 if u == 1 else sT+3}, s{sUST}']
            so = sT + 2 if u == 0 else sT + 3
            for i in range(2):
                g.append((pre if i == 0 else []) + [f'buffer_load_dwordx4 v{vWo+i}, s[{SWs}:{SWs+3}], s{so} offen offset:{i*1024} lds'])
        Ls = lab('nostrip')
        g.append([f's_cmp_eq_u32 s{sF}, 0', f's_cbranch_scc1 {Ls}', f's_add_u32 m0, s{sL}, s{sHS}', f's_add_u32 s{sT+3}, s{sT+2}, s{sSD}',
                  f'buffer_load_dwordx4 v{vS}, s[{SWs}:{SWs+3}], s{sT+3} offen lds', f'{Ls}:',
                  f's_add_u32 s{sKC}, s{sKC}, 1', f's_and_b32 s{sKC}, s{sKC}, 7', f's_add_u32 s{sL}, s{sL}, {SLOT}',
                  f's_cmp_eq_u32 s{sL}, {3*SLOT}', f's_cselect_b32 s{sL}, 0, s{sL}'])
        return g
    def b2_groups(n, w):
        S, off = (SW2, (7 * w + UN[n]) * 65536) if n < 7 else (SWO, (2 * w + n - 7) * 65536)
        g = []
        for i in range(2):
            pre = [f's_add_u32 s{sT+4}, s{sB2}, {off}'] if i == 0 else []
            if n < 4 or n > 8 - OPT['ld']:
                if i == 0: pre = [f's_add_u32 m0, s{sHW}, {GS[n%4]+w*8192}'] + pre
                g.append(pre + [f'buffer_load_dwordx4 v{vB+i}, s[{S}:{S+3}], s{sT+4} offen offset:{i*1024} lds'])
            else:
                r = vBuf + (((n - 4) * 4 + w) * 2 + i) * 4
                g.append(pre + [f'buffer_load_dwordx4 v[{r}:{r+3}], v{vB+i}, s[{S}:{S+3}], s{sT+4} offen offset:{i*1024}'])
        return [] if OPT['nob2'] else g
    def issue(groups):
        for g in groups:
            for l in g:
                e(l)
                if l.startswith(f'buffer_load_dwordx4 v{vS},'): e.vm -= 1
    def take(q, n):
        g = []
        for _ in range(min(n, len(q))): g += b2_groups(*q.pop(0))
        return g
    def kts(c, k=0):
        if DIAG and k == OPT['kts']: e(f'{TSI} s[{KTS[c]}:{KTS[c]+1}]')
    tok = {}
    issue(chunk_groups(True)); tok[0] = e.vtok()
    ids2(e)
    srd(e, SW2, pW2, 1792 * 1024); srd(e, SWO, pWO, 512 * 1024); srd(e, SWS, pWS, WS_SIZE)
    e('v_lshlrev_b32 v43, 1, v42\nv_xor_b32 v43, v41, v43\nv_lshlrev_b32 v43, 4, v43')
    e(f'v_lshl_add_u32 v{vB}, v40, 10, v43\nv_add_u32 v{vB+1}, {8192-1024}, v{vB}\nv_lshlrev_b32 v{vL16}, 4, v0')
    e(f's_and_b32 s{sT}, s{sRB2}, 1\ns_xor_b32 s{sT}, s{sT}, s{sW}\ns_lshl_b32 s{sB2}, s{sT}, 14\ns_lshl_b32 s{sT}, s{sCB}, 7\ns_add_u32 s{sB2}, s{sB2}, s{sT}')
    e(f's_lshl_b32 s{sT}, s{sW}, 8\nv_lshl_add_u32 v{vN}, v0, 2, s{sT}\nv_add_u32 v{vT}, {L_CS}, v{vN}')
    e(f's_lshl_b32 s{sT}, s{sF}, 3\ns_add_u32 s{sT}, s{sT}, s{sG}\ns_lshl_b32 s{sCSB}, s{sT}, 13\ns_add_u32 s{sCSB}, s{sCSB}, {WS_CS}')
    e(f's_lshl_b32 s{sRSB}, s{sRB}, 11\ns_add_u32 s{sRSB}, s{sRSB}, {WS_RS}\ns_lshl_b32 s{sT}, s{sT}, 7\ns_add_u32 s{sRSP}, s{sRSB}, s{sT}')
    e(f's_lshl_b32 s{sT}, s{sW}, 9\ns_add_u32 s{sRSB}, s{sRSB}, s{sT}\ns_cmp_eq_u32 s{sW}, 0\ns_cselect_b32 s{sRSP}, s{sRSP}, 0x7ff00000')
    e(f'v_and_b32 v{vRG}, 0x1f0, v{vL16}\nv_and_b32 v46, 0x70, v{vL16}\nv_add_u32 v47, s{sSY}, v46')
    e(f'v_and_b32 v44, 31, v0\ns_lshl_b32 s{sT}, s{sW}, 7\ns_add_u32 s{sT}, s{sT}, {L_R}\nv_lshl_add_u32 v{vRW}, v44, 2, s{sT}')
    e(f'v_mov_b32 v{vSY}, s{sSY}\nv_and_b32 v45, 3, v0\nv_lshlrev_b32 v45, 3, v45')
    e(f's_lshl_b32 s{sT}, s{sLI}, 2\ns_add_u32 s{sT}, s{sT}, s{sW}\ns_mul_i32 s{sT+1}, s{sT}, {14*1024}\ns_lshl_b32 s{sT}, s{sT}, 12')
    e(f's_add_u32 s56, s{pW2}, s{sT+1}\ns_addc_u32 s57, s{pW2+1}, 0\ns_add_u32 s58, s{pWO}, s{sT}\ns_addc_u32 s59, s{pWO+1}, 0')
    sq = [f's_load_dword s65, s[56:57], {(k>>1)*1024+384+(k&1)*64}' for k in range(28)] + [f's_load_dword s65, s[58:59], {(k>>1)*1024+384+(k&1)*64}' for k in range(8)]
    if OPT['swp']:
        e(f's_xor_b32 s{sT}, s2, 1\ns_lshl_b32 s{sT}, s{sT}, 2\ns_add_u32 s{sT}, s{sT}, s{sW}\ns_mul_i32 s{sT+1}, s{sT}, 1792\ns_lshl_b32 s{sT}, s{sT}, 9')
        e(f's_add_u32 s94, s{pW2}, s{sT+1}\ns_addc_u32 s95, s{pW2+1}, 0\ns_add_u32 s96, s{pWO}, s{sT}\ns_addc_u32 s97, s{pWO+1}, 0')
        st = OPT['swp'] if OPT['swp'] < 3 else 1
        s2q = [f's_load_dword s65, s[94:95], {k*64}' for k in range(0, 28, st)] + [f's_load_dword s65, s[96:97], {k*64}' for k in range(0, 8, st)]
        sq = s2q + sq if OPT['swp'] == 3 else sq + s2q
    if OPT['tw'] & 1: srd(e, 92, pOUT, 2048 * 1024)
    dq = [(0, 0), (0, 1), (0, 2), (0, 3), (2, 1), (2, 2), (1, 0), (1, 1), (1, 2), (1, 3), (2, 3), (3, 0), (2, 0), (3, 1), (3, 2), (3, 3)]
    rq = [(n, w) for n in range(4, 9 - OPT['ld']) for w in range(4)]
    assert OPT['b2a'] <= 6 and OPT['b2a'] + OPT['b2b'] <= 12
    def gather_loads(x):
        for k in range(8): x(f'buffer_load_dword v{20+k}, v{vN}, s[{SWS}:{SWS+3}], s{sCSB if k < 4 else sT+5} offen offset:{(k&3)*1024} sc1')
        x(f'buffer_load_dwordx4 v[28:31], v{vRG}, s[{SWS}:{SWS+3}], s{sRSB} offen sc1')
    g1 = chunk_groups()
    issue(g1[:OPT['pre1']]); rest = g1[OPT['pre1']:]; tok[1] = e.vtok()
    ts(e, 1)
    for c in range(8):
        pert(e)
        e.wait_vm(tok[c])
        e('s_barrier')
        kts(c)
        if rest: issue(rest); tok[c + 1] = e.vtok(); rest = []
        if c == 0: e(f'ds_read_b64 v[18:19], v{vSY}')
        if c == 1: e(f'ds_read_b32 v20, v{vT}\nds_read_b128 v[24:27], v47 offset:128')
        def wpf(x=0):
            e(f's_xor_b32 s{sT}, s2, {x}\ns_lshl_b32 s{sT}, s{sT}, 2\ns_add_u32 s{sT}, s{sT}, s{sW}\ns_mul_i32 s{sT+1}, s{sT}, 1792\ns_lshl_b32 s{sT}, s{sT}, 9')
            e(f'v_min_u32 v55, 13, v0\nv_lshlrev_b32 v55, 7, v55\nbuffer_load_dword v56, v55, s[{SW2}:{SW2+3}], s{sT+1} offen')
            e(f'v_min_u32 v55, 0x180, v55\nbuffer_load_dword v56, v55, s[{SWO}:{SWO+3}], s{sT} offen')
        if c == OPT['wpc'] and not OPT['wpa']: wpf()
        if c == 6:
            e(f's_add_u32 s{sT+5}, s{sCSB}, 4096')
            gather_loads(e); tg = e.vtok()
        if c == 7:
            L, M, Dn = lab('xchk'), lab('xretry'), lab('xdone')
            spin_init(e)
            e.wait_vm(tg)
            e(f'{L}:')
            for i in range(8): e(f'v_xor_b32 v{20+i}, v{vTG}, v{20+i}')
            e('v_or3_b32 v32, v20, v21, v22\nv_or3_b32 v32, v32, v23, v24\nv_or3_b32 v32, v32, v25, v26\nv_or_b32 v32, v32, v27\nv_and_b32 v32, 0xff, v32')
            e('v_and_b32 v33, 1, v18\nv_xor_b32 v28, v33, v28\nv_xor_b32 v29, v33, v29\nv_or_b32 v33, v28, v29\nv_and_or_b32 v32, v33, 1, v32')
            e('v_xor_b32 v30, v18, v30\nv_xor_b32 v31, v19, v31\nv_or3_b32 v32, v32, v30, v31\nv_cmp_ne_u32 vcc, 0, v32')
            e(f's_cmp_lg_u64 vcc, 0\ns_cbranch_scc1 {M}\n{Dn}:')
            x = Emit()
            x(f'{M}:\ns_sub_u32 s{sSPIN}, s{sSPIN}, 1\ns_cmp_eq_u32 s{sSPIN}, 0\ns_cbranch_scc1 {Dn}\ns_sleep 2')
            gather_loads(x); x(f's_waitcnt vmcnt(0)\ns_branch {L}')
            COLD.extend(x.lines)
            e(f'ds_write_b32 v{vRW}, v28\nds_write_b32 v{vRW}, v29 offset:512')
            for a, b in ((20, 21), (22, 23), (24, 25), (26, 27), (20, 22), (24, 26), (20, 24)): e(f'v_add_f32 v{a}, v{a}, v{b}')
            e(f'ds_write_b32 v{vT}, v20')
        if c + 2 <= 7:
            g = chunk_groups(); k = OPT['sk'] if c <= OPT['skn'] else 11
            issue(g[:k]); rest = g[k:]; tok[c + 2] = e.vtok()
            if c == OPT['wpc'] and OPT['wpa']: wpf()
            if c == OPT['wp2']: wpf(1)
            if c == OPT['wpc'] and OPT['tw'] & 2:
                e(f'v_min_u32 v55, 5, v0\nv_lshlrev_b32 v55, 21, v55\nbuffer_load_dword v56, v55, s[{SWS}:{SWS+3}], 0 offen offset:2048')
            if c >= OPT['nbc']: issue(take(rq, OPT['nb']))
        elif c == 6: issue(take(dq, OPT['b2a']))
        else: issue(take(dq, OPT['b2b'])); issue(take(rq, OPT['r7']))
        if c == 0:
            e(f's_waitcnt lgkmcnt(0)\nv_bfe_u32 v{vTG}, v18, v45, 8\nv_bfi_b32 v{vTG}, 1, v18, v{vTG}')
        if c == 1:
            e(f's_lshl_b32 s{sT}, s{sK0}, 10\ns_add_u32 s{sT}, s{sT}, s{sCSB}\ns_movk_i32 s{sT+1}, 0xff\ns_waitcnt lgkmcnt(0)')
            e(f'v_add_u32 v20, 0x80, v20\nv_bfi_b32 v20, s{sT+1}, v{vTG}, v20')
            e(f'buffer_store_dword v20, v{vN}, s[{SWS}:{SWS+3}], s{sT} offen sc1')
            e(f's_mov_b64 exec, 0xff\nbuffer_store_dwordx4 v[24:27], v46, s[{SWS}:{SWS+3}], s{sRSP} offen sc1\ns_mov_b64 exec, -1')
        for _ in range(min(OPT['sn'], len(sq)) if c >= OPT['s0'] else 0): e(sq.pop(0))
    e('s_waitcnt lgkmcnt(0)\ns_barrier')
    kts(8)
    ts(e, 2)
    e(f's_lshl_b32 s{sT}, s{sW}, 2\nv_add_u32 v25, s{sT}, v{vSY}\nv_mov_b32 v24, -1')
    pert(e)
    nD = 2 * len(dq); tD = e.vtok(); landed = False
    allg = take(dq, 16) + take(rq, 20)
    lastg = allg[len(allg) - OPT['hl']:]; allg = allg[:len(allg) - OPT['hl']]
    for k, g in enumerate(allg + [[]]):
        if OPT['hp'] and k == OPT['hpk']: e(f's_setprio {OPT["hp"]}')
        if not landed and (k == nD + 12 or not g):
            e.wait_vm(tD); e('ds_write_b32 v25, v24 offset:16'); landed = True
        for l in g: e(l)
        if k + 1 == nD: tD = e.vtok()
        if g: e(f's_waitcnt vmcnt({OPT["thr"]})')
    ts(e, 3)
    if OPT['hp']: e('s_setprio 0')
    e(f'v_add_u32 v{vL16}, s{sHW}, v{vL16}')
    for r in range(4): e(f'v_add_u32 v{20+r}, {GS[r]}, v{vL16}')
    def refill(n, k0=0, k1=8):
        if n > 8 - OPT['ld']:
            if k0 == 0:
                e(f's_setprio {OPT["ldp"]}'); issue(take([(n, w) for w in range(4)], 4)); e('s_setprio 0')
            return
        for k in range(k0, k1):
            b = vBuf + ((n - 4) * 8 + k) * 4
            e(f'ds_write_b128 v{20+n%4}, v[{b}:{b+3}] offset:{(k//2)*8192+(k&1)*1024}')
    L, Dn = lab('free'), lab('freed')
    spin_init(e, 2000000)
    kts(0, 1)
    e(f'{L}:')
    e(f'ds_read_b128 v[24:27], v{vSY} offset:64\ns_waitcnt lgkmcnt(0)\nv_and_b32 v24, v24, v25\nv_and_b32 v26, v26, v27\nv_and_b32 v24, v24, v26')
    e(f'v_readfirstlane_b32 s{sT}, v24\ns_cmp_lg_u32 s{sT}, 0\ns_cbranch_scc1 {Dn}')
    spin_tail(e, L, Dn, 1)
    e(f'{Dn}:')
    kts(1, 1)
    pert(e)
    assert OPT['thr'] <= 16 - OPT['hl'] and OPT['hl'] <= 8
    for n in (4, 5, 6):
        if OPT['ld']: e(f's_waitcnt vmcnt({8*(8-OPT["ld"]-n)})')
        refill(n)
    if lastg:
        e('s_setprio 2'); issue(lastg); e('s_setprio 0')
    e(f's_waitcnt vmcnt({len(lastg)}) lgkmcnt(0)')
    kts(2, 1)
    e('s_barrier')
    kts(3, 1)
    if OPT['tw'] & 1:
        e(f's_lshl_b32 s{sT}, s{sRB2}, 16\nbuffer_load_dword v56, off, s[92:95], s{sT}')
    refill(7, 0, OPT['w1'])
    e('s_barrier')
    kts(5, 1)
    pert(e)
    refill(7, OPT['w1'], 8)
    if lastg: e('s_waitcnt vmcnt(0)')
    refill(8)
    e('s_waitcnt vmcnt(0) lgkmcnt(0)')
    ts(e, 5)
    e('s_barrier')
    ts(e, 6)
    ts_dump(e, 7, 0)
    e('s_endpgm')

ACC = 16; XF = 128; WR = 160; CS = 192; SEL = 208; AX = 212; AW = 216; AS = 220
CSW, L16, L16B, G4, N16, SYV = 224, 225, 226, 227, 228, 229
VO, FV, VBA = 1, 12, 15
VF = G4; sO2 = 20
BR = 128; AB = 244; VA = 248; AB2 = 252; XR = 40
sRH, sCH, sDL, sCNT, sSL = 11, 12, 13, 14, 15
sAU, sAO, sO, sEP, sKV, sKR, TG = 16, 17, 18, 19, 25, 26, 28
sXP, sNC, sC0, sFP, sY0, sY1, sYS = 40, 42, 65, 66, 76, 77, 78

def compute_early(e):
    e(f's_sub_u32 s{sW}, s{sW}, 4\ns_setprio 1\ns_and_b32 s{sRH}, s{sW}, 1\ns_lshr_b32 s{sCH}, s{sW}, 1')
    Lq = lab('pc')
    e(f's_getpc_b64 s[44:45]\n{Lq}:')
    e(f's_lshl_b32 s{sT}, s{sLI}, 2\ns_add_u32 s{sT}, s{sT}, s{sW}\ns_lshl_b32 s{sT}, s{sT}, 8\ns_min_u32 s{sT}, s{sT}, L_code_end-{Lq}-196')
    e(f's_add_u32 s44, s44, s{sT}\ns_addc_u32 s45, s45, 0')
    e(f'v_lshlrev_b32 v{L16}, 4, v0\nv_and_b32 v{N16}, 15, v0')
    e(f's_lshl_b32 s{sT}, s{sF}, 3\ns_add_u32 s{sT}, s{sT}, s{sG}\ns_lshl_b32 s{sT}, s{sT}, 2\ns_add_u32 s{sT}, s{sT}, s{sW}')
    e(f's_lshl_b32 s{sT+1}, s{sRB}, 6\ns_add_u32 s{sT+1}, s{sT}, s{sT+1}\ns_lshl_b32 s{sT+1}, s{sT+1}, 11')
    e(f's_mov_b32 s{SX+2}, {2048*1024}\ns_mov_b32 s{SX+3}, 0x20000\ns_mov_b32 s{SB1+2}, {1792*2}\ns_mov_b32 s{SB1+3}, 0x20000')
    e(f's_lshr_b32 s{sT}, s{sG}, 1\ns_mul_i32 s{sT}, s{sT}, 448\ns_and_b32 s{sT+2}, s{sG}, 1')
    e(f's_lshl_b32 s{sC0}, s{sT+2}, 8\ns_add_u32 s{sC0}, s{sC0}, s{sT}\ns_lshl_b32 s{sT+3}, s{sCH}, 5\ns_add_u32 s{sC0}, s{sC0}, s{sT+3}')
    e(f's_lshl_b32 s{sYS}, s{sT+2}, 5\ns_add_u32 s{sYS}, s{sYS}, s{sT}\ns_add_u32 s{sYS}, s{sYS}, 192')
    e(f'v_bfe_u32 v5, v0, 4, 1\nv_xor_b32 v5, s{sRH}, v5\nv_lshl_add_u32 v2, v5, 4, v{N16}\nv_lshrrev_b32 v3, 5, v0')
    e(f'v_lshl_add_u32 v4, v3, 6, v2\nv_add_lshl_u32 v4, v4, s{sC0}, 1')
    e(f's_sub_u32 s{sT}, s{sYS}, s{sC0}\ns_sub_u32 s{sT}, s{sT}, 128\nv_mul_lo_u32 v6, v3, s{sT}\nv_add3_u32 v6, v6, v2, s{sC0}\nv_add_u32 v6, 128, v6\nv_lshlrev_b32 v6, 1, v6')
    e('s_waitcnt lgkmcnt(0)')
    e(f's_mov_b32 s{SX}, s{pX}\ns_mov_b32 s{SX+1}, s{pX+1}')
    for k in range(2): e(f'buffer_load_dwordx4 v[{XF+4*k}:{XF+4*k+3}], v{L16}, s[{SX}:{SX+3}], s{sT+1} offen offset:{k*1024}')
    e(f's_load_dwordx2 s[{sNON}:{sNON+1}], s[{pWS}:{pWS+1}], 0')
    e(f's_mov_b32 s{SB1}, s{pB1}\ns_mov_b32 s{SB1+1}, s{pB1+1}')
    e(f'buffer_load_ushort v8, v4, s[{SB1}:{SB1+3}], 0 offen\nbuffer_load_ushort v9, v6, s[{SB1}:{SB1+3}], 0 offen')
    for k in range(4): e(f's_load_dword s46, s[44:45], {k*64}')
    e('s_branch L_compute')

def acc_main(u, rt, jj): return ACC + ((u * 4 + rt) * 2 + jj) * 4
def acc_strip(rt, jj): return ACC + 96 + (rt * 2 + jj) * 4

def compute_common(e):
    ids2(e)
    e(f'v_lshrrev_b32 v{G4}, 4, v0\nv_add_u32 v{L16B}, {YRT}, v{L16}')
    srd(e, SWS, pWS, WS_SIZE); srd(e, SOUT, pOUT, 2048 * 1024)
    e(f's_lshl_b32 s{sT}, s{sCH}, 2\nv_bfe_u32 v2, v0, 1, 3\nv_xor_b32 v2, v{G4}, v2\nv_xor_b32 v2, s{sT}, v2')
    e(f's_lshl_b32 s{sT}, s{sRH}, 13\ns_lshl_b32 s{sT+1}, s{sCH}, 12\ns_add_u32 s{sT}, s{sT}, s{sT+1}')
    e(f'v_lshlrev_b32 v3, 7, v{N16}\nv_add_u32 v3, s{sT}, v3\nv_lshl_add_u32 v{AX}, v2, 4, v3')
    e(f'v_xor_b32 v{AX+1}, 0x1000, v{AX}\nv_xor_b32 v{AX+2}, 64, v{AX}\nv_xor_b32 v{AX+3}, 64, v{AX+1}')
    e(f'v_bfe_u32 v2, v0, 2, 2\nv_lshl_add_u32 v2, v{G4}, 3, v2\ns_lshl_b32 s{sT}, s{sCH}, 5\nv_add_u32 v2, s{sT}, v2')
    e('v_and_b32 v4, 3, v0\nv_cmp_eq_u32 vcc, 0, v4\nv_lshlrev_b32 v4, 3, v4\nv_bfe_u32 v3, v0, 3, 2')
    e(f'v_xor_b32 v7, s{sW}, v3\nv_lshl_add_u32 v7, v7, 5, v4\nv_lshl_add_u32 v7, v2, 7, v7\nv_add_u32 v{AW}, {L_W}, v7')
    e(f'v_xor_b32 v{AW+1}, 32, v{AW}\nv_xor_b32 v{AW+2}, 0x1000, v{AW}\nv_xor_b32 v{AW+3}, 0x1000, v{AW+1}')
    e(f'v_lshl_add_u32 v6, v5, 5, v4\nv_lshl_add_u32 v6, v2, 6, v6\nv_add_u32 v{AS}, {L_S}, v6')
    e(f'v_xor_b32 v{AS+1}, 32, v{AS}\nv_xor_b32 v{AS+2}, 0x800, v{AS}\nv_xor_b32 v{AS+3}, 0x800, v{AS+1}')
    e(f'v_lshrrev_b32 v2, 2, v0\nv_lshl_add_u32 v4, v3, 5, v4\nv_lshl_add_u32 v4, v2, 7, v4\ns_lshl_b32 s{sT}, s{sW}, 13\nv_add_u32 v{VBA}, s{sT}, v4')
    e(f'v_mov_b32 v3, 0x3f803f80\nv_cndmask_b32 v{SEL}, 0, v3, vcc')
    for i in range(1, 4): e(f'v_mov_b32 v{SEL+i}, v{SEL}')
    e(f's_lshl_b32 s{sT}, s{sRB}, 1\ns_add_u32 s{sT}, s{sT}, s{sRH}\ns_mul_i32 s{sT+2}, s{sT}, {8*FPH}\ns_lshl_b32 s{sT}, s{sT}, 1\ns_add_u32 s{sT}, s{sT}, s{sCH}')
    e(f's_xor_b32 s{sT+1}, s{sT}, 1\ns_mul_i32 s{sY0}, s{sT}, {2*YRT}\ns_mul_i32 s{sY1}, s{sT+1}, {2*YRT}')
    e(f's_lshr_b32 s{sT}, s{sG}, 1\ns_mul_i32 s{sT}, s{sT}, {FG}\ns_add_u32 s{sT+2}, s{sT+2}, s{sT}')
    e(f's_and_b32 s{sT}, s{sG}, 1\ns_lshl_b32 s{sT}, s{sT}, 1\ns_add_u32 s{sT}, s{sT}, s{sCH}\ns_lshl_b32 s{sT}, s{sT}, 2\ns_add_u32 s{sT+2}, s{sT+2}, s{sT}')
    e(f's_xor_b32 s{sT}, s{sF}, 1\ns_mul_i32 s{sT}, s{sT}, {FPH}\ns_add_u32 s{sT+2}, s{sT+2}, s{sT}\ns_add_u32 s{sT+2}, s{sT+2}, {WS_YF}')
    e(f's_add_u32 s{sFP}, s{pWS}, s{sT+2}\ns_addc_u32 s{sFP+1}, s{pWS+1}, 0')
    e(f's_mul_i32 s{sT}, s{sRB2}, {8*FPH}\ns_mul_i32 s{sT+1}, s{sW}, {FG}\ns_add_u32 s{sT}, s{sT}, s{sT+1}\ns_add_u32 s{sT}, s{sT}, {WS_YF}')
    e(f's_add_u32 s{sXP}, s{pWS}, s{sT}\ns_addc_u32 s{sXP+1}, s{pWS+1}, 0')
    e(f's_mov_b32 s{sCNT}, 0\ns_mov_b32 s{sSL}, 0\ns_mov_b32 s22, {-2*SLOT}\ns_mov_b32 s23, 0xffff0000')
    e(f's_lshl_b32 s{sT}, s{sRB2}, 2\ns_add_u32 s{sT+1}, s{sT}, s{sW}\ns_lshl_b32 s{sT+1}, s{sT+1}, 14\ns_lshl_b32 s{sT+2}, s{sCB}, 7\ns_add_u32 s{sO}, s{sT+1}, s{sT+2}')
    e(f'v_bfe_u32 v2, v0, 4, 1\nv_lshrrev_b32 v3, 5, v0\nv_lshlrev_b32 v14, 4, v3\nv_lshl_add_u32 v3, v2, 5, v14\nv_lshl_add_u32 v{VO}, v{N16}, 10, v3')
    e(f's_mul_i32 s{sT}, s{sT}, {YRT}\ns_add_u32 s{sT}, s{sT}, {WS_Y}\ns_or_b32 s{sEP}, s2, s{sW}')
    e(f's_mul_i32 s{sT+1}, s{sW}, {7*2048}\ns_add_u32 s{sAU}, s{sT}, s{sT+1}\ns_lshl_b32 s{sT+1}, s{sW}, 12\ns_add_u32 s{sAO}, s{sT}, s{sT+1}\ns_add_u32 s{sAO}, s{sAO}, {28*2048}')
    for j in range(4): e(f's_add_u32 s{sT}, s{sW}, {1+j}\ns_and_b32 s{sT}, s{sT}, 3\ns_mul_i32 s{sT}, s{sT}, {YRT}\nv_add_u32 v{VA+j}, s{sT}, v{L16}')
    for u in (1, 2):
        for rt in range(4):
            for i in range(4): e(f'v_mov_b32 v{acc_main(u, rt, 1)+i}, 0')
    e('s_waitcnt lgkmcnt(0)')
    e(f's_mul_i32 s{sT+4}, s{sNON}, 0x4c957f2d\ns_mul_hi_u32 s{sT+5}, s{sNON}, 0x4c957f2d')
    e(f's_mul_i32 s{sT}, s{sNON+1}, 0x4c957f2d\ns_add_u32 s{sT+5}, s{sT+5}, s{sT}')
    e(f's_mul_i32 s{sT}, s{sNON}, 0x5851f42d\ns_add_u32 s{sT+5}, s{sT+5}, s{sT}')
    e(f's_add_u32 s{sNON}, s{sT+4}, 0xf767814f\ns_addc_u32 s{sNON+1}, s{sT+5}, 0x14057b7e\ns_mov_b32 s{sNC}, s{sNON}\ns_mov_b32 s{sNC+1}, s{sNON}')
    e(f'v_mov_b32 v{FV}, s{sNON}\nv_mov_b32 v{FV+1}, s{sNON+1}\nv_mov_b32 v2, s{sSY}\ns_lshl_b32 s{sT}, s{sW}, 2\nv_add_u32 v{SYV}, s{sT}, v2\nv_mov_b32 v3, 0')
    e(f'ds_write_b64 v2, v[{FV}:{FV+1}]')
    for o in (16, 32, 48, 64): e(f'ds_write_b32 v{SYV}, v3 offset:{o}')
    e('s_waitcnt vmcnt(2)')
    S = 136; R = FV - 2
    for k in range(2):
        for d in range(4):
            w = XF + 4 * k + d
            e(f'v_lshlrev_b32 v2, 16, v{w}\nv_and_b32 v3, s23, v{w}')
            if d == 0: e(f'v_add_f32 v{S+2*k}, v2, v3\nv_mul_f32 v{S+2*k+1}, v2, v2')
            else: e(f'v_add_f32 v{S+2*k}, v{S+2*k}, v2\nv_fmac_f32 v{S+2*k+1}, v2, v2\nv_add_f32 v{S+2*k}, v{S+2*k}, v3')
            e(f'v_fmac_f32 v{S+2*k+1}, v3, v3')
    for i in range(2): e(f'v_permlane32_swap_b32 v{S+i}, v{S+2+i}')
    for i in range(2): e(f'v_add_f32 v{S+i}, v{S+i}, v{S+2+i}')
    for i in range(2): e(f'v_mov_b32 v{S+2+i}, v{S+i}')
    for i in range(2): e(f'v_permlane16_swap_b32 v{S+2+i}, v{S+i}')
    for i in range(2): e(f'v_add_f32 v{S+i}, v{S+i}, v{S+2+i}')
    for ror in (1, 2, 4, 8):
        for i in range(2): e(f'v_add_f32_dpp v{S+i}, v{S+i}, v{S+i} row_ror:{ror} row_mask:0xf bank_mask:0xf')
    e(f'v_mul_f32 v2, {fl(-1/512)}, v{S}\nv_mul_f32 v3, {fl(1/512)}, v{S+1}\nv_fma_f32 v3, -v2, v2, v3\nv_max_f32 v3, 0, v3\nv_add_f32 v3, {fl(1e-5)}, v3')
    e(f'v_rsq_f32 v3, v3\ns_lshl_b32 s{sT}, s{sW}, 5\ns_add_u32 s{sT}, s{sT}, s{sSY}\nv_add_u32 v4, s{sT}, v14\nv_mul_f32 v{R}, {fl(LOG2E)}, v3\nv_mul_f32 v{R+1}, v{R}, v2')
    e(f'v_bfi_b32 v{R}, 1, v{FV}, v{R}\nv_bfi_b32 v{R+1}, 1, v{FV}, v{R+1}')
    e(f's_mov_b32 exec_lo, 1\ns_mov_b32 exec_hi, 1\nds_write_b128 v4, v[{R}:{R+3}] offset:128\ns_mov_b64 exec, -1')
    e(f's_lshl_b32 s{sT+4}, s{sRH}, 8\ns_lshl_b32 s{sT+1}, s{sCH}, 7\ns_add_u32 s{sT+4}, s{sT+4}, s{sT+1}\ns_add_u32 s{sT+4}, s{sT+4}, {L_R}')
    e(f's_lshl_b32 s{sT}, s{sCH}, 9\ns_lshl_b32 s{sT+1}, s{sRH}, 6\ns_add_u32 s{sT}, s{sT}, s{sT+1}\ns_add_u32 s{sT}, s{sT}, {L_CS}')
    e(f'v_lshl_add_u32 v2, v{N16}, 2, s{sT+4}\nv_xor_b32 v3, 128, v2\nv_lshl_add_u32 v4, v{G4}, 4, s{sT}\nv_xor_b32 v5, 64, v4\nv_lshl_add_u32 v{CSW}, v{N16}, 2, s{sT}')

def readB(n):
    b = BR + 32 * (n % 3); hi = GS[n % 4] >= 65536
    return [f'ds_read_b64_tr_b16 v[{b+8*ct+4*s+2*j}:{b+8*ct+4*s+2*j+1}], v{(AB2 if hi else AB)+ct} offset:{GS[n%4]-(GS[2] if hi else 0)+s*4096+j*2048}'
            for ct in range(4) for s in range(2) for j in range(2)]
STEPS = [(n, j) for n in range(7) for j in range(4)] + [(n, j) for j in range(4) for n in (7, 8)]
DA = 6; A0 = 80; A1 = OPT['a1']
CHK = {2: 1, 10: 4, 18: 2, 22: 3}
GATE = lambda u: 0 if u < 8 else 2 if u < 16 else 10 if u < 24 else 18 if u < 28 else 22
ISSUE = {}; _u = A1
for _t in range(36):
    ISSUE[_t] = []
    while _u < 36 and _u - DA <= _t and GATE(_u) <= _t and len(ISSUE[_t]) < 2: ISSUE[_t].append(_u); _u += 1
assert A1 <= 4 and all(t <= u - 3 for t in ISSUE for u in ISSUE[t])
def loadA(t):
    n, j = STEPS[t]
    L = [f's_add_u32 s{sT}, s{sAU}, {UN[n]*2048}'] if n < 7 and j == 0 else []
    for s in range(2):
        a = A0 + 8 * (t % DA) + 4 * s
        so, off = (sT, s * 1024) if n < 7 else (sAO, ((n - 7) * 2 + s) * 1024)
        L.append('s_nop 0' if OPT['p2noa'] else f'buffer_load_dwordx4 v[{a}:{a+3}], v{VA+j}, s[{SWS}:{SWS+3}], s{so} offen offset:{off} sc1')
    return L
def p2_start(e, t0, t1):
    for t in range(t0, t1):
        for l in loadA(t): e(l)
def swap8(a, b, t):
    return [f'v_mov_b32 v{t+i}, v{a+i}' for i in range(4)] + [f'v_mov_b32_dpp v{a+i}, v{b+i} row_ror:8 row_mask:0xf bank_mask:0xc' for i in range(4)] + \
           [f'v_mov_b32_dpp v{b+i}, v{t+i} row_ror:8 row_mask:0xf bank_mask:0x3' for i in range(4)]
def p2_resid(e):
    if OPT['fr']:
        for h in range(2): e(f'buffer_load_dwordx4 v[{XR+4*h}:{XR+4*h+3}], v{VF}, s[{SX}:{SX+3}], s{sO2 if h else sO} offen')
        return
    for h in range(2): e(f'buffer_load_dwordx4 v[{XR+4*h}:{XR+4*h+3}], v{VO}, s[{SX}:{SX+3}], s{sO} offen offset:{h*64}')
def put_flag(e, phase): e(f's_atomic_swap s{sNON}, s[{sFP}:{sFP+1}], {phase*FPH}')
QUAD = {0: 44, 1: 60, 4: 44, 2: 60, 3: 44}
def look(phase): return f's_load_dwordx4 s[{QUAD[phase]}:{QUAD[phase]+3}], s[{sXP}:{sXP+1}], {phase*FPH} glc'
def check(phase):
    L, D, M = lab('chk'), lab('chkd'), lab('chkm'); q = QUAD[phase]
    cmp = [f's_xor_b64 s[{q}:{q+1}], s[{q}:{q+1}], s[{sNC}:{sNC+1}]', f's_xor_b64 s[{q+2}:{q+3}], s[{q+2}:{q+3}], s[{sNC}:{sNC+1}]',
           f's_or_b64 s[{q}:{q+1}], s[{q}:{q+1}], s[{q+2}:{q+3}]']
    c = Emit()
    c(f'{M}:'); spin_init(c); c(f'{L}:'); c(look(phase)); c('s_waitcnt lgkmcnt(0)')
    for l in cmp: c(l)
    c(f's_cbranch_scc0 {D}'); spin_tail(c, L, D)
    COLD.extend(c.lines)
    return cmp + [f's_cbranch_scc1 {M}\n{D}:']
def land_look(r): return f'v_mov_b32 v2, s{sSY}\nds_read_b128 v[{r}:{r+3}], v2 offset:16'
def land_check(e, r):
    L, D, M = lab('land'), lab('landd'), lab('landm')
    cmp = f'v_and_b32 v{r}, v{r}, v{r+1}\nv_and_b32 v{r+2}, v{r+2}, v{r+3}\nv_and_b32 v{r}, v{r}, v{r+2}\nv_readfirstlane_b32 s{sT+5}, v{r}\ns_cmp_eq_u32 s{sT+5}, 0'
    e(cmp + f'\ns_cbranch_scc1 {M}\n{D}:')
    c = Emit()
    c(f'{M}:'); spin_init(c, 2000000); c(f'{L}:'); c(land_look(r)); c('s_waitcnt lgkmcnt(0)'); c(cmp); c(f's_cbranch_scc0 {D}')
    spin_tail(c, L, D, 1)
    COLD.extend(c.lines)
def p2_preread(e):
    for ct in range(4): e(f'v_xor_b32 v{AB+ct}, {32*ct}, v{VBA}\nv_add_u32 v{AB2+ct}, {GS[2]}, v{AB+ct}')
    for n in range(3):
        for l in readB(n): e(l)
    e(f'v_mov_b32 v2, -1\nds_write_b32 v{SYV}, v2 offset:64')
def pair_wait(e, off, reads):
    L, M, Dn = lab('pair'), lab('pairm'), lab('paird')
    spin_init(e, 2000000)
    e(f'{L}:\nds_read_b32 v3, v9 offset:{off}')
    for l in reads: e(l)
    e(f's_waitcnt lgkmcnt({len(reads)})\nv_readfirstlane_b32 s{sT+5}, v3\ns_cmp_eq_u32 s{sT+5}, 0\ns_cbranch_scc1 {M}\n{Dn}:')
    c = Emit(); c(f'{M}:'); spin_tail(c, L, Dn); COLD.extend(c.lines)
def mfma(d, a, b, z=False): return f'v_mfma_f32_16x16x32_bf16 v[{d}:{d+3}], v[{a}:{a+3}], v[{b}:{b+3}], ' + ('0' if z else f'v[{d}:{d+3}]')

def compute_p1(e, F):
    H = 192
    if F:
        CSV = 128; BV = 160; KK = 232; RL = 240; NL = 244; U = 208
        e(f's_lshl_b32 s{sYS}, s{sYS}, 5\ns_add_u32 s{sYS}, s{sYS}, s{sY0}\ns_add_u32 s{sYS}, s{sYS}, {WS_Y}')
        e(f's_lshl_b32 s{sT+2}, s{sC0}, 5\ns_add_u32 s{sT+2}, s{sT+2}, {WS_Y}')
        e(f's_lshl_b32 s{sT}, s{sW}, 9\ns_add_u32 s{sT}, s{sT}, {L_BT}\nv_lshl_add_u32 v7, v0, 2, s{sT}\nv_lshl_add_u32 v6, v{G4}, 4, s{sT}')
        e('s_waitcnt vmcnt(0)')
        e(f'v_lshlrev_b32 v8, 16, v8\nv_lshlrev_b32 v9, 16, v9\nv_mul_f32 v8, {fl(LOG2E)}, v8\nv_mul_f32 v9, {fl(LOG2E)}, v9')
        e('ds_write_b32 v7, v8\nds_write_b32 v7, v9 offset:256')
        e(f'v_xor_b32 v7, 0x200, v4\nv_xor_b32 v14, 0x200, v5\nv_mov_b32 v{KK}, {fl(-2/LOG2E)}\nv_mov_b32 v{KK+1}, {fl(1/LOG2E)}')
    else:
        NVV = 128; RV = 144; CK = 160; CSQ = 164; RL = 172; NL = 176; D0 = 184; PV = 208; EP = 230; PK = 232; D1 = 240; ONE = 252; PQ = 48; U = 112
        e(f's_lshl_b32 s{sT}, s{sG}, 2\ns_add_u32 s{sT}, s{sT}, s{sW}\ns_mul_i32 s{sKV}, s{sT}, {16*1152}\ns_add_u32 s{sKV}, s{sKV}, {WS_KV}')
        e(f's_mul_i32 s{sKR}, s{sRB}, 1152\ns_add_u32 s{sKR}, s{sKR}, s{sKV}\ns_and_b32 s{sT+2}, s{sNON}, 1')
        e(f's_and_b32 s{sT}, s{sRB}, {8 if OPT["go"] else 0}\ns_mul_i32 s{sT}, s{sT}, 1152\ns_add_u32 s32, s{sKV}, s{sT}\ns_sub_u32 s33, s{sKV}, s{sT}')
        for i in range(4): e(f's_lshr_b64 s[{sT}:{sT+1}], s[{sNON}:{sNON+1}], {12*i}\ns_and_b32 s{TG+i}, s{sT}, 0xffe\ns_or_b32 s{TG+i}, s{TG+i}, s{sT+2}')
        e(f's_lshl_b32 s{sT+2}, s{sG}, 1\ns_add_u32 s{sT+2}, s{sT+2}, s{sCH}\ns_lshl_b32 s{sT+2}, s{sT+2}, 10\ns_add_u32 s{sT+2}, s{sT+2}, {WS_Y+56*1024}')
        e(f'v_lshl_add_u32 v6, v{G4}, 4, s{sT+4}\nv_xor_b32 v7, 128, v6\nv_xor_b32 v14, 64, v{CSW}')
        e(f'v_mov_b32 v{EP}, {fl(1e-6*LOG2E)}\nv_mov_b32 v{EP+1}, {fl(1/LOG2E)}')
        for i in range(4): e(f'v_mov_b32 v{ONE+i}, 0x3f803f80')
        e(f's_waitcnt vmcnt(0)\nv_lshlrev_b32 v9, 4, v{G4}\nv_lshl_add_u32 v8, v{N16}, 6, v9\nv_cmp_gt_u32 vcc, 2, v{N16}\nv_mov_b32 v10, 0x7ff00000')
        e(f'v_mul_u32_u24 v11, 1152, v{N16}\nv_add_u32 v11, v11, v9\nv_cndmask_b32 v8, v10, v8, vcc\nv_mov_b32 v10, 0xfff\nv_xor_b32 v9, 4, v{SYV}')
    e(f's_add_u32 s{sY0}, s{sY0}, s{sT+2}\ns_add_u32 s{sY1}, s{sY1}, s{sT+2}')
    if F:
        for u in (1, 2): e(f's_add_u32 s{sT+2*u-2}, s{sY0}, {u*2048}\ns_add_u32 s{sT+2*u-1}, s{sY1}, {u*2048}')
    if OPT['fr'] or OPT['fo']:
        e(f'v_and_b32 v{VF}, 8, v0\nv_mul_u32_u24 v{VF}, {1024-8}, v{VF}\nv_sub_u32 v{VF}, v{VO}, v{VF}\ns_add_u32 s{sO2}, s{sO}, 8192')
    e('s_waitcnt lgkmcnt(0)')

    seq = [(0, 0), (1, 0), (2, 0), (3, 0), (3, 1), (0, 1), (1, 1), (2, 1)] if F else [(0, 0), (1, 0), (2, 0), (0, 1), (1, 1), (2, 1)]
    NP = len(seq); RING = 4 if F else 3
    def wreads(p):
        u, jj = seq[p]; b = WR + 8 * (p % RING)
        if u < 3: return [f'ds_read_b64_tr_b16 v[{b+4*s+2*j}:{b+4*s+2*j+1}], v{AW+2*s+jj} offset:{u*8192+j*512}' for s in range(2) for j in range(2)]
        return [f'ds_read_b64_tr_b16 v[{b+4*s+2*j}:{b+4*s+2*j+1}], v{AS+2*s+jj} offset:{j*256}' for s in range(2) for j in range(2)]
    def xreads(rt): return [f'ds_read_b128 v[{XF+8*rt+4*s}:{XF+8*rt+4*s+3}], v{AX+2*s+(rt>>1)} offset:{(rt&1)*2048}' for s in range(2)]
    def mfmas(p, first):
        u, jj = seq[p]; b = WR + 8 * (p % RING)
        m = []
        for rt in range(4 if u < 3 else 2):
            d = acc_main(u, rt, jj) if u < 3 else acc_strip(rt, jj)
            for s in range(2):
                w, x = b + 4 * s, XF + 8 * rt + 4 * s; z = first and s == 0
                m.append((rt, mfma(d, w, x, z) if (F or u == 0) else mfma(d, x, w, z)))
        if jj == 0 and first: m = [(None, mfma(CS + 4 * u, SEL, b + 4 * s, s == 0)) for s in range(2 if u < 3 else 1)] + m
        return m
    tokW = {}; tokX = {}; BP = OPT['bp']
    def spread(m, ex, p=None):
        seen = set(); k = 0
        for i, (rt, x) in enumerate(m):
            if p == 0 and rt is not None and rt not in seen: e.wait_lg(tokX[rt]); seen.add(rt)
            e(x)
            n = -(-(len(ex) - k) // (len(m) - i))
            for l in ex[k:k + n]:
                e(l[0] if isinstance(l, tuple) else l)
                if isinstance(l, tuple): tokW[l[1]] = e.ltok()
            k += n
    def head(first):
        for p in range(NP - 2):
            ex = wreads(p + 2); ex[-1] = (ex[-1], p + 2)
            if first and 1 <= p <= (4 if F else 3): ex = [f'ds_write_b32 v{CSW}, v{CS+4*(p-1)} offset:{(p-1)*128}'] + ex
            if p == 0: ex += [f's_add_u32 s{sSL}, s{sSL}, 1', f's_cmp_eq_u32 s{sSL}, 3', f's_cselect_b32 s{sDL}, s22, {SLOT}', f's_cselect_b32 s{sSL}, 0, s{sSL}']
            if p == 1: ex += [f'v_add_u32 v{a}, s{sDL}, v{a}' for a in (AW, AW + 2, AX, AX + 1)]
            if p == 2:
                ex += [f'v_add_u32 v{a}, s{sDL}, v{a}' for a in (AX + 2, AX + 3)]
                if not first: ex += [f's_add_u32 s{sCNT}, s{sCNT}, 1', f's_cmp_lt_u32 s{sCNT}, 7']
            if p == NP - 3 and F: ex += [f'v_add_u32 v{a}, s{sDL}, v{a}' for a in (AS, AS + 1, AS + 2, AS + 3)]
            e.wait_lg(tokW[p])
            spread(mfmas(p, first), ex, p)
        if BP:
            e.wait_lg(tokW[NP - 2])
            for rt, x in mfmas(NP - 2, False)[:BP]: e(x)
    def last(even, odd):
        for i, (rt, x) in enumerate(mfmas(NP - 1, False)):
            e(x)
            for l in (odd if i & 1 else even)(i // 2): e(l)
            if i == 6: tokW[1] = e.ltok()
            if i & 1: tokX[i // 2] = e.ltok()
    pert(e)
    if DIAG and OPT['p2ts'] == 0: e(f's_mov_b32 s{sTS+14}, 0')
    ts(e, 1, 0)
    e('s_barrier')
    ts(e, 2, 0)
    for l in wreads(0): e(l)
    tokW[0] = e.ltok()
    for rt in range(4):
        e(wreads(1)[rt])
        if rt == 3: tokW[1] = e.ltok()
        for l in xreads(rt): e(l)
        tokX[rt] = e.ltok()
    head(True)
    LK = lab('kloop')
    e(f'{LK}:\ns_waitcnt lgkmcnt(0)\ns_barrier')
    ex = wreads(0); ex[-1] = (ex[-1], 0)
    spread(mfmas(NP - 2, False)[BP:], ex + [f'v_add_u32 v{a}, s{sDL}, v{a}' for a in (AW + 1, AW + 3)])
    last(lambda k: [wreads(1)[k]], xreads)
    head(False)
    e(f's_cbranch_scc1 {LK}')
    e('s_waitcnt lgkmcnt(0)\ns_barrier')
    rowt = lambda dst, o: [f'ds_read_b32 v{dst+rt}, v{2+(rt>>1)} offset:{(rt&1)*64+o}' for rt in range(4)]
    if F:
        bvr = lambda t: f'ds_read_b128 v[{BV+4*t}:{BV+4*t+3}], v6 offset:{t*64}'
        spread(mfmas(NP - 2, False)[BP:], rowt(NL, 512) + rowt(RL, 0) + [bvr(t) for t in range(4)])
        last(lambda k: [['ds_read_b128 v[252:255], v14 offset:384'], ['ds_read_b128 v[8:11], v7 offset:384'], [bvr(4)], [bvr(5)]][k],
             lambda u: [f'ds_read_b128 v[{CSV+8*u+4*jj}:{CSV+8*u+4*jj+3}], v{4+jj} offset:{u*128}' for jj in range(2)])
        e(bvr(6)); e(bvr(7))
        ts(e, 3)
        held = []; gi = -1
        for u in range(4):
            if u == 0: e.wait_lg(tokX[0])
            if u == 1:
                e('s_waitcnt lgkmcnt(0)')
                for i in (0, 2):
                    e(f'v_pk_add_f32 v[{CSV+24+i}:{CSV+25+i}], v[{CSV+24+i}:{CSV+25+i}], v[{8+i}:{9+i}]')
                    e(f'v_pk_add_f32 v[{CSV+28+i}:{CSV+29+i}], v[{CSV+28+i}:{CSV+29+i}], v[{252+i}:{253+i}]')
            for p in range(2 if u < 3 else 1):
                a = acc_main(u, 2 * p, 0) if u < 3 else acc_strip(0, 0)
                L = []
                for i in range(0, 16, 2):
                    o = i >> 3; c = 8 * u + (i & 7)
                    L.append(f'v_pk_fma_f32 v[{H+i}:{H+i+1}], v[{CSV+c}:{CSV+c+1}], v[{NL+2*p}:{NL+2*p+1}], v[{BV+c}:{BV+c+1}] op_sel:[0,{o},0] op_sel_hi:[1,{o},1]')
                for i in range(0, 16, 2):
                    o = i >> 3
                    L.append(f'v_pk_fma_f32 v[{H+i}:{H+i+1}], v[{a+i}:{a+i+1}], v[{RL+2*p}:{RL+2*p+1}], v[{H+i}:{H+i+1}] op_sel:[0,{o},0] op_sel_hi:[1,{o},1]')
                for i in range(16): L.append(f'v_exp_f32 v{U+i}, v{H+i}')
                for i in range(0, 16, 2): L.append(f'v_pk_add_f32 v[{U+i}:{U+i+1}], v[{U+i}:{U+i+1}], 1.0 op_sel_hi:[1,0]')
                for i in range(0, 16, 2): L.append(f'v_pk_fma_f32 v[{U+i}:{U+i+1}], v[{U+i}:{U+i+1}], v[{U+i}:{U+i+1}], 1.0 op_sel_hi:[1,1,0]')
                for i in range(16): L.append(f'v_rcp_f32 v{U+i}, v{U+i}' if i >= OPT['ecut'] else 's_setprio 1')
                for i in range(0, 16, 2): L.append(f'v_pk_fma_f32 v[{U+i}:{U+i+1}], v[{U+i}:{U+i+1}], v[{KK}:{KK+1}], v[{KK}:{KK+1}] op_sel:[0,0,1] op_sel_hi:[1,0,1]')
                for i in range(0, 16, 2): L.append(f'v_pk_mul_f32 v[{U+i}:{U+i+1}], v[{U+i}:{U+i+1}], v[{H+i}:{H+i+1}]')
                for i in range(8): L.append(f'v_cvt_pk_bf16_f32 v{a+i}, v{U+2*i}, v{U+2*i+1}')
                gi += 1
                pert(e)
                for i, l in enumerate(L):
                    at = gi * 100 + i
                    if at == OPT['xpos']: ts(e, 1, 2); e.wait_vm(tX[0]); put_flag(e, 0); ts(e, 2, 2); p2_resid(e); done.add(0)
                    if at == OPT['xpos1'] - 30: e(land_look(4)); done.add(1)
                    if at == OPT['xpos1']:
                        ts(e, 5, 2); e(f's_waitcnt vmcnt({e.vm - tX[1]}) lgkmcnt(0)'); put_flag(e, 1); land_check(e, 4); ts(e, 6, 2); done.add(2)
                    if at == OPT['lpos']: e(look(0)); done.add(3)
                    e(l)
                so = (sY1 if p else sY0) if u == 0 else sT + 2 * u - 2 + p if u < 3 else sYS
                for k in range(2): held.append(f'buffer_store_dwordx4 v[{a+4*k}:{a+4*k+3}], v{L16B if k else L16}, s[{SWS}:{SWS+3}], s{so} offen sc1')
                if gi == 0: tX = {}; done = set()
                if u == 3:
                    assert done == {0, 1, 2, 3}
                    ts(e, 7, 2)
                    if OPT['a0']:
                        e('s_waitcnt lgkmcnt(0)')
                        for l in check(0): e(l)
                        p2_start(e, 0, OPT['a0'])
                    p2_preread(e)
                    e(f's_waitcnt vmcnt({e.vm - tX[2]}) lgkmcnt(0)'); put_flag(e, 4)
                    if not OPT['a0']:
                        for l in check(0): e(l)
                    ts(e, 1, 1)
                    e(look(1)); p2_start(e, OPT['a0'], A1)
                if p == 1 or u == 3:
                    for l in held: e(l)
                    held = []; tX[u] = e.vtok()
        ts(e, 4)
    else:
        spread(mfmas(NP - 2, False)[BP:], [f'ds_read_b32 v{CK+2*k+jj}, v{14 if jj else CSW} offset:{128+128*k}' for k in range(2) for jj in range(2)])
        last(lambda k: [], lambda k: [f'ds_read_b128 v[{NVV+8*k+4*i}:{NVV+8*k+4*i+3}], v{6+(k&1)} offset:{i*64+(512 if k < 2 else 0)}' for i in range(2)])
        for l in [f'ds_read_b128 v[{CSQ+4*jj}:{CSQ+4*jj+3}], v{4+jj}' for jj in range(2)] + rowt(RL, 0) + rowt(NL, 512): e(l)
        e(f's_lshl_b32 s{sT}, s{sW}, 11\ns_add_u32 s{sT}, s{sT}, {L_KX}\nv_add_u32 v6, s{sT}, v{L16}\nv_xor_b32 v7, 0x800, v6')
        ts(e, 3)
        def phi_tail(dst):
            for i in range(16): e(f'v_exp_f32_e64 v{U+i}, v{H+i} clamp')
            for i in range(16): e(f'v_max_f32 v{H+i}, v{EP}, v{H+i}')
            for i in range(0, 16, 2): e(f'v_pk_fma_f32 v[{H+i}:{H+i+1}], v[{H+i}:{H+i+1}], v[{EP}:{EP+1}], v[{U+i}:{U+i+1}] op_sel:[0,1,0] op_sel_hi:[1,1,1]')
            for i in range(0, 16, 2): e(f'v_cvt_pk_bf16_f32 v{dst+(i>>1)}, v{H+i}, v{H+i+1}')
        for h in (1, 0):
            ak = lambda i: acc_main(1, i >> 2, h) + (i & 3); av = lambda i: acc_main(2, i >> 2, h) + (i & 3)
            if h: e.wait_lg(tokX[1])
            for i in range(0, 16, 2): e(f'v_pk_fma_f32 v[{H+i}:{H+i+1}], v[{NVV+i}:{NVV+i+1}], v[{CK}:{CK+1}], v[{EP}:{EP+1}] op_sel:[0,{h},0] op_sel_hi:[1,{h},0]')
            if h: e.wait_lg(tokX[3])
            for i in range(0, 16, 2): e(f'v_pk_fma_f32 v[{H+i}:{H+i+1}], v[{ak(i)}:{ak(i)+1}], v[{RV+i}:{RV+i+1}], v[{H+i}:{H+i+1}]')
            pert(e)
            if not h: e(f'ds_write_b128 v6, v[{D1}:{D1+3}]\nds_write_b128 v6, v[{D1+4}:{D1+7}] offset:1024\nds_write_b32 v{SYV}, v{ONE} offset:32')
            phi_tail(PK)
            for i in range(0, 16, 2): e(f'v_pk_mul_f32 v[{H+i}:{H+i+1}], v[{NVV+i}:{NVV+i+1}], v[{CK+2}:{CK+3}] op_sel:[0,{h}] op_sel_hi:[1,{h}]')
            for i in range(0, 16, 2): e(f'v_pk_fma_f32 v[{H+i}:{H+i+1}], v[{av(i)}:{av(i)+1}], v[{RV+i}:{RV+i+1}], v[{H+i}:{H+i+1}]')
            for i in range(0, 16, 2): e(f'v_cvt_pk_bf16_f32 v{PV+(i>>1)}, v{H+i}, v{H+i+1}')
            d = D1 if h else D0
            for p in range(2): e(mfma(d + 4, PK + 4 * p, ONE, p == 0))
            for p in range(2): e(mfma(d, PK + 4 * p, PV + 4 * p, p == 0))
        pair_wait(e, 32, [f'ds_read_b128 v[{U}:{U+3}], v7', f'ds_read_b128 v[{U+4}:{U+7}], v7 offset:1024'])
        for k in range(2):
            e(f's_waitcnt lgkmcnt({1-k})')
            for i in range(4 * k, 4 * k + 4): e(f'v_add_f32 v{D0+i}, v{U+i}, v{D0+i}')
            for i in range(4 * k, 4 * k + 4): e(f'v_add_u32 v{D0+i}, 0x800, v{D0+i}')
            for i in range(4 * k, 4 * k + 4): e(f'v_bfi_b32 v{D0+i}, v10, s{TG+(i&3)}, v{D0+i}')
            if k == 0: e(f'buffer_store_dwordx4 v[{D0}:{D0+3}], v{L16}, s[{SWS}:{SWS+3}], s{sKR} offen sc1')
            else: e(f'buffer_store_dwordx4 v[{D0+4}:{D0+7}], v8, s[{SWS}:{SWS+3}], s{sKR} offen offset:1024 sc1')
        ts(e, 4)
        for p in range(2):
            a = acc_main(0, 2 * p, 0)
            if p: e(land_look(AB))
            for i in range(0, 16, 2):
                o = i >> 3; c = i & 7
                e(f'v_pk_fma_f32 v[{H+i}:{H+i+1}], v[{CSQ+c}:{CSQ+c+1}], v[{NL+2*p}:{NL+2*p+1}], v[{EP}:{EP+1}] op_sel:[0,{o},0] op_sel_hi:[1,{o},0]')
            for i in range(0, 16, 2):
                o = i >> 3
                e(f'v_pk_fma_f32 v[{H+i}:{H+i+1}], v[{a+i}:{a+i+1}], v[{RL+2*p}:{RL+2*p+1}], v[{H+i}:{H+i+1}] op_sel:[0,{o},0] op_sel_hi:[1,{o},1]')
            phi_tail(PQ + 8 * p)
        Z = 232; G = 64; KF = 236
        p2_resid(e)
        e('s_waitcnt lgkmcnt(0)')
        land_check(e, AB)
        p2_preread(e)
        e(f's_lshl_b32 s{sT}, s{sW}, 10\ns_add_u32 s{sT}, s{sT}, {L_KF}\nv_add_u32 v6, s{sT}, v{L16}\nv_xor_b32 v7, 0x400, v6')
        L, M, Fin = lab('gather'), lab('gretry'), lab('gdone')
        spin_init(e)
        e(f'{L}:')
        ts(e, 5, 0)
        for r in range(16):
            if r % 4 == 0: e(f's_add_u32 s{sT+1}, s{32 + (r >> 3)}, {r*1152}')
            e(f'buffer_load_dwordx4 v[{G+4*r}:{G+4*r+3}], v{L16}, s[{SWS}:{SWS+3}], s{sT+1} offen offset:{(r&3)*1152} sc1')
        e(f'buffer_load_dwordx4 v[{Z}:{Z+3}], v11, s[{SWS}:{SWS+3}], s{sKV} offen offset:1024 sc1\nv_mov_b32 v3, 0')
        for r in range(17):
            b = G + 4 * r if r < 16 else Z
            e(f's_waitcnt vmcnt({16-r})')
            if r == 8: e(look(0))
            for i in range(4): e(f'v_xor_b32 v{b+i}, s{TG+i}, v{b+i}')
            e(f'v_or3_b32 v3, v3, v{b}, v{b+1}\nv_or3_b32 v3, v3, v{b+2}, v{b+3}')
            if 0 < r < 16:
                for i in (0, 2): e(f'v_pk_add_f32 v[{G+i}:{G+i+1}], v[{G+i}:{G+i+1}], v[{b+i}:{b+i+1}]')
        e('v_and_b32 v3, v10, v3\nv_cmp_ne_u32 vcc, 0, v3')
        for ror in (1, 2, 4, 8):
            for i in range(4): e(f'v_add_f32_dpp v{Z+i}, v{Z+i}, v{Z+i} row_ror:{ror} row_mask:0xf bank_mask:0xf')
        e(f's_cmp_lg_u64 vcc, 0\ns_cbranch_scc1 {M}\n{Fin}:')
        c = Emit(); c(f'{M}:\ns_waitcnt lgkmcnt(0)')
        if DIAG and OPT['p2ts'] == 0: c(f's_add_u32 s{sTS+14}, s{sTS+14}, 1')
        spin_tail(c, L, Fin, 1); COLD.extend(c.lines)
        e(f'v_cvt_pk_bf16_f32 v{KF}, v{G}, v{G+1}\nv_cvt_pk_bf16_f32 v{KF+1}, v{G+2}, v{G+3}')
        e(f'v_cvt_pk_bf16_f32 v{KF+2}, v{Z}, v{Z+1}\nv_cvt_pk_bf16_f32 v{KF+3}, v{Z+2}, v{Z+3}')
        e(f'ds_write_b128 v6, v[{KF}:{KF+3}]\nds_write_b32 v{SYV}, v2 offset:48\ns_waitcnt lgkmcnt(0)')
        for l in check(0): e(l)
        ts(e, 1, 1)
        p2_start(e, 0, A1)
        ODR = (16, 24, 64, 72)
        def o_head(h):
            for rt in range(4):
                d = ODR[rt]; q = PQ + 4 * rt + 2 * h
                e(f'v_mfma_f32_16x16x16_bf16 v[{d+4}:{d+7}], v[{KF+4*h+2}:{KF+4*h+3}], v[{q}:{q+1}], 0')
            for rt in range(4):
                d = ODR[rt]; q = PQ + 4 * rt + 2 * h
                e(f'v_mfma_f32_16x16x16_bf16 v[{d}:{d+3}], v[{KF+4*h}:{KF+4*h+1}], v[{q}:{q+1}], 0')
            for d in ODR: e(f'v_fmamk_f32 v{d+4}, v{d+4}, {fl(LOG2E)}, v{EP}')
            for d in ODR: e(f'v_rcp_f32 v{d+4}, v{d+4}')
            for d in ODR:
                for i in (0, 2): e(f'v_pk_mul_f32 v[{d+i}:{d+i+1}], v[{d+i}:{d+i+1}], v[{d+4}:{d+5}] op_sel_hi:[1,0]')
            for rt in range(4):
                for i in range(2): e(f'v_cvt_pk_bf16_f32 v{PQ+4*rt+2*h+i}, v{ODR[rt]+2*i}, v{ODR[rt]+2*i+1}')
                if h: e(f'buffer_store_dwordx4 v[{PQ+4*rt}:{PQ+4*rt+3}], v{L16B if rt&1 else L16}, s[{SWS}:{SWS+3}], s{sY1 if rt>>1 else sY0} offen sc1')
        pert(e)
        o_head(0)
        pair_wait(e, 48, [f'ds_read_b128 v[{KF+4}:{KF+7}], v7'])
        e('s_waitcnt lgkmcnt(0)')
        e(look(1))
        o_head(1)
        ts(e, 6, 0)

def compute_p2(e):
    ts(e, 2, 1)
    nA = 0 if OPT['p2noa'] else 2
    e.vm = A1 * nA + 2
    tokA = {t: (t + 1) * nA for t in range(A1)}
    RD = {}; tokB = {}
    for n, (t0, k) in {3: (4, 4), 4: (10, 8), 5: (12, 4), 6: (18, 8), 7: (22, 8), 8: (24, 6)}.items():
        r = readB(n)
        for i in range(0, 16, k): RD[t0 + i // k] = (n, r[i:i + k])
    RED = (0, 16384, 0)
    OW = ACC + 48
    for t in range(36):
        n, j = STEPS[t]
        if t in (0, 5, 11, 20, 30, 34): pert(e)
        w = f's_waitcnt vmcnt({e.vm - tokA[t]})'
        ex = []
        if t in CHK:
            e(w + ' lgkmcnt(0)'); ex = check(CHK[t])
            if t == 22:
                Le, Lb = lab('epoch'), lab('epochd')
                ex += [f's_cmp_eq_u32 s{sEP}, 0', f's_cbranch_scc1 {Le}\n{Lb}:']
                COLD.extend([f'{Le}:', '    s_mov_b64 exec, 1', f'    buffer_store_dwordx2 v[{FV}:{FV+1}], off, s[{SWS}:{SWS+3}], 0 sc1', '    s_mov_b64 exec, -1', f'    s_branch {Lb}'])
        elif t == 13: e(w + f' lgkmcnt({e.lg - tokB[4]})')
        elif j == 0 and n >= 3: e(w + f' lgkmcnt({min(15, e.lg - tokB[n])})')
        else: e(w)
        if t == 0:
            if OPT['fr']:
                for l in swap8(XR, XR + 4, 32): e(l)
            for h in range(2):
                for i in range(2): e(f'v_permlane16_swap_b32 v{XR+4*h+i}, v{XR+4*h+2+i}')
            for i in range(8): ex += [f'v_lshlrev_b32 v{OW+2*i}, 16, v{XR+i}', f'v_and_b32 v{OW+2*i+1}, s23, v{XR+i}']
            ts(e, 8)
        if t == A1: put_flag(e, 2)
        if t == 2: ts(e, 6, 1)
        if t == 10: ts(e, 7, 1)
        if t in (10, 13, 22): e('s_barrier')
        if t in (4, 10, 16, 22, 28): ts(e, {4: 1, 10: 2, 16: 5, 22: 6, 28: 7}[t], 3)
        if t in RD: ex += RD[t][1]; tokB[RD[t][0]] = e.lg + len(RD[t][1])
        for o, ph in (('ly', 4), ('ls', 2), ('lo', 3)):
            if t == OPT[o]: ex.append(look(ph))
        if t == 27:
            for jj in range(3): ex += [f's_add_u32 s{sT+1}, s{sW}, {1+jj}', f's_and_b32 s{sT+1}, s{sT+1}, 3', f's_lshl_b32 s{sT+1}, s{sT+1}, 12', f'v_add_u32 v{2+jj}, s{sT+1}, v{L16}']
        if t == 28: ex += [f'v_add_u32 v4, {SCR}, v4', f's_lshl_b32 s{sT+1}, s{sW}, 12', f'v_add_u32 v5, s{sT+1}, v{L16}', f'v_add_u32 v6, {SCR}, v5']
        if t >= 30:
            jj = (t - 30) // 2
            ex += ['s_nop 0'] * 2 * (1 - t % 2) + [f'ds_write_b128 v{2+jj}, v[{ACC+16*jj+4*q}:{ACC+16*jj+4*q+3}] offset:{RED[jj]+q*1024}' for q in ((0, 1) if t % 2 == 0 else (2, 3))]
        la = []
        for u in ISSUE[t]:
            L = loadA(u)
            if u - DA == t:
                if len(L) == 3: ex.append(L.pop(0))
                la = L
            else: ex += L + [('tok', u)]
        k = 0
        for i in range(8):
            ct, s = i >> 1, i & 1
            e(mfma(ACC + 16 * j + 4 * ct, BR + 32 * (n % 3) + 8 * ct + 4 * s, A0 + 8 * (t % DA) + 4 * s, n == 0 and s == 0 and j < 3))
            lim = 6 if la else 8
            if i < lim:
                nx = -(-(len(ex) - k) // (lim - i))
                for l in ex[k:k + nx]:
                    if isinstance(l, tuple): tokA[l[1]] = e.vtok()
                    else: e(l)
                k += nx
            else: e(la[i - 6])
        if la: tokA[t + DA] = e.vtok()
    assert 0 <= OPT['ly'] < 10 and 2 < OPT['ls'] < 18 and 10 < OPT['lo'] < 22
    ts(e, 9)
    e('s_waitcnt lgkmcnt(0)\ns_barrier')
    RB = 128
    for q in range(4):
        for jj in range(3): e(f'ds_read_b128 v[{RB+12*q+4*jj}:{RB+12*q+4*jj+3}], v{5 if jj < 2 else 6} offset:{RED[jj]+q*1024}')
    for q in range(4):
        e(f's_waitcnt lgkmcnt({9-3*q})')
        for i in (0, 2):
            r = RB + 12 * q + i; o = OW + 4 * q + i
            e(f'v_pk_add_f32 v[{o}:{o+1}], v[{o}:{o+1}], v[{r}:{r+1}]\nv_pk_add_f32 v[{r+4}:{r+5}], v[{r+4}:{r+5}], v[{r+8}:{r+9}]')
        for i in (0, 2):
            r = RB + 12 * q + i; o = OW + 4 * q + i
            e(f'v_pk_add_f32 v[{o}:{o+1}], v[{o}:{o+1}], v[{r+4}:{r+5}]')
        for i in (0, 2): e(f'v_cvt_pk_bf16_f32 v{80+2*q+i//2}, v{OW+4*q+i}, v{OW+4*q+i+1}')
        if q & 1:
            h = q >> 1
            for i in range(2): e(f'v_permlane16_swap_b32 v{80+4*h+i}, v{80+4*h+2+i}')
            if not OPT['fo']: e(f'buffer_store_dwordx4 v[{80+4*h}:{83+4*h}], v{VO}, s[{SOUT}:{SOUT+3}], s{sO} offen offset:{h*64} nt')
    if OPT['fo']:
        for l in swap8(80, 84, 88): e(l)
        for h in range(2): e(f'buffer_store_dwordx4 v[{80+4*h}:{83+4*h}], v{VF}, s[{SOUT}:{SOUT+3}], s{sO2 if h else sO} offen nt')
    if DIAG: e('s_waitcnt vmcnt(0)')
    ts(e, 10)
    ts_dump(e, 11, 4)
    e('s_endpgm')

def ids2(e):
    e(f's_and_b32 s{sRB2}, s2, 7\ns_lshl_b32 s{sRB2}, s{sRB2}, 2\ns_lshr_b32 s{sT}, s2, 6\ns_add_u32 s{sRB2}, s{sRB2}, s{sT}')
    tabs = []
    for ab in ((0, 1), (2, 4), (5, 6), (0, 4)):
        rest = [c for c in range(8) if c not in (3, 7) + ab]
        tabs.append(sum(c << (4 * i) for i, c in enumerate([3, ab[0], rest[0], rest[1], 7, ab[1], rest[2], rest[3]])))
    e(f's_mov_b32 s{sT+1}, {tabs[0]}')
    for k in (1, 2, 3): e(f's_cmp_eq_u32 s{sT}, {k}\ns_cselect_b32 s{sT+1}, {tabs[k]}, s{sT+1}')
    e(f's_and_b32 s{sCB}, s{sLI}, 7\ns_lshl_b32 s{sCB}, s{sCB}, 2\ns_lshr_b32 s{sCB}, s{sT+1}, s{sCB}\ns_and_b32 s{sCB}, s{sCB}, 7')
    e(f's_lshl_b32 s{sSY}, s{sF}, 11\ns_add_u32 s{sSY}, s{sSY}, {L_SY}')

def main():
    e = Emit()
    e('s_load_dwordx16 s[16:31], s[0:1], 0\ns_load_dwordx2 s[34:35], s[0:1], 72')
    e('s_cmp_ge_u32 s2, 256\ns_cbranch_scc1 L_end')
    ts(e, 0)
    e(f'v_readfirstlane_b32 s{sW}, v0\nv_and_b32 v0, 63, v0')
    if OPT['mix']: e(f's_lshr_b32 s{sT}, s2, {OPT["mix"]}\ns_and_b32 s{sT}, s{sT}, 16\ns_xor_b32 s2, s2, s{sT}')
    e(f's_lshr_b32 s{sLI}, s2, 3\ns_bfe_u32 s{sT+1}, s2, 0x10002\ns_lshl_b32 s{sRB}, s{sT+1}, 3\ns_lshr_b32 s{sT}, s2, 5\ns_add_u32 s{sRB}, s{sRB}, s{sT}')
    e(f's_add_u32 s{sT}, s{sT}, s2\ns_and_b32 s{sT}, s{sT}, 3\ns_lshl_b32 s{sT}, s{sT}, 1\ns_add_u32 s{sKC}, s{sT}, s{sT+1}')
    e(f's_and_b32 s{sG}, s2, 3\ns_lshl_b32 s{sG}, s{sG}, 1\ns_and_b32 s{sT+1}, s{sLI}, 1\ns_add_u32 s{sG}, s{sG}, s{sT+1}')
    e(f's_lshr_b32 s{sW}, s{sW}, 6\ns_bfe_u32 s{sF}, s2, 0x10004')
    if OPT['kaf']: e(f's_sub_u32 s{sKC}, s{sKC}, s{sF}\ns_and_b32 s{sKC}, s{sKC}, 7')
    e(f's_cmp_lt_u32 s{sW}, 4\ns_cbranch_scc1 L_helper')
    compute_early(e)
    e('L_helper:')
    helper(e)
    e('L_compute:')
    compute_common(e)
    e(f's_cmp_eq_u32 s{sF}, 0\ns_cbranch_scc1 L_compute_A')
    compute_p1(e, 1)
    e('s_branch L_p2')
    e('L_compute_A:')
    compute_p1(e, 0)
    e('L_p2:')
    compute_p2(e)
    e.lines += COLD
    e('L_end:\ns_endpgm\nL_code_end:')
    lines, n = hazard_pass_fast(e.lines)
    if OPT['al']: lines, nw, npad = align_pass(lines, NAME + '_kernel', 3, OPT['al'] - 1)
    lines2, n2 = hazard_pass(lines); assert n2 == 0
    hdr = open('cdna_kernels/%s.s.ref' % NAME).read().split('; Override launch')[0]
    out = hdr + f'; @launch grid=(256,1,1) block=(512,1,1) lds={LDS_BYTES}\n'
    out += ''.join('; ' + l + '\n' for l in __doc__.split('\n')[2:])
    out += f'.amdgcn_target "amdgcn-amd-amdhsa--gfx950"\n.text\n.globl {NAME}_kernel\n.p2align 8\n.type {NAME}_kernel,@function\n{NAME}_kernel:\n'
    out += '\n'.join(lines) + '\n'
    out += f'''.section .rodata,"a"
.p2align 6
.amdhsa_kernel {NAME}_kernel
  .amdhsa_next_free_vgpr 256
  .amdhsa_next_free_sgpr 102
  .amdhsa_accum_offset 256
  .amdhsa_group_segment_fixed_size 0
  .amdhsa_kernarg_size 80
  .amdhsa_user_sgpr_count 2
  .amdhsa_user_sgpr_kernarg_segment_ptr 1
  .amdhsa_system_sgpr_workgroup_id_x 1
  .amdhsa_float_denorm_mode_32 3
.end_amdhsa_kernel
'''
    open(sys.argv[1], 'w').write(out)
    print('wrote', sys.argv[1], len(lines), 'lines,', n, 'hazard pads')

main()
```

```python
import sys, struct
from asmlib import *

NAME = 'parallel_sum__linear_attn_block__dense_activation_mish__prompt'
OPT = dict(diag=0, cyc=0, kts=0, p2ts=0, pert=0, al=1, wg=0, ia=0, ib=0,
           pre1=8, wpc=2, s0=3, sn=12, b2a=6, b2b=6, r7=0, thr=8, w1=4, hp=0, hpk=0, hl=0, ld=0, ldp=2, bp=2, wpa=1, mix=3, tw=0, nb=0, nbc=4, kaf=0, wp2=9, sk=11, skn=0, fr=0, fo=0, swp=0,
           xpos=387, xpos1=560, lpos=562, a0=1, go=1, a1=3, ly=5, ls=13, lo=16,
           nob2=0, p2noa=0, ecut=0)
for a in sys.argv[2:]:
    k, v = a.split('='); assert k in OPT, k; OPT[k] = int(v)
DIAG = OPT['diag']

WS_RS = 0x1000
WS_CS = 0x30000
WS_KV = 0x50000
WS_TS = 0xE0000
WS_YF = 0x100000
FG = 256; FPH = 4 * FG
WS_Y = 0x200000
YRT = 72 * 1024
WS_SIZE = WS_Y + 128 * YRT
SLOT = 45056
L_W = 16384; L_S = 40960
GS = (14 * 8192, 0, 10 * 8192, 4 * 8192)
SCR = 147456
L_R = SCR
L_CS = SCR + 1024
L_BT = SCR + 2048
L_KX = SCR + 4096
L_KF = SCR + 12288
L_SY = SCR + 2048
LDS_BYTES = 163840

sW, sRB, sG, sF, sKC, sRB2, sCB, sLI = 3, 4, 5, 6, 7, 8, 9, 10
pX, pWQKV, pWO, pW1, pB1, pW2, pOUT, pWS = 16, 18, 20, 24, 26, 28, 30, 34
SX, SWs, SW2, SWO, SWS, SOUT, SB1 = 36, 40, 44, 48, 52, 56, 60
sSY, sNON, sT, sSPIN, sTS = 64, 68, 70, 79, 80

def fl(x): return '0x%08x' % struct.unpack('<I', struct.pack('<f', x))[0]
LOG2E = 1.4426950408889634
def srd(e, d, p, n): e(f's_mov_b32 s{d}, s{p}\ns_mov_b32 s{d+1}, s{p+1}\ns_mov_b32 s{d+2}, {n}\ns_mov_b32 s{d+3}, 0x20000')
_lab = [0]
def lab(p):
    _lab[0] += 1
    return f'L_{p}_{_lab[0]}'
COLD = []

TSI = 's_memtime' if OPT['cyc'] else 's_memrealtime'
KTS = (16, 18, 20, 24, 26, 28, 30, 32, 34)
def ts(e, k, p2=None):
    if DIAG and (p2 is None or p2 == OPT['p2ts']): e(f'{TSI} s[{sTS+2*k}:{sTS+2*k+1}]')
def ts_dump(e, nst, wave_off):
    if not DIAG: return
    if DIAG == 3:
        if wave_off == 0: return
        Ls = lab('dd'); Lw = lab('dw')
        e(f's_waitcnt lgkmcnt(0)\ns_cmp_lg_u32 s{sW}, 0\ns_cbranch_scc1 {Ls}\ns_cmp_lg_u32 s2, {OPT["wg"]}\ns_cbranch_scc1 {Ls}')
        e(f's_sub_u32 s{sT}, s{sTS+2*OPT["ib"]}, s{sTS+2*OPT["ia"]}\ns_min_u32 s{sT}, s{sT}, 10000\ns_mul_i32 s{sT}, s{sT}, 20')
        e(f'{Lw}:')
        e(f's_memrealtime s[72:73]\ns_waitcnt lgkmcnt(0)\ns_sub_u32 s72, s72, s{sTS+2*(nst-1)}\ns_cmp_lt_u32 s72, s{sT}\ns_cbranch_scc1 {Lw}')
        e(f'{Ls}:')
        return
    e('s_waitcnt lgkmcnt(0)\nv_mov_b32 v1, 0')
    if wave_off == 0:
        for c in range(9): e(f'v_writelane_b32 v1, s{KTS[c]}, {7+c}')
    for k in range(nst): e(f'v_writelane_b32 v1, s{sTS+2*k}, {k}')
    if wave_off:
        e(f's_getreg_b32 s{sT}, hwreg(HW_REG_HW_ID)\ns_getreg_b32 s{sT+1}, hwreg(HW_REG_XCC_ID)\nv_writelane_b32 v1, s{sT}, 12\nv_writelane_b32 v1, s{sT+1}, 13\nv_writelane_b32 v1, s{sNON}, 14')
    e(f's_lshl_b32 s{sT}, s2, 3\ns_add_u32 s{sT}, s{sT}, s{sW}\ns_add_u32 s{sT}, s{sT}, {wave_off}\ns_lshl_b32 s{sT}, s{sT}, 6\ns_add_u32 s{sT}, s{sT}, {WS_TS}')
    e(f'v_lshlrev_b32 v2, 2, v0\ns_mov_b64 exec, 0xffff\nbuffer_store_dword v1, v2, s[{SWS}:{SWS+3}], s{sT} offen\ns_mov_b64 exec, -1')
_pn = [0]
def pert(e):
    if not OPT['pert']: return
    _pn[0] += 1
    L = lab('pert'); m = (0x9e3779b1 * (OPT['pert'] * 131 + _pn[0])) & 0xffffffff | 1
    e(f's_lshl_b32 s100, s2, 3\ns_add_u32 s100, s100, s{sW}\ns_add_u32 s100, s100, {_pn[0]*77}\ns_mul_i32 s100, s100, {m}\ns_lshr_b32 s100, s100, 28')
    e(f's_cmp_lt_u32 s100, 11\ns_cbranch_scc1 {L}\ns_sleep {20 + 25 * (_pn[0] % 4)}\n{L}:')

def spin_init(e, n=200000): e(f's_mov_b32 s{sSPIN}, {n}')
def spin_tail(e, L, D, slp=0):
    e(f's_sub_u32 s{sSPIN}, s{sSPIN}, 1\ns_cmp_eq_u32 s{sSPIN}, 0\ns_cbranch_scc1 {D}')
    if slp: e(f's_sleep {slp}')
    e(f's_branch {L}')

UN = (0, 4, 1, 5, 2, 6, 3)

def helper(e):
    vX, vWo, vS, vB, vL16, vN, vT, vTG, vRG, vRW, vSY, vBuf = 2, 6, 8, 9, 11, 12, 13, 14, 15, 16, 17, 96
    sXB, sWB, sHX, sHW, sHS = 11, 12, 13, 14, 15
    sRSP, sUST, sB2, sK0, sCSB, sRSB, sSD, sCK, sL = 22, 23, 60, 61, 62, 63, 76, 77, 78
    e('v_lshrrev_b32 v40, 3, v0\nv_and_b32 v41, 7, v0\nv_lshrrev_b32 v42, 4, v0')
    e(f'v_xor_b32 v43, v41, v42\nv_lshlrev_b32 v43, 4, v43\nv_lshl_add_u32 v{vX}, v40, 10, v43')
    e(f'v_xor_b32 v{vX+1}, 64, v{vX}\nv_add_u32 v{vX+1}, {8192-1024}, v{vX+1}')
    e(f'v_add_u32 v{vX+2}, {2*(8192-1024)}, v{vX}\nv_add_u32 v{vX+3}, {2*(8192-1024)}, v{vX+1}')
    e(f's_lshl_b32 s{sHX}, s{sW}, 12\ns_lshl_b32 s{sXB}, s{sRB}, 17\ns_lshl_b32 s{sT}, s{sW}, 15\ns_add_u32 s{sXB}, s{sXB}, s{sT}')
    e(f's_lshl_b32 s{sT+1}, s{sKC}, 7\ns_add_u32 s{sT+1}, s{sT+1}, s{sXB}\ns_mov_b32 m0, s{sHX}')
    e(f's_mov_b32 s{SX+2}, {2048*1024}\ns_mov_b32 s{SX+3}, 0x20000\ns_mov_b32 s{SWs+3}, 0x20000')
    e(f's_lshr_b32 s{sT}, s{sG}, 1\ns_mul_i32 s{sT}, s{sT}, 896\ns_and_b32 s{sT+2}, s{sG}, 1\ns_lshl_b32 s{sT+3}, s{sT+2}, 9\ns_add_u32 s{sT}, s{sT}, s{sT+3}')
    e(f's_mul_i32 s{sSD}, s{sT+2}, -448\ns_add_u32 s{sSD}, s{sSD}, 384\ns_lshl_b32 s{sT+2}, s{sG}, 7')
    e(f's_lshl_b32 s{sT+3}, s{sF}, 9\ns_add_u32 s{sT+3}, s{sT+3}, 3072')
    e(f's_lshl_b32 s{sCK}, s{sT+3}, 6\ns_lshl_b32 s{SWs+2}, s{sT+3}, 9\ns_mul_i32 s{sWB}, s{sT+3}, s{sW}\ns_lshl_b32 s{sWB}, s{sWB}, 4')
    e('v_and_b32 v43, 1, v42\nv_lshlrev_b32 v43, 1, v43\nv_xor_b32 v43, v41, v43\nv_lshlrev_b32 v43, 4, v43')
    e(f'v_mad_u32_u24 v{vWo}, v40, s{sT+3}, v43\ns_lshl_b32 s{sT+4}, s{sT+3}, 3\ns_sub_u32 s{sT+4}, s{sT+4}, 1024')
    e(f'v_xor_b32 v{vWo+1}, 64, v{vWo}\nv_add_u32 v{vWo+1}, s{sT+4}, v{vWo+1}')
    e('v_lshrrev_b32 v44, 2, v0\nv_and_b32 v45, 3, v0\nv_and_b32 v46, 2, v42\nv_xor_b32 v45, v45, v46\nv_lshlrev_b32 v45, 4, v45')
    e(f'v_mad_u32_u24 v{vS}, v44, s{sT+3}, v45')
    e(f's_lshl_b32 s{sHW}, s{sW}, 11\ns_lshl_b32 s{sHS}, s{sW}, 10\ns_add_u32 s{sHS}, s{sHS}, {L_S}')
    e(f's_cmp_lg_u32 s{sF}, 0\ns_cselect_b32 s{sT}, s{sT}, s{sT+2}\ns_add_u32 s{sWB}, s{sWB}, s{sT}\ns_mov_b32 s{sL}, 0\ns_mov_b32 s{sK0}, s{sKC}')
    e('s_waitcnt lgkmcnt(0)')
    e(f's_mov_b32 s{SX}, s{pX}\ns_mov_b32 s{SX+1}, s{pX+1}')

    def chunk_groups(first=False):
        g = []
        pre = [] if first else [f's_lshl_b32 s{sT+1}, s{sKC}, 7', f's_add_u32 m0, s{sL}, s{sHX}', f's_add_u32 s{sT+1}, s{sT+1}, s{sXB}']
        for i in range(4):
            g.append((pre if i == 0 else []) + [f'buffer_load_dwordx4 v{vX+i}, s[{SX}:{SX+3}], s{sT+1} offen offset:{i*1024} lds'])
        if first:
            g.append([f's_cmp_lg_u32 s{sF}, 0', f's_cselect_b32 s{SWs}, s{pW1}, s{pWQKV}', f's_cselect_b32 s{SWs+1}, s{pW1+1}, s{pWQKV+1}',
                      f's_movk_i32 s{sUST}, 1024', f's_cselect_b32 s{sUST}, 128, s{sUST}'])
        for u in range(3):
            if u == 0: pre = [f's_add_u32 s{sT+4}, s{sL}, s{sHW}', f's_mul_i32 s{sT+2}, s{sKC}, s{sCK}', f's_add_u32 m0, s{sT+4}, {L_W}', f's_add_u32 s{sT+2}, s{sT+2}, s{sWB}']
            else: pre = [f's_add_u32 m0, s{sT+4}, {L_W+u*8192}', f's_add_u32 s{sT+3}, s{sT+2 if u == 1 else sT+3}, s{sUST}']
            so = sT + 2 if u == 0 else sT + 3
            for i in range(2):
                g.append((pre if i == 0 else []) + [f'buffer_load_dwordx4 v{vWo+i}, s[{SWs}:{SWs+3}], s{so} offen offset:{i*1024} lds'])
        Ls = lab('nostrip')
        g.append([f's_cmp_eq_u32 s{sF}, 0', f's_cbranch_scc1 {Ls}', f's_add_u32 m0, s{sL}, s{sHS}', f's_add_u32 s{sT+3}, s{sT+2}, s{sSD}',
                  f'buffer_load_dwordx4 v{vS}, s[{SWs}:{SWs+3}], s{sT+3} offen lds', f'{Ls}:',
                  f's_add_u32 s{sKC}, s{sKC}, 1', f's_and_b32 s{sKC}, s{sKC}, 7', f's_add_u32 s{sL}, s{sL}, {SLOT}',
                  f's_cmp_eq_u32 s{sL}, {3*SLOT}', f's_cselect_b32 s{sL}, 0, s{sL}'])
        return g
    def b2_groups(n, w):
        S, off = (SW2, (7 * w + UN[n]) * 65536) if n < 7 else (SWO, (2 * w + n - 7) * 65536)
        g = []
        for i in range(2):
            pre = [f's_add_u32 s{sT+4}, s{sB2}, {off}'] if i == 0 else []
            if n < 4 or n > 8 - OPT['ld']:
                if i == 0: pre = [f's_add_u32 m0, s{sHW}, {GS[n%4]+w*8192}'] + pre
                g.append(pre + [f'buffer_load_dwordx4 v{vB+i}, s[{S}:{S+3}], s{sT+4} offen offset:{i*1024} lds'])
            else:
                r = vBuf + (((n - 4) * 4 + w) * 2 + i) * 4
                g.append(pre + [f'buffer_load_dwordx4 v[{r}:{r+3}], v{vB+i}, s[{S}:{S+3}], s{sT+4} offen offset:{i*1024}'])
        return [] if OPT['nob2'] else g
    def issue(groups):
        for g in groups:
            for l in g:
                e(l)
                if l.startswith(f'buffer_load_dwordx4 v{vS},'): e.vm -= 1
    def take(q, n):
        g = []
        for _ in range(min(n, len(q))): g += b2_groups(*q.pop(0))
        return g
    def kts(c, k=0):
        if DIAG and k == OPT['kts']: e(f'{TSI} s[{KTS[c]}:{KTS[c]+1}]')
    tok = {}
    issue(chunk_groups(True)); tok[0] = e.vtok()
    ids2(e)
    srd(e, SW2, pW2, 1792 * 1024); srd(e, SWO, pWO, 512 * 1024); srd(e, SWS, pWS, WS_SIZE)
    e('v_lshlrev_b32 v43, 1, v42\nv_xor_b32 v43, v41, v43\nv_lshlrev_b32 v43, 4, v43')
    e(f'v_lshl_add_u32 v{vB}, v40, 10, v43\nv_add_u32 v{vB+1}, {8192-1024}, v{vB}\nv_lshlrev_b32 v{vL16}, 4, v0')
    e(f's_and_b32 s{sT}, s{sRB2}, 1\ns_xor_b32 s{sT}, s{sT}, s{sW}\ns_lshl_b32 s{sB2}, s{sT}, 14\ns_lshl_b32 s{sT}, s{sCB}, 7\ns_add_u32 s{sB2}, s{sB2}, s{sT}')
    e(f's_lshl_b32 s{sT}, s{sW}, 8\nv_lshl_add_u32 v{vN}, v0, 2, s{sT}\nv_add_u32 v{vT}, {L_CS}, v{vN}')
    e(f's_lshl_b32 s{sT}, s{sF}, 3\ns_add_u32 s{sT}, s{sT}, s{sG}\ns_lshl_b32 s{sCSB}, s{sT}, 13\ns_add_u32 s{sCSB}, s{sCSB}, {WS_CS}')
    e(f's_lshl_b32 s{sRSB}, s{sRB}, 11\ns_add_u32 s{sRSB}, s{sRSB}, {WS_RS}\ns_lshl_b32 s{sT}, s{sT}, 7\ns_add_u32 s{sRSP}, s{sRSB}, s{sT}')
    e(f's_lshl_b32 s{sT}, s{sW}, 9\ns_add_u32 s{sRSB}, s{sRSB}, s{sT}\ns_cmp_eq_u32 s{sW}, 0\ns_cselect_b32 s{sRSP}, s{sRSP}, 0x7ff00000')
    e(f'v_and_b32 v{vRG}, 0x1f0, v{vL16}\nv_and_b32 v46, 0x70, v{vL16}\nv_add_u32 v47, s{sSY}, v46')
    e(f'v_and_b32 v44, 31, v0\ns_lshl_b32 s{sT}, s{sW}, 7\ns_add_u32 s{sT}, s{sT}, {L_R}\nv_lshl_add_u32 v{vRW}, v44, 2, s{sT}')
    e(f'v_mov_b32 v{vSY}, s{sSY}\nv_and_b32 v45, 3, v0\nv_lshlrev_b32 v45, 3, v45')
    e(f's_lshl_b32 s{sT}, s{sLI}, 2\ns_add_u32 s{sT}, s{sT}, s{sW}\ns_mul_i32 s{sT+1}, s{sT}, {14*1024}\ns_lshl_b32 s{sT}, s{sT}, 12')
    e(f's_add_u32 s56, s{pW2}, s{sT+1}\ns_addc_u32 s57, s{pW2+1}, 0\ns_add_u32 s58, s{pWO}, s{sT}\ns_addc_u32 s59, s{pWO+1}, 0')
    sq = [f's_load_dword s65, s[56:57], {(k>>1)*1024+384+(k&1)*64}' for k in range(28)] + [f's_load_dword s65, s[58:59], {(k>>1)*1024+384+(k&1)*64}' for k in range(8)]
    if OPT['swp']:
        e(f's_xor_b32 s{sT}, s2, 1\ns_lshl_b32 s{sT}, s{sT}, 2\ns_add_u32 s{sT}, s{sT}, s{sW}\ns_mul_i32 s{sT+1}, s{sT}, 1792\ns_lshl_b32 s{sT}, s{sT}, 9')
        e(f's_add_u32 s94, s{pW2}, s{sT+1}\ns_addc_u32 s95, s{pW2+1}, 0\ns_add_u32 s96, s{pWO}, s{sT}\ns_addc_u32 s97, s{pWO+1}, 0')
        st = OPT['swp'] if OPT['swp'] < 3 else 1
        s2q = [f's_load_dword s65, s[94:95], {k*64}' for k in range(0, 28, st)] + [f's_load_dword s65, s[96:97], {k*64}' for k in range(0, 8, st)]
        sq = s2q + sq if OPT['swp'] == 3 else sq + s2q
    if OPT['tw'] & 1: srd(e, 96, pOUT, 2048 * 1024)
    dq = [(0, 0), (0, 1), (0, 2), (0, 3), (2, 1), (2, 2), (1, 0), (1, 1), (1, 2), (1, 3), (2, 3), (3, 0), (2, 0), (3, 1), (3, 2), (3, 3)]
    rq = [(n, w) for n in range(4, 9 - OPT['ld']) for w in range(4)]
    assert OPT['b2a'] <= 6 and OPT['b2a'] + OPT['b2b'] <= 12
    def gather_loads(x):
        for k in range(8): x(f'buffer_load_dword v{20+k}, v{vN}, s[{SWS}:{SWS+3}], s{sCSB if k < 4 else sT+5} offen offset:{(k&3)*1024} sc1')
        x(f'buffer_load_dwordx4 v[28:31], v{vRG}, s[{SWS}:{SWS+3}], s{sRSB} offen sc1')
    g1 = chunk_groups()
    issue(g1[:OPT['pre1']]); rest = g1[OPT['pre1']:]; tok[1] = e.vtok()
    ts(e, 1)
    for c in range(8):
        pert(e)
        e.wait_vm(tok[c])
        e('s_barrier')
        kts(c)
        if rest: issue(rest); tok[c + 1] = e.vtok(); rest = []
        if c == 0: e(f'ds_read_b64 v[18:19], v{vSY}')
        if c == 1: e(f'ds_read_b32 v20, v{vT}\nds_read_b128 v[24:27], v47 offset:128')
        def wpf(x=0):
            e(f's_xor_b32 s{sT}, s2, {x}\ns_lshl_b32 s{sT}, s{sT}, 2\ns_add_u32 s{sT}, s{sT}, s{sW}\ns_mul_i32 s{sT+1}, s{sT}, 1792\ns_lshl_b32 s{sT}, s{sT}, 9')
            e(f'v_min_u32 v55, 13, v0\nv_lshlrev_b32 v55, 7, v55\nbuffer_load_dword v56, v55, s[{SW2}:{SW2+3}], s{sT+1} offen')
            e(f'v_min_u32 v55, 0x180, v55\nbuffer_load_dword v56, v55, s[{SWO}:{SWO+3}], s{sT} offen')
        if c == OPT['wpc'] and not OPT['wpa']: wpf()
        if c == 6:
            e(f's_add_u32 s{sT+5}, s{sCSB}, 4096')
            gather_loads(e); tg = e.vtok()
        if c == 7:
            L, M, Dn = lab('xchk'), lab('xretry'), lab('xdone')
            spin_init(e)
            e.wait_vm(tg)
            e(f'{L}:')
            for i in range(8): e(f'v_xor_b32 v{20+i}, v{vTG}, v{20+i}')
            e('v_or3_b32 v32, v20, v21, v22\nv_or3_b32 v32, v32, v23, v24\nv_or3_b32 v32, v32, v25, v26\nv_or_b32 v32, v32, v27\nv_and_b32 v32, 0xff, v32')
            e('v_and_b32 v33, 1, v18\nv_xor_b32 v28, v33, v28\nv_xor_b32 v29, v33, v29\nv_or_b32 v33, v28, v29\nv_and_or_b32 v32, v33, 1, v32')
            e('v_xor_b32 v30, v18, v30\nv_xor_b32 v31, v19, v31\nv_or3_b32 v32, v32, v30, v31\nv_cmp_ne_u32 vcc, 0, v32')
            e(f's_cmp_lg_u64 vcc, 0\ns_cbranch_scc1 {M}\n{Dn}:')
            x = Emit()
            x(f'{M}:\ns_sub_u32 s{sSPIN}, s{sSPIN}, 1\ns_cmp_eq_u32 s{sSPIN}, 0\ns_cbranch_scc1 {Dn}\ns_sleep 2')
            gather_loads(x); x(f's_waitcnt vmcnt(0)\ns_branch {L}')
            COLD.extend(x.lines)
            e(f'ds_write_b32 v{vRW}, v28\nds_write_b32 v{vRW}, v29 offset:512')
            for a, b in ((20, 21), (22, 23), (24, 25), (26, 27), (20, 22), (24, 26), (20, 24)): e(f'v_add_f32 v{a}, v{a}, v{b}')
            e(f'ds_write_b32 v{vT}, v20')
        if c + 2 <= 7:
            g = chunk_groups(); k = OPT['sk'] if c <= OPT['skn'] else 11
            issue(g[:k]); rest = g[k:]; tok[c + 2] = e.vtok()
            if c == OPT['wpc'] and OPT['wpa']: wpf()
            if c == OPT['wp2']: wpf(1)
            if c == OPT['wpc'] and OPT['tw'] & 2:
                e(f'v_min_u32 v55, 5, v0\nv_lshlrev_b32 v55, 21, v55\nbuffer_load_dword v56, v55, s[{SWS}:{SWS+3}], 0 offen offset:2048')
            if c >= OPT['nbc']: issue(take(rq, OPT['nb']))
        elif c == 6: issue(take(dq, OPT['b2a']))
        else: issue(take(dq, OPT['b2b'])); issue(take(rq, OPT['r7']))
        if c == 0:
            e(f's_waitcnt lgkmcnt(0)\nv_bfe_u32 v{vTG}, v18, v45, 8\nv_bfi_b32 v{vTG}, 1, v18, v{vTG}')
        if c == 1:
            e(f's_lshl_b32 s{sT}, s{sK0}, 10\ns_add_u32 s{sT}, s{sT}, s{sCSB}\ns_movk_i32 s{sT+1}, 0xff\ns_waitcnt lgkmcnt(0)')
            e(f'v_add_u32 v20, 0x80, v20\nv_bfi_b32 v20, s{sT+1}, v{vTG}, v20')
            e(f'buffer_store_dword v20, v{vN}, s[{SWS}:{SWS+3}], s{sT} offen sc1')
            e(f's_mov_b64 exec, 0xff\nbuffer_store_dwordx4 v[24:27], v46, s[{SWS}:{SWS+3}], s{sRSP} offen sc1\ns_mov_b64 exec, -1')
        for _ in range(min(OPT['sn'], len(sq)) if c >= OPT['s0'] else 0): e(sq.pop(0))
    e('s_waitcnt lgkmcnt(0)\ns_barrier')
    kts(8)
    ts(e, 2)
    e(f's_lshl_b32 s{sT}, s{sW}, 2\nv_add_u32 v25, s{sT}, v{vSY}\nv_mov_b32 v24, -1')
    pert(e)
    nD = 2 * len(dq); tD = e.vtok(); landed = False
    allg = take(dq, 16) + take(rq, 20)
    lastg = allg[len(allg) - OPT['hl']:]; allg = allg[:len(allg) - OPT['hl']]
    for k, g in enumerate(allg + [[]]):
        if OPT['hp'] and k == OPT['hpk']: e(f's_setprio {OPT["hp"]}')
        if not landed and (k == nD + 12 or not g):
            e.wait_vm(tD); e('ds_write_b32 v25, v24 offset:16'); landed = True
        for l in g: e(l)
        if k + 1 == nD: tD = e.vtok()
        if g: e(f's_waitcnt vmcnt({OPT["thr"]})')
    ts(e, 3)
    if OPT['hp']: e('s_setprio 0')
    e(f'v_add_u32 v{vL16}, s{sHW}, v{vL16}')
    for r in range(4): e(f'v_add_u32 v{20+r}, {GS[r]}, v{vL16}')
    def refill(n, k0=0, k1=8):
        if n > 8 - OPT['ld']:
            if k0 == 0:
                e(f's_setprio {OPT["ldp"]}'); issue(take([(n, w) for w in range(4)], 4)); e('s_setprio 0')
            return
        for k in range(k0, k1):
            b = vBuf + ((n - 4) * 8 + k) * 4
            e(f'ds_write_b128 v{20+n%4}, v[{b}:{b+3}] offset:{(k//2)*8192+(k&1)*1024}')
    L, Dn = lab('free'), lab('freed')
    spin_init(e, 2000000)
    kts(0, 1)
    e(f'{L}:')
    e(f'ds_read_b128 v[24:27], v{vSY} offset:64\ns_waitcnt lgkmcnt(0)\nv_and_b32 v24, v24, v25\nv_and_b32 v26, v26, v27\nv_and_b32 v24, v24, v26')
    e(f'v_readfirstlane_b32 s{sT}, v24\ns_cmp_lg_u32 s{sT}, 0\ns_cbranch_scc1 {Dn}')
    spin_tail(e, L, Dn, 1)
    e(f'{Dn}:')
    kts(1, 1)
    pert(e)
    assert OPT['thr'] <= 16 - OPT['hl'] and OPT['hl'] <= 8
    for n in (4, 5, 6):
        if OPT['ld']: e(f's_waitcnt vmcnt({8*(8-OPT["ld"]-n)})')
        refill(n)
    if lastg:
        e('s_setprio 2'); issue(lastg); e('s_setprio 0')
    e(f's_waitcnt vmcnt({len(lastg)}) lgkmcnt(0)')
    kts(2, 1)
    e('s_barrier')
    kts(3, 1)
    if OPT['tw'] & 1:
        e(f's_lshl_b32 s{sT}, s{sRB2}, 16\nbuffer_load_dword v56, off, s[96:99], s{sT}')
    refill(7, 0, OPT['w1'])
    e('s_barrier')
    kts(5, 1)
    pert(e)
    refill(7, OPT['w1'], 8)
    if lastg: e('s_waitcnt vmcnt(0)')
    refill(8)
    e('s_waitcnt vmcnt(0) lgkmcnt(0)')
    ts(e, 5)
    e('s_barrier')
    ts(e, 6)
    ts_dump(e, 7, 0)
    e('s_endpgm')

ACC = 16; XF = 128; WR = 160; CS = 192; SEL = 208; AX = 212; AW = 216; AS = 220
CSW, L16, L16B, G4, N16, SYV = 224, 225, 226, 227, 228, 229
VO, FV, VBA = 1, 12, 15
VF = G4; sO2 = 20
BR = 128; AB = 244; VA = 248; AB2 = 252; XR = 40
sRH, sCH, sDL, sCNT, sSL = 11, 12, 13, 14, 15
sAU, sAO, sO, sEP, sKV, sKR, TG = 16, 17, 18, 19, 25, 26, 28
sXP, sNC, sC0, sFP, sY0, sY1, sYS = 40, 42, 65, 66, 76, 77, 78

def compute_early(e):
    e(f's_sub_u32 s{sW}, s{sW}, 4\ns_setprio 1\ns_and_b32 s{sRH}, s{sW}, 1\ns_lshr_b32 s{sCH}, s{sW}, 1')
    Lq = lab('pc')
    e(f's_getpc_b64 s[44:45]\n{Lq}:')
    e(f's_lshl_b32 s{sT}, s{sLI}, 2\ns_add_u32 s{sT}, s{sT}, s{sW}\ns_lshl_b32 s{sT}, s{sT}, 8\ns_min_u32 s{sT}, s{sT}, L_code_end-{Lq}-196')
    e(f's_add_u32 s44, s44, s{sT}\ns_addc_u32 s45, s45, 0')
    e(f'v_lshlrev_b32 v{L16}, 4, v0\nv_and_b32 v{N16}, 15, v0')
    e(f's_lshl_b32 s{sT}, s{sF}, 3\ns_add_u32 s{sT}, s{sT}, s{sG}\ns_lshl_b32 s{sT}, s{sT}, 2\ns_add_u32 s{sT}, s{sT}, s{sW}')
    e(f's_lshl_b32 s{sT+1}, s{sRB}, 6\ns_add_u32 s{sT+1}, s{sT}, s{sT+1}\ns_lshl_b32 s{sT+1}, s{sT+1}, 11')
    e(f's_mov_b32 s{SX+2}, {2048*1024}\ns_mov_b32 s{SX+3}, 0x20000\ns_mov_b32 s{SB1+2}, {1792*2}\ns_mov_b32 s{SB1+3}, 0x20000')
    e(f's_lshr_b32 s{sT}, s{sG}, 1\ns_mul_i32 s{sT}, s{sT}, 448\ns_and_b32 s{sT+2}, s{sG}, 1')
    e(f's_lshl_b32 s{sC0}, s{sT+2}, 8\ns_add_u32 s{sC0}, s{sC0}, s{sT}\ns_lshl_b32 s{sT+3}, s{sCH}, 5\ns_add_u32 s{sC0}, s{sC0}, s{sT+3}')
    e(f's_lshl_b32 s{sYS}, s{sT+2}, 5\ns_add_u32 s{sYS}, s{sYS}, s{sT}\ns_add_u32 s{sYS}, s{sYS}, 192')
    e(f'v_bfe_u32 v5, v0, 4, 1\nv_xor_b32 v5, s{sRH}, v5\nv_lshl_add_u32 v2, v5, 4, v{N16}\nv_lshrrev_b32 v3, 5, v0')
    e(f'v_lshl_add_u32 v4, v3, 6, v2\nv_add_lshl_u32 v4, v4, s{sC0}, 1')
    e(f's_sub_u32 s{sT}, s{sYS}, s{sC0}\ns_sub_u32 s{sT}, s{sT}, 128\nv_mul_lo_u32 v6, v3, s{sT}\nv_add3_u32 v6, v6, v2, s{sC0}\nv_add_u32 v6, 128, v6\nv_lshlrev_b32 v6, 1, v6')
    e('s_waitcnt lgkmcnt(0)')
    e(f's_mov_b32 s{SX}, s{pX}\ns_mov_b32 s{SX+1}, s{pX+1}')
    for k in range(2): e(f'buffer_load_dwordx4 v[{XF+4*k}:{XF+4*k+3}], v{L16}, s[{SX}:{SX+3}], s{sT+1} offen offset:{k*1024}')
    e(f's_load_dwordx2 s[{sNON}:{sNON+1}], s[{pWS}:{pWS+1}], 0')
    e(f's_mov_b32 s{SB1}, s{pB1}\ns_mov_b32 s{SB1+1}, s{pB1+1}')
    e(f'buffer_load_ushort v8, v4, s[{SB1}:{SB1+3}], 0 offen\nbuffer_load_ushort v9, v6, s[{SB1}:{SB1+3}], 0 offen')
    for k in range(4): e(f's_load_dword s46, s[44:45], {k*64}')
    e('s_branch L_compute')

def acc_main(u, rt, jj): return ACC + ((u * 4 + rt) * 2 + jj) * 4
def acc_strip(rt, jj): return ACC + 96 + (rt * 2 + jj) * 4

def compute_common(e):
    ids2(e)
    e(f'v_lshrrev_b32 v{G4}, 4, v0\nv_add_u32 v{L16B}, {YRT}, v{L16}')
    srd(e, SWS, pWS, WS_SIZE); srd(e, SOUT, pOUT, 2048 * 1024)
    e(f's_lshl_b32 s{sT}, s{sCH}, 2\nv_bfe_u32 v2, v0, 1, 3\nv_xor_b32 v2, v{G4}, v2\nv_xor_b32 v2, s{sT}, v2')
    e(f's_lshl_b32 s{sT}, s{sRH}, 13\ns_lshl_b32 s{sT+1}, s{sCH}, 12\ns_add_u32 s{sT}, s{sT}, s{sT+1}')
    e(f'v_lshlrev_b32 v3, 7, v{N16}\nv_add_u32 v3, s{sT}, v3\nv_lshl_add_u32 v{AX}, v2, 4, v3')
    e(f'v_xor_b32 v{AX+1}, 0x1000, v{AX}\nv_xor_b32 v{AX+2}, 64, v{AX}\nv_xor_b32 v{AX+3}, 64, v{AX+1}')
    e(f'v_bfe_u32 v2, v0, 2, 2\nv_lshl_add_u32 v2, v{G4}, 3, v2\ns_lshl_b32 s{sT}, s{sCH}, 5\nv_add_u32 v2, s{sT}, v2')
    e('v_and_b32 v4, 3, v0\nv_cmp_eq_u32 vcc, 0, v4\nv_lshlrev_b32 v4, 3, v4\nv_bfe_u32 v3, v0, 3, 2')
    e(f'v_xor_b32 v7, s{sW}, v3\nv_lshl_add_u32 v7, v7, 5, v4\nv_lshl_add_u32 v7, v2, 7, v7\nv_add_u32 v{AW}, {L_W}, v7')
    e(f'v_xor_b32 v{AW+1}, 32, v{AW}\nv_xor_b32 v{AW+2}, 0x1000, v{AW}\nv_xor_b32 v{AW+3}, 0x1000, v{AW+1}')
    e(f'v_lshl_add_u32 v6, v5, 5, v4\nv_lshl_add_u32 v6, v2, 6, v6\nv_add_u32 v{AS}, {L_S}, v6')
    e(f'v_xor_b32 v{AS+1}, 32, v{AS}\nv_xor_b32 v{AS+2}, 0x800, v{AS}\nv_xor_b32 v{AS+3}, 0x800, v{AS+1}')
    e(f'v_lshrrev_b32 v2, 2, v0\nv_lshl_add_u32 v4, v3, 5, v4\nv_lshl_add_u32 v4, v2, 7, v4\ns_lshl_b32 s{sT}, s{sW}, 13\nv_add_u32 v{VBA}, s{sT}, v4')
    e(f'v_mov_b32 v3, 0x3f803f80\nv_cndmask_b32 v{SEL}, 0, v3, vcc')
    for i in range(1, 4): e(f'v_mov_b32 v{SEL+i}, v{SEL}')
    e(f's_lshl_b32 s{sT}, s{sRB}, 1\ns_add_u32 s{sT}, s{sT}, s{sRH}\ns_mul_i32 s{sT+2}, s{sT}, {8*FPH}\ns_lshl_b32 s{sT}, s{sT}, 1\ns_add_u32 s{sT}, s{sT}, s{sCH}')
    e(f's_xor_b32 s{sT+1}, s{sT}, 1\ns_mul_i32 s{sY0}, s{sT}, {2*YRT}\ns_mul_i32 s{sY1}, s{sT+1}, {2*YRT}')
    e(f's_lshr_b32 s{sT}, s{sG}, 1\ns_mul_i32 s{sT}, s{sT}, {FG}\ns_add_u32 s{sT+2}, s{sT+2}, s{sT}')
    e(f's_and_b32 s{sT}, s{sG}, 1\ns_lshl_b32 s{sT}, s{sT}, 1\ns_add_u32 s{sT}, s{sT}, s{sCH}\ns_lshl_b32 s{sT}, s{sT}, 2\ns_add_u32 s{sT+2}, s{sT+2}, s{sT}')
    e(f's_xor_b32 s{sT}, s{sF}, 1\ns_mul_i32 s{sT}, s{sT}, {FPH}\ns_add_u32 s{sT+2}, s{sT+2}, s{sT}\ns_add_u32 s{sT+2}, s{sT+2}, {WS_YF}')
    e(f's_add_u32 s{sFP}, s{pWS}, s{sT+2}\ns_addc_u32 s{sFP+1}, s{pWS+1}, 0')
    e(f's_mul_i32 s{sT}, s{sRB2}, {8*FPH}\ns_mul_i32 s{sT+1}, s{sW}, {FG}\ns_add_u32 s{sT}, s{sT}, s{sT+1}\ns_add_u32 s{sT}, s{sT}, {WS_YF}')
    e(f's_add_u32 s{sXP}, s{pWS}, s{sT}\ns_addc_u32 s{sXP+1}, s{pWS+1}, 0')
    e(f's_mov_b32 s{sCNT}, 0\ns_mov_b32 s{sSL}, 0\ns_mov_b32 s22, {-2*SLOT}\ns_mov_b32 s23, 0xffff0000')
    e(f's_lshl_b32 s{sT}, s{sRB2}, 2\ns_add_u32 s{sT+1}, s{sT}, s{sW}\ns_lshl_b32 s{sT+1}, s{sT+1}, 14\ns_lshl_b32 s{sT+2}, s{sCB}, 7\ns_add_u32 s{sO}, s{sT+1}, s{sT+2}')
    e(f'v_bfe_u32 v2, v0, 4, 1\nv_lshrrev_b32 v3, 5, v0\nv_lshlrev_b32 v14, 4, v3\nv_lshl_add_u32 v3, v2, 5, v14\nv_lshl_add_u32 v{VO}, v{N16}, 10, v3')
    e(f's_mul_i32 s{sT}, s{sT}, {YRT}\ns_add_u32 s{sT}, s{sT}, {WS_Y}\ns_or_b32 s{sEP}, s2, s{sW}')
    e(f's_mul_i32 s{sT+1}, s{sW}, {7*2048}\ns_add_u32 s{sAU}, s{sT}, s{sT+1}\ns_lshl_b32 s{sT+1}, s{sW}, 12\ns_add_u32 s{sAO}, s{sT}, s{sT+1}\ns_add_u32 s{sAO}, s{sAO}, {28*2048}')
    for j in range(4): e(f's_add_u32 s{sT}, s{sW}, {1+j}\ns_and_b32 s{sT}, s{sT}, 3\ns_mul_i32 s{sT}, s{sT}, {YRT}\nv_add_u32 v{VA+j}, s{sT}, v{L16}')
    for u in (1, 2):
        for rt in range(4):
            for i in range(4): e(f'v_mov_b32 v{acc_main(u, rt, 1)+i}, 0')
    e('s_waitcnt lgkmcnt(0)')
    e(f's_mul_i32 s{sT+4}, s{sNON}, 0x4c957f2d\ns_mul_hi_u32 s{sT+5}, s{sNON}, 0x4c957f2d')
    e(f's_mul_i32 s{sT}, s{sNON+1}, 0x4c957f2d\ns_add_u32 s{sT+5}, s{sT+5}, s{sT}')
    e(f's_mul_i32 s{sT}, s{sNON}, 0x5851f42d\ns_add_u32 s{sT+5}, s{sT+5}, s{sT}')
    e(f's_add_u32 s{sNON}, s{sT+4}, 0xf767814f\ns_addc_u32 s{sNON+1}, s{sT+5}, 0x14057b7e\ns_mov_b32 s{sNC}, s{sNON}\ns_mov_b32 s{sNC+1}, s{sNON}')
    e(f'v_mov_b32 v{FV}, s{sNON}\nv_mov_b32 v{FV+1}, s{sNON+1}\nv_mov_b32 v2, s{sSY}\ns_lshl_b32 s{sT}, s{sW}, 2\nv_add_u32 v{SYV}, s{sT}, v2\nv_mov_b32 v3, 0')
    e(f'ds_write_b64 v2, v[{FV}:{FV+1}]')
    for o in (16, 32, 48, 64): e(f'ds_write_b32 v{SYV}, v3 offset:{o}')
    e('s_waitcnt vmcnt(2)')
    S = 136; R = FV - 2
    for k in range(2):
        for d in range(4):
            w = XF + 4 * k + d
            e(f'v_lshlrev_b32 v2, 16, v{w}\nv_and_b32 v3, s23, v{w}')
            if d == 0: e(f'v_add_f32 v{S+2*k}, v2, v3\nv_mul_f32 v{S+2*k+1}, v2, v2')
            else: e(f'v_add_f32 v{S+2*k}, v{S+2*k}, v2\nv_fmac_f32 v{S+2*k+1}, v2, v2\nv_add_f32 v{S+2*k}, v{S+2*k}, v3')
            e(f'v_fmac_f32 v{S+2*k+1}, v3, v3')
    for i in range(2): e(f'v_permlane32_swap_b32 v{S+i}, v{S+2+i}')
    for i in range(2): e(f'v_add_f32 v{S+i}, v{S+i}, v{S+2+i}')
    for i in range(2): e(f'v_mov_b32 v{S+2+i}, v{S+i}')
    for i in range(2): e(f'v_permlane16_swap_b32 v{S+2+i}, v{S+i}')
    for i in range(2): e(f'v_add_f32 v{S+i}, v{S+i}, v{S+2+i}')
    for ror in (1, 2, 4, 8):
        for i in range(2): e(f'v_add_f32_dpp v{S+i}, v{S+i}, v{S+i} row_ror:{ror} row_mask:0xf bank_mask:0xf')
    e(f'v_mul_f32 v2, {fl(-1/512)}, v{S}\nv_mul_f32 v3, {fl(1/512)}, v{S+1}\nv_fma_f32 v3, -v2, v2, v3\nv_max_f32 v3, 0, v3\nv_add_f32 v3, {fl(1e-5)}, v3')
    e(f'v_rsq_f32 v3, v3\ns_lshl_b32 s{sT}, s{sW}, 5\ns_add_u32 s{sT}, s{sT}, s{sSY}\nv_add_u32 v4, s{sT}, v14\nv_mul_f32 v{R}, {fl(LOG2E)}, v3\nv_mul_f32 v{R+1}, v{R}, v2')
    e(f'v_bfi_b32 v{R}, 1, v{FV}, v{R}\nv_bfi_b32 v{R+1}, 1, v{FV}, v{R+1}')
    e(f's_mov_b32 exec_lo, 1\ns_mov_b32 exec_hi, 1\nds_write_b128 v4, v[{R}:{R+3}] offset:128\ns_mov_b64 exec, -1')
    e(f's_lshl_b32 s{sT+4}, s{sRH}, 8\ns_lshl_b32 s{sT+1}, s{sCH}, 7\ns_add_u32 s{sT+4}, s{sT+4}, s{sT+1}\ns_add_u32 s{sT+4}, s{sT+4}, {L_R}')
    e(f's_lshl_b32 s{sT}, s{sCH}, 9\ns_lshl_b32 s{sT+1}, s{sRH}, 6\ns_add_u32 s{sT}, s{sT}, s{sT+1}\ns_add_u32 s{sT}, s{sT}, {L_CS}')
    e(f'v_lshl_add_u32 v2, v{N16}, 2, s{sT+4}\nv_xor_b32 v3, 128, v2\nv_lshl_add_u32 v4, v{G4}, 4, s{sT}\nv_xor_b32 v5, 64, v4\nv_lshl_add_u32 v{CSW}, v{N16}, 2, s{sT}')

def readB(n):
    b = BR + 32 * (n % 3); hi = GS[n % 4] >= 65536
    return [f'ds_read_b64_tr_b16 v[{b+8*ct+4*s+2*j}:{b+8*ct+4*s+2*j+1}], v{(AB2 if hi else AB)+ct} offset:{GS[n%4]-(GS[2] if hi else 0)+s*4096+j*2048}'
            for ct in range(4) for s in range(2) for j in range(2)]
STEPS = [(n, j) for n in range(7) for j in range(4)] + [(n, j) for j in range(4) for n in (7, 8)]
DA = 6; A0 = 80; A1 = OPT['a1']
CHK = {2: 1, 10: 4, 18: 2, 22: 3}
GATE = lambda u: 0 if u < 8 else 2 if u < 16 else 10 if u < 24 else 18 if u < 28 else 22
ISSUE = {}; _u = A1
for _t in range(36):
    ISSUE[_t] = []
    while _u < 36 and _u - DA <= _t and GATE(_u) <= _t and len(ISSUE[_t]) < 2: ISSUE[_t].append(_u); _u += 1
assert A1 <= 4 and all(t <= u - 3 for t in ISSUE for u in ISSUE[t])
def loadA(t):
    n, j = STEPS[t]
    L = [f's_add_u32 s{sT}, s{sAU}, {UN[n]*2048}'] if n < 7 and j == 0 else []
    for s in range(2):
        a = A0 + 8 * (t % DA) + 4 * s
        so, off = (sT, s * 1024) if n < 7 else (sAO, ((n - 7) * 2 + s) * 1024)
        L.append('s_nop 0' if OPT['p2noa'] else f'buffer_load_dwordx4 v[{a}:{a+3}], v{VA+j}, s[{SWS}:{SWS+3}], s{so} offen offset:{off} sc1')
    return L
def p2_start(e, t0, t1):
    for t in range(t0, t1):
        for l in loadA(t): e(l)
def swap8(a, b, t):
    return [f'v_mov_b32 v{t+i}, v{a+i}' for i in range(4)] + [f'v_mov_b32_dpp v{a+i}, v{b+i} row_ror:8 row_mask:0xf bank_mask:0xc' for i in range(4)] + \
           [f'v_mov_b32_dpp v{b+i}, v{t+i} row_ror:8 row_mask:0xf bank_mask:0x3' for i in range(4)]
def p2_resid(e):
    if OPT['fr']:
        for h in range(2): e(f'buffer_load_dwordx4 v[{XR+4*h}:{XR+4*h+3}], v{VF}, s[{SX}:{SX+3}], s{sO2 if h else sO} offen')
        return
    for h in range(2): e(f'buffer_load_dwordx4 v[{XR+4*h}:{XR+4*h+3}], v{VO}, s[{SX}:{SX+3}], s{sO} offen offset:{h*64}')
def put_flag(e, phase): e(f's_atomic_swap s{sNON}, s[{sFP}:{sFP+1}], {phase*FPH}')
QUAD = {0: 44, 1: 60, 4: 44, 2: 60, 3: 44}
def look(phase): return f's_load_dwordx4 s[{QUAD[phase]}:{QUAD[phase]+3}], s[{sXP}:{sXP+1}], {phase*FPH} glc'
def check(phase):
    L, D, M = lab('chk'), lab('chkd'), lab('chkm'); q = QUAD[phase]
    cmp = [f's_xor_b64 s[{q}:{q+1}], s[{q}:{q+1}], s[{sNC}:{sNC+1}]', f's_xor_b64 s[{q+2}:{q+3}], s[{q+2}:{q+3}], s[{sNC}:{sNC+1}]',
           f's_or_b64 s[{q}:{q+1}], s[{q}:{q+1}], s[{q+2}:{q+3}]']
    c = Emit()
    c(f'{M}:'); spin_init(c); c(f'{L}:'); c(look(phase)); c('s_waitcnt lgkmcnt(0)')
    for l in cmp: c(l)
    c(f's_cbranch_scc0 {D}'); spin_tail(c, L, D)
    COLD.extend(c.lines)
    return cmp + [f's_cbranch_scc1 {M}\n{D}:']
def land_look(r): return f'v_mov_b32 v2, s{sSY}\nds_read_b128 v[{r}:{r+3}], v2 offset:16'
def land_check(e, r):
    L, D, M = lab('land'), lab('landd'), lab('landm')
    cmp = f'v_and_b32 v{r}, v{r}, v{r+1}\nv_and_b32 v{r+2}, v{r+2}, v{r+3}\nv_and_b32 v{r}, v{r}, v{r+2}\nv_readfirstlane_b32 s{sT+5}, v{r}\ns_cmp_eq_u32 s{sT+5}, 0'
    e(cmp + f'\ns_cbranch_scc1 {M}\n{D}:')
    c = Emit()
    c(f'{M}:'); spin_init(c, 2000000); c(f'{L}:'); c(land_look(r)); c('s_waitcnt lgkmcnt(0)'); c(cmp); c(f's_cbranch_scc0 {D}')
    spin_tail(c, L, D, 1)
    COLD.extend(c.lines)
def p2_preread(e):
    for ct in range(4): e(f'v_xor_b32 v{AB+ct}, {32*ct}, v{VBA}\nv_add_u32 v{AB2+ct}, {GS[2]}, v{AB+ct}')
    for n in range(3):
        for l in readB(n): e(l)
    e(f'v_mov_b32 v2, -1\nds_write_b32 v{SYV}, v2 offset:64')
def pair_wait(e, off, reads):
    L, M, Dn = lab('pair'), lab('pairm'), lab('paird')
    spin_init(e, 2000000)
    e(f'{L}:\nds_read_b32 v3, v9 offset:{off}')
    for l in reads: e(l)
    e(f's_waitcnt lgkmcnt({len(reads)})\nv_readfirstlane_b32 s{sT+5}, v3\ns_cmp_eq_u32 s{sT+5}, 0\ns_cbranch_scc1 {M}\n{Dn}:')
    c = Emit(); c(f'{M}:'); spin_tail(c, L, Dn); COLD.extend(c.lines)
def mfma(d, a, b, z=False): return f'v_mfma_f32_16x16x32_bf16 v[{d}:{d+3}], v[{a}:{a+3}], v[{b}:{b+3}], ' + ('0' if z else f'v[{d}:{d+3}]')

def compute_p1(e, F):
    H = 192
    if F:
        CSV = 128; BV = 160; KK = 232; RL = 240; NL = 244; U = 208
        e(f's_lshl_b32 s{sYS}, s{sYS}, 5\ns_add_u32 s{sYS}, s{sYS}, s{sY0}\ns_add_u32 s{sYS}, s{sYS}, {WS_Y}')
        e(f's_lshl_b32 s{sT+2}, s{sC0}, 5\ns_add_u32 s{sT+2}, s{sT+2}, {WS_Y}')
        e(f's_lshl_b32 s{sT}, s{sW}, 9\ns_add_u32 s{sT}, s{sT}, {L_BT}\nv_lshl_add_u32 v7, v0, 2, s{sT}\nv_lshl_add_u32 v6, v{G4}, 4, s{sT}')
        e('s_waitcnt vmcnt(0)')
        e(f'v_lshlrev_b32 v8, 16, v8\nv_lshlrev_b32 v9, 16, v9\nv_mul_f32 v8, {fl(LOG2E)}, v8\nv_mul_f32 v9, {fl(LOG2E)}, v9')
        e('ds_write_b32 v7, v8\nds_write_b32 v7, v9 offset:256')
        e(f'v_xor_b32 v7, 0x200, v4\nv_xor_b32 v14, 0x200, v5\nv_mov_b32 v{KK}, {fl(-2/LOG2E)}\nv_mov_b32 v{KK+1}, {fl(1/LOG2E)}')
    else:
        NVV = 128; RV = 144; CK = 160; CSQ = 164; RL = 172; NL = 176; D0 = 184; PV = 208; EP = 230; PK = 232; D1 = 240; ONE = 252; PQ = 48; U = 112
        e(f's_lshl_b32 s{sT}, s{sG}, 2\ns_add_u32 s{sT}, s{sT}, s{sW}\ns_mul_i32 s{sKV}, s{sT}, {16*1152}\ns_add_u32 s{sKV}, s{sKV}, {WS_KV}')
        e(f's_mul_i32 s{sKR}, s{sRB}, 1152\ns_add_u32 s{sKR}, s{sKR}, s{sKV}\ns_and_b32 s{sT+2}, s{sNON}, 1')
        e(f's_and_b32 s{sT}, s{sRB}, {8 if OPT["go"] else 0}\ns_mul_i32 s{sT}, s{sT}, 1152\ns_add_u32 s32, s{sKV}, s{sT}\ns_sub_u32 s33, s{sKV}, s{sT}')
        for i in range(4): e(f's_lshr_b64 s[{sT}:{sT+1}], s[{sNON}:{sNON+1}], {12*i}\ns_and_b32 s{TG+i}, s{sT}, 0xffe\ns_or_b32 s{TG+i}, s{TG+i}, s{sT+2}')
        e(f's_lshl_b32 s{sT+2}, s{sG}, 1\ns_add_u32 s{sT+2}, s{sT+2}, s{sCH}\ns_lshl_b32 s{sT+2}, s{sT+2}, 10\ns_add_u32 s{sT+2}, s{sT+2}, {WS_Y+56*1024}')
        e(f'v_lshl_add_u32 v6, v{G4}, 4, s{sT+4}\nv_xor_b32 v7, 128, v6\nv_xor_b32 v14, 64, v{CSW}')
        e(f'v_mov_b32 v{EP}, {fl(1e-6*LOG2E)}\nv_mov_b32 v{EP+1}, {fl(1/LOG2E)}')
        for i in range(4): e(f'v_mov_b32 v{ONE+i}, 0x3f803f80')
        e(f's_waitcnt vmcnt(0)\nv_lshlrev_b32 v9, 4, v{G4}\nv_lshl_add_u32 v8, v{N16}, 6, v9\nv_cmp_gt_u32 vcc, 2, v{N16}\nv_mov_b32 v10, 0x7ff00000')
        e(f'v_mul_u32_u24 v11, 1152, v{N16}\nv_add_u32 v11, v11, v9\nv_cndmask_b32 v8, v10, v8, vcc\nv_mov_b32 v10, 0xfff\nv_xor_b32 v9, 4, v{SYV}')
    e(f's_add_u32 s{sY0}, s{sY0}, s{sT+2}\ns_add_u32 s{sY1}, s{sY1}, s{sT+2}')
    if F:
        for u in (1, 2): e(f's_add_u32 s{sT+2*u-2}, s{sY0}, {u*2048}\ns_add_u32 s{sT+2*u-1}, s{sY1}, {u*2048}')
    if OPT['fr'] or OPT['fo']:
        e(f'v_and_b32 v{VF}, 8, v0\nv_mul_u32_u24 v{VF}, {1024-8}, v{VF}\nv_sub_u32 v{VF}, v{VO}, v{VF}\ns_add_u32 s{sO2}, s{sO}, 8192')
    e('s_waitcnt lgkmcnt(0)')

    seq = [(0, 0), (1, 0), (2, 0), (3, 0), (3, 1), (0, 1), (1, 1), (2, 1)] if F else [(0, 0), (1, 0), (2, 0), (0, 1), (1, 1), (2, 1)]
    NP = len(seq); RING = 4 if F else 3
    def wreads(p):
        u, jj = seq[p]; b = WR + 8 * (p % RING)
        if u < 3: return [f'ds_read_b64_tr_b16 v[{b+4*s+2*j}:{b+4*s+2*j+1}], v{AW+2*s+jj} offset:{u*8192+j*512}' for s in range(2) for j in range(2)]
        return [f'ds_read_b64_tr_b16 v[{b+4*s+2*j}:{b+4*s+2*j+1}], v{AS+2*s+jj} offset:{j*256}' for s in range(2) for j in range(2)]
    def xreads(rt): return [f'ds_read_b128 v[{XF+8*rt+4*s}:{XF+8*rt+4*s+3}], v{AX+2*s+(rt>>1)} offset:{(rt&1)*2048}' for s in range(2)]
    def mfmas(p, first):
        u, jj = seq[p]; b = WR + 8 * (p % RING)
        m = []
        for rt in range(4 if u < 3 else 2):
            d = acc_main(u, rt, jj) if u < 3 else acc_strip(rt, jj)
            for s in range(2):
                w, x = b + 4 * s, XF + 8 * rt + 4 * s; z = first and s == 0
                m.append((rt, mfma(d, w, x, z) if (F or u == 0) else mfma(d, x, w, z)))
        if jj == 0 and first: m = [(None, mfma(CS + 4 * u, SEL, b + 4 * s, s == 0)) for s in range(2 if u < 3 else 1)] + m
        return m
    tokW = {}; tokX = {}; BP = OPT['bp']
    def spread(m, ex, p=None):
        seen = set(); k = 0
        for i, (rt, x) in enumerate(m):
            if p == 0 and rt is not None and rt not in seen: e.wait_lg(tokX[rt]); seen.add(rt)
            e(x)
            n = -(-(len(ex) - k) // (len(m) - i))
            for l in ex[k:k + n]:
                e(l[0] if isinstance(l, tuple) else l)
                if isinstance(l, tuple): tokW[l[1]] = e.ltok()
            k += n
    def head(first):
        for p in range(NP - 2):
            ex = wreads(p + 2); ex[-1] = (ex[-1], p + 2)
            if first and 1 <= p <= (4 if F else 3): ex = [f'ds_write_b32 v{CSW}, v{CS+4*(p-1)} offset:{(p-1)*128}'] + ex
            if p == 0: ex += [f's_add_u32 s{sSL}, s{sSL}, 1', f's_cmp_eq_u32 s{sSL}, 3', f's_cselect_b32 s{sDL}, s22, {SLOT}', f's_cselect_b32 s{sSL}, 0, s{sSL}']
            if p == 1: ex += [f'v_add_u32 v{a}, s{sDL}, v{a}' for a in (AW, AW + 2, AX, AX + 1)]
            if p == 2:
                ex += [f'v_add_u32 v{a}, s{sDL}, v{a}' for a in (AX + 2, AX + 3)]
                if not first: ex += [f's_add_u32 s{sCNT}, s{sCNT}, 1', f's_cmp_lt_u32 s{sCNT}, 7']
            if p == NP - 3 and F: ex += [f'v_add_u32 v{a}, s{sDL}, v{a}' for a in (AS, AS + 1, AS + 2, AS + 3)]
            e.wait_lg(tokW[p])
            spread(mfmas(p, first), ex, p)
        if BP:
            e.wait_lg(tokW[NP - 2])
            for rt, x in mfmas(NP - 2, False)[:BP]: e(x)
    def last(even, odd):
        for i, (rt, x) in enumerate(mfmas(NP - 1, False)):
            e(x)
            for l in (odd if i & 1 else even)(i // 2): e(l)
            if i == 6: tokW[1] = e.ltok()
            if i & 1: tokX[i // 2] = e.ltok()
    pert(e)
    if DIAG and OPT['p2ts'] == 0: e(f's_mov_b32 s{sTS+14}, 0')
    ts(e, 1, 0)
    e('s_barrier')
    ts(e, 2, 0)
    for l in wreads(0): e(l)
    tokW[0] = e.ltok()
    for rt in range(4):
        e(wreads(1)[rt])
        if rt == 3: tokW[1] = e.ltok()
        for l in xreads(rt): e(l)
        tokX[rt] = e.ltok()
    head(True)
    LK = lab('kloop')
    e(f'{LK}:\ns_waitcnt lgkmcnt(0)\ns_barrier')
    ex = wreads(0); ex[-1] = (ex[-1], 0)
    spread(mfmas(NP - 2, False)[BP:], ex + [f'v_add_u32 v{a}, s{sDL}, v{a}' for a in (AW + 1, AW + 3)])
    last(lambda k: [wreads(1)[k]], xreads)
    head(False)
    e(f's_cbranch_scc1 {LK}')
    e('s_waitcnt lgkmcnt(0)\ns_barrier')
    rowt = lambda dst, o: [f'ds_read_b32 v{dst+rt}, v{2+(rt>>1)} offset:{(rt&1)*64+o}' for rt in range(4)]
    if F:
        bvr = lambda t: f'ds_read_b128 v[{BV+4*t}:{BV+4*t+3}], v6 offset:{t*64}'
        spread(mfmas(NP - 2, False)[BP:], rowt(NL, 512) + rowt(RL, 0) + [bvr(t) for t in range(4)])
        last(lambda k: [['ds_read_b128 v[252:255], v14 offset:384'], ['ds_read_b128 v[8:11], v7 offset:384'], [bvr(4)], [bvr(5)]][k],
             lambda u: [f'ds_read_b128 v[{CSV+8*u+4*jj}:{CSV+8*u+4*jj+3}], v{4+jj} offset:{u*128}' for jj in range(2)])
        e(bvr(6)); e(bvr(7))
        ts(e, 3)
        held = []; gi = -1
        for u in range(4):
            if u == 0: e.wait_lg(tokX[0])
            if u == 1:
                e('s_waitcnt lgkmcnt(0)')
                for i in (0, 2):
                    e(f'v_pk_add_f32 v[{CSV+24+i}:{CSV+25+i}], v[{CSV+24+i}:{CSV+25+i}], v[{8+i}:{9+i}]')
                    e(f'v_pk_add_f32 v[{CSV+28+i}:{CSV+29+i}], v[{CSV+28+i}:{CSV+29+i}], v[{252+i}:{253+i}]')
            for p in range(2 if u < 3 else 1):
                a = acc_main(u, 2 * p, 0) if u < 3 else acc_strip(0, 0)
                L = []
                for i in range(0, 16, 2):
                    o = i >> 3; c = 8 * u + (i & 7)
                    L.append(f'v_pk_fma_f32 v[{H+i}:{H+i+1}], v[{CSV+c}:{CSV+c+1}], v[{NL+2*p}:{NL+2*p+1}], v[{BV+c}:{BV+c+1}] op_sel:[0,{o},0] op_sel_hi:[1,{o},1]')
                for i in range(0, 16, 2):
                    o = i >> 3
                    L.append(f'v_pk_fma_f32 v[{H+i}:{H+i+1}], v[{a+i}:{a+i+1}], v[{RL+2*p}:{RL+2*p+1}], v[{H+i}:{H+i+1}] op_sel:[0,{o},0] op_sel_hi:[1,{o},1]')
                for i in range(16): L.append(f'v_exp_f32 v{U+i}, v{H+i}')
                for i in range(0, 16, 2): L.append(f'v_pk_add_f32 v[{U+i}:{U+i+1}], v[{U+i}:{U+i+1}], 1.0 op_sel_hi:[1,0]')
                for i in range(0, 16, 2): L.append(f'v_pk_fma_f32 v[{U+i}:{U+i+1}], v[{U+i}:{U+i+1}], v[{U+i}:{U+i+1}], 1.0 op_sel_hi:[1,1,0]')
                for i in range(16): L.append(f'v_rcp_f32 v{U+i}, v{U+i}' if i >= OPT['ecut'] else 's_setprio 1')
                for i in range(0, 16, 2): L.append(f'v_pk_fma_f32 v[{U+i}:{U+i+1}], v[{U+i}:{U+i+1}], v[{KK}:{KK+1}], v[{KK}:{KK+1}] op_sel:[0,0,1] op_sel_hi:[1,0,1]')
                for i in range(0, 16, 2): L.append(f'v_pk_mul_f32 v[{U+i}:{U+i+1}], v[{U+i}:{U+i+1}], v[{H+i}:{H+i+1}]')
                for i in range(8): L.append(f'v_cvt_pk_bf16_f32 v{a+i}, v{U+2*i}, v{U+2*i+1}')
                gi += 1
                pert(e)
                for i, l in enumerate(L):
                    at = gi * 100 + i
                    if at == OPT['xpos']: ts(e, 1, 2); e.wait_vm(tX[0]); put_flag(e, 0); ts(e, 2, 2); p2_resid(e); done.add(0)
                    if at == OPT['xpos1'] - 30: e(land_look(4)); done.add(1)
                    if at == OPT['xpos1']:
                        ts(e, 5, 2); e(f's_waitcnt vmcnt({e.vm - tX[1]}) lgkmcnt(0)'); put_flag(e, 1); land_check(e, 4); ts(e, 6, 2); done.add(2)
                    if at == OPT['lpos']: e(look(0)); done.add(3)
                    e(l)
                so = (sY1 if p else sY0) if u == 0 else sT + 2 * u - 2 + p if u < 3 else sYS
                for k in range(2): held.append(f'buffer_store_dwordx4 v[{a+4*k}:{a+4*k+3}], v{L16B if k else L16}, s[{SWS}:{SWS+3}], s{so} offen sc1')
                if gi == 0: tX = {}; done = set()
                if u == 3:
                    assert done == {0, 1, 2, 3}
                    ts(e, 7, 2)
                    if OPT['a0']:
                        e('s_waitcnt lgkmcnt(0)')
                        for l in check(0): e(l)
                        p2_start(e, 0, OPT['a0'])
                    p2_preread(e)
                    e(f's_waitcnt vmcnt({e.vm - tX[2]}) lgkmcnt(0)'); put_flag(e, 4)
                    if not OPT['a0']:
                        for l in check(0): e(l)
                    ts(e, 1, 1)
                    e(look(1)); p2_start(e, OPT['a0'], A1)
                if p == 1 or u == 3:
                    for l in held: e(l)
                    held = []; tX[u] = e.vtok()
        ts(e, 4)
    else:
        spread(mfmas(NP - 2, False)[BP:], [f'ds_read_b32 v{CK+2*k+jj}, v{14 if jj else CSW} offset:{128+128*k}' for k in range(2) for jj in range(2)])
        last(lambda k: [], lambda k: [f'ds_read_b128 v[{NVV+8*k+4*i}:{NVV+8*k+4*i+3}], v{6+(k&1)} offset:{i*64+(512 if k < 2 else 0)}' for i in range(2)])
        for l in [f'ds_read_b128 v[{CSQ+4*jj}:{CSQ+4*jj+3}], v{4+jj}' for jj in range(2)] + rowt(RL, 0) + rowt(NL, 512): e(l)
        e(f's_lshl_b32 s{sT}, s{sW}, 11\ns_add_u32 s{sT}, s{sT}, {L_KX}\nv_add_u32 v6, s{sT}, v{L16}\nv_xor_b32 v7, 0x800, v6')
        ts(e, 3)
        def phi_tail(dst):
            for i in range(16): e(f'v_exp_f32_e64 v{U+i}, v{H+i} clamp')
            for i in range(16): e(f'v_max_f32 v{H+i}, v{EP}, v{H+i}')
            for i in range(0, 16, 2): e(f'v_pk_fma_f32 v[{H+i}:{H+i+1}], v[{H+i}:{H+i+1}], v[{EP}:{EP+1}], v[{U+i}:{U+i+1}] op_sel:[0,1,0] op_sel_hi:[1,1,1]')
            for i in range(0, 16, 2): e(f'v_cvt_pk_bf16_f32 v{dst+(i>>1)}, v{H+i}, v{H+i+1}')
        for h in (1, 0):
            ak = lambda i: acc_main(1, i >> 2, h) + (i & 3); av = lambda i: acc_main(2, i >> 2, h) + (i & 3)
            if h: e.wait_lg(tokX[1])
            for i in range(0, 16, 2): e(f'v_pk_fma_f32 v[{H+i}:{H+i+1}], v[{NVV+i}:{NVV+i+1}], v[{CK}:{CK+1}], v[{EP}:{EP+1}] op_sel:[0,{h},0] op_sel_hi:[1,{h},0]')
            if h: e.wait_lg(tokX[3])
            for i in range(0, 16, 2): e(f'v_pk_fma_f32 v[{H+i}:{H+i+1}], v[{ak(i)}:{ak(i)+1}], v[{RV+i}:{RV+i+1}], v[{H+i}:{H+i+1}]')
            pert(e)
            if not h: e(f'ds_write_b128 v6, v[{D1}:{D1+3}]\nds_write_b128 v6, v[{D1+4}:{D1+7}] offset:1024\nds_write_b32 v{SYV}, v{ONE} offset:32')
            phi_tail(PK)
            for i in range(0, 16, 2): e(f'v_pk_mul_f32 v[{H+i}:{H+i+1}], v[{NVV+i}:{NVV+i+1}], v[{CK+2}:{CK+3}] op_sel:[0,{h}] op_sel_hi:[1,{h}]')
            for i in range(0, 16, 2): e(f'v_pk_fma_f32 v[{H+i}:{H+i+1}], v[{av(i)}:{av(i)+1}], v[{RV+i}:{RV+i+1}], v[{H+i}:{H+i+1}]')
            for i in range(0, 16, 2): e(f'v_cvt_pk_bf16_f32 v{PV+(i>>1)}, v{H+i}, v{H+i+1}')
            d = D1 if h else D0
            for p in range(2): e(mfma(d + 4, PK + 4 * p, ONE, p == 0))
            for p in range(2): e(mfma(d, PK + 4 * p, PV + 4 * p, p == 0))
        pair_wait(e, 32, [f'ds_read_b128 v[{U}:{U+3}], v7', f'ds_read_b128 v[{U+4}:{U+7}], v7 offset:1024'])
        for k in range(2):
            e(f's_waitcnt lgkmcnt({1-k})')
            for i in range(4 * k, 4 * k + 4): e(f'v_add_f32 v{D0+i}, v{U+i}, v{D0+i}')
            for i in range(4 * k, 4 * k + 4): e(f'v_add_u32 v{D0+i}, 0x800, v{D0+i}')
            for i in range(4 * k, 4 * k + 4): e(f'v_bfi_b32 v{D0+i}, v10, s{TG+(i&3)}, v{D0+i}')
            if k == 0: e(f'buffer_store_dwordx4 v[{D0}:{D0+3}], v{L16}, s[{SWS}:{SWS+3}], s{sKR} offen sc1')
            else: e(f'buffer_store_dwordx4 v[{D0+4}:{D0+7}], v8, s[{SWS}:{SWS+3}], s{sKR} offen offset:1024 sc1')
        ts(e, 4)
        for p in range(2):
            a = acc_main(0, 2 * p, 0)
            if p: e(land_look(AB))
            for i in range(0, 16, 2):
                o = i >> 3; c = i & 7
                e(f'v_pk_fma_f32 v[{H+i}:{H+i+1}], v[{CSQ+c}:{CSQ+c+1}], v[{NL+2*p}:{NL+2*p+1}], v[{EP}:{EP+1}] op_sel:[0,{o},0] op_sel_hi:[1,{o},0]')
            for i in range(0, 16, 2):
                o = i >> 3
                e(f'v_pk_fma_f32 v[{H+i}:{H+i+1}], v[{a+i}:{a+i+1}], v[{RL+2*p}:{RL+2*p+1}], v[{H+i}:{H+i+1}] op_sel:[0,{o},0] op_sel_hi:[1,{o},1]')
            phi_tail(PQ + 8 * p)
        Z = 232; G = 64; KF = 236
        p2_resid(e)
        e('s_waitcnt lgkmcnt(0)')
        land_check(e, AB)
        p2_preread(e)
        e(f's_lshl_b32 s{sT}, s{sW}, 10\ns_add_u32 s{sT}, s{sT}, {L_KF}\nv_add_u32 v6, s{sT}, v{L16}\nv_xor_b32 v7, 0x400, v6')
        L, M, Fin = lab('gather'), lab('gretry'), lab('gdone')
        spin_init(e)
        e(f'{L}:')
        ts(e, 5, 0)
        for r in range(16):
            if r % 4 == 0: e(f's_add_u32 s{sT+1}, s{32 + (r >> 3)}, {r*1152}')
            e(f'buffer_load_dwordx4 v[{G+4*r}:{G+4*r+3}], v{L16}, s[{SWS}:{SWS+3}], s{sT+1} offen offset:{(r&3)*1152} sc1')
        e(f'buffer_load_dwordx4 v[{Z}:{Z+3}], v11, s[{SWS}:{SWS+3}], s{sKV} offen offset:1024 sc1\nv_mov_b32 v3, 0')
        for r in range(17):
            b = G + 4 * r if r < 16 else Z
            e(f's_waitcnt vmcnt({16-r})')
            if r == 8: e(look(0))
            for i in range(4): e(f'v_xor_b32 v{b+i}, s{TG+i}, v{b+i}')
            e(f'v_or3_b32 v3, v3, v{b}, v{b+1}\nv_or3_b32 v3, v3, v{b+2}, v{b+3}')
            if 0 < r < 16:
                for i in (0, 2): e(f'v_pk_add_f32 v[{G+i}:{G+i+1}], v[{G+i}:{G+i+1}], v[{b+i}:{b+i+1}]')
        e('v_and_b32 v3, v10, v3\nv_cmp_ne_u32 vcc, 0, v3')
        for ror in (1, 2, 4, 8):
            for i in range(4): e(f'v_add_f32_dpp v{Z+i}, v{Z+i}, v{Z+i} row_ror:{ror} row_mask:0xf bank_mask:0xf')
        e(f's_cmp_lg_u64 vcc, 0\ns_cbranch_scc1 {M}\n{Fin}:')
        c = Emit(); c(f'{M}:\ns_waitcnt lgkmcnt(0)')
        if DIAG and OPT['p2ts'] == 0: c(f's_add_u32 s{sTS+14}, s{sTS+14}, 1')
        spin_tail(c, L, Fin, 1); COLD.extend(c.lines)
        e(f'v_cvt_pk_bf16_f32 v{KF}, v{G}, v{G+1}\nv_cvt_pk_bf16_f32 v{KF+1}, v{G+2}, v{G+3}')
        e(f'v_cvt_pk_bf16_f32 v{KF+2}, v{Z}, v{Z+1}\nv_cvt_pk_bf16_f32 v{KF+3}, v{Z+2}, v{Z+3}')
        e(f'ds_write_b128 v6, v[{KF}:{KF+3}]\nds_write_b32 v{SYV}, v2 offset:48\ns_waitcnt lgkmcnt(0)')
        for l in check(0): e(l)
        ts(e, 1, 1)
        p2_start(e, 0, A1)
        ODR = (16, 24, 64, 72)
        def o_head(h):
            for rt in range(4):
                d = ODR[rt]; q = PQ + 4 * rt + 2 * h
                e(f'v_mfma_f32_16x16x16_bf16 v[{d+4}:{d+7}], v[{KF+4*h+2}:{KF+4*h+3}], v[{q}:{q+1}], 0')
            for rt in range(4):
                d = ODR[rt]; q = PQ + 4 * rt + 2 * h
                e(f'v_mfma_f32_16x16x16_bf16 v[{d}:{d+3}], v[{KF+4*h}:{KF+4*h+1}], v[{q}:{q+1}], 0')
            for d in ODR: e(f'v_fmamk_f32 v{d+4}, v{d+4}, {fl(LOG2E)}, v{EP}')
            for d in ODR: e(f'v_rcp_f32 v{d+4}, v{d+4}')
            for d in ODR:
                for i in (0, 2): e(f'v_pk_mul_f32 v[{d+i}:{d+i+1}], v[{d+i}:{d+i+1}], v[{d+4}:{d+5}] op_sel_hi:[1,0]')
            for rt in range(4):
                for i in range(2): e(f'v_cvt_pk_bf16_f32 v{PQ+4*rt+2*h+i}, v{ODR[rt]+2*i}, v{ODR[rt]+2*i+1}')
                if h: e(f'buffer_store_dwordx4 v[{PQ+4*rt}:{PQ+4*rt+3}], v{L16B if rt&1 else L16}, s[{SWS}:{SWS+3}], s{sY1 if rt>>1 else sY0} offen sc1')
        pert(e)
        o_head(0)
        pair_wait(e, 48, [f'ds_read_b128 v[{KF+4}:{KF+7}], v7'])
        e('s_waitcnt lgkmcnt(0)')
        e(look(1))
        o_head(1)
        ts(e, 6, 0)

def compute_p2(e):
    ts(e, 2, 1)
    nA = 0 if OPT['p2noa'] else 2
    e.vm = A1 * nA + 2
    tokA = {t: (t + 1) * nA for t in range(A1)}
    RD = {}; tokB = {}
    for n, (t0, k) in {3: (4, 4), 4: (10, 8), 5: (12, 4), 6: (18, 8), 7: (22, 8), 8: (24, 6)}.items():
        r = readB(n)
        for i in range(0, 16, k): RD[t0 + i // k] = (n, r[i:i + k])
    RED = (0, 16384, 0)
    OW = ACC + 48
    for t in range(36):
        n, j = STEPS[t]
        if t in (0, 5, 11, 20, 30, 34): pert(e)
        w = f's_waitcnt vmcnt({e.vm - tokA[t]})'
        ex = []
        if t in CHK:
            e(w + ' lgkmcnt(0)'); ex = check(CHK[t])
            if t == 22:
                Le, Lb = lab('epoch'), lab('epochd')
                ex += [f's_cmp_eq_u32 s{sEP}, 0', f's_cbranch_scc1 {Le}\n{Lb}:']
                COLD.extend([f'{Le}:', '    s_mov_b64 exec, 1', f'    buffer_store_dwordx2 v[{FV}:{FV+1}], off, s[{SWS}:{SWS+3}], 0 sc1', '    s_mov_b64 exec, -1', f'    s_branch {Lb}'])
        elif t == 13: e(w + f' lgkmcnt({e.lg - tokB[4]})')
        elif j == 0 and n >= 3: e(w + f' lgkmcnt({min(15, e.lg - tokB[n])})')
        else: e(w)
        if t == 0:
            if OPT['fr']:
                for l in swap8(XR, XR + 4, 32): e(l)
            for h in range(2):
                for i in range(2): e(f'v_permlane16_swap_b32 v{XR+4*h+i}, v{XR+4*h+2+i}')
            for i in range(8): ex += [f'v_lshlrev_b32 v{OW+2*i}, 16, v{XR+i}', f'v_and_b32 v{OW+2*i+1}, s23, v{XR+i}']
            ts(e, 8)
        if t == A1: put_flag(e, 2)
        if t == 2: ts(e, 6, 1)
        if t == 10: ts(e, 7, 1)
        if t in (10, 13, 22): e('s_barrier')
        if t in (4, 10, 16, 22, 28): ts(e, {4: 1, 10: 2, 16: 5, 22: 6, 28: 7}[t], 3)
        if t in RD: ex += RD[t][1]; tokB[RD[t][0]] = e.lg + len(RD[t][1])
        for o, ph in (('ly', 4), ('ls', 2), ('lo', 3)):
            if t == OPT[o]: ex.append(look(ph))
        if t == 27:
            for jj in range(3): ex += [f's_add_u32 s{sT+1}, s{sW}, {1+jj}', f's_and_b32 s{sT+1}, s{sT+1}, 3', f's_lshl_b32 s{sT+1}, s{sT+1}, 12', f'v_add_u32 v{2+jj}, s{sT+1}, v{L16}']
        if t == 28: ex += [f'v_add_u32 v4, {SCR}, v4', f's_lshl_b32 s{sT+1}, s{sW}, 12', f'v_add_u32 v5, s{sT+1}, v{L16}', f'v_add_u32 v6, {SCR}, v5']
        if t >= 30:
            jj = (t - 30) // 2
            ex += ['s_nop 0'] * 2 * (1 - t % 2) + [f'ds_write_b128 v{2+jj}, v[{ACC+16*jj+4*q}:{ACC+16*jj+4*q+3}] offset:{RED[jj]+q*1024}' for q in ((0, 1) if t % 2 == 0 else (2, 3))]
        la = []
        for u in ISSUE[t]:
            L = loadA(u)
            if u - DA == t:
                if len(L) == 3: ex.append(L.pop(0))
                la = L
            else: ex += L + [('tok', u)]
        k = 0
        for i in range(8):
            ct, s = i >> 1, i & 1
            e(mfma(ACC + 16 * j + 4 * ct, BR + 32 * (n % 3) + 8 * ct + 4 * s, A0 + 8 * (t % DA) + 4 * s, n == 0 and s == 0 and j < 3))
            lim = 6 if la else 8
            if i < lim:
                nx = -(-(len(ex) - k) // (lim - i))
                for l in ex[k:k + nx]:
                    if isinstance(l, tuple): tokA[l[1]] = e.vtok()
                    else: e(l)
                k += nx
            else: e(la[i - 6])
        if la: tokA[t + DA] = e.vtok()
    assert 0 <= OPT['ly'] < 10 and 2 < OPT['ls'] < 18 and 10 < OPT['lo'] < 22
    ts(e, 9)
    e('s_waitcnt lgkmcnt(0)\ns_barrier')
    RB = 128
    for q in range(4):
        for jj in range(3): e(f'ds_read_b128 v[{RB+12*q+4*jj}:{RB+12*q+4*jj+3}], v{5 if jj < 2 else 6} offset:{RED[jj]+q*1024}')
    for q in range(4):
        e(f's_waitcnt lgkmcnt({9-3*q})')
        for i in (0, 2):
            r = RB + 12 * q + i; o = OW + 4 * q + i
            e(f'v_pk_add_f32 v[{o}:{o+1}], v[{o}:{o+1}], v[{r}:{r+1}]\nv_pk_add_f32 v[{r+4}:{r+5}], v[{r+4}:{r+5}], v[{r+8}:{r+9}]')
        for i in (0, 2):
            r = RB + 12 * q + i; o = OW + 4 * q + i
            e(f'v_pk_add_f32 v[{o}:{o+1}], v[{o}:{o+1}], v[{r+4}:{r+5}]')
        for i in (0, 2): e(f'v_cvt_pk_bf16_f32 v{80+2*q+i//2}, v{OW+4*q+i}, v{OW+4*q+i+1}')
        if q & 1:
            h = q >> 1
            for i in range(2): e(f'v_permlane16_swap_b32 v{80+4*h+i}, v{80+4*h+2+i}')
            if not OPT['fo']: e(f'buffer_store_dwordx4 v[{80+4*h}:{83+4*h}], v{VO}, s[{SOUT}:{SOUT+3}], s{sO} offen offset:{h*64} nt')
    if OPT['fo']:
        for l in swap8(80, 84, 88): e(l)
        for h in range(2): e(f'buffer_store_dwordx4 v[{80+4*h}:{83+4*h}], v{VF}, s[{SOUT}:{SOUT+3}], s{sO2 if h else sO} offen nt')
    if DIAG: e('s_waitcnt vmcnt(0)')
    ts(e, 10)
    ts_dump(e, 11, 4)
    e('s_endpgm')

def ids2(e):
    e(f's_and_b32 s{sRB2}, s2, 7\ns_lshl_b32 s{sRB2}, s{sRB2}, 2\ns_lshr_b32 s{sT}, s2, 6\ns_add_u32 s{sRB2}, s{sRB2}, s{sT}')
    tabs = []
    for ab in ((0, 1), (2, 4), (5, 6), (0, 4)):
        rest = [c for c in range(8) if c not in (3, 7) + ab]
        tabs.append(sum(c << (4 * i) for i, c in enumerate([3, ab[0], rest[0], rest[1], 7, ab[1], rest[2], rest[3]])))
    e(f's_mov_b32 s{sT+1}, {tabs[0]}')
    for k in (1, 2, 3): e(f's_cmp_eq_u32 s{sT}, {k}\ns_cselect_b32 s{sT+1}, {tabs[k]}, s{sT+1}')
    e(f's_and_b32 s{sCB}, s{sLI}, 7\ns_lshl_b32 s{sCB}, s{sCB}, 2\ns_lshr_b32 s{sCB}, s{sT+1}, s{sCB}\ns_and_b32 s{sCB}, s{sCB}, 7')
    e(f's_lshl_b32 s{sSY}, s{sF}, 11\ns_add_u32 s{sSY}, s{sSY}, {L_SY}')

def main():
    e = Emit()
    e('s_load_dwordx16 s[16:31], s[0:1], 0\ns_load_dwordx2 s[34:35], s[0:1], 72')
    e('s_cmp_ge_u32 s2, 256\ns_cbranch_scc1 L_end')
    ts(e, 0)
    e(f'v_readfirstlane_b32 s{sW}, v0\nv_and_b32 v0, 63, v0')
    if OPT['mix']: e(f's_lshr_b32 s{sT}, s2, {OPT["mix"]}\ns_and_b32 s{sT}, s{sT}, 16\ns_xor_b32 s2, s2, s{sT}')
    e(f's_lshr_b32 s{sLI}, s2, 3\ns_bfe_u32 s{sT+1}, s2, 0x10002\ns_lshl_b32 s{sRB}, s{sT+1}, 3\ns_lshr_b32 s{sT}, s2, 5\ns_add_u32 s{sRB}, s{sRB}, s{sT}')
    e(f's_add_u32 s{sT}, s{sT}, s2\ns_and_b32 s{sT}, s{sT}, 3\ns_lshl_b32 s{sT}, s{sT}, 1\ns_add_u32 s{sKC}, s{sT}, s{sT+1}')
    e(f's_and_b32 s{sG}, s2, 3\ns_lshl_b32 s{sG}, s{sG}, 1\ns_and_b32 s{sT+1}, s{sLI}, 1\ns_add_u32 s{sG}, s{sG}, s{sT+1}')
    e(f's_lshr_b32 s{sW}, s{sW}, 6\ns_bfe_u32 s{sF}, s2, 0x10004')
    if OPT['kaf']: e(f's_sub_u32 s{sKC}, s{sKC}, s{sF}\ns_and_b32 s{sKC}, s{sKC}, 7')
    e(f's_cmp_lt_u32 s{sW}, 4\ns_cbranch_scc1 L_helper')
    compute_early(e)
    e('L_helper:')
    helper(e)
    e('L_compute:')
    compute_common(e)
    e(f's_cmp_eq_u32 s{sF}, 0\ns_cbranch_scc1 L_compute_A')
    compute_p1(e, 1)
    e('s_branch L_p2')
    e('L_compute_A:')
    compute_p1(e, 0)
    e('L_p2:')
    compute_p2(e)
    e.lines += COLD
    e('L_end:\ns_endpgm\nL_code_end:')
    lines, n = hazard_pass_fast(e.lines)
    if OPT['al']: lines, nw, npad = align_pass(lines, NAME + '_kernel', 3, OPT['al'] - 1)
    lines2, n2 = hazard_pass(lines); assert n2 == 0
    hdr = open('cdna_kernels/%s.s.ref' % NAME).read().split('; Override launch')[0]
    out = hdr + f'; @launch grid=(256,1,1) block=(512,1,1) lds={LDS_BYTES}\n'
    out += ''.join('; ' + l + '\n' for l in __doc__.split('\n')[2:])
    out += f'.amdgcn_target "amdgcn-amd-amdhsa--gfx950"\n.text\n.globl {NAME}_kernel\n.p2align 8\n.type {NAME}_kernel,@function\n{NAME}_kernel:\n'
    out += '\n'.join(lines) + '\n'
    out += f'''.section .rodata,"a"
.p2align 6
.amdhsa_kernel {NAME}_kernel
  .amdhsa_next_free_vgpr 256
  .amdhsa_next_free_sgpr 102
  .amdhsa_accum_offset 256
  .amdhsa_group_segment_fixed_size 0
  .amdhsa_kernarg_size 80
  .amdhsa_user_sgpr_count 2
  .amdhsa_user_sgpr_kernarg_segment_ptr 1
  .amdhsa_system_sgpr_workgroup_id_x 1
  .amdhsa_float_denorm_mode_32 3
.end_amdhsa_kernel
'''
    open(sys.argv[1], 'w').write(out)
    print('wrote', sys.argv[1], len(lines), 'lines,', n, 'hazard pads')

main()
```

```python
import sys, struct
from asmlib import *

NAME = 'parallel_sum__linear_attn_block__dense_activation_mish__prompt'
OPT = dict(diag=0, cyc=0, kts=0, p2ts=0, pert=0, al=1, wg=0, ia=0, ib=0,
           pre1=8, wpc=2, s0=3, sn=12, b2a=6, b2b=6, r7=0, thr=8, w1=4, hp=0, hpk=0, hl=0, ld=0, ldp=2, bp=2, wpa=1, mix=3, tw=1, vp=1, lay=0, ep=0, nb=0, nbc=4, kaf=0, wp2=9, sk=11, skn=0, fr=0, fo=0, swp=0,
           xpos=387, xpos1=560, lpos=562, a0=1, go=1, a1=3, ly=5, ls=13, lo=16,
           nob2=0, p2noa=0, ecut=0)
for a in sys.argv[2:]:
    k, v = a.split('='); assert k in OPT, k; OPT[k] = int(v)
DIAG = OPT['diag']

WS_RS = 0x1000
WS_CS = 0x30000
WS_KV = 0x50000
WS_TS = 0xE0000
WS_YF = 0x100000
FG = 256; FPH = 4 * FG
WS_Y = 0x200000
YRT = 72 * 1024
WS_SIZE = WS_Y + 128 * YRT
SLOT = 45056
L_W = 16384; L_S = 40960
GS = (14 * 8192, 0, 10 * 8192, 4 * 8192)
SCR = 147456
L_R = SCR
L_CS = SCR + 1024
L_BT = SCR + 2048
L_KX = SCR + 4096
L_KF = SCR + 12288
L_SY = SCR + 2048
LDS_BYTES = 163840

sW, sRB, sG, sF, sKC, sRB2, sCB, sLI = 3, 4, 5, 6, 7, 8, 9, 10
pX, pWQKV, pWO, pW1, pB1, pW2, pOUT, pWS = 16, 18, 20, 24, 26, 28, 30, 34
SX, SWs, SW2, SWO, SWS, SOUT, SB1 = 36, 40, 44, 48, 52, 56, 60
sSY, sNON, sT, sSPIN, sTS = 64, 68, 70, 79, 80

def fl(x): return '0x%08x' % struct.unpack('<I', struct.pack('<f', x))[0]
LOG2E = 1.4426950408889634
def srd(e, d, p, n): e(f's_mov_b32 s{d}, s{p}\ns_mov_b32 s{d+1}, s{p+1}\ns_mov_b32 s{d+2}, {n}\ns_mov_b32 s{d+3}, 0x20000')
_lab = [0]
def lab(p):
    _lab[0] += 1
    return f'L_{p}_{_lab[0]}'
COLD = []

TSI = 's_memtime' if OPT['cyc'] else 's_memrealtime'
KTS = (16, 18, 20, 24, 26, 28, 30, 32, 34)
def ts(e, k, p2=None):
    if DIAG and (p2 is None or p2 == OPT['p2ts']): e(f'{TSI} s[{sTS+2*k}:{sTS+2*k+1}]')
def ts_dump(e, nst, wave_off):
    if not DIAG: return
    if DIAG == 3:
        if wave_off == 0: return
        Ls = lab('dd'); Lw = lab('dw')
        e(f's_waitcnt lgkmcnt(0)\ns_cmp_lg_u32 s{sW}, 0\ns_cbranch_scc1 {Ls}\ns_cmp_lg_u32 s2, {OPT["wg"]}\ns_cbranch_scc1 {Ls}')
        e(f's_sub_u32 s{sT}, s{sTS+2*OPT["ib"]}, s{sTS+2*OPT["ia"]}\ns_min_u32 s{sT}, s{sT}, 10000\ns_mul_i32 s{sT}, s{sT}, 20')
        e(f'{Lw}:')
        e(f's_memrealtime s[72:73]\ns_waitcnt lgkmcnt(0)\ns_sub_u32 s72, s72, s{sTS+2*(nst-1)}\ns_cmp_lt_u32 s72, s{sT}\ns_cbranch_scc1 {Lw}')
        e(f'{Ls}:')
        return
    e('s_waitcnt lgkmcnt(0)\nv_mov_b32 v1, 0')
    if wave_off == 0:
        for c in range(9): e(f'v_writelane_b32 v1, s{KTS[c]}, {7+c}')
    for k in range(nst): e(f'v_writelane_b32 v1, s{sTS+2*k}, {k}')
    if wave_off:
        e(f's_getreg_b32 s{sT}, hwreg(HW_REG_HW_ID)\ns_getreg_b32 s{sT+1}, hwreg(HW_REG_XCC_ID)\nv_writelane_b32 v1, s{sT}, 12\nv_writelane_b32 v1, s{sT+1}, 13\nv_writelane_b32 v1, s{sNON}, 14')
    e(f's_lshl_b32 s{sT}, s2, 3\ns_add_u32 s{sT}, s{sT}, s{sW}\ns_add_u32 s{sT}, s{sT}, {wave_off}\ns_lshl_b32 s{sT}, s{sT}, 6\ns_add_u32 s{sT}, s{sT}, {WS_TS}')
    e(f'v_lshlrev_b32 v2, 2, v0\ns_mov_b64 exec, 0xffff\nbuffer_store_dword v1, v2, s[{SWS}:{SWS+3}], s{sT} offen\ns_mov_b64 exec, -1')
_pn = [0]
def pert(e):
    if not OPT['pert']: return
    _pn[0] += 1
    L = lab('pert'); m = (0x9e3779b1 * (OPT['pert'] * 131 + _pn[0])) & 0xffffffff | 1
    e(f's_lshl_b32 s100, s2, 3\ns_add_u32 s100, s100, s{sW}\ns_add_u32 s100, s100, {_pn[0]*77}\ns_mul_i32 s100, s100, {m}\ns_lshr_b32 s100, s100, 28')
    e(f's_cmp_lt_u32 s100, 11\ns_cbranch_scc1 {L}\ns_sleep {20 + 25 * (_pn[0] % 4)}\n{L}:')

def spin_init(e, n=200000): e(f's_mov_b32 s{sSPIN}, {n}')
def spin_tail(e, L, D, slp=0):
    e(f's_sub_u32 s{sSPIN}, s{sSPIN}, 1\ns_cmp_eq_u32 s{sSPIN}, 0\ns_cbranch_scc1 {D}')
    if slp: e(f's_sleep {slp}')
    e(f's_branch {L}')

UN = (0, 4, 1, 5, 2, 6, 3)

def helper(e):
    vX, vWo, vS, vB, vL16, vN, vT, vTG, vRG, vRW, vSY, vBuf = 2, 6, 8, 9, 11, 12, 13, 14, 15, 16, 17, 96
    sXB, sWB, sHX, sHW, sHS = 11, 12, 13, 14, 15
    sRSP, sUST, sB2, sK0, sCSB, sRSB, sSD, sCK, sL = 22, 23, 60, 61, 62, 63, 76, 77, 78
    if OPT['vp'] == 2:
        Lq = lab('pc')
        e(f's_getpc_b64 s[44:45]\n{Lq}:\ns_andn2_b32 s{sT}, s2, 7\nv_add_lshl_u32 v10, v10, s{sT}, 7')
        e(f'v_min_u32 v10, L_code_end-{Lq}-4, v10\nglobal_load_dword v57, v10, s[44:45]')
    e('v_lshrrev_b32 v40, 3, v0\nv_and_b32 v41, 7, v0\nv_lshrrev_b32 v42, 4, v0')
    e(f'v_xor_b32 v43, v41, v42\nv_lshlrev_b32 v43, 4, v43\nv_lshl_add_u32 v{vX}, v40, 10, v43')
    e(f'v_xor_b32 v{vX+1}, 64, v{vX}\nv_add_u32 v{vX+1}, {8192-1024}, v{vX+1}')
    e(f'v_add_u32 v{vX+2}, {2*(8192-1024)}, v{vX}\nv_add_u32 v{vX+3}, {2*(8192-1024)}, v{vX+1}')
    e(f's_lshl_b32 s{sHX}, s{sW}, 12\ns_lshl_b32 s{sXB}, s{sRB}, 17\ns_lshl_b32 s{sT}, s{sW}, 15\ns_add_u32 s{sXB}, s{sXB}, s{sT}')
    e(f's_lshl_b32 s{sT+1}, s{sKC}, 7\ns_add_u32 s{sT+1}, s{sT+1}, s{sXB}\ns_mov_b32 m0, s{sHX}')
    e(f's_mov_b32 s{SX+2}, {2048*1024}\ns_mov_b32 s{SX+3}, 0x20000')
    if OPT['lay'] == 2:
        e(f's_waitcnt lgkmcnt(0)\ns_mov_b32 s{SX}, s{pX}\ns_mov_b32 s{SX+1}, s{pX+1}')
        for i in range(4): e(f'buffer_load_dwordx4 v{vX+i}, s[{SX}:{SX+3}], s{sT+1} offen offset:{i*1024} lds')
        ts(e, 4)
        e('s_branch L_helper2\nL_split:\nL_helper2:')
        idg(e)
    e(f's_mov_b32 s{SWs+3}, 0x20000')
    e(f's_lshr_b32 s{sT}, s{sG}, 1\ns_mul_i32 s{sT}, s{sT}, 896\ns_and_b32 s{sT+2}, s{sG}, 1\ns_lshl_b32 s{sT+3}, s{sT+2}, 9\ns_add_u32 s{sT}, s{sT}, s{sT+3}')
    e(f's_mul_i32 s{sSD}, s{sT+2}, -448\ns_add_u32 s{sSD}, s{sSD}, 384\ns_lshl_b32 s{sT+2}, s{sG}, 7')
    e(f's_lshl_b32 s{sT+3}, s{sF}, 9\ns_add_u32 s{sT+3}, s{sT+3}, 3072')
    e(f's_lshl_b32 s{sCK}, s{sT+3}, 6\ns_lshl_b32 s{SWs+2}, s{sT+3}, 9\ns_mul_i32 s{sWB}, s{sT+3}, s{sW}\ns_lshl_b32 s{sWB}, s{sWB}, 4')
    e('v_and_b32 v43, 1, v42\nv_lshlrev_b32 v43, 1, v43\nv_xor_b32 v43, v41, v43\nv_lshlrev_b32 v43, 4, v43')
    e(f'v_mad_u32_u24 v{vWo}, v40, s{sT+3}, v43\ns_lshl_b32 s{sT+4}, s{sT+3}, 3\ns_sub_u32 s{sT+4}, s{sT+4}, 1024')
    e(f'v_xor_b32 v{vWo+1}, 64, v{vWo}\nv_add_u32 v{vWo+1}, s{sT+4}, v{vWo+1}')
    e('v_lshrrev_b32 v44, 2, v0\nv_and_b32 v45, 3, v0\nv_and_b32 v46, 2, v42\nv_xor_b32 v45, v45, v46\nv_lshlrev_b32 v45, 4, v45')
    e(f'v_mad_u32_u24 v{vS}, v44, s{sT+3}, v45')
    e(f's_lshl_b32 s{sHW}, s{sW}, 11\ns_lshl_b32 s{sHS}, s{sW}, 10\ns_add_u32 s{sHS}, s{sHS}, {L_S}')
    e(f's_cmp_lg_u32 s{sF}, 0\ns_cselect_b32 s{sT}, s{sT}, s{sT+2}\ns_add_u32 s{sWB}, s{sWB}, s{sT}\ns_mov_b32 s{sL}, 0\ns_mov_b32 s{sK0}, s{sKC}')
    if OPT['lay'] != 2:
        e('s_waitcnt lgkmcnt(0)')
        ts(e, 4)
        e(f's_mov_b32 s{SX}, s{pX}\ns_mov_b32 s{SX+1}, s{pX+1}')

    def chunk_groups(first=False):
        g = []
        pre = [] if first else [f's_lshl_b32 s{sT+1}, s{sKC}, 7', f's_add_u32 m0, s{sL}, s{sHX}', f's_add_u32 s{sT+1}, s{sT+1}, s{sXB}']
        for i in range(4):
            g.append((pre if i == 0 else []) + [f'buffer_load_dwordx4 v{vX+i}, s[{SX}:{SX+3}], s{sT+1} offen offset:{i*1024} lds'])
        if first:
            g.append([f's_cmp_lg_u32 s{sF}, 0', f's_cselect_b32 s{SWs}, s{pW1}, s{pWQKV}', f's_cselect_b32 s{SWs+1}, s{pW1+1}, s{pWQKV+1}',
                      f's_movk_i32 s{sUST}, 1024', f's_cselect_b32 s{sUST}, 128, s{sUST}'])
        for u in range(3):
            if u == 0: pre = [f's_add_u32 s{sT+4}, s{sL}, s{sHW}', f's_mul_i32 s{sT+2}, s{sKC}, s{sCK}', f's_add_u32 m0, s{sT+4}, {L_W}', f's_add_u32 s{sT+2}, s{sT+2}, s{sWB}']
            else: pre = [f's_add_u32 m0, s{sT+4}, {L_W+u*8192}', f's_add_u32 s{sT+3}, s{sT+2 if u == 1 else sT+3}, s{sUST}']
            so = sT + 2 if u == 0 else sT + 3
            for i in range(2):
                g.append((pre if i == 0 else []) + [f'buffer_load_dwordx4 v{vWo+i}, s[{SWs}:{SWs+3}], s{so} offen offset:{i*1024} lds'])
        Ls = lab('nostrip')
        g.append([f's_cmp_eq_u32 s{sF}, 0', f's_cbranch_scc1 {Ls}', f's_add_u32 m0, s{sL}, s{sHS}', f's_add_u32 s{sT+3}, s{sT+2}, s{sSD}',
                  f'buffer_load_dwordx4 v{vS}, s[{SWs}:{SWs+3}], s{sT+3} offen lds', f'{Ls}:',
                  f's_add_u32 s{sKC}, s{sKC}, 1', f's_and_b32 s{sKC}, s{sKC}, 7', f's_add_u32 s{sL}, s{sL}, {SLOT}',
                  f's_cmp_eq_u32 s{sL}, {3*SLOT}', f's_cselect_b32 s{sL}, 0, s{sL}'])
        return g
    def b2_groups(n, w):
        S, off = (SW2, (7 * w + UN[n]) * 65536) if n < 7 else (SWO, (2 * w + n - 7) * 65536)
        g = []
        for i in range(2):
            pre = [f's_add_u32 s{sT+4}, s{sB2}, {off}'] if i == 0 else []
            if n < 4 or n > 8 - OPT['ld']:
                if i == 0: pre = [f's_add_u32 m0, s{sHW}, {GS[n%4]+w*8192}'] + pre
                g.append(pre + [f'buffer_load_dwordx4 v{vB+i}, s[{S}:{S+3}], s{sT+4} offen offset:{i*1024} lds'])
            else:
                r = vBuf + (((n - 4) * 4 + w) * 2 + i) * 4
                g.append(pre + [f'buffer_load_dwordx4 v[{r}:{r+3}], v{vB+i}, s[{S}:{S+3}], s{sT+4} offen offset:{i*1024}'])
        return [] if OPT['nob2'] else g
    def issue(groups):
        for g in groups:
            for l in g:
                e(l)
                if l.startswith(f'buffer_load_dwordx4 v{vS},'): e.vm -= 1
    def take(q, n):
        g = []
        for _ in range(min(n, len(q))): g += b2_groups(*q.pop(0))
        return g
    def kts(c, k=0):
        if DIAG and k == OPT['kts']: e(f'{TSI} s[{KTS[c]}:{KTS[c]+1}]')
    tok = {}
    issue(chunk_groups(True)[4 if OPT['lay'] == 2 else 0:]); tok[0] = e.vtok()
    if OPT['lay'] == 1: e('s_branch L_helper2\nL_split:\nL_helper2:')
    ids2(e)
    srd(e, SW2, pW2, 1792 * 1024); srd(e, SWO, pWO, 512 * 1024); srd(e, SWS, pWS, WS_SIZE)
    e('v_lshlrev_b32 v43, 1, v42\nv_xor_b32 v43, v41, v43\nv_lshlrev_b32 v43, 4, v43')
    e(f'v_lshl_add_u32 v{vB}, v40, 10, v43\nv_add_u32 v{vB+1}, {8192-1024}, v{vB}\nv_lshlrev_b32 v{vL16}, 4, v0')
    e(f's_and_b32 s{sT}, s{sRB2}, 1\ns_xor_b32 s{sT}, s{sT}, s{sW}\ns_lshl_b32 s{sB2}, s{sT}, 14\ns_lshl_b32 s{sT}, s{sCB}, 7\ns_add_u32 s{sB2}, s{sB2}, s{sT}')
    e(f's_lshl_b32 s{sT}, s{sW}, 8\nv_lshl_add_u32 v{vN}, v0, 2, s{sT}\nv_add_u32 v{vT}, {L_CS}, v{vN}')
    e(f's_lshl_b32 s{sT}, s{sF}, 3\ns_add_u32 s{sT}, s{sT}, s{sG}\ns_lshl_b32 s{sCSB}, s{sT}, 13\ns_add_u32 s{sCSB}, s{sCSB}, {WS_CS}')
    e(f's_lshl_b32 s{sRSB}, s{sRB}, 11\ns_add_u32 s{sRSB}, s{sRSB}, {WS_RS}\ns_lshl_b32 s{sT}, s{sT}, 7\ns_add_u32 s{sRSP}, s{sRSB}, s{sT}')
    e(f's_lshl_b32 s{sT}, s{sW}, 9\ns_add_u32 s{sRSB}, s{sRSB}, s{sT}\ns_cmp_eq_u32 s{sW}, 0\ns_cselect_b32 s{sRSP}, s{sRSP}, 0x7ff00000')
    e(f'v_and_b32 v{vRG}, 0x1f0, v{vL16}\nv_and_b32 v46, 0x70, v{vL16}\nv_add_u32 v47, s{sSY}, v46')
    e(f'v_and_b32 v44, 31, v0\ns_lshl_b32 s{sT}, s{sW}, 7\ns_add_u32 s{sT}, s{sT}, {L_R}\nv_lshl_add_u32 v{vRW}, v44, 2, s{sT}')
    e(f'v_mov_b32 v{vSY}, s{sSY}\nv_and_b32 v45, 3, v0\nv_lshlrev_b32 v45, 3, v45')
    e(f's_lshl_b32 s{sT}, s{sLI}, 2\ns_add_u32 s{sT}, s{sT}, s{sW}\ns_mul_i32 s{sT+1}, s{sT}, {14*1024}\ns_lshl_b32 s{sT}, s{sT}, 12')
    e(f's_add_u32 s56, s{pW2}, s{sT+1}\ns_addc_u32 s57, s{pW2+1}, 0\ns_add_u32 s58, s{pWO}, s{sT}\ns_addc_u32 s59, s{pWO+1}, 0')
    sq = [f's_load_dword s65, s[56:57], {(k>>1)*1024+384+(k&1)*64}' for k in range(28)] + [f's_load_dword s65, s[58:59], {(k>>1)*1024+384+(k&1)*64}' for k in range(8)]
    if OPT['swp']:
        e(f's_xor_b32 s{sT}, s2, 1\ns_lshl_b32 s{sT}, s{sT}, 2\ns_add_u32 s{sT}, s{sT}, s{sW}\ns_mul_i32 s{sT+1}, s{sT}, 1792\ns_lshl_b32 s{sT}, s{sT}, 9')
        e(f's_add_u32 s94, s{pW2}, s{sT+1}\ns_addc_u32 s95, s{pW2+1}, 0\ns_add_u32 s96, s{pWO}, s{sT}\ns_addc_u32 s97, s{pWO+1}, 0')
        st = OPT['swp'] if OPT['swp'] < 3 else 1
        s2q = [f's_load_dword s65, s[94:95], {k*64}' for k in range(0, 28, st)] + [f's_load_dword s65, s[96:97], {k*64}' for k in range(0, 8, st)]
        sq = s2q + sq if OPT['swp'] == 3 else sq + s2q
    if OPT['tw'] & 1: srd(e, 96, pOUT, 2048 * 1024)
    dq = [(0, 0), (0, 1), (0, 2), (0, 3), (2, 1), (2, 2), (1, 0), (1, 1), (1, 2), (1, 3), (2, 3), (3, 0), (2, 0), (3, 1), (3, 2), (3, 3)]
    rq = [(n, w) for n in range(4, 9 - OPT['ld']) for w in range(4)]
    assert OPT['b2a'] <= 6 and OPT['b2a'] + OPT['b2b'] <= 12
    def gather_loads(x):
        for k in range(8): x(f'buffer_load_dword v{20+k}, v{vN}, s[{SWS}:{SWS+3}], s{sCSB if k < 4 else sT+5} offen offset:{(k&3)*1024} sc1')
        x(f'buffer_load_dwordx4 v[28:31], v{vRG}, s[{SWS}:{SWS+3}], s{sRSB} offen sc1')
    g1 = chunk_groups()
    issue(g1[:OPT['pre1']]); rest = g1[OPT['pre1']:]; tok[1] = e.vtok()
    ts(e, 1)
    for c in range(8):
        pert(e)
        e.wait_vm(tok[c])
        e('s_barrier')
        kts(c)
        if rest: issue(rest); tok[c + 1] = e.vtok(); rest = []
        if c == 0: e(f'ds_read_b64 v[18:19], v{vSY}')
        if c == 1: e(f'ds_read_b32 v20, v{vT}\nds_read_b128 v[24:27], v47 offset:128')
        def wpf(x=0):
            e(f's_xor_b32 s{sT}, s2, {x}\ns_lshl_b32 s{sT}, s{sT}, 2\ns_add_u32 s{sT}, s{sT}, s{sW}\ns_mul_i32 s{sT+1}, s{sT}, 1792\ns_lshl_b32 s{sT}, s{sT}, 9')
            e(f'v_min_u32 v55, 13, v0\nv_lshlrev_b32 v55, 7, v55\nbuffer_load_dword v56, v55, s[{SW2}:{SW2+3}], s{sT+1} offen')
            e(f'v_min_u32 v55, 0x180, v55\nbuffer_load_dword v56, v55, s[{SWO}:{SWO+3}], s{sT} offen')
        if c == OPT['wpc'] and not OPT['wpa']: wpf()
        if c == 6:
            e(f's_add_u32 s{sT+5}, s{sCSB}, 4096')
            gather_loads(e); tg = e.vtok()
        if c == 7:
            L, M, Dn = lab('xchk'), lab('xretry'), lab('xdone')
            spin_init(e)
            e.wait_vm(tg)
            e(f'{L}:')
            for i in range(8): e(f'v_xor_b32 v{20+i}, v{vTG}, v{20+i}')
            e('v_or3_b32 v32, v20, v21, v22\nv_or3_b32 v32, v32, v23, v24\nv_or3_b32 v32, v32, v25, v26\nv_or_b32 v32, v32, v27\nv_and_b32 v32, 0xff, v32')
            e('v_and_b32 v33, 1, v18\nv_xor_b32 v28, v33, v28\nv_xor_b32 v29, v33, v29\nv_or_b32 v33, v28, v29\nv_and_or_b32 v32, v33, 1, v32')
            e('v_xor_b32 v30, v18, v30\nv_xor_b32 v31, v19, v31\nv_or3_b32 v32, v32, v30, v31\nv_cmp_ne_u32 vcc, 0, v32')
            e(f's_cmp_lg_u64 vcc, 0\ns_cbranch_scc1 {M}\n{Dn}:')
            x = Emit()
            x(f'{M}:\ns_sub_u32 s{sSPIN}, s{sSPIN}, 1\ns_cmp_eq_u32 s{sSPIN}, 0\ns_cbranch_scc1 {Dn}\ns_sleep 2')
            gather_loads(x); x(f's_waitcnt vmcnt(0)\ns_branch {L}')
            COLD.extend(x.lines)
            e(f'ds_write_b32 v{vRW}, v28\nds_write_b32 v{vRW}, v29 offset:512')
            for a, b in ((20, 21), (22, 23), (24, 25), (26, 27), (20, 22), (24, 26), (20, 24)): e(f'v_add_f32 v{a}, v{a}, v{b}')
            e(f'ds_write_b32 v{vT}, v20')
        if c + 2 <= 7:
            g = chunk_groups(); k = OPT['sk'] if c <= OPT['skn'] else 11
            issue(g[:k]); rest = g[k:]; tok[c + 2] = e.vtok()
            if c == OPT['wpc'] and OPT['wpa']: wpf()
            if c == OPT['wp2']: wpf(1)
            if c == OPT['wpc'] and OPT['tw'] & 2:
                e(f'v_min_u32 v55, 5, v0\nv_lshlrev_b32 v55, 21, v55\nbuffer_load_dword v56, v55, s[{SWS}:{SWS+3}], 0 offen offset:2048')
            if c >= OPT['nbc']: issue(take(rq, OPT['nb']))
        elif c == 6: issue(take(dq, OPT['b2a']))
        else: issue(take(dq, OPT['b2b'])); issue(take(rq, OPT['r7']))
        if c == 0:
            e(f's_waitcnt lgkmcnt(0)\nv_bfe_u32 v{vTG}, v18, v45, 8\nv_bfi_b32 v{vTG}, 1, v18, v{vTG}')
        if c == 1:
            e(f's_lshl_b32 s{sT}, s{sK0}, 10\ns_add_u32 s{sT}, s{sT}, s{sCSB}\ns_movk_i32 s{sT+1}, 0xff\ns_waitcnt lgkmcnt(0)')
            e(f'v_add_u32 v20, 0x80, v20\nv_bfi_b32 v20, s{sT+1}, v{vTG}, v20')
            e(f'buffer_store_dword v20, v{vN}, s[{SWS}:{SWS+3}], s{sT} offen sc1')
            e(f's_mov_b64 exec, 0xff\nbuffer_store_dwordx4 v[24:27], v46, s[{SWS}:{SWS+3}], s{sRSP} offen sc1\ns_mov_b64 exec, -1')
        for _ in range(min(OPT['sn'], len(sq)) if c >= OPT['s0'] else 0): e(sq.pop(0))
    e('s_waitcnt lgkmcnt(0)\ns_barrier')
    kts(8)
    ts(e, 2)
    e(f's_lshl_b32 s{sT}, s{sW}, 2\nv_add_u32 v25, s{sT}, v{vSY}\nv_mov_b32 v24, -1')
    pert(e)
    nD = 2 * len(dq); tD = e.vtok(); landed = False
    allg = take(dq, 16) + take(rq, 20)
    lastg = allg[len(allg) - OPT['hl']:]; allg = allg[:len(allg) - OPT['hl']]
    for k, g in enumerate(allg + [[]]):
        if OPT['hp'] and k == OPT['hpk']: e(f's_setprio {OPT["hp"]}')
        if not landed and (k == nD + 12 or not g):
            e.wait_vm(tD); e('ds_write_b32 v25, v24 offset:16'); landed = True
        for l in g: e(l)
        if k + 1 == nD: tD = e.vtok()
        if g: e(f's_waitcnt vmcnt({OPT["thr"]})')
    ts(e, 3)
    if OPT['hp']: e('s_setprio 0')
    e(f'v_add_u32 v{vL16}, s{sHW}, v{vL16}')
    for r in range(4): e(f'v_add_u32 v{20+r}, {GS[r]}, v{vL16}')
    def refill(n, k0=0, k1=8):
        if n > 8 - OPT['ld']:
            if k0 == 0:
                e(f's_setprio {OPT["ldp"]}'); issue(take([(n, w) for w in range(4)], 4)); e('s_setprio 0')
            return
        for k in range(k0, k1):
            b = vBuf + ((n - 4) * 8 + k) * 4
            e(f'ds_write_b128 v{20+n%4}, v[{b}:{b+3}] offset:{(k//2)*8192+(k&1)*1024}')
    L, Dn = lab('free'), lab('freed')
    spin_init(e, 2000000)
    kts(0, 1)
    e(f'{L}:')
    e(f'ds_read_b128 v[24:27], v{vSY} offset:64\ns_waitcnt lgkmcnt(0)\nv_and_b32 v24, v24, v25\nv_and_b32 v26, v26, v27\nv_and_b32 v24, v24, v26')
    e(f'v_readfirstlane_b32 s{sT}, v24\ns_cmp_lg_u32 s{sT}, 0\ns_cbranch_scc1 {Dn}')
    spin_tail(e, L, Dn, 1)
    e(f'{Dn}:')
    kts(1, 1)
    pert(e)
    assert OPT['thr'] <= 16 - OPT['hl'] and OPT['hl'] <= 8
    for n in (4, 5, 6):
        if OPT['ld']: e(f's_waitcnt vmcnt({8*(8-OPT["ld"]-n)})')
        refill(n)
    if lastg:
        e('s_setprio 2'); issue(lastg); e('s_setprio 0')
    e(f's_waitcnt vmcnt({len(lastg)}) lgkmcnt(0)')
    kts(2, 1)
    e('s_barrier')
    kts(3, 1)
    if OPT['tw'] & 1:
        e(f's_lshl_b32 s{sT}, s{sRB2}, 16\nbuffer_load_dword v56, off, s[96:99], s{sT}')
    refill(7, 0, OPT['w1'])
    e('s_barrier')
    kts(5, 1)
    pert(e)
    refill(7, OPT['w1'], 8)
    if lastg: e('s_waitcnt vmcnt(0)')
    refill(8)
    e('s_waitcnt vmcnt(0) lgkmcnt(0)')
    ts(e, 5)
    e('s_barrier')
    ts(e, 6)
    ts_dump(e, 7, 0)
    e('s_endpgm')

ACC = 16; XF = 128; WR = 160; CS = 192; SEL = 208; AX = 212; AW = 216; AS = 220
CSW, L16, L16B, G4, N16, SYV = 224, 225, 226, 227, 228, 229
VO, FV, VBA = 1, 12, 15
VF = G4; sO2 = 20
BR = 128; AB = 244; VA = 248; AB2 = 252; XR = 40
sRH, sCH, sDL, sCNT, sSL = 11, 12, 13, 14, 15
sAU, sAO, sO, sEP, sKV, sKR, TG = 16, 17, 18, 19, 25, 26, 28
sXP, sNC, sC0, sFP, sY0, sY1, sYS = 40, 42, 65, 66, 76, 77, 78

def compute_early(e):
    e(f's_sub_u32 s{sW}, s{sW}, 4\ns_setprio 1\ns_and_b32 s{sRH}, s{sW}, 1\ns_lshr_b32 s{sCH}, s{sW}, 1')
    if OPT['vp'] == 2: pass
    elif OPT['vp']:
        Lq = lab('pc')
        e(f's_getpc_b64 s[44:45]\n{Lq}:')
        e(f's_lshl_b32 s{sT}, s{sLI}, 2\ns_add_u32 s{sT}, s{sT}, s{sW}\ns_lshl_b32 s{sT}, s{sT}, 8\nv_and_b32 v10, 1, v0\nv_lshl_add_u32 v10, v10, 7, s{sT}')
        e(f'v_min_u32 v10, L_code_end-{Lq}-4, v10\nglobal_load_dword v11, v10, s[44:45]')
    else:
        Lq = lab('pc')
        e(f's_getpc_b64 s[44:45]\n{Lq}:')
        e(f's_lshl_b32 s{sT}, s{sLI}, 2\ns_add_u32 s{sT}, s{sT}, s{sW}\ns_lshl_b32 s{sT}, s{sT}, 8\ns_min_u32 s{sT}, s{sT}, L_code_end-{Lq}-196')
        e(f's_add_u32 s44, s44, s{sT}\ns_addc_u32 s45, s45, 0')
    e(f'v_lshlrev_b32 v{L16}, 4, v0\nv_and_b32 v{N16}, 15, v0')
    e(f's_lshl_b32 s{sT}, s{sF}, 3\ns_add_u32 s{sT}, s{sT}, s{sG}\ns_lshl_b32 s{sT}, s{sT}, 2\ns_add_u32 s{sT}, s{sT}, s{sW}')
    e(f's_lshl_b32 s{sT+1}, s{sRB}, 6\ns_add_u32 s{sT+1}, s{sT}, s{sT+1}\ns_lshl_b32 s{sT+1}, s{sT+1}, 11')
    e(f's_mov_b32 s{SX+2}, {2048*1024}\ns_mov_b32 s{SX+3}, 0x20000\ns_mov_b32 s{SB1+2}, {1792*2}\ns_mov_b32 s{SB1+3}, 0x20000')
    e(f's_lshr_b32 s{sT}, s{sG}, 1\ns_mul_i32 s{sT}, s{sT}, 448\ns_and_b32 s{sT+2}, s{sG}, 1')
    e(f's_lshl_b32 s{sC0}, s{sT+2}, 8\ns_add_u32 s{sC0}, s{sC0}, s{sT}\ns_lshl_b32 s{sT+3}, s{sCH}, 5\ns_add_u32 s{sC0}, s{sC0}, s{sT+3}')
    e(f's_lshl_b32 s{sYS}, s{sT+2}, 5\ns_add_u32 s{sYS}, s{sYS}, s{sT}\ns_add_u32 s{sYS}, s{sYS}, 192')
    e(f'v_bfe_u32 v5, v0, 4, 1\nv_xor_b32 v5, s{sRH}, v5\nv_lshl_add_u32 v2, v5, 4, v{N16}\nv_lshrrev_b32 v3, 5, v0')
    e(f'v_lshl_add_u32 v4, v3, 6, v2\nv_add_lshl_u32 v4, v4, s{sC0}, 1')
    e(f's_sub_u32 s{sT}, s{sYS}, s{sC0}\ns_sub_u32 s{sT}, s{sT}, 128\nv_mul_lo_u32 v6, v3, s{sT}\nv_add3_u32 v6, v6, v2, s{sC0}\nv_add_u32 v6, 128, v6\nv_lshlrev_b32 v6, 1, v6')
    e('s_waitcnt lgkmcnt(0)')
    e(f's_mov_b32 s{SX}, s{pX}\ns_mov_b32 s{SX+1}, s{pX+1}')
    for k in range(2): e(f'buffer_load_dwordx4 v[{XF+4*k}:{XF+4*k+3}], v{L16}, s[{SX}:{SX+3}], s{sT+1} offen offset:{k*1024}')
    e(f's_load_dwordx2 s[{sNON}:{sNON+1}], s[{pWS}:{pWS+1}], 0')
    e(f's_mov_b32 s{SB1}, s{pB1}\ns_mov_b32 s{SB1+1}, s{pB1+1}')
    e(f'buffer_load_ushort v8, v4, s[{SB1}:{SB1+3}], 0 offen\nbuffer_load_ushort v9, v6, s[{SB1}:{SB1+3}], 0 offen')
    for k in range(0 if OPT['vp'] else 4): e(f's_load_dword s46, s[44:45], {k*64}')
    if OPT['lay'] != 1: e('s_branch L_compute')

def acc_main(u, rt, jj): return ACC + ((u * 4 + rt) * 2 + jj) * 4
def acc_strip(rt, jj): return ACC + 96 + (rt * 2 + jj) * 4

def compute_common(e):
    ids2(e)
    e(f'v_lshrrev_b32 v{G4}, 4, v0\nv_add_u32 v{L16B}, {YRT}, v{L16}')
    srd(e, SWS, pWS, WS_SIZE); srd(e, SOUT, pOUT, 2048 * 1024)
    e(f's_lshl_b32 s{sT}, s{sCH}, 2\nv_bfe_u32 v2, v0, 1, 3\nv_xor_b32 v2, v{G4}, v2\nv_xor_b32 v2, s{sT}, v2')
    e(f's_lshl_b32 s{sT}, s{sRH}, 13\ns_lshl_b32 s{sT+1}, s{sCH}, 12\ns_add_u32 s{sT}, s{sT}, s{sT+1}')
    e(f'v_lshlrev_b32 v3, 7, v{N16}\nv_add_u32 v3, s{sT}, v3\nv_lshl_add_u32 v{AX}, v2, 4, v3')
    e(f'v_xor_b32 v{AX+1}, 0x1000, v{AX}\nv_xor_b32 v{AX+2}, 64, v{AX}\nv_xor_b32 v{AX+3}, 64, v{AX+1}')
    e(f'v_bfe_u32 v2, v0, 2, 2\nv_lshl_add_u32 v2, v{G4}, 3, v2\ns_lshl_b32 s{sT}, s{sCH}, 5\nv_add_u32 v2, s{sT}, v2')
    e('v_and_b32 v4, 3, v0\nv_cmp_eq_u32 vcc, 0, v4\nv_lshlrev_b32 v4, 3, v4\nv_bfe_u32 v3, v0, 3, 2')
    e(f'v_xor_b32 v7, s{sW}, v3\nv_lshl_add_u32 v7, v7, 5, v4\nv_lshl_add_u32 v7, v2, 7, v7\nv_add_u32 v{AW}, {L_W}, v7')
    e(f'v_xor_b32 v{AW+1}, 32, v{AW}\nv_xor_b32 v{AW+2}, 0x1000, v{AW}\nv_xor_b32 v{AW+3}, 0x1000, v{AW+1}')
    e(f'v_lshl_add_u32 v6, v5, 5, v4\nv_lshl_add_u32 v6, v2, 6, v6\nv_add_u32 v{AS}, {L_S}, v6')
    e(f'v_xor_b32 v{AS+1}, 32, v{AS}\nv_xor_b32 v{AS+2}, 0x800, v{AS}\nv_xor_b32 v{AS+3}, 0x800, v{AS+1}')
    e(f'v_lshrrev_b32 v2, 2, v0\nv_lshl_add_u32 v4, v3, 5, v4\nv_lshl_add_u32 v4, v2, 7, v4\ns_lshl_b32 s{sT}, s{sW}, 13\nv_add_u32 v{VBA}, s{sT}, v4')
    e(f'v_mov_b32 v3, 0x3f803f80\nv_cndmask_b32 v{SEL}, 0, v3, vcc')
    for i in range(1, 4): e(f'v_mov_b32 v{SEL+i}, v{SEL}')
    e(f's_lshl_b32 s{sT}, s{sRB}, 1\ns_add_u32 s{sT}, s{sT}, s{sRH}\ns_mul_i32 s{sT+2}, s{sT}, {8*FPH}\ns_lshl_b32 s{sT}, s{sT}, 1\ns_add_u32 s{sT}, s{sT}, s{sCH}')
    e(f's_xor_b32 s{sT+1}, s{sT}, 1\ns_mul_i32 s{sY0}, s{sT}, {2*YRT}\ns_mul_i32 s{sY1}, s{sT+1}, {2*YRT}')
    e(f's_lshr_b32 s{sT}, s{sG}, 1\ns_mul_i32 s{sT}, s{sT}, {FG}\ns_add_u32 s{sT+2}, s{sT+2}, s{sT}')
    e(f's_and_b32 s{sT}, s{sG}, 1\ns_lshl_b32 s{sT}, s{sT}, 1\ns_add_u32 s{sT}, s{sT}, s{sCH}\ns_lshl_b32 s{sT}, s{sT}, 2\ns_add_u32 s{sT+2}, s{sT+2}, s{sT}')
    e(f's_xor_b32 s{sT}, s{sF}, 1\ns_mul_i32 s{sT}, s{sT}, {FPH}\ns_add_u32 s{sT+2}, s{sT+2}, s{sT}\ns_add_u32 s{sT+2}, s{sT+2}, {WS_YF}')
    e(f's_add_u32 s{sFP}, s{pWS}, s{sT+2}\ns_addc_u32 s{sFP+1}, s{pWS+1}, 0')
    e(f's_mul_i32 s{sT}, s{sRB2}, {8*FPH}\ns_mul_i32 s{sT+1}, s{sW}, {FG}\ns_add_u32 s{sT}, s{sT}, s{sT+1}\ns_add_u32 s{sT}, s{sT}, {WS_YF}')
    e(f's_add_u32 s{sXP}, s{pWS}, s{sT}\ns_addc_u32 s{sXP+1}, s{pWS+1}, 0')
    e(f's_mov_b32 s{sCNT}, 0\ns_mov_b32 s{sSL}, 0\ns_mov_b32 s22, {-2*SLOT}\ns_mov_b32 s23, 0xffff0000')
    e(f's_lshl_b32 s{sT}, s{sRB2}, 2\ns_add_u32 s{sT+1}, s{sT}, s{sW}\ns_lshl_b32 s{sT+1}, s{sT+1}, 14\ns_lshl_b32 s{sT+2}, s{sCB}, 7\ns_add_u32 s{sO}, s{sT+1}, s{sT+2}')
    e(f'v_bfe_u32 v2, v0, 4, 1\nv_lshrrev_b32 v3, 5, v0\nv_lshlrev_b32 v14, 4, v3\nv_lshl_add_u32 v3, v2, 5, v14\nv_lshl_add_u32 v{VO}, v{N16}, 10, v3')
    e(f's_mul_i32 s{sT}, s{sT}, {YRT}\ns_add_u32 s{sT}, s{sT}, {WS_Y}\ns_or_b32 s{sEP}, s2, s{sW}')
    e(f's_mul_i32 s{sT+1}, s{sW}, {7*2048}\ns_add_u32 s{sAU}, s{sT}, s{sT+1}\ns_lshl_b32 s{sT+1}, s{sW}, 12\ns_add_u32 s{sAO}, s{sT}, s{sT+1}\ns_add_u32 s{sAO}, s{sAO}, {28*2048}')
    for j in range(4): e(f's_add_u32 s{sT}, s{sW}, {1+j}\ns_and_b32 s{sT}, s{sT}, 3\ns_mul_i32 s{sT}, s{sT}, {YRT}\nv_add_u32 v{VA+j}, s{sT}, v{L16}')
    for u in (1, 2):
        for rt in range(4):
            for i in range(4): e(f'v_mov_b32 v{acc_main(u, rt, 1)+i}, 0')
    e('s_waitcnt lgkmcnt(0)')
    e(f's_mul_i32 s{sT+4}, s{sNON}, 0x4c957f2d\ns_mul_hi_u32 s{sT+5}, s{sNON}, 0x4c957f2d')
    e(f's_mul_i32 s{sT}, s{sNON+1}, 0x4c957f2d\ns_add_u32 s{sT+5}, s{sT+5}, s{sT}')
    e(f's_mul_i32 s{sT}, s{sNON}, 0x5851f42d\ns_add_u32 s{sT+5}, s{sT+5}, s{sT}')
    e(f's_add_u32 s{sNON}, s{sT+4}, 0xf767814f\ns_addc_u32 s{sNON+1}, s{sT+5}, 0x14057b7e\ns_mov_b32 s{sNC}, s{sNON}\ns_mov_b32 s{sNC+1}, s{sNON}')
    e(f'v_mov_b32 v{FV}, s{sNON}\nv_mov_b32 v{FV+1}, s{sNON+1}\nv_mov_b32 v2, s{sSY}\ns_lshl_b32 s{sT}, s{sW}, 2\nv_add_u32 v{SYV}, s{sT}, v2\nv_mov_b32 v3, 0')
    e(f'ds_write_b64 v2, v[{FV}:{FV+1}]')
    for o in (16, 32, 48, 64): e(f'ds_write_b32 v{SYV}, v3 offset:{o}')
    e('s_waitcnt vmcnt(2)')
    S = 136; R = FV - 2
    for k in range(2):
        for d in range(4):
            w = XF + 4 * k + d
            e(f'v_lshlrev_b32 v2, 16, v{w}\nv_and_b32 v3, s23, v{w}')
            if d == 0: e(f'v_add_f32 v{S+2*k}, v2, v3\nv_mul_f32 v{S+2*k+1}, v2, v2')
            else: e(f'v_add_f32 v{S+2*k}, v{S+2*k}, v2\nv_fmac_f32 v{S+2*k+1}, v2, v2\nv_add_f32 v{S+2*k}, v{S+2*k}, v3')
            e(f'v_fmac_f32 v{S+2*k+1}, v3, v3')
    for i in range(2): e(f'v_permlane32_swap_b32 v{S+i}, v{S+2+i}')
    for i in range(2): e(f'v_add_f32 v{S+i}, v{S+i}, v{S+2+i}')
    for i in range(2): e(f'v_mov_b32 v{S+2+i}, v{S+i}')
    for i in range(2): e(f'v_permlane16_swap_b32 v{S+2+i}, v{S+i}')
    for i in range(2): e(f'v_add_f32 v{S+i}, v{S+i}, v{S+2+i}')
    for ror in (1, 2, 4, 8):
        for i in range(2): e(f'v_add_f32_dpp v{S+i}, v{S+i}, v{S+i} row_ror:{ror} row_mask:0xf bank_mask:0xf')
    e(f'v_mul_f32 v2, {fl(-1/512)}, v{S}\nv_mul_f32 v3, {fl(1/512)}, v{S+1}\nv_fma_f32 v3, -v2, v2, v3\nv_max_f32 v3, 0, v3\nv_add_f32 v3, {fl(1e-5)}, v3')
    e(f'v_rsq_f32 v3, v3\ns_lshl_b32 s{sT}, s{sW}, 5\ns_add_u32 s{sT}, s{sT}, s{sSY}\nv_add_u32 v4, s{sT}, v14\nv_mul_f32 v{R}, {fl(LOG2E)}, v3\nv_mul_f32 v{R+1}, v{R}, v2')
    e(f'v_bfi_b32 v{R}, 1, v{FV}, v{R}\nv_bfi_b32 v{R+1}, 1, v{FV}, v{R+1}')
    e(f's_mov_b32 exec_lo, 1\ns_mov_b32 exec_hi, 1\nds_write_b128 v4, v[{R}:{R+3}] offset:128\ns_mov_b64 exec, -1')
    e(f's_lshl_b32 s{sT+4}, s{sRH}, 8\ns_lshl_b32 s{sT+1}, s{sCH}, 7\ns_add_u32 s{sT+4}, s{sT+4}, s{sT+1}\ns_add_u32 s{sT+4}, s{sT+4}, {L_R}')
    e(f's_lshl_b32 s{sT}, s{sCH}, 9\ns_lshl_b32 s{sT+1}, s{sRH}, 6\ns_add_u32 s{sT}, s{sT}, s{sT+1}\ns_add_u32 s{sT}, s{sT}, {L_CS}')
    e(f'v_lshl_add_u32 v2, v{N16}, 2, s{sT+4}\nv_xor_b32 v3, 128, v2\nv_lshl_add_u32 v4, v{G4}, 4, s{sT}\nv_xor_b32 v5, 64, v4\nv_lshl_add_u32 v{CSW}, v{N16}, 2, s{sT}')

def readB(n):
    b = BR + 32 * (n % 3); hi = GS[n % 4] >= 65536
    return [f'ds_read_b64_tr_b16 v[{b+8*ct+4*s+2*j}:{b+8*ct+4*s+2*j+1}], v{(AB2 if hi else AB)+ct} offset:{GS[n%4]-(GS[2] if hi else 0)+s*4096+j*2048}'
            for ct in range(4) for s in range(2) for j in range(2)]
STEPS = [(n, j) for n in range(7) for j in range(4)] + [(n, j) for j in range(4) for n in (7, 8)]
DA = 6; A0 = 80; A1 = OPT['a1']
CHK = {2: 1, 10: 4, 18: 2, 22: 3}
GATE = lambda u: 0 if u < 8 else 2 if u < 16 else 10 if u < 24 else 18 if u < 28 else 22
ISSUE = {}; _u = A1
for _t in range(36):
    ISSUE[_t] = []
    while _u < 36 and _u - DA <= _t and GATE(_u) <= _t and len(ISSUE[_t]) < 2: ISSUE[_t].append(_u); _u += 1
assert A1 <= 4 and all(t <= u - 3 for t in ISSUE for u in ISSUE[t])
def loadA(t):
    n, j = STEPS[t]
    L = [f's_add_u32 s{sT}, s{sAU}, {UN[n]*2048}'] if n < 7 and j == 0 else []
    for s in range(2):
        a = A0 + 8 * (t % DA) + 4 * s
        so, off = (sT, s * 1024) if n < 7 else (sAO, ((n - 7) * 2 + s) * 1024)
        L.append('s_nop 0' if OPT['p2noa'] else f'buffer_load_dwordx4 v[{a}:{a+3}], v{VA+j}, s[{SWS}:{SWS+3}], s{so} offen offset:{off} sc1')
    return L
def p2_start(e, t0, t1):
    for t in range(t0, t1):
        for l in loadA(t): e(l)
def swap8(a, b, t):
    return [f'v_mov_b32 v{t+i}, v{a+i}' for i in range(4)] + [f'v_mov_b32_dpp v{a+i}, v{b+i} row_ror:8 row_mask:0xf bank_mask:0xc' for i in range(4)] + \
           [f'v_mov_b32_dpp v{b+i}, v{t+i} row_ror:8 row_mask:0xf bank_mask:0x3' for i in range(4)]
def p2_resid(e):
    if OPT['fr']:
        for h in range(2): e(f'buffer_load_dwordx4 v[{XR+4*h}:{XR+4*h+3}], v{VF}, s[{SX}:{SX+3}], s{sO2 if h else sO} offen')
        return
    for h in range(2): e(f'buffer_load_dwordx4 v[{XR+4*h}:{XR+4*h+3}], v{VO}, s[{SX}:{SX+3}], s{sO} offen offset:{h*64}')
def put_flag(e, phase): e(f's_atomic_swap s{sNON}, s[{sFP}:{sFP+1}], {phase*FPH}')
QUAD = {0: 44, 1: 60, 4: 44, 2: 60, 3: 44}
def look(phase): return f's_load_dwordx4 s[{QUAD[phase]}:{QUAD[phase]+3}], s[{sXP}:{sXP+1}], {phase*FPH} glc'
def check(phase):
    L, D, M = lab('chk'), lab('chkd'), lab('chkm'); q = QUAD[phase]
    cmp = [f's_xor_b64 s[{q}:{q+1}], s[{q}:{q+1}], s[{sNC}:{sNC+1}]', f's_xor_b64 s[{q+2}:{q+3}], s[{q+2}:{q+3}], s[{sNC}:{sNC+1}]',
           f's_or_b64 s[{q}:{q+1}], s[{q}:{q+1}], s[{q+2}:{q+3}]']
    c = Emit()
    c(f'{M}:'); spin_init(c); c(f'{L}:'); c(look(phase)); c('s_waitcnt lgkmcnt(0)')
    for l in cmp: c(l)
    c(f's_cbranch_scc0 {D}'); spin_tail(c, L, D)
    COLD.extend(c.lines)
    return cmp + [f's_cbranch_scc1 {M}\n{D}:']
def land_look(r): return f'v_mov_b32 v2, s{sSY}\nds_read_b128 v[{r}:{r+3}], v2 offset:16'
def land_check(e, r):
    L, D, M = lab('land'), lab('landd'), lab('landm')
    cmp = f'v_and_b32 v{r}, v{r}, v{r+1}\nv_and_b32 v{r+2}, v{r+2}, v{r+3}\nv_and_b32 v{r}, v{r}, v{r+2}\nv_readfirstlane_b32 s{sT+5}, v{r}\ns_cmp_eq_u32 s{sT+5}, 0'
    e(cmp + f'\ns_cbranch_scc1 {M}\n{D}:')
    c = Emit()
    c(f'{M}:'); spin_init(c, 2000000); c(f'{L}:'); c(land_look(r)); c('s_waitcnt lgkmcnt(0)'); c(cmp); c(f's_cbranch_scc0 {D}')
    spin_tail(c, L, D, 1)
    COLD.extend(c.lines)
def p2_preread(e):
    for ct in range(4): e(f'v_xor_b32 v{AB+ct}, {32*ct}, v{VBA}\nv_add_u32 v{AB2+ct}, {GS[2]}, v{AB+ct}')
    for n in range(3):
        for l in readB(n): e(l)
    e(f'v_mov_b32 v2, -1\nds_write_b32 v{SYV}, v2 offset:64')
def pair_wait(e, off, reads):
    L, M, Dn = lab('pair'), lab('pairm'), lab('paird')
    spin_init(e, 2000000)
    e(f'{L}:\nds_read_b32 v3, v9 offset:{off}')
    for l in reads: e(l)
    e(f's_waitcnt lgkmcnt({len(reads)})\nv_readfirstlane_b32 s{sT+5}, v3\ns_cmp_eq_u32 s{sT+5}, 0\ns_cbranch_scc1 {M}\n{Dn}:')
    c = Emit(); c(f'{M}:'); spin_tail(c, L, Dn); COLD.extend(c.lines)
def mfma(d, a, b, z=False): return f'v_mfma_f32_16x16x32_bf16 v[{d}:{d+3}], v[{a}:{a+3}], v[{b}:{b+3}], ' + ('0' if z else f'v[{d}:{d+3}]')

def compute_p1(e, F):
    H = 192
    if F:
        CSV = 128; BV = 160; KK = 232; RL = 240; NL = 244; U = 208
        e(f's_lshl_b32 s{sYS}, s{sYS}, 5\ns_add_u32 s{sYS}, s{sYS}, s{sY0}\ns_add_u32 s{sYS}, s{sYS}, {WS_Y}')
        e(f's_lshl_b32 s{sT+2}, s{sC0}, 5\ns_add_u32 s{sT+2}, s{sT+2}, {WS_Y}')
        e(f's_lshl_b32 s{sT}, s{sW}, 9\ns_add_u32 s{sT}, s{sT}, {L_BT}\nv_lshl_add_u32 v7, v0, 2, s{sT}\nv_lshl_add_u32 v6, v{G4}, 4, s{sT}')
        e('s_waitcnt vmcnt(0)')
        e(f'v_lshlrev_b32 v8, 16, v8\nv_lshlrev_b32 v9, 16, v9\nv_mul_f32 v8, {fl(LOG2E)}, v8\nv_mul_f32 v9, {fl(LOG2E)}, v9')
        e('ds_write_b32 v7, v8\nds_write_b32 v7, v9 offset:256')
        e(f'v_xor_b32 v7, 0x200, v4\nv_xor_b32 v14, 0x200, v5\nv_mov_b32 v{KK}, {fl(-2/LOG2E)}\nv_mov_b32 v{KK+1}, {fl(1/LOG2E)}')
    else:
        NVV = 128; RV = 144; CK = 160; CSQ = 164; RL = 172; NL = 176; D0 = 184; PV = 208; EP = 230; PK = 232; D1 = 240; ONE = 252; PQ = 48; U = 112
        e(f's_lshl_b32 s{sT}, s{sG}, 2\ns_add_u32 s{sT}, s{sT}, s{sW}\ns_mul_i32 s{sKV}, s{sT}, {16*1152}\ns_add_u32 s{sKV}, s{sKV}, {WS_KV}')
        e(f's_mul_i32 s{sKR}, s{sRB}, 1152\ns_add_u32 s{sKR}, s{sKR}, s{sKV}\ns_and_b32 s{sT+2}, s{sNON}, 1')
        e(f's_and_b32 s{sT}, s{sRB}, {8 if OPT["go"] else 0}\ns_mul_i32 s{sT}, s{sT}, 1152\ns_add_u32 s32, s{sKV}, s{sT}\ns_sub_u32 s33, s{sKV}, s{sT}')
        for i in range(4): e(f's_lshr_b64 s[{sT}:{sT+1}], s[{sNON}:{sNON+1}], {12*i}\ns_and_b32 s{TG+i}, s{sT}, 0xffe\ns_or_b32 s{TG+i}, s{TG+i}, s{sT+2}')
        e(f's_lshl_b32 s{sT+2}, s{sG}, 1\ns_add_u32 s{sT+2}, s{sT+2}, s{sCH}\ns_lshl_b32 s{sT+2}, s{sT+2}, 10\ns_add_u32 s{sT+2}, s{sT+2}, {WS_Y+56*1024}')
        e(f'v_lshl_add_u32 v6, v{G4}, 4, s{sT+4}\nv_xor_b32 v7, 128, v6\nv_xor_b32 v14, 64, v{CSW}')
        e(f'v_mov_b32 v{EP}, {fl(1e-6*LOG2E)}\nv_mov_b32 v{EP+1}, {fl(1/LOG2E)}')
        for i in range(4): e(f'v_mov_b32 v{ONE+i}, 0x3f803f80')
        e(f's_waitcnt vmcnt(0)\nv_lshlrev_b32 v9, 4, v{G4}\nv_lshl_add_u32 v8, v{N16}, 6, v9\nv_cmp_gt_u32 vcc, 2, v{N16}\nv_mov_b32 v10, 0x7ff00000')
        e(f'v_mul_u32_u24 v11, 1152, v{N16}\nv_add_u32 v11, v11, v9\nv_cndmask_b32 v8, v10, v8, vcc\nv_mov_b32 v10, 0xfff\nv_xor_b32 v9, 4, v{SYV}')
    e(f's_add_u32 s{sY0}, s{sY0}, s{sT+2}\ns_add_u32 s{sY1}, s{sY1}, s{sT+2}')
    if F:
        for u in (1, 2): e(f's_add_u32 s{sT+2*u-2}, s{sY0}, {u*2048}\ns_add_u32 s{sT+2*u-1}, s{sY1}, {u*2048}')
    if OPT['fr'] or OPT['fo']:
        e(f'v_and_b32 v{VF}, 8, v0\nv_mul_u32_u24 v{VF}, {1024-8}, v{VF}\nv_sub_u32 v{VF}, v{VO}, v{VF}\ns_add_u32 s{sO2}, s{sO}, 8192')
    e('s_waitcnt lgkmcnt(0)')

    seq = [(0, 0), (1, 0), (2, 0), (3, 0), (3, 1), (0, 1), (1, 1), (2, 1)] if F else [(0, 0), (1, 0), (2, 0), (0, 1), (1, 1), (2, 1)]
    NP = len(seq); RING = 4 if F else 3
    def wreads(p):
        u, jj = seq[p]; b = WR + 8 * (p % RING)
        if u < 3: return [f'ds_read_b64_tr_b16 v[{b+4*s+2*j}:{b+4*s+2*j+1}], v{AW+2*s+jj} offset:{u*8192+j*512}' for s in range(2) for j in range(2)]
        return [f'ds_read_b64_tr_b16 v[{b+4*s+2*j}:{b+4*s+2*j+1}], v{AS+2*s+jj} offset:{j*256}' for s in range(2) for j in range(2)]
    def xreads(rt): return [f'ds_read_b128 v[{XF+8*rt+4*s}:{XF+8*rt+4*s+3}], v{AX+2*s+(rt>>1)} offset:{(rt&1)*2048}' for s in range(2)]
    def mfmas(p, first):
        u, jj = seq[p]; b = WR + 8 * (p % RING)
        m = []
        for rt in range(4 if u < 3 else 2):
            d = acc_main(u, rt, jj) if u < 3 else acc_strip(rt, jj)
            for s in range(2):
                w, x = b + 4 * s, XF + 8 * rt + 4 * s; z = first and s == 0
                m.append((rt, mfma(d, w, x, z) if (F or u == 0) else mfma(d, x, w, z)))
        if jj == 0 and first: m = [(None, mfma(CS + 4 * u, SEL, b + 4 * s, s == 0)) for s in range(2 if u < 3 else 1)] + m
        return m
    tokW = {}; tokX = {}; BP = OPT['bp']
    def spread(m, ex, p=None):
        seen = set(); k = 0
        for i, (rt, x) in enumerate(m):
            if p == 0 and rt is not None and rt not in seen: e.wait_lg(tokX[rt]); seen.add(rt)
            e(x)
            n = -(-(len(ex) - k) // (len(m) - i))
            for l in ex[k:k + n]:
                e(l[0] if isinstance(l, tuple) else l)
                if isinstance(l, tuple): tokW[l[1]] = e.ltok()
            k += n
    def head(first):
        for p in range(NP - 2):
            ex = wreads(p + 2); ex[-1] = (ex[-1], p + 2)
            if first and 1 <= p <= (4 if F else 3): ex = [f'ds_write_b32 v{CSW}, v{CS+4*(p-1)} offset:{(p-1)*128}'] + ex
            if p == 0: ex += [f's_add_u32 s{sSL}, s{sSL}, 1', f's_cmp_eq_u32 s{sSL}, 3', f's_cselect_b32 s{sDL}, s22, {SLOT}', f's_cselect_b32 s{sSL}, 0, s{sSL}']
            if p == 1: ex += [f'v_add_u32 v{a}, s{sDL}, v{a}' for a in (AW, AW + 2, AX, AX + 1)]
            if p == 2:
                ex += [f'v_add_u32 v{a}, s{sDL}, v{a}' for a in (AX + 2, AX + 3)]
                if not first: ex += [f's_add_u32 s{sCNT}, s{sCNT}, 1', f's_cmp_lt_u32 s{sCNT}, 7']
            if p == NP - 3 and F: ex += [f'v_add_u32 v{a}, s{sDL}, v{a}' for a in (AS, AS + 1, AS + 2, AS + 3)]
            e.wait_lg(tokW[p])
            spread(mfmas(p, first), ex, p)
        if BP:
            e.wait_lg(tokW[NP - 2])
            for rt, x in mfmas(NP - 2, False)[:BP]: e(x)
    def last(even, odd):
        for i, (rt, x) in enumerate(mfmas(NP - 1, False)):
            e(x)
            for l in (odd if i & 1 else even)(i // 2): e(l)
            if i == 6: tokW[1] = e.ltok()
            if i & 1: tokX[i // 2] = e.ltok()
    pert(e)
    if DIAG and OPT['p2ts'] == 0: e(f's_mov_b32 s{sTS+14}, 0')
    ts(e, 1, 0)
    e('s_barrier')
    ts(e, 2, 0)
    for l in wreads(0): e(l)
    tokW[0] = e.ltok()
    for rt in range(4):
        e(wreads(1)[rt])
        if rt == 3: tokW[1] = e.ltok()
        for l in xreads(rt): e(l)
        tokX[rt] = e.ltok()
    head(True)
    LK = lab('kloop')
    e(f'{LK}:\ns_waitcnt lgkmcnt(0)\ns_barrier')
    ex = wreads(0); ex[-1] = (ex[-1], 0)
    spread(mfmas(NP - 2, False)[BP:], ex + [f'v_add_u32 v{a}, s{sDL}, v{a}' for a in (AW + 1, AW + 3)])
    last(lambda k: [wreads(1)[k]], xreads)
    head(False)
    e(f's_cbranch_scc1 {LK}')
    e('s_waitcnt lgkmcnt(0)\ns_barrier')
    rowt = lambda dst, o: [f'ds_read_b32 v{dst+rt}, v{2+(rt>>1)} offset:{(rt&1)*64+o}' for rt in range(4)]
    if F:
        bvr = lambda t: f'ds_read_b128 v[{BV+4*t}:{BV+4*t+3}], v6 offset:{t*64}'
        spread(mfmas(NP - 2, False)[BP:], rowt(NL, 512) + rowt(RL, 0) + [bvr(t) for t in range(4)])
        last(lambda k: [['ds_read_b128 v[252:255], v14 offset:384'], ['ds_read_b128 v[8:11], v7 offset:384'], [bvr(4)], [bvr(5)]][k],
             lambda u: [f'ds_read_b128 v[{CSV+8*u+4*jj}:{CSV+8*u+4*jj+3}], v{4+jj} offset:{u*128}' for jj in range(2)])
        e(bvr(6)); e(bvr(7))
        ts(e, 3)
        held = []; gi = -1
        for u in range(4):
            if u == 0: e.wait_lg(tokX[0])
            if u == 1:
                e('s_waitcnt lgkmcnt(0)')
                for i in (0, 2):
                    e(f'v_pk_add_f32 v[{CSV+24+i}:{CSV+25+i}], v[{CSV+24+i}:{CSV+25+i}], v[{8+i}:{9+i}]')
                    e(f'v_pk_add_f32 v[{CSV+28+i}:{CSV+29+i}], v[{CSV+28+i}:{CSV+29+i}], v[{252+i}:{253+i}]')
            for p in range(2 if u < 3 else 1):
                a = acc_main(u, 2 * p, 0) if u < 3 else acc_strip(0, 0)
                L = []
                for i in range(0, 16, 2):
                    o = i >> 3; c = 8 * u + (i & 7)
                    L.append(f'v_pk_fma_f32 v[{H+i}:{H+i+1}], v[{CSV+c}:{CSV+c+1}], v[{NL+2*p}:{NL+2*p+1}], v[{BV+c}:{BV+c+1}] op_sel:[0,{o},0] op_sel_hi:[1,{o},1]')
                for i in range(0, 16, 2):
                    o = i >> 3
                    L.append(f'v_pk_fma_f32 v[{H+i}:{H+i+1}], v[{a+i}:{a+i+1}], v[{RL+2*p}:{RL+2*p+1}], v[{H+i}:{H+i+1}] op_sel:[0,{o},0] op_sel_hi:[1,{o},1]')
                for i in range(16): L.append(f'v_exp_f32 v{U+i}, v{H+i}')
                for i in range(0, 16, 2): L.append(f'v_pk_add_f32 v[{U+i}:{U+i+1}], v[{U+i}:{U+i+1}], 1.0 op_sel_hi:[1,0]')
                for i in range(0, 16, 2): L.append(f'v_pk_fma_f32 v[{U+i}:{U+i+1}], v[{U+i}:{U+i+1}], v[{U+i}:{U+i+1}], 1.0 op_sel_hi:[1,1,0]')
                for i in range(16): L.append(f'v_rcp_f32 v{U+i}, v{U+i}' if i >= OPT['ecut'] else 's_setprio 1')
                for i in range(0, 16, 2): L.append(f'v_pk_fma_f32 v[{U+i}:{U+i+1}], v[{U+i}:{U+i+1}], v[{KK}:{KK+1}], v[{KK}:{KK+1}] op_sel:[0,0,1] op_sel_hi:[1,0,1]')
                for i in range(0, 16, 2): L.append(f'v_pk_mul_f32 v[{U+i}:{U+i+1}], v[{U+i}:{U+i+1}], v[{H+i}:{H+i+1}]')
                for i in range(8): L.append(f'v_cvt_pk_bf16_f32 v{a+i}, v{U+2*i}, v{U+2*i+1}')
                gi += 1
                pert(e)
                for i, l in enumerate(L):
                    at = gi * 100 + i
                    if at == OPT['xpos']: ts(e, 1, 2); e.wait_vm(tX[0]); put_flag(e, 0); ts(e, 2, 2); p2_resid(e); done.add(0)
                    if at == OPT['xpos1'] - 30: e(land_look(4)); done.add(1)
                    if at == OPT['xpos1']:
                        ts(e, 5, 2); e(f's_waitcnt vmcnt({e.vm - tX[1]}) lgkmcnt(0)'); put_flag(e, 1); land_check(e, 4); ts(e, 6, 2); done.add(2)
                    if at == OPT['lpos']: e(look(0)); done.add(3)
                    e(l)
                so = (sY1 if p else sY0) if u == 0 else sT + 2 * u - 2 + p if u < 3 else sYS
                for k in range(2): held.append(f'buffer_store_dwordx4 v[{a+4*k}:{a+4*k+3}], v{L16B if k else L16}, s[{SWS}:{SWS+3}], s{so} offen sc1')
                if gi == 0: tX = {}; done = set()
                if u == 3:
                    assert done == {0, 1, 2, 3}
                    ts(e, 7, 2)
                    if OPT['a0']:
                        e('s_waitcnt lgkmcnt(0)')
                        for l in check(0): e(l)
                        p2_start(e, 0, OPT['a0'])
                    p2_preread(e)
                    e(f's_waitcnt vmcnt({e.vm - tX[2]}) lgkmcnt(0)'); put_flag(e, 4)
                    if not OPT['a0']:
                        for l in check(0): e(l)
                    ts(e, 1, 1)
                    e(look(1)); p2_start(e, OPT['a0'], A1)
                if p == 1 or u == 3:
                    for l in held: e(l)
                    held = []; tX[u] = e.vtok()
        ts(e, 4)
    else:
        spread(mfmas(NP - 2, False)[BP:], [f'ds_read_b32 v{CK+2*k+jj}, v{14 if jj else CSW} offset:{128+128*k}' for k in range(2) for jj in range(2)])
        last(lambda k: [], lambda k: [f'ds_read_b128 v[{NVV+8*k+4*i}:{NVV+8*k+4*i+3}], v{6+(k&1)} offset:{i*64+(512 if k < 2 else 0)}' for i in range(2)])
        for l in [f'ds_read_b128 v[{CSQ+4*jj}:{CSQ+4*jj+3}], v{4+jj}' for jj in range(2)] + rowt(RL, 0) + rowt(NL, 512): e(l)
        e(f's_lshl_b32 s{sT}, s{sW}, 11\ns_add_u32 s{sT}, s{sT}, {L_KX}\nv_add_u32 v6, s{sT}, v{L16}\nv_xor_b32 v7, 0x800, v6')
        ts(e, 3)
        def phi_tail(dst):
            for i in range(16): e(f'v_exp_f32_e64 v{U+i}, v{H+i} clamp')
            for i in range(16): e(f'v_max_f32 v{H+i}, v{EP}, v{H+i}')
            for i in range(0, 16, 2): e(f'v_pk_fma_f32 v[{H+i}:{H+i+1}], v[{H+i}:{H+i+1}], v[{EP}:{EP+1}], v[{U+i}:{U+i+1}] op_sel:[0,1,0] op_sel_hi:[1,1,1]')
            for i in range(0, 16, 2): e(f'v_cvt_pk_bf16_f32 v{dst+(i>>1)}, v{H+i}, v{H+i+1}')
        for h in (1, 0):
            ak = lambda i: acc_main(1, i >> 2, h) + (i & 3); av = lambda i: acc_main(2, i >> 2, h) + (i & 3)
            if h: e.wait_lg(tokX[1])
            for i in range(0, 16, 2): e(f'v_pk_fma_f32 v[{H+i}:{H+i+1}], v[{NVV+i}:{NVV+i+1}], v[{CK}:{CK+1}], v[{EP}:{EP+1}] op_sel:[0,{h},0] op_sel_hi:[1,{h},0]')
            if h: e.wait_lg(tokX[3])
            for i in range(0, 16, 2): e(f'v_pk_fma_f32 v[{H+i}:{H+i+1}], v[{ak(i)}:{ak(i)+1}], v[{RV+i}:{RV+i+1}], v[{H+i}:{H+i+1}]')
            pert(e)
            if not h: e(f'ds_write_b128 v6, v[{D1}:{D1+3}]\nds_write_b128 v6, v[{D1+4}:{D1+7}] offset:1024\nds_write_b32 v{SYV}, v{ONE} offset:32')
            phi_tail(PK)
            for i in range(0, 16, 2): e(f'v_pk_mul_f32 v[{H+i}:{H+i+1}], v[{NVV+i}:{NVV+i+1}], v[{CK+2}:{CK+3}] op_sel:[0,{h}] op_sel_hi:[1,{h}]')
            for i in range(0, 16, 2): e(f'v_pk_fma_f32 v[{H+i}:{H+i+1}], v[{av(i)}:{av(i)+1}], v[{RV+i}:{RV+i+1}], v[{H+i}:{H+i+1}]')
            for i in range(0, 16, 2): e(f'v_cvt_pk_bf16_f32 v{PV+(i>>1)}, v{H+i}, v{H+i+1}')
            d = D1 if h else D0
            for p in range(2): e(mfma(d + 4, PK + 4 * p, ONE, p == 0))
            for p in range(2): e(mfma(d, PK + 4 * p, PV + 4 * p, p == 0))
        pair_wait(e, 32, [f'ds_read_b128 v[{U}:{U+3}], v7', f'ds_read_b128 v[{U+4}:{U+7}], v7 offset:1024'])
        for k in range(2):
            e(f's_waitcnt lgkmcnt({1-k})')
            for i in range(4 * k, 4 * k + 4): e(f'v_add_f32 v{D0+i}, v{U+i}, v{D0+i}')
            for i in range(4 * k, 4 * k + 4): e(f'v_add_u32 v{D0+i}, 0x800, v{D0+i}')
            for i in range(4 * k, 4 * k + 4): e(f'v_bfi_b32 v{D0+i}, v10, s{TG+(i&3)}, v{D0+i}')
            if k == 0: e(f'buffer_store_dwordx4 v[{D0}:{D0+3}], v{L16}, s[{SWS}:{SWS+3}], s{sKR} offen sc1')
            else: e(f'buffer_store_dwordx4 v[{D0+4}:{D0+7}], v8, s[{SWS}:{SWS+3}], s{sKR} offen offset:1024 sc1')
        ts(e, 4)
        for p in range(2):
            a = acc_main(0, 2 * p, 0)
            if p: e(land_look(AB))
            for i in range(0, 16, 2):
                o = i >> 3; c = i & 7
                e(f'v_pk_fma_f32 v[{H+i}:{H+i+1}], v[{CSQ+c}:{CSQ+c+1}], v[{NL+2*p}:{NL+2*p+1}], v[{EP}:{EP+1}] op_sel:[0,{o},0] op_sel_hi:[1,{o},0]')
            for i in range(0, 16, 2):
                o = i >> 3
                e(f'v_pk_fma_f32 v[{H+i}:{H+i+1}], v[{a+i}:{a+i+1}], v[{RL+2*p}:{RL+2*p+1}], v[{H+i}:{H+i+1}] op_sel:[0,{o},0] op_sel_hi:[1,{o},1]')
            phi_tail(PQ + 8 * p)
        Z = 232; G = 64; KF = 236
        p2_resid(e)
        e('s_waitcnt lgkmcnt(0)')
        land_check(e, AB)
        p2_preread(e)
        e(f's_lshl_b32 s{sT}, s{sW}, 10\ns_add_u32 s{sT}, s{sT}, {L_KF}\nv_add_u32 v6, s{sT}, v{L16}\nv_xor_b32 v7, 0x400, v6')
        L, M, Fin = lab('gather'), lab('gretry'), lab('gdone')
        spin_init(e)
        e(f'{L}:')
        ts(e, 5, 0)
        for r in range(16):
            if r % 4 == 0: e(f's_add_u32 s{sT+1}, s{32 + (r >> 3)}, {r*1152}')
            e(f'buffer_load_dwordx4 v[{G+4*r}:{G+4*r+3}], v{L16}, s[{SWS}:{SWS+3}], s{sT+1} offen offset:{(r&3)*1152} sc1')
        e(f'buffer_load_dwordx4 v[{Z}:{Z+3}], v11, s[{SWS}:{SWS+3}], s{sKV} offen offset:1024 sc1\nv_mov_b32 v3, 0')
        for r in range(17):
            b = G + 4 * r if r < 16 else Z
            e(f's_waitcnt vmcnt({16-r})')
            if r == 8: e(look(0))
            for i in range(4): e(f'v_xor_b32 v{b+i}, s{TG+i}, v{b+i}')
            e(f'v_or3_b32 v3, v3, v{b}, v{b+1}\nv_or3_b32 v3, v3, v{b+2}, v{b+3}')
            if 0 < r < 16:
                for i in (0, 2): e(f'v_pk_add_f32 v[{G+i}:{G+i+1}], v[{G+i}:{G+i+1}], v[{b+i}:{b+i+1}]')
        e('v_and_b32 v3, v10, v3\nv_cmp_ne_u32 vcc, 0, v3')
        for ror in (1, 2, 4, 8):
            for i in range(4): e(f'v_add_f32_dpp v{Z+i}, v{Z+i}, v{Z+i} row_ror:{ror} row_mask:0xf bank_mask:0xf')
        e(f's_cmp_lg_u64 vcc, 0\ns_cbranch_scc1 {M}\n{Fin}:')
        c = Emit(); c(f'{M}:\ns_waitcnt lgkmcnt(0)')
        if DIAG and OPT['p2ts'] == 0: c(f's_add_u32 s{sTS+14}, s{sTS+14}, 1')
        spin_tail(c, L, Fin, 1); COLD.extend(c.lines)
        e(f'v_cvt_pk_bf16_f32 v{KF}, v{G}, v{G+1}\nv_cvt_pk_bf16_f32 v{KF+1}, v{G+2}, v{G+3}')
        e(f'v_cvt_pk_bf16_f32 v{KF+2}, v{Z}, v{Z+1}\nv_cvt_pk_bf16_f32 v{KF+3}, v{Z+2}, v{Z+3}')
        e(f'ds_write_b128 v6, v[{KF}:{KF+3}]\nds_write_b32 v{SYV}, v2 offset:48\ns_waitcnt lgkmcnt(0)')
        for l in check(0): e(l)
        ts(e, 1, 1)
        p2_start(e, 0, A1)
        ODR = (16, 24, 64, 72)
        def o_head(h):
            for rt in range(4):
                d = ODR[rt]; q = PQ + 4 * rt + 2 * h
                e(f'v_mfma_f32_16x16x16_bf16 v[{d+4}:{d+7}], v[{KF+4*h+2}:{KF+4*h+3}], v[{q}:{q+1}], 0')
            for rt in range(4):
                d = ODR[rt]; q = PQ + 4 * rt + 2 * h
                e(f'v_mfma_f32_16x16x16_bf16 v[{d}:{d+3}], v[{KF+4*h}:{KF+4*h+1}], v[{q}:{q+1}], 0')
            for d in ODR: e(f'v_fmamk_f32 v{d+4}, v{d+4}, {fl(LOG2E)}, v{EP}')
            for d in ODR: e(f'v_rcp_f32 v{d+4}, v{d+4}')
            for d in ODR:
                for i in (0, 2): e(f'v_pk_mul_f32 v[{d+i}:{d+i+1}], v[{d+i}:{d+i+1}], v[{d+4}:{d+5}] op_sel_hi:[1,0]')
            for rt in range(4):
                for i in range(2): e(f'v_cvt_pk_bf16_f32 v{PQ+4*rt+2*h+i}, v{ODR[rt]+2*i}, v{ODR[rt]+2*i+1}')
                if h: e(f'buffer_store_dwordx4 v[{PQ+4*rt}:{PQ+4*rt+3}], v{L16B if rt&1 else L16}, s[{SWS}:{SWS+3}], s{sY1 if rt>>1 else sY0} offen sc1')
        pert(e)
        o_head(0)
        pair_wait(e, 48, [f'ds_read_b128 v[{KF+4}:{KF+7}], v7'])
        e('s_waitcnt lgkmcnt(0)')
        e(look(1))
        o_head(1)
        ts(e, 6, 0)

def compute_p2(e):
    ts(e, 2, 1)
    nA = 0 if OPT['p2noa'] else 2
    e.vm = A1 * nA + 2
    tokA = {t: (t + 1) * nA for t in range(A1)}
    RD = {}; tokB = {}
    for n, (t0, k) in {3: (4, 4), 4: (10, 8), 5: (12, 4), 6: (18, 8), 7: (22, 8), 8: (24, 6)}.items():
        r = readB(n)
        for i in range(0, 16, k): RD[t0 + i // k] = (n, r[i:i + k])
    RED = (0, 16384, 0)
    OW = ACC + 48
    for t in range(36):
        n, j = STEPS[t]
        if t in (0, 5, 11, 20, 30, 34): pert(e)
        w = f's_waitcnt vmcnt({e.vm - tokA[t]})'
        ex = []
        if t in CHK:
            e(w + ' lgkmcnt(0)'); ex = check(CHK[t])
            if t == 22:
                Le, Lb = lab('epoch'), lab('epochd')
                ex += [f's_cmp_eq_u32 s{sEP}, 0', f's_cbranch_scc1 {Le}\n{Lb}:']
                COLD.extend([f'{Le}:', '    s_mov_b64 exec, 1', f'    buffer_store_dwordx2 v[{FV}:{FV+1}], off, s[{SWS}:{SWS+3}], 0 sc1', '    s_mov_b64 exec, -1', f'    s_branch {Lb}'])
        elif t == 13: e(w + f' lgkmcnt({e.lg - tokB[4]})')
        elif j == 0 and n >= 3: e(w + f' lgkmcnt({min(15, e.lg - tokB[n])})')
        else: e(w)
        if t == 0:
            if OPT['fr']:
                for l in swap8(XR, XR + 4, 32): e(l)
            for h in range(2):
                for i in range(2): e(f'v_permlane16_swap_b32 v{XR+4*h+i}, v{XR+4*h+2+i}')
            for i in range(8): ex += [f'v_lshlrev_b32 v{OW+2*i}, 16, v{XR+i}', f'v_and_b32 v{OW+2*i+1}, s23, v{XR+i}']
            ts(e, 8)
        if t == A1: put_flag(e, 2)
        if t == 2: ts(e, 6, 1)
        if t == 10: ts(e, 7, 1)
        if t in (10, 13, 22): e('s_barrier')
        if t in (4, 10, 16, 22, 28): ts(e, {4: 1, 10: 2, 16: 5, 22: 6, 28: 7}[t], 3)
        if t in RD: ex += RD[t][1]; tokB[RD[t][0]] = e.lg + len(RD[t][1])
        for o, ph in (('ly', 4), ('ls', 2), ('lo', 3)):
            if t == OPT[o]: ex.append(look(ph))
        if t == 27:
            for jj in range(3): ex += [f's_add_u32 s{sT+1}, s{sW}, {1+jj}', f's_and_b32 s{sT+1}, s{sT+1}, 3', f's_lshl_b32 s{sT+1}, s{sT+1}, 12', f'v_add_u32 v{2+jj}, s{sT+1}, v{L16}']
        if t == 28: ex += [f'v_add_u32 v4, {SCR}, v4', f's_lshl_b32 s{sT+1}, s{sW}, 12', f'v_add_u32 v5, s{sT+1}, v{L16}', f'v_add_u32 v6, {SCR}, v5']
        if t >= 30:
            jj = (t - 30) // 2
            ex += ['s_nop 0'] * 2 * (1 - t % 2) + [f'ds_write_b128 v{2+jj}, v[{ACC+16*jj+4*q}:{ACC+16*jj+4*q+3}] offset:{RED[jj]+q*1024}' for q in ((0, 1) if t % 2 == 0 else (2, 3))]
        la = []
        for u in ISSUE[t]:
            L = loadA(u)
            if u - DA == t:
                if len(L) == 3: ex.append(L.pop(0))
                la = L
            else: ex += L + [('tok', u)]
        k = 0
        for i in range(8):
            ct, s = i >> 1, i & 1
            e(mfma(ACC + 16 * j + 4 * ct, BR + 32 * (n % 3) + 8 * ct + 4 * s, A0 + 8 * (t % DA) + 4 * s, n == 0 and s == 0 and j < 3))
            lim = 6 if la else 8
            if i < lim:
                nx = -(-(len(ex) - k) // (lim - i))
                for l in ex[k:k + nx]:
                    if isinstance(l, tuple): tokA[l[1]] = e.vtok()
                    else: e(l)
                k += nx
            else: e(la[i - 6])
        if la: tokA[t + DA] = e.vtok()
    assert 0 <= OPT['ly'] < 10 and 2 < OPT['ls'] < 18 and 10 < OPT['lo'] < 22
    ts(e, 9)
    e('s_waitcnt lgkmcnt(0)\ns_barrier')
    RB = 128
    for q in range(4):
        for jj in range(3): e(f'ds_read_b128 v[{RB+12*q+4*jj}:{RB+12*q+4*jj+3}], v{5 if jj < 2 else 6} offset:{RED[jj]+q*1024}')
    for q in range(4):
        e(f's_waitcnt lgkmcnt({9-3*q})')
        for i in (0, 2):
            r = RB + 12 * q + i; o = OW + 4 * q + i
            e(f'v_pk_add_f32 v[{o}:{o+1}], v[{o}:{o+1}], v[{r}:{r+1}]\nv_pk_add_f32 v[{r+4}:{r+5}], v[{r+4}:{r+5}], v[{r+8}:{r+9}]')
        for i in (0, 2):
            r = RB + 12 * q + i; o = OW + 4 * q + i
            e(f'v_pk_add_f32 v[{o}:{o+1}], v[{o}:{o+1}], v[{r+4}:{r+5}]')
        for i in (0, 2): e(f'v_cvt_pk_bf16_f32 v{80+2*q+i//2}, v{OW+4*q+i}, v{OW+4*q+i+1}')
        if q & 1:
            h = q >> 1
            for i in range(2): e(f'v_permlane16_swap_b32 v{80+4*h+i}, v{80+4*h+2+i}')
            if not OPT['fo']: e(f'buffer_store_dwordx4 v[{80+4*h}:{83+4*h}], v{VO}, s[{SOUT}:{SOUT+3}], s{sO} offen offset:{h*64} nt')
    if OPT['fo']:
        for l in swap8(80, 84, 88): e(l)
        for h in range(2): e(f'buffer_store_dwordx4 v[{80+4*h}:{83+4*h}], v{VF}, s[{SOUT}:{SOUT+3}], s{sO2 if h else sO} offen nt')
    if DIAG: e('s_waitcnt vmcnt(0)')
    ts(e, 10)
    ts_dump(e, 11, 4)
    e('s_endpgm')

def idg(e):
    if OPT['mix']: e(f's_lshr_b32 s{sT}, s2, {OPT["mix"]}\ns_and_b32 s{sT}, s{sT}, 16\ns_xor_b32 s2, s2, s{sT}')
    e(f's_lshr_b32 s{sLI}, s2, 3\ns_and_b32 s{sG}, s2, 3\ns_lshl_b32 s{sG}, s{sG}, 1\ns_and_b32 s{sT}, s{sLI}, 1\ns_add_u32 s{sG}, s{sG}, s{sT}\ns_bfe_u32 s{sF}, s2, 0x10004')

def ids2(e):
    e(f's_and_b32 s{sRB2}, s2, 7\ns_lshl_b32 s{sRB2}, s{sRB2}, 2\ns_lshr_b32 s{sT}, s2, 6\ns_add_u32 s{sRB2}, s{sRB2}, s{sT}')
    tabs = []
    for ab in ((0, 1), (2, 4), (5, 6), (0, 4)):
        rest = [c for c in range(8) if c not in (3, 7) + ab]
        tabs.append(sum(c << (4 * i) for i, c in enumerate([3, ab[0], rest[0], rest[1], 7, ab[1], rest[2], rest[3]])))
    e(f's_mov_b32 s{sT+1}, {tabs[0]}')
    for k in (1, 2, 3): e(f's_cmp_eq_u32 s{sT}, {k}\ns_cselect_b32 s{sT+1}, {tabs[k]}, s{sT+1}')
    e(f's_and_b32 s{sCB}, s{sLI}, 7\ns_lshl_b32 s{sCB}, s{sCB}, 2\ns_lshr_b32 s{sCB}, s{sT+1}, s{sCB}\ns_and_b32 s{sCB}, s{sCB}, 7')
    e(f's_lshl_b32 s{sSY}, s{sF}, 11\ns_add_u32 s{sSY}, s{sSY}, {L_SY}')

def main():
    e = Emit()
    e('s_load_dwordx16 s[16:31], s[0:1], 0\ns_load_dwordx2 s[34:35], s[0:1], 72')
    e('s_cmp_ge_u32 s2, 256\ns_cbranch_scc1 L_end')
    ts(e, 0)
    if OPT['ep']:
        e(f's_getpc_b64 s[44:45]\nv_lshlrev_b32 v10, 7, v0\nv_cmp_gt_u32 vcc, {OPT["ep"]}, v0\ns_and_saveexec_b64 s[46:47], vcc\ns_cbranch_execz L_ep')
        e('global_load_dword v57, v10, s[44:45] offset:64\nL_ep:\ns_mov_b64 exec, s[46:47]')
    if OPT['vp'] == 2: e('v_lshrrev_b32 v10, 5, v0')
    e(f'v_readfirstlane_b32 s{sW}, v0\nv_and_b32 v0, 63, v0')
    e(f's_bfe_u32 s{sT+1}, s2, 0x10002\ns_lshl_b32 s{sRB}, s{sT+1}, 3\ns_lshr_b32 s{sT}, s2, 5\ns_add_u32 s{sRB}, s{sRB}, s{sT}')
    e(f's_add_u32 s{sT}, s{sT}, s2\ns_and_b32 s{sT}, s{sT}, 3\ns_lshl_b32 s{sT}, s{sT}, 1\ns_add_u32 s{sKC}, s{sT}, s{sT+1}')
    if OPT['lay'] != 2: idg(e)
    e(f's_lshr_b32 s{sW}, s{sW}, 6')
    if OPT['kaf']: e(f's_sub_u32 s{sKC}, s{sKC}, s{sF}\ns_and_b32 s{sKC}, s{sKC}, 7')
    if OPT['lay']:
        e(f's_cmp_ge_u32 s{sW}, 4\ns_cbranch_scc1 L_early')
        helper(e)
        k = e.lines.index('L_split:'); tail = e.lines[k + 1:]; del e.lines[k:]
        e('L_early:')
        if OPT['lay'] == 2: idg(e)
        compute_early(e)
        if OPT['lay'] == 1:
            compute_common(e)
            e('s_branch L_compute')
        e.lines += tail
        e('L_compute:')
        if OPT['lay'] == 2: compute_common(e)
    else:
        e(f's_cmp_lt_u32 s{sW}, 4\ns_cbranch_scc1 L_helper')
        compute_early(e)
        e('L_helper:')
        helper(e)
        e('L_compute:')
        compute_common(e)
    e(f's_cmp_eq_u32 s{sF}, 0\ns_cbranch_scc1 L_compute_A')
    compute_p1(e, 1)
    e('s_branch L_p2')
    e('L_compute_A:')
    compute_p1(e, 0)
    e('L_p2:')
    compute_p2(e)
    e.lines += COLD
    e('L_end:\ns_endpgm\nL_code_end:')
    lines, n = hazard_pass_fast(e.lines)
    if OPT['al']: lines, nw, npad = align_pass(lines, NAME + '_kernel', 3, OPT['al'] - 1)
    lines2, n2 = hazard_pass(lines); assert n2 == 0
    hdr = open('cdna_kernels/%s.s.ref' % NAME).read().split('; Override launch')[0]
    out = hdr + f'; @launch grid=(256,1,1) block=(512,1,1) lds={LDS_BYTES}\n'
    out += ''.join('; ' + l + '\n' for l in __doc__.split('\n')[2:])
    out += f'.amdgcn_target "amdgcn-amd-amdhsa--gfx950"\n.text\n.globl {NAME}_kernel\n.p2align 8\n.type {NAME}_kernel,@function\n{NAME}_kernel:\n'
    out += '\n'.join(lines) + '\n'
    out += f'''.section .rodata,"a"
.p2align 6
.amdhsa_kernel {NAME}_kernel
  .amdhsa_next_free_vgpr 256
  .amdhsa_next_free_sgpr 102
  .amdhsa_accum_offset 256
  .amdhsa_group_segment_fixed_size 0
  .amdhsa_kernarg_size 80
  .amdhsa_user_sgpr_count 2
  .amdhsa_user_sgpr_kernarg_segment_ptr 1
  .amdhsa_system_sgpr_workgroup_id_x 1
  .amdhsa_float_denorm_mode_32 3
.end_amdhsa_kernel
'''
    open(sys.argv[1], 'w').write(out)
    print('wrote', sys.argv[1], len(lines), 'lines,', n, 'hazard pads')

main()
```
